```python
import torch

def _softmax(x, axis=-1):
    return torch.softmax(x, dim=axis)
def _gelu(x):
    return torch.nn.functional.gelu(x, approximate="tanh")
def _silu(x):
    return torch.nn.functional.silu(x)
def _sigmoid(x):
    return torch.sigmoid(x)
def _layernorm(x, axis=-1, eps=1e-5):
    m = x.mean(dim=axis, keepdim=True)
    v = x.var(dim=axis, keepdim=True, unbiased=False)
    return (x - m) / torch.sqrt(v + eps)
def _scatter_add(tgt, idx, src, axis=0):
    return tgt.clone().index_add_(axis, idx, src)
def _segment_sum(src, seg, n):
    out = torch.zeros((n,) + src.shape[1:], dtype=src.dtype)
    return out.index_add_(0, seg, src)
def _pad(x, pw):
    flat = tuple(v for pair in reversed(pw) for v in pair)
    return torch.nn.functional.pad(x, flat)

kernel_name = 'gated_mix__grouped_kv_mqa__dense_activation_squared_relu__prompt'

def setup_inputs():

    _w = (lambda a: (lambda t: t.to(torch.bfloat16) if t.is_floating_point() else t)(torch.as_tensor(a)))
    def _A_setup():
        B, S, D, H = 1, 2048, 512, 32
        Dh = D // H
        return {
            "x": _w((lambda *s: torch.randn(*s, dtype=torch.bfloat16) * 0.05)(B, S, D)),
            "wq": _w((lambda *s: torch.randn(*s, dtype=torch.bfloat16) * 0.8)(D, H * Dh)),
            "wk": _w((lambda *s: torch.randn(*s, dtype=torch.bfloat16) * 0.8)(D, Dh)),
            "wv": _w((lambda *s: torch.randn(*s, dtype=torch.bfloat16) * 0.2)(D, Dh)),
            "wo": _w((lambda *s: torch.randn(*s, dtype=torch.bfloat16) * 0.2)(H * Dh, D)),
        }
    _A_in = _A_setup()

    def _B_setup():
        B, S, D, F = 1, 2048, 512, 1792
        return {
            "x": _w((lambda *s: torch.randn(*s, dtype=torch.bfloat16) * 0.05)(B, S, D)),
            "w1": _w((lambda *s: torch.randn(*s, dtype=torch.bfloat16) * 0.05)(D, F)),
            "b1": _w((lambda *s: torch.randn(*s, dtype=torch.bfloat16) * 0.05)(F)),
            "w2": _w((lambda *s: torch.randn(*s, dtype=torch.bfloat16) * 0.05)(F, D)),
            "b2": _w((lambda *s: torch.randn(*s, dtype=torch.bfloat16) * 0.05)(D)),
        }
    _B_in = _B_setup()

    return {
        "A_x": _A_in["x"],
        "A_wq": _A_in["wq"],
        "A_wk": _A_in["wk"],
        "A_wv": _A_in["wv"],
        "A_wo": _A_in["wo"],
        "B_x": _B_in["x"],
        "B_w1": _B_in["w1"],
        "B_b1": _B_in["b1"],
        "B_w2": _B_in["w2"],
        "B_b2": _B_in["b2"],
        "gate_w": _w((lambda *s: torch.randn(*s, dtype=torch.bfloat16) * 0.05)(512) * 16.0),
    }

def reference(A_x, A_wq, A_wk, A_wv, A_wo, B_x, B_w1, B_b1, B_w2, B_b2, gate_w):
    def _A_ref(x, wq, wk, wv, wo):
        B, S, D = x.shape
        H = 32
        Dh = D // H
        q = (lambda x, *d: x.permute(*d))((x @ wq).reshape(B, S, H, Dh), 0, 2, 1, 3)
        k = x @ wk
        v = x @ wv
        scores = torch.einsum("bhqd,bkd->bhqk", q, k) * (Dh ** -0.5)
        p = _softmax(scores, axis=-1)
        o = torch.einsum("bhqk,bkd->bhqd", p, v)
        return (lambda x, *d: x.permute(*d))(o, 0, 2, 1, 3).reshape(B, S, H * Dh) @ wo

    def _B_ref(x, w1, b1, w2, b2):
        h = torch.einsum("bsd,df->bsf", x, w1) + b1
        zero = torch.zeros_like(h)
        r = torch.where(h > zero, h, zero)
        h = r * r
        out = torch.einsum("bsf,fd->bsd", h, w2) + b2
        return out

    x = A_x
    g = _sigmoid((x * gate_w).sum(-1, keepdims=True))
    a = _A_ref(x, A_wq, A_wk, A_wv, A_wo)
    b = _B_ref(x, B_w1, B_b1, B_w2, B_b2)
    return g * a + (1 - g) * b
```

```python
import re

TRANS = ("v_exp_f32", "v_log_f32", "v_rcp_f32", "v_rsq_f32", "v_sqrt_f32", "v_sin_f32", "v_cos_f32")

def regs(tok, p):
    tok = tok.strip()
    tok = tok.lstrip("-")
    m = re.fullmatch(r"abs\((.*)\)", tok)
    if m: tok = m.group(1)
    m = re.fullmatch(r"\|(.*)\|", tok)
    if m: tok = m.group(1)
    m = re.fullmatch(p + r"(\d+)", tok)
    if m: return {int(m.group(1))}
    m = re.fullmatch(p + r"\[(\d+):(\d+)\]", tok)
    if m: return set(range(int(m.group(1)), int(m.group(2)) + 1))
    return set()

def vset(tok):
    return regs(tok, "v") | {1000 + x for x in regs(tok, "a")}
def sset(tok):
    t = tok.strip()
    if t == "vcc": return {"vcc"}
    if t in ("vcc_lo", "vcc_hi"): return {"vcc"}
    if t == "exec" or t in ("exec_lo", "exec_hi"): return {"exec"}
    if t == "m0": return {"m0"}
    return regs(t, "s")

class Ins:
    def __init__(self, text):
        self.text = text
        t = text.split(";")[0].strip()
        self.label = None; self.op = None
        self.kind = "other"
        self.vw = set(); self.vr = set(); self.sw = set(); self.sr = set()
        self.A = set(); self.B = set(); self.C = set(); self.passes = 0
        self.states = 1
        self.target = None
        self.wide_store = set()
        if not t or t.startswith("."):
            self.kind = "dir"; self.states = 0; return
        if t.endswith(":"):
            self.label = t[:-1]; self.kind = "label"; self.states = 0; return
        parts = t.split(None, 1)
        op = self.op = parts[0]
        rest = parts[1] if len(parts) > 1 else ""
        ops = []; cur = ""; d = 0
        for ch in rest:
            if ch == "[": d += 1
            if ch == "]": d -= 1
            if ch == "," and d == 0: ops.append(cur.strip()); cur = ""
            else: cur += ch
        if cur.strip(): ops.append(cur.strip())
        mods = ""
        if ops:
            last = ops[-1].split(None, 1)
            ops[-1] = last[0]
            mods = last[1] if len(last) > 1 else ""
        self.ops = ops; self.mods = mods
        if op == "s_nop":
            self.kind = "nop"; self.states = int(ops[0], 0) + 1
        elif op.startswith("v_mfma"):
            self.kind = "mfma"
            self.vw = vset(ops[0]); self.A = vset(ops[1]); self.B = vset(ops[2]); self.C = vset(ops[3])
            self.vr = self.A | self.B | self.C
            self.passes = 8 if "32x32x16" in op else 4 if "16x16x32" in op else None
            assert self.passes
        elif op.startswith("v_"):
            self.kind = "valu"
            base = op.replace("_e32", "").replace("_e64", "").replace("_dpp", "").replace("_sdwa", "")
            self.base = base
            if base.startswith("v_cmp"):
                self.sw = sset(ops[0]); srcs = ops[1:]
                if base.startswith("v_cmpx"): self.sw |= {"exec"}
            elif base in ("v_readfirstlane_b32", "v_readlane_b32"):
                self.sw = sset(ops[0]); srcs = ops[1:]
            elif base.startswith("v_permlane") and "swap" in base:
                self.vw = vset(ops[0]) | vset(ops[1]); srcs = ops
            elif base in ("v_add_co_u32", "v_sub_co_u32", "v_addc_co_u32", "v_subb_co_u32"):
                self.vw = vset(ops[0]); self.sw = sset(ops[1]); srcs = ops[2:]
            else:
                self.vw = vset(ops[0]); srcs = ops[1:]
                if base in ("v_fmac_f32", "v_dot2c_f32_bf16", "v_writelane_b32") or "dpp" in op or "dpp" in mods or "row_" in mods or "quad_perm" in mods:
                    srcs = ops
            for s in srcs:
                self.vr |= vset(s); self.sr |= sset(s)
            if base == "v_cndmask_b32" and len(ops) == 3: self.sr |= {"vcc"}
            self.trans = base in TRANS
            self.dpp = ("dpp" in op) or ("row_" in mods) or ("quad_perm" in mods)
            self.dot = base.startswith("v_dot")
        elif op.startswith("buffer_") or op.startswith("global_"):
            self.kind = "vmem"
            lds = re.search(r"\blds\b", mods) is not None or "load_lds" in op
            self.lds = lds
            if op in ("buffer_inv", "buffer_wbl2"):
                pass
            elif "load" in op and not lds:
                self.vw = vset(ops[0])
                if "d16" in op: self.vr |= vset(ops[0])
                for s in ops[1:]: self.vr |= vset(s); self.sr |= sset(s)
            elif "atomic" in op and "sc0" in mods.split():
                self.vw = vset(ops[0])
                for s in ops: self.vr |= vset(s); self.sr |= sset(s)
            else:
                for s in ops: self.vr |= vset(s); self.sr |= sset(s)
                if ("store" in op) and ("x3" in op or "x4" in op):
                    self.wide_store = vset(ops[0]) if op.startswith("buffer_") else vset(ops[1])
            if lds: self.sr |= {"m0"}
        elif op.startswith("ds_"):
            self.kind = "ds"
            if "read" in op or "permute" in op or "swizzle" in op or "_rtn" in op:
                self.vw = vset(ops[0])
                for s in ops[1:]: self.vr |= vset(s)
            else:
                for s in ops: self.vr |= vset(s)
        elif op.startswith("s_"):
            self.kind = "salu"
            if op.startswith("s_cbranch") or op == "s_branch":
                self.kind = "branch"; self.target = ops[0]
            elif op.startswith("s_cmp") or op.startswith("s_bitcmp"):
                for s in ops: self.sr |= sset(s)
            elif op in ("s_waitcnt", "s_barrier", "s_endpgm", "s_setprio", "s_sleep"):
                pass
            else:
                if ops:
                    self.sw = sset(ops[0])
                    for s in ops[1:]: self.sr |= sset(s)
                if "saveexec" in op: self.sw |= {"exec"}

def need(prev, cur):
    n = 0
    pk, ck = prev.kind, cur.kind
    if pk == "valu":
        if ck == "mfma" and prev.vw & cur.vr: n = max(n, 3 if prev.dot else 2)
        if ck == "mfma" and "exec" in prev.sw: n = max(n, 4)
        if ck == "valu":
            if prev.trans and not cur.trans and prev.vw & cur.vr: n = max(n, 1)
            if cur.dpp and prev.vw & cur.vr: n = max(n, 2)
            if cur.dpp and "exec" in prev.sw: n = max(n, 5)
            if cur.base.startswith("v_permlane") and prev.vw & cur.vr: n = max(n, 2)
            if cur.base.startswith("v_permlane") and "exec" in prev.sw: n = max(n, 4)
            if cur.base in ("v_readfirstlane_b32", "v_readlane_b32") and prev.vw & cur.vr: n = max(n, 1)
            if cur.base in ("v_readfirstlane_b32", "v_readlane_b32", "v_writelane_b32") and "exec" in prev.sw: n = max(n, 4)
            if prev.sw & cur.sr:
                n = max(n, 4 if cur.base in ("v_readlane_b32", "v_writelane_b32") else 2)
            if prev.dot and prev.vw & (cur.vr | cur.vw):
                if cur.base == prev.base:
                    srcAB = set()
                    o = cur.ops
                    for s in o[1:3]: srcAB |= vset(s)
                    if prev.vw & srcAB: n = max(n, 3)
                else: n = max(n, 3)
        if ck == "vmem" and prev.sw & cur.sr: n = max(n, 5)
        if ck in ("vmem", "ds") and prev.dot and prev.vw & cur.vr: n = max(n, 3)
        if ck in ("salu", "branch") and prev.sw & cur.sr: n = max(n, 1)
    if pk == "mfma":
        P = prev.passes
        big = {4: 8, 8: 12}[P]
        if ck == "mfma":
            if prev.vw & (cur.A | cur.B): n = max(n, big)
            if prev.vw & cur.C and not (prev.vw == cur.C and cur.passes == P): n = max(n, {4: 6, 8: 10}[P])
            if prev.vw & cur.vw and not (prev.vw & cur.C) : n = max(n, {4: 6, 8: 10}[P] if prev.vw != cur.vw else 0)
        elif ck in ("valu", "vmem", "ds"):
            if prev.vw & (cur.vr | cur.vw): n = max(n, big)
            if ck == "valu" and prev.C & cur.vw: n = max(n, {4: 3, 8: 7}[P])
    if pk == "vmem" and prev.wide_store and prev.wide_store & cur.vw:
        n = max(n, 2 if ck in ("valu", "mfma") else 1)
    if pk == "salu" and "m0" in prev.sw and ck == "vmem" and getattr(cur, "lds", False): n = max(n, 1)
    return n

MAXW = 20
class Asm:
    def __init__(self):
        self.ins = []
        self.vm = []
        self.lg = []
        self.uid = 0
        self.nops = []
    def raw(self, text):
        for line in text.split("\n"):
            if line.strip(): self.ins.append(Ins(line))
    def i(self, text, tag=None):
        x = Ins("    " + text.strip()); self.ins.append(x)
        if x.kind == "vmem": self.vm.append(tag)
        if x.kind == "ds": self.lg.append(tag)
        return x
    def c(self, text): self.ins.append(Ins("    ; " + text))
    def label(self, name): self.ins.append(Ins(name + ":"))
    def newlabel(self, base):
        self.uid += 1; return f"L_{base}_{self.uid}"
    def _cnt(self, q, tags):
        if not isinstance(tags, (list, tuple, set)) or (isinstance(tags, tuple)): tags = [tags]
        idx = -1
        for t in tags:
            for k in range(len(q) - 1, -1, -1):
                if q[k] == t: idx = max(idx, k); break
        return idx
    def wait(self, vm=None, lg=None, force=False):
        parts = []
        if vm is not None:
            k = len(self.vm) - 1 if vm == "all" else self._cnt(self.vm, vm)
            if k >= 0:
                n = len(self.vm) - 1 - k
                n = min(n, 62)
                self.vm = self.vm[len(self.vm) - n:] if n else []
                parts.append(f"vmcnt({n})")
        if lg is not None:
            k = len(self.lg) - 1 if lg == "all" else self._cnt(self.lg, lg)
            if k >= 0:
                n = len(self.lg) - 1 - k
                n = min(n, 14)
                self.lg = self.lg[len(self.lg) - n:] if n else []
                parts.append(f"lgkmcnt({n})")
        if parts: self.i("s_waitcnt " + " ".join(parts))
    def waitall(self):
        self.vm = []; self.lg = []
        self.i("s_waitcnt vmcnt(0) lgkmcnt(0)")
    def _req(self, hist, cur):
        dist = 0; req = 0
        for p in reversed(hist):
            if p.states == 0: continue
            nd = need(p, cur)
            if nd - dist > req: req = nd - dist
            dist += p.states
            if dist >= MAXW: break
        return req
    def finish(self, verbose=True):
        out = []
        sec = "?"
        for x in self.ins:
            if x.kind == "label": sec = x.label
            if x.states and x.kind != "nop":
                hist = []
                for p in reversed(out):
                    if p.op in ("s_branch", "s_endpgm", "s_setpc_b64"): break
                    hist.append(p)
                    if len(hist) > 60: break
                hist.reverse()
                r = self._req(hist, x)
                if r > 0:
                    self.nops.append((sec, r, x.text.strip()))
                    while r > 0:
                        k = min(r, 16); out.append(Ins(f"    s_nop {k-1}")); r -= k
            out.append(x)
        pos = {x.label: i for i, x in enumerate(out) if x.kind == "label"}
        errs = []
        for i, x in enumerate(out):
            if x.kind == "branch" and x.target in pos:
                hist = []
                for p in reversed(out[:i+1]):
                    if p is not x and p.op in ("s_branch", "s_endpgm"): break
                    hist.append(p)
                    if len(hist) > 60: break
                hist.reverse()
                j = pos[x.target]; n = 0
                while j < len(out) and n < MAXW:
                    y = out[j]
                    if y.states:
                        if y.kind != "nop" and self._req(hist, y) > 0:
                            errs.append((x.text.strip(), y.text.strip(), self._req(hist, y)))
                        hist.append(y); n += y.states
                        if y.op in ("s_branch", "s_endpgm"): break
                    j += 1
        if errs:
            for e in errs: print("HAZARD over branch:", e)
            raise SystemExit("hazard over branch edge")
        if verbose and self.nops:
            for s in self.nops:
                if not s[2].endswith(" lds"): print("  nop inserted:", s)
        self.ins = out
        return "\n".join(x.text for x in out) + "\n"

def v(a, n=1): return f"v{a}" if n == 1 else f"v[{a}:{a+n-1}]"
def s(a, n=1): return f"s{a}" if n == 1 else f"s[{a}:{a+n-1}]"
```

```python
import sys, math
from asmgen import *

NAME = "gated_mix__grouped_kv_mqa__dense_activation_squared_relu__prompt"
WS_KV = 0
WS_G  = 0x20000
WS_Q  = 0x40000
WS_O  = 0x240000
WS_H  = 0x440000
WS_END = WS_H + 32*112*2048
WS_SIZE = 0x10000000
L_X, L_WQ, L_WKV, L_QF, L_G = 0, 65536, 131072, 147456, 155648
L_RING = 65536; RING_W = 20480; RD = 10
LDS_BYTES = 163840
QSCALE = 0.25 * math.log2(math.e)
import struct
def f2u(x): return struct.unpack("<I", struct.pack("<f", x))[0]

S_W, S_G, S_MU = 3, 4, 5
P = dict(x=16, wq=18, wk=20, wv=22, wo=24, bx=26, w1=28, b1=30, w2=32, b2=34, gate=36, out=38, dbg=40, ws=42)
SZ = dict(x=2048*1024, wq=512*1024, wk=16384, wv=16384, wo=512*1024, w1=512*3584, b1=3584, w2=1792*1024, b2=1024, gate=1024, out=2048*1024, dbg=256, ws=WS_END)
BIG = 0x40000000

def srd(a, d, name):
    a.i(f"s_mov_b32 s{d}, s{P[name]}")
    a.i(f"s_mov_b32 s{d+1}, s{P[name]+1}")
    a.i(f"s_mov_b32 s{d+2}, {SZ[name]:#x}")
    a.i(f"s_mov_b32 s{d+3}, 0x20000")

def entry(a, end):
    a.i("s_cmp_ge_u32 s2, 256")
    a.i(f"s_cbranch_scc1 {end}")
    a.i("s_load_dwordx16 s[16:31], s[0:1], 0")
    a.i("s_load_dwordx8 s[32:39], s[0:1], 64")
    a.i("s_load_dwordx4 s[40:43], s[0:1], 96")
    a.i("v_lshrrev_b32 v1, 6, v0")
    a.i("v_and_b32 v0, 63, v0")
    a.i(f"v_readfirstlane_b32 s{S_W}, v1")
    a.i("s_and_b32 s6, s2, 7")
    a.i("s_lshr_b32 s7, s2, 3")
    a.i(f"s_and_b32 s{S_MU}, s7, 7")
    a.i("s_lshr_b32 s7, s7, 3")
    a.i("s_lshl_b32 s6, s6, 2")
    a.i(f"s_add_u32 s{S_G}, s6, s7")

def mfma(a, d, A, B, C=None):
    c = v(d, 16) if C is None else C
    a.i(f"v_mfma_f32_32x32x16_bf16 {v(d,16)}, {v(A,4)}, {v(B,4)}, {c}")

def tr_addr(a, dst, t0, t1, rowmul_h, pitch_sh, use_half):
    a.i(f"v_lshrrev_b32 v{t0}, 5, v0")
    a.i(f"v_mul_u32_u24 v{t0}, {rowmul_h}, v{t0}")
    a.i(f"v_bfe_u32 v{t1}, v0, 2, 2")
    a.i(f"v_add_u32 v{t0}, v{t0}, v{t1}")
    a.i(f"v_lshlrev_b32 v{dst}, {pitch_sh}, v{t0}")
    a.i(f"v_and_b32 v{t1}, 3, v0")
    a.i(f"v_lshl_add_u32 v{dst}, v{t1}, 3, v{dst}")
    if use_half:
        a.i(f"v_bfe_u32 v{t1}, v0, 4, 1")
        a.i(f"v_lshl_add_u32 v{dst}, v{t1}, 5, v{dst}")

def xfrag_addr(a, dst, t0, t1):
    a.i(f"v_bfe_u32 v{t0}, v0, 1, 3")
    a.i(f"v_lshrrev_b32 v{t1}, 5, v0")
    a.i(f"v_xor_b32 v{t0}, v{t0}, v{t1}")
    a.i(f"v_and_b32 v{t1}, 31, v0")
    a.i(f"v_lshlrev_b32 v{t1}, 7, v{t1}")
    for q in range(4):
        a.i(f"v_xor_b32 v{dst+q}, {2*q}, v{t0}")
        a.i(f"v_lshl_add_u32 v{dst+q}, v{dst+q}, 4, v{t1}")

def wchunk_addr(a, dst, t0, pitch):
    a.i(f"v_lshrrev_b32 v{t0}, 2, v0")
    a.i(f"v_mul_u32_u24 v{dst}, {pitch}, v{t0}")
    a.i(f"v_and_b32 v{t0}, 3, v0")
    a.i(f"v_lshl_add_u32 v{dst}, v{t0}, 4, v{dst}")

def bias_frags(a, ONE, t0):
    a.i(f"v_mov_b32 v{t0}, 0x3f80")
    a.i("v_cmp_gt_u32 vcc, 32, v0")
    a.i(f"v_mov_b32 v{ONE+1}, 0")
    a.i(f"v_mov_b32 v{ONE+2}, 0")
    a.i(f"v_mov_b32 v{ONE+3}, 0")
    a.i(f"v_cndmask_b32 v{ONE}, 0, v{t0}, vcc")

def front():
    a = Asm()
    END = "L_front_end"
    entry(a, END)
    SX, SWQ, SWKV, SW1, SB1, SGT, SWS = 44, 48, 52, 56, 60, 64, 68
    VXS, VGS, VW1K, VLIN, VW35 = 2, 3, 4, 5, 6
    VXR, VTR, VTRK = 8, 12, 13
    a.i("v_lshrrev_b32 v14, 3, v0")
    a.i(f"s_lshl_b32 s6, s{S_W}, 3")
    a.i("v_add_u32 v14, s6, v14")
    a.i("v_bfe_u32 v15, v14, 1, 3")
    a.i("v_and_b32 v16, 7, v0")
    a.i("v_xor_b32 v15, v15, v16")
    a.i(f"v_lshlrev_b32 v{VGS}, 4, v15")
    a.i(f"s_lshl_b32 s6, s{S_G}, 6")
    a.i("v_add_u32 v14, s6, v14")
    a.i(f"v_lshl_add_u32 v{VXS}, v14, 10, v{VGS}")
    wchunk_addr(a, VW1K, 14, 1024)
    a.i(f"v_lshlrev_b32 v{VLIN}, 4, v0")
    a.i("s_waitcnt lgkmcnt(0)")
    srd(a, SX, "x")
    a.i(f"s_lshl_b32 s8, s{S_W}, 10")
    for kb in range(8):
        a.i(f"s_add_u32 m0, s8, {L_X + kb*8192 - kb*128}")
        a.i(f"buffer_load_dwordx4 v{VXS}, s[{SX}:{SX+3}], 0 offen offset:{kb*128} lds", tag="x")
    a.i(f"s_cmp_ge_u32 s{S_MU}, 2")
    a.i(f"s_cselect_b32 s{SWKV}, s{P['wv']}, s{P['wk']}")
    a.i(f"s_cselect_b32 s{SWKV+1}, s{P['wv']+1}, s{P['wk']+1}")
    a.i(f"s_mov_b32 s{SWKV+2}, 16384")
    a.i(f"s_mov_b32 s{SWKV+3}, 0x20000")
    a.i(f"s_lshl_b32 s9, s{S_W}, 11")
    a.i(f"s_cmp_ge_u32 s{S_MU}, 4")
    skip = a.newlabel("nokv")
    a.i(f"s_cbranch_scc1 {skip}")
    for j in range(2):
        a.i(f"s_add_u32 m0, s9, {L_WKV}")
        a.i(f"buffer_load_dwordx4 v{VLIN}, s[{SWKV}:{SWKV+3}], s9 offen offset:{j*1024} lds")
    a.vm = a.vm[:-2]
    a.label(skip)
    srd(a, SWQ, "wq")
    a.i(f"s_lshl_b32 s9, s{S_W}, 16")
    a.i(f"s_lshl_b32 s10, s{S_MU}, 7")
    a.i("s_add_u32 s9, s9, s10")
    a.i(f"s_lshl_b32 s8, s{S_W}, 13")
    for sl in range(4):
        for p in range(2):
            a.i(f"s_add_u32 m0, s8, {L_WQ + (2*sl+p)*1024 - 64*p}")
            a.i(f"buffer_load_dwordx4 v{VW1K}, s[{SWQ}:{SWQ+3}], s9 offen offset:{64*p} lds", tag="wq")
        if sl < 3: a.i("s_add_u32 s9, s9, 16384")
    srd(a, SWS, "ws")
    xfrag_addr(a, VXR, 14, 15)
    tr_addr(a, VTR, 14, 15, 8, 6, True)
    a.i(f"s_cmp_ge_u32 s{S_W}, 4")
    a.i("s_cbranch_scc1 L_front_G")
    vm_at_split = list(a.vm)
    a.i(f"s_and_b32 s6, s{S_W}, 1")
    a.i(f"s_lshr_b32 s7, s{S_W}, 1")
    a.i("s_lshl_b32 s8, s6, 10")
    a.i(f"s_add_u32 s8, s8, {L_WQ}")
    a.i(f"v_add_u32 v{VTR}, s8, v{VTR}")
    a.i("s_lshl_b32 s8, s7, 12")
    for q in range(4): a.i(f"v_add_u32 v{VXR+q}, s8, v{VXR+q}")
    a.wait(vm="all")
    a.i("s_barrier")
    def chain(a, ACC, FR, wread, orient):
        NB = 4
        def rd(sx):
            b = FR + 8*(sx % NB)
            wread(sx, b)
            a.i(f"ds_read_b128 {v(b+4,4)}, v{VXR + (sx&3)} offset:{(sx>>2)*8192}", tag=("c", sx))
        for sx in range(NB-1): rd(sx)
        for sx in range(32):
            if sx + NB - 1 < 32: rd(sx + NB - 1)
            a.wait(lg=("c", sx))
            b = FR + 8*(sx % NB)
            A_, B_ = (b, b+4) if orient == 0 else (b+4, b)
            mfma(a, ACC, A_, B_, "0" if sx == 0 else None)
    def wq_read(sx, b):
        a.i(f"ds_read_b64_tr_b16 {v(b,2)}, v{VTR} offset:{sx*2048}")
        a.i(f"ds_read_b64_tr_b16 {v(b+2,2)}, v{VTR} offset:{sx*2048+256}")
    chain(a, 64, 32, wq_read, 0)
    a.i(f"s_lshl_b32 s8, s{S_G}, 3")
    a.i(f"s_add_u32 s8, s8, s{S_MU}")
    a.i("s_lshl_b32 s8, s8, 3")
    a.i("s_lshl_b32 s9, s6, 2")
    a.i("s_add_u32 s8, s8, s9")
    a.i("s_add_u32 s8, s8, s7")
    a.i("s_lshl_b32 s8, s8, 10")
    a.i(f"s_add_u32 s8, s8, {WS_Q}")
    a.i(f"s_mov_b32 s10, {f2u(QSCALE):#x}")
    for r in range(16): a.i(f"v_mul_f32 v{64+r}, s10, v{64+r}")
    for j in range(8): a.i(f"v_cvt_pk_bf16_f32 v{32+j}, v{64+2*j}, v{65+2*j}")
    for e in range(2):
        a.i(f"buffer_store_dwordx4 {v(32+4*e,4)}, v{VLIN}, s[{SWS}:{SWS+3}], s8 offen offset:{2048*e}")
    a.i("s_barrier")
    a.i("s_endpgm")
    a.label("L_front_G")
    a.vm = vm_at_split; a.lg = []
    GW = 6
    a.i(f"s_sub_u32 s{GW}, s{S_W}, 4")
    srd(a, SW1, "w1"); srd(a, SB1, "b1"); srd(a, SGT, "gate")
    GF = 128
    for kb in range(8):
        a.i(f"buffer_load_dwordx4 {v(GF+4*kb,4)}, v{VGS}, s[{SGT}:{SGT+3}], 0 offen offset:{kb*128}", tag="gate")
    BA, ONE = 160, 168
    a.i(f"s_mul_i32 s12, s{S_MU}, 448")
    a.i(f"s_lshl_b32 s9, s{GW}, 7")
    a.i("s_add_u32 s12, s12, s9")
    a.i("s_add_u32 s13, s12, 64")
    a.i(f"s_cmp_eq_u32 s{GW}, 3")
    a.i(f"s_cselect_b32 s13, {BIG:#x}, s13")
    a.i("v_lshlrev_b32 v14, 1, v0")
    a.i("v_cmp_gt_u32 vcc, 32, v0")
    a.i(f"v_mov_b32 v15, {BIG:#x}")
    a.i("v_cndmask_b32 v14, v15, v14, vcc")
    for p in range(2):
        a.i(f"buffer_load_ushort v{BA+4*p}, v14, s[{SB1}:{SB1+3}], s{12+p} offen", tag="b1")
        for r in range(1, 4): a.i(f"v_mov_b32 v{BA+4*p+r}, 0")
    bias_frags(a, ONE, 15)
    wchunk_addr(a, VW35, 14, 3584)
    tr_addr(a, VTRK, 14, 15, 8, 5, False)
    a.i(f"v_add_u32 v{VTRK}, {L_WKV}, v{VTRK}")
    a.wait(vm="wq")
    a.i("s_barrier")
    a.i(f"s_cmp_lg_u32 s{GW}, 0")
    a.i("s_cbranch_scc1 L_front_nokv")
    a.i(f"s_cmp_ge_u32 s{S_MU}, 4")
    a.i("s_cbranch_scc1 L_front_b2")
    vm_save = list(a.vm)
    a.i("s_setprio 2")
    a.i(f"s_and_b32 s7, s{S_MU}, 1")
    a.i("s_lshl_b32 s8, s7, 12")
    XR2 = 16
    for q in range(4): a.i(f"v_add_u32 v{XR2+q}, s8, v{VXR+q}")
    a.i(f"s_lshl_b32 s8, s{S_G}, 1")
    a.i("s_add_u32 s8, s8, s7")
    a.i("s_lshl_b32 s8, s8, 11")
    a.i(f"s_add_u32 s8, s8, {WS_KV}")
    def wk_read(sx, b):
        a.i(f"ds_read_b64_tr_b16 {v(b,2)}, v{VTRK} offset:{sx*512}")
        a.i(f"ds_read_b64_tr_b16 {v(b+2,2)}, v{VTRK} offset:{sx*512+128}")
    VXR_save = VXR
    a.i(f"s_cmp_ge_u32 s{S_MU}, 2")
    a.i("s_cbranch_scc1 L_front_V")
    VXR = XR2
    chain(a, 64, 32, wk_read, 0)
    for j in range(4): a.i(f"v_cvt_pk_bf16_f32 v{32+j}, v{64+2*j}, v{65+2*j}")
    a.i(f"buffer_store_dwordx4 {v(32,4)}, v{VLIN}, s[{SWS}:{SWS+3}], s8 offen")
    a.i("s_setprio 0")
    a.i("s_branch L_front_b2")
    a.label("L_front_V")
    chain(a, 64, 32, wk_read, 1)
    VXR = VXR_save
    a.i("v_and_b32 v14, 16, v0")
    a.i("v_cmp_ne_u32 vcc, 0, v14")
    a.i("v_lshlrev_b32 v14, 5, v14")
    a.i("v_and_b32 v15, 15, v0")
    a.i("v_lshl_add_u32 v14, v15, 4, v14")
    a.i("v_lshrrev_b32 v15, 5, v0")
    a.i("v_lshl_add_u32 v14, v15, 8, v14")
    for j in range(8): a.i(f"v_cvt_pk_bf16_f32 v{32+j}, v{64+2*j}, v{65+2*j}")
    for j in range(4): a.i(f"v_cndmask_b32 v{32+j}, v{32+j}, v{36+j}, vcc")
    a.i(f"buffer_store_dwordx4 {v(32,4)}, v14, s[{SWS}:{SWS+3}], s8 offen offset:1024")
    a.i("s_setprio 0")
    a.i("s_branch L_front_b2")
    a.label("L_front_nokv")
    a.vm = list(vm_save); a.lg = []
    a.i(f"s_cmp_lt_u32 s{GW}, 2")
    a.i("s_cbranch_scc1 L_front_b2")
    a.i(f"s_and_b32 s7, s{GW}, 1")
    a.i("s_lshl_b32 s8, s7, 10")
    a.i(f"v_add_u32 v14, s8, v{VLIN}")
    XG, AC = 32, 20
    for i in range(4): a.i(f"v_mov_b32 v{AC+i}, 0")
    def grd(kb):
        for i in range(4):
            a.i(f"ds_read_b128 {v(XG + 16*(kb&1) + 4*i,4)}, v14 offset:{kb*8192 + i*2048}", tag=("g", kb))
    grd(0)
    a.wait(vm="gate")
    for kb in range(8):
        if kb < 7: grd(kb+1)
        a.wait(lg=("g", kb))
        for r in range(4):
            for i in range(4):
                a.i(f"v_dot2_f32_bf16 v{AC+i}, v{XG + 16*(kb&1) + 4*i + r}, v{GF+4*kb+r}, v{AC+i}")
    for mod in ("quad_perm:[1,0,3,2]", "quad_perm:[2,3,0,1]", "row_half_mirror"):
        for i in range(4):
            a.i(f"v_add_f32_dpp v{AC+i}, v{AC+i}, v{AC+i} {mod} row_mask:0xf bank_mask:0xf")
    a.i(f"s_mov_b32 s10, {f2u(-math.log2(math.e)):#x}")
    for i in range(4): a.i(f"v_mul_f32 v{AC+i}, s10, v{AC+i}")
    for i in range(4): a.i(f"v_exp_f32 v{AC+i}, v{AC+i}")
    for i in range(4): a.i(f"v_add_f32 v{AC+i}, 1.0, v{AC+i}")
    for i in range(4): a.i(f"v_rcp_f32 v{AC+i}, v{AC+i}")
    a.i("v_lshrrev_b32 v15, 3, v0")
    a.i("v_lshlrev_b32 v15, 2, v15")
    a.i(f"s_lshl_b32 s8, s{S_G}, 8")
    a.i("s_lshl_b32 s9, s7, 5")
    a.i("s_add_u32 s8, s8, s9")
    a.i(f"s_add_u32 s8, s8, {WS_G}")
    for i in range(4):
        a.i(f"buffer_store_dword v{AC+i}, v15, s[{SWS}:{SWS+3}], s8 offen offset:{64*i}")
    a.label("L_front_b2")
    a.i("s_waitcnt vmcnt(0) lgkmcnt(0)"); a.vm = []; a.lg = []
    a.i("s_barrier")
    ACC, WF, XF = 64, 32, 48
    a.i(f"s_mul_i32 s14, s{GW}, {RING_W}")
    a.i(f"s_add_u32 s14, s14, {L_RING}")
    a.i(f"v_add_u32 v{VTR}, s14, v{VTR}")
    def dma(sx):
        for p in range(2):
            a.i(f"s_add_u32 m0, s14, {(sx % RD)*2048 + p*1024}")
            a.i(f"buffer_load_dwordx4 v{VW35}, s[{SW1}:{SW1+3}], s{12+p} offen lds", tag=("w", sx))
            a.i(f"s_add_u32 s{12+p}, s{12+p}, {16*3584}")
    for sx in range(RD): dma(sx)
    for p in range(2):
        for rh in range(2): mfma(a, ACC + 32*p + 16*rh, BA + 4*p, ONE, "0")
    def rd(sx):
        a.wait(vm=("w", sx))
        b = sx & 1
        for p in range(2):
            o = (sx % RD)*2048 + p*1024
            a.i(f"ds_read_b64_tr_b16 {v(WF+8*b+4*p,2)}, v{VTR} offset:{o}")
            a.i(f"ds_read_b64_tr_b16 {v(WF+8*b+4*p+2,2)}, v{VTR} offset:{o+256}")
        for rh in range(2):
            a.i(f"ds_read_b128 {v(XF+8*b+4*rh,4)}, v{VXR+(sx&3)} offset:{(sx>>2)*8192 + rh*4096}", tag=("r", sx))
    rd(0)
    for sx in range(32):
        if sx < 31: rd(sx+1)
        a.wait(lg=("r", sx))
        b = sx & 1
        for p in range(2):
            for rh in range(2):
                mfma(a, ACC + 32*p + 16*rh, WF+8*b+4*p, XF+8*b+4*rh)
        if sx + RD < 32: dma(sx + RD)
    a.i(f"s_mul_i32 s8, s{S_G}, 112")
    a.i(f"s_mul_i32 s9, s{S_MU}, 14")
    a.i("s_add_u32 s8, s8, s9")
    a.i(f"s_lshl_b32 s9, s{GW}, 2")
    a.i("s_add_u32 s8, s8, s9")
    a.i("s_lshl_b32 s8, s8, 11")
    a.i(f"s_add_u32 s12, s8, {WS_H}")
    a.i("s_add_u32 s13, s12, 4096")
    a.i(f"s_cmp_eq_u32 s{GW}, 3")
    a.i(f"s_cselect_b32 s13, {BIG:#x}, s13")
    a.i("s_nop 7")
    for p in range(2):
        for rh in range(2):
            t = ACC + 32*p + 16*rh
            o = 128 + 8*(2*p+rh)
            for r in range(16): a.i(f"v_max_f32 v{t+r}, 0, v{t+r}")
            for r in range(0, 16, 2): a.i(f"v_pk_mul_f32 {v(t+r,2)}, {v(t+r,2)}, {v(t+r,2)}")
            for j in range(8): a.i(f"v_cvt_pk_bf16_f32 v{o+j}, v{t+2*j}, v{t+2*j+1}")
            for u in range(2):
                a.i(f"buffer_store_dwordx4 {v(o+4*u,4)}, v{VLIN}, s[{SWS}:{SWS+3}], s{12+p} offen offset:{u*2048 + rh*1024}")
    a.label(END)
    a.i("s_endpgm")
    return a.finish()

def attn_slot(a, i, Q, KV, S, Pq, O, cur, nxt, extra):
    Sc = S + 16*(i & 1); Sn = S + 16*((i+1) & 1)
    e = lambda r: a.i(f"v_exp_f32 v{Sc+r}, v{Sc+r}")
    c = lambda j: a.i(f"v_cvt_pk_bf16_f32 v{Pq+j}, v{Sc+2*j}, v{Sc+2*j+1}")
    def ex(k):
        for t in extra.get(k, []):
            t() if callable(t) else a.i(t)
    e(0); e(1)
    ip = (i - 1) % 8
    setp = cur if i > 0 else nxt
    mfma(a, O + 16*ip, KV + 12*setp + 8, Pq + 4)
    ex(0)
    for r in range(2, 7): e(r)
    inx = (i + 1) % 8
    setn = cur if i < 7 else nxt
    mfma(a, Sn, KV + 12*setn, Q + 4*inx, "0")
    ex(1)
    e(7)
    for j in range(4): c(j)
    e(8); e(9)
    mfma(a, O + 16*i, KV + 12*cur + 4, Pq)
    ex(2)
    for r in range(10, 16): e(r)
    for j in range(4, 8): c(j)

def attn():
    a = Asm()
    END = "L_attn_end"
    entry(a, END)
    SWS = 44
    VLIN, VV, VG = 2, 3, 4
    Q, KV, S, Pq, F, O = 8, 40, 64, 96, 104, 128
    a.i(f"v_lshlrev_b32 v{VLIN}, 4, v0")
    a.i("v_and_b32 v6, 15, v0")
    a.i("v_lshrrev_b32 v7, 5, v0")
    a.i("v_lshlrev_b32 v7, 8, v7")
    a.i(f"v_lshl_add_u32 v{VV}, v6, 4, v7")
    a.i("s_mov_b32 s48, 0xffff")
    a.i("s_mov_b32 s49, 0xffff")
    a.i("s_waitcnt lgkmcnt(0)")
    srd(a, SWS, "ws")
    a.i(f"s_lshl_b32 s50, s{S_W}, 15")
    a.i(f"s_add_u32 s50, s50, {WS_KV}")
    a.i(f"s_add_u32 s51, s50, {15*2048}")
    a.i("v_and_b32 v6, 16, v0")
    a.i("v_cmp_ne_u32 vcc, 0, v6")
    a.i("v_mov_b32 v7, 0x3f803f80")
    a.i("v_cndmask_b32 v7, 0, v7, vcc")
    for st in range(2):
        for r in range(4, 12): a.i(f"v_mov_b32 v{KV+12*st+r}, v7")
    def kvload(st):
        return [
            lambda: a.i(f"buffer_load_dwordx4 {v(KV+12*st,4)}, v{VLIN}, s[{SWS}:{SWS+3}], s50 offen", tag="kv"),
            "s_mov_b64 exec, s[48:49]",
            lambda: a.i(f"buffer_load_dwordx4 {v(KV+12*st+4,4)}, v{VV}, s[{SWS}:{SWS+3}], s50 offen offset:1024", tag="kv"),
            lambda: a.i(f"buffer_load_dwordx4 {v(KV+12*st+8,4)}, v{VV}, s[{SWS}:{SWS+3}], s50 offen offset:1536", tag="kv"),
            "s_mov_b64 exec, -1"]
    for t in kvload(0): t() if callable(t) else a.i(t)
    a.i(f"s_lshl_b32 s8, s{S_G}, 3")
    a.i(f"s_add_u32 s8, s8, s{S_MU}")
    a.i("s_lshl_b32 s8, s8, 13")
    a.i(f"s_add_u32 s8, s8, {WS_Q}")
    a.i("s_add_u32 s9, s8, 4096")
    for i in range(8):
        a.i(f"buffer_load_dwordx4 {v(Q+4*i,4)}, v{VLIN}, s[{SWS}:{SWS+3}], s{8 + (i>>2)} offen offset:{(i&3)*1024}", tag="q")
    a.i("v_and_b32 v6, 31, v0")
    a.i("v_lshlrev_b32 v6, 2, v6")
    a.i(f"s_lshl_b32 s8, s{S_G}, 8")
    a.i(f"s_add_u32 s8, s8, {WS_G}")
    for rh in range(2):
        a.i(f"buffer_load_dword v{VG+rh}, v6, s[{SWS}:{SWS+3}], s8 offen offset:{128*rh}", tag="g")
    for r in range(128): a.i(f"v_mov_b32 v{O+r}, 0")
    for r in range(4, 8): a.i(f"v_mov_b32 v{Pq+r}, 0")
    a.wait(vm="all")
    mfma(a, S, KV, Q, "0")
    a.i("s_mov_b32 s52, 8")
    a.i("s_nop 11")
    a.raw(".p2align 6")
    a.label("L_attn_loop")
    for half in range(2):
        cur, nxt = half, 1 - half
        ld = kvload(nxt)
        for i in range(8):
            extra = {}
            if i == 0:
                extra = {0: ["s_add_u32 s50, s50, 2048"], 1: ["s_min_u32 s50, s50, s51"], 2: [ld[0]]}
            if i == 1:
                extra = {0: ld[1:]}
            if i == 7:
                extra = {0: [lambda: a.wait(vm="all")]}
                if half == 1:
                    extra[1] = ["s_sub_u32 s52, s52, 1"]; extra[2] = ["s_cmp_lg_u32 s52, 0"]
            attn_slot(a, i, Q, KV, S, Pq, O, cur, nxt, extra)
    a.i("s_cbranch_scc1 L_attn_loop")
    a.i("s_nop 0")
    mfma(a, O + 16*7, KV + 12*1 + 8, Pq + 4)
    a.i("v_lshlrev_b32 v6, 2, v0")
    FQ = S
    for w in range(4):
        if w < 3:
            a.i(f"s_cmp_lg_u32 s{S_W}, {w}")
            a.i(f"s_cbranch_scc1 L_attn_x{w+1}")
        for i in list(range(8)):
            own = i >> 1
            if own == w: continue
            idx = w if w < own else w - 1
            o = (i*3 + idx)*2304
            a.i(f"ds_write_b128 v{VLIN}, {v(O+16*i,4)} offset:{o}")
            a.i(f"ds_write_b128 v{VLIN}, {v(O+16*i+4,4)} offset:{o+1024}")
            a.i(f"ds_write_b32 v6, v{O+16*i+8} offset:{o+2048}")
        a.i("s_waitcnt lgkmcnt(0)"); a.lg = []
        a.i("s_barrier")
        T = S
        land = [O + 16*((2*w + 2 + k) % 8) for k in range(6)]
        for rh in range(2):
            i = 2*w + rh
            for idx in range(3):
                o = (i*3 + idx)*2304; d = land[rh*3 + idx]
                a.i(f"ds_read_b128 {v(d,4)}, v{VLIN} offset:{o}")
                a.i(f"ds_read_b128 {v(d+4,4)}, v{VLIN} offset:{o+1024}")
                a.i(f"ds_read_b32 v{d+8}, v6 offset:{o+2048}", tag=("x", rh, idx))
        for rh in range(2):
            i = 2*w + rh
            for j in range(4): a.i(f"v_mov_b32 v{F+20+4*rh+j - 0}, v{Q+4*i+j}") if False else None
            a.wait(lg=("x", rh, 1))
            for r in range(9): a.i(f"v_add_f32 v{land[rh*3]+r}, v{land[rh*3]+r}, v{land[rh*3+1]+r}")
            a.wait(lg=("x", rh, 2))
            for r in range(9): a.i(f"v_add_f32 v{O+16*i+r}, v{O+16*i+r}, v{land[rh*3+2]+r}")
            for r in range(9): a.i(f"v_add_f32 v{F+10*rh+r}, v{O+16*i+r}, v{land[rh*3]+r}")
        for rh in range(2):
            i = 2*w + rh
            for j in range(4): a.i(f"v_mov_b32 v{Pq+4*rh+j}, v{Q+4*i+j}")
        if w < 3: a.i("s_branch L_attn_fin")
        if w < 3: a.label(f"L_attn_x{w+1}")
    a.label("L_attn_fin")
    a.i(f"s_lshl_b32 s8, s{S_G}, 5")
    a.i(f"s_lshl_b32 s9, s{S_MU}, 2")
    a.i("s_add_u32 s8, s8, s9")
    a.i(f"s_add_u32 s8, s8, s{S_W}")
    a.i("s_lshl_b32 s8, s8, 11")
    a.i(f"s_add_u32 s8, s8, {WS_O}")
    a.i(f"s_mov_b32 s10, {f2u(2.0**-30):#x}")
    a.i(f"s_mov_b32 s11, {f2u(2.0**100):#x}")
    a.i("s_mov_b32 s12, 0x7f800000")
    for rh in range(2):
        f = F + 10*rh
        a.i(f"v_add_f32 v6, abs(v{f}), abs(v{f+1})")
        for r in range(2, 8): a.i(f"v_add_f32 v6, v6, abs(v{f+r})")
        a.i(f"v_cmp_le_f32 s[54:55], s10, v{f+8}")
        a.i(f"v_cmp_ge_f32 s[56:57], s11, v{f+8}")
        a.i(f"v_cmp_gt_f32 vcc, s12, v6")
        a.i("s_and_b64 s[54:55], s[54:55], s[56:57]")
        a.i("s_and_b64 s[54:55], s[54:55], vcc")
        a.i("s_cmp_eq_u64 s[54:55], -1")
        a.i(f"s_cbranch_scc0 L_attn_slow{rh}")
        a.label(f"L_attn_ok{rh}")
        a.i(f"v_rcp_f32 v6, v{f+8}")
        a.i(f"v_mul_f32 v6, v6, v{VG+rh}")
        for r in range(8): a.i(f"v_mul_f32 v{f+r}, v6, v{f+r}")
        for j in range(4): a.i(f"v_cvt_pk_bf16_f32 v{S+4*rh+j}, v{f+2*j}, v{f+2*j+1}")
        a.i(f"buffer_store_dwordx4 {v(S+4*rh,4)}, v{VLIN}, s[{SWS}:{SWS+3}], s8 offen offset:{1024*rh}")
    a.label(END)
    a.i("s_endpgm")
    for rh in range(2):
        f = F + 10*rh; q = Pq + 4*rh
        SS, CC, OO, PP = O, O + 16, O + 32, O + 48
        a.label(f"L_attn_slow{rh}")
        a.i("s_nop 7")
        a.i(f"s_mov_b32 s50, {WS_KV}")
        a.i("v_mov_b32 v7, 0xff800000")
        a.label(f"L_attn_slow{rh}_a")
        a.i(f"buffer_load_dwordx4 {v(KV,4)}, v{VLIN}, s[{SWS}:{SWS+3}], s50 offen")
        a.i("s_waitcnt vmcnt(0)")
        mfma(a, SS, KV, q, "0")
        a.i("s_nop 15")
        for r in range(0, 16, 2): a.i(f"v_max3_f32 v7, v7, v{SS+r}, v{SS+r+1}")
        a.i("s_add_u32 s50, s50, 2048")
        a.i(f"s_cmp_lt_u32 s50, {WS_KV + 64*2048}")
        a.i(f"s_cbranch_scc1 L_attn_slow{rh}_a")
        a.i("v_mov_b32 v6, v7")
        a.i("s_nop 1")
        a.i("v_permlane32_swap_b32 v6, v7")
        a.i("v_max_f32 v7, v6, v7")
        for r in range(16):
            a.i(f"v_sub_f32 v{CC+r}, 0, v7")
            a.i(f"v_mov_b32 v{OO+r}, 0")
        a.i(f"s_mov_b32 s50, {WS_KV}")
        a.label(f"L_attn_slow{rh}_b")
        for t in kvload(0): t() if callable(t) else a.i(t)
        a.i("s_waitcnt vmcnt(0)")
        mfma(a, SS, KV, q, v(CC, 16))
        a.i("s_nop 15")
        for r in range(16): a.i(f"v_exp_f32 v{SS+r}, v{SS+r}")
        a.i("s_nop 0")
        for j in range(8): a.i(f"v_cvt_pk_bf16_f32 v{PP+j}, v{SS+2*j}, v{SS+2*j+1}")
        a.i("s_nop 1")
        mfma(a, OO, KV + 4, PP)
        mfma(a, OO, KV + 8, PP + 4)
        a.i("s_nop 15")
        a.i("s_add_u32 s50, s50, 2048")
        a.i(f"s_cmp_lt_u32 s50, {WS_KV + 64*2048}")
        a.i(f"s_cbranch_scc1 L_attn_slow{rh}_b")
        for r in range(9): a.i(f"v_mov_b32 v{f+r}, v{OO+r}")
        a.i("s_nop 1")
        a.i(f"s_branch L_attn_ok{rh}")
    a.vm = []; a.lg = []
    return a.finish()

def back():
    a = Asm()
    END = "L_back_end"
    entry(a, END)
    SWS, SW2, SWO, SB2, SOUT = 44, 48, 52, 56, 60
    VLIN, VW1K, VTR, VG = 2, 3, 4, 6
    ACC, WF, HR, BA, ONE = 64, 32, 128, 16, 24
    L_PART = 0; RING0 = 73728
    GW = S_W
    a.i(f"v_lshlrev_b32 v{VLIN}, 4, v0")
    wchunk_addr(a, VW1K, 14, 1024)
    tr_addr(a, VTR, 14, 15, 4, 6, True)
    a.i(f"s_mul_i32 s14, s{GW}, {RING_W}")
    a.i(f"s_add_u32 s14, s14, {RING0}")
    a.i(f"v_add_u32 v{VTR}, s14, v{VTR}")
    a.i("s_waitcnt lgkmcnt(0)")
    srd(a, SW2, "w2"); srd(a, SWS, "ws"); srd(a, SWO, "wo"); srd(a, SB2, "b2"); srd(a, SOUT, "out")
    a.i(f"s_mul_i32 s12, s{GW}, {28*16384}")
    a.i(f"s_lshl_b32 s8, s{S_MU}, 7")
    a.i("s_add_u32 s12, s12, s8")
    a.i(f"s_lshl_b32 s15, s{GW}, 17")
    a.i("s_add_u32 s15, s15, s8")
    a.i(f"s_mul_i32 s13, s{S_G}, 112")
    a.i(f"s_mul_i32 s9, s{GW}, 28")
    a.i("s_add_u32 s13, s13, s9")
    a.i("s_lshl_b32 s13, s13, 11")
    a.i(f"s_add_u32 s13, s13, {WS_H}")
    a.i(f"s_lshl_b32 s9, s{S_G}, 2")
    a.i(f"s_add_u32 s9, s9, s{GW}")
    a.i("s_lshl_b32 s9, s9, 14")
    a.i(f"s_add_u32 s9, s9, {WS_O}")
    NS = 36
    def issue(sx):
        wsrd, wso, hso = (SW2, 12, 13) if sx < 28 else (SWO, 15, 9)
        for p in range(2):
            a.i(f"s_add_u32 m0, s14, {(sx % RD)*2048 + p*1024 - 64*p}")
            a.i(f"buffer_load_dwordx4 v{VW1K}, s[{wsrd}:{wsrd+3}], s{wso} offen offset:{64*p} lds")
        a.i(f"s_add_u32 s{wso}, s{wso}, 16384")
        for rh in range(2):
            a.i(f"buffer_load_dwordx4 {v(HR + 8*(sx % RD) + 4*rh,4)}, v{VLIN}, s[{SWS}:{SWS+3}], s{hso} offen offset:{1024*rh}", tag=("w", sx))
        a.i(f"s_add_u32 s{hso}, s{hso}, 2048")
    a.i("v_lshlrev_b32 v14, 1, v0")
    a.i("v_cmp_gt_u32 vcc, 32, v0")
    a.i(f"v_mov_b32 v15, {BIG:#x}")
    a.i("v_cndmask_b32 v14, v15, v14, vcc")
    a.i(f"s_cmp_eq_u32 s{GW}, 0")
    a.i(f"s_cselect_b32 s10, s8, {BIG:#x}")
    for p in range(2):
        a.i(f"buffer_load_ushort v{BA+4*p}, v14, s[{SB2}:{SB2+3}], s10 offen offset:{64*p}", tag="b2")
        for r in range(1, 4): a.i(f"v_mov_b32 v{BA+4*p+r}, 0")
    a.i("v_and_b32 v14, 31, v0")
    a.i("v_lshlrev_b32 v14, 2, v14")
    a.i(f"s_lshl_b32 s10, s{S_G}, 8")
    a.i(f"s_add_u32 s10, s10, {WS_G}")
    for rh in range(2):
        a.i(f"buffer_load_dword v{VG+rh}, v14, s[{SWS}:{SWS+3}], s10 offen offset:{128*rh}", tag="b2")
    for sx in range(RD): issue(sx)
    bias_frags(a, ONE, 15)
    a.wait(vm="b2")
    for p in range(2):
        for rh in range(2): mfma(a, ACC + 32*p + 16*rh, BA + 4*p, ONE, "0")
    for rh in range(2): a.i(f"v_sub_f32 v{VG+rh}, 1.0, v{VG+rh}")
    def rd(sx):
        a.wait(vm=("w", sx))
        b = sx & 1
        for p in range(2):
            o = (sx % RD)*2048 + p*1024
            a.i(f"ds_read_b64_tr_b16 {v(WF+8*b+4*p,2)}, v{VTR} offset:{o}")
            a.i(f"ds_read_b64_tr_b16 {v(WF+8*b+4*p+2,2)}, v{VTR} offset:{o+512}", tag=("r", sx))
    rd(0)
    for sx in range(NS):
        if sx + 1 < NS: rd(sx+1)
        a.wait(lg=("r", sx))
        b = sx & 1
        if sx == 28:
            a.i("s_nop 7")
            for p in range(2):
                for rh in range(2):
                    t = ACC + 32*p + 16*rh
                    for r in range(16): a.i(f"v_mul_f32 v{t+r}, v{VG+rh}, v{t+r}")
        for p in range(2):
            for rh in range(2):
                mfma(a, ACC + 32*p + 16*rh, WF+8*b+4*p, HR + 8*(sx % RD) + 4*rh)
        if sx + RD < NS: issue(sx + RD)
    PITCH = 272; PW = 64*PITCH
    a.i("v_and_b32 v14, 31, v0")
    a.i(f"v_mul_u32_u24 v14, {PITCH}, v14")
    a.i("v_lshrrev_b32 v15, 5, v0")
    a.i("v_lshl_add_u32 v14, v15, 4, v14")
    a.i(f"s_mul_i32 s10, s{GW}, {PW}")
    a.i("v_add_u32 v14, s10, v14")
    a.i("v_lshrrev_b32 v15, 3, v0")
    a.i(f"s_lshl_b32 s10, s{GW}, 4")
    a.i("v_add_u32 v15, s10, v15")
    a.i("v_and_b32 v13, 7, v0")
    a.i(f"v_mul_u32_u24 v12, {PITCH}, v15")
    a.i("v_lshl_add_u32 v12, v13, 5, v12")
    a.i("v_lshlrev_b32 v15, 10, v15")
    a.i("v_lshl_add_u32 v15, v13, 4, v15")
    a.i(f"s_lshl_b32 s10, s{S_G}, 16")
    a.i("s_add_u32 s10, s10, s8")
    a.i("s_add_u32 s11, s10, 8192")
    for p in range(2):
        for rh in range(2):
            for q in range(4):
                a.i(f"ds_write_b128 v14, {v(ACC + 32*p + 16*rh + 4*q,4)} offset:{L_PART + rh*32*PITCH + (32*p + 8*q)*4}")
    a.i("s_waitcnt lgkmcnt(0)"); a.lg = []
    a.i("s_barrier")
    a.i(f"v_add_u32 v13, {2*PW}, v12")
    for rnd in range(2):
        for w in range(4):
            for hf in range(2):
                base = 12 if w < 2 else 13
                a.i(f"ds_read_b128 {v(128 + rnd*32 + w*8 + 4*hf,4)}, v{base} offset:{L_PART + (w&1)*PW + rnd*8*PITCH + 16*hf}", tag=("p", rnd, w))
    for rnd in range(2):
        b = 128 + rnd*32
        a.wait(lg=("p", rnd, 1))
        for r in range(0, 8, 2): a.i(f"v_pk_add_f32 {v(b+r,2)}, {v(b+r,2)}, {v(b+8+r,2)}")
        a.wait(lg=("p", rnd, 3))
        for r in range(0, 8, 2): a.i(f"v_pk_add_f32 {v(b+16+r,2)}, {v(b+16+r,2)}, {v(b+24+r,2)}")
        for r in range(0, 8, 2): a.i(f"v_pk_add_f32 {v(b+r,2)}, {v(b+r,2)}, {v(b+16+r,2)}")
        for j in range(4): a.i(f"v_cvt_pk_bf16_f32 v{b+8+j}, v{b+2*j}, v{b+2*j+1}")
        a.i(f"buffer_store_dwordx4 {v(b+8,4)}, v15, s[{SOUT}:{SOUT+3}], s{10+rnd} offen")
    a.label(END)
    a.i("s_endpgm")
    return a.finish()

HEAD = open("cdna_kernels/" + NAME + ".s.ref").read().split("; Override launch")[0]
def kd(name, vg=256):
    return f""".section .rodata,"a"
.p2align 6
.amdhsa_kernel {name}
  .amdhsa_next_free_vgpr {vg}
  .amdhsa_next_free_sgpr 102
  .amdhsa_accum_offset {vg}
  .amdhsa_group_segment_fixed_size 0
  .amdhsa_kernarg_size 112
  .amdhsa_user_sgpr_count 2
  .amdhsa_user_sgpr_kernarg_segment_ptr 1
  .amdhsa_system_sgpr_workgroup_id_x 1
.end_amdhsa_kernel
"""
def build(kernels):
    s_ = HEAD
    for n, blk, lds, body in kernels:
        s_ += f"; @launch kernel={n} grid=(256,1,1) block=({blk},1,1) lds={lds}\n"
    s_ += '.amdgcn_target "amdgcn-amd-amdhsa--gfx950"\n'
    seen = set()
    for n, blk, lds, body in kernels:
        if n in seen: continue
        seen.add(n)
        s_ += f".text\n.globl {n}\n.p2align 8\n.type {n},@function\n{n}:\n{body}" + kd(n)
    return s_

if __name__ == "__main__":
    out = sys.argv[1] if len(sys.argv) > 1 else "v1.s"
    txt = build([("front_kernel", 512, LDS_BYTES, front()), ("attn_kernel", 256, 65536, attn()), ("back_kernel", 256, LDS_BYTES, back())])
    open(out, "w").write(txt)
```

```python
import sys, math
from asmgen import *

NAME = "gated_mix__grouped_kv_mqa__dense_activation_squared_relu__prompt"
WS_KV = 0
WS_G  = 0x20000
WS_Q  = 0x40000
WS_O  = 0x240000
WS_H  = 0x440000
WS_END = WS_H + 32*112*2048
WS_SIZE = 0x10000000
L_X, L_WQ, L_WKV, L_QF, L_G = 0, 65536, 131072, 147456, 155648
L_RING = 65536; RING_W = 20480; RD = 10
LDS_BYTES = 163840
QSCALE = 0.25 * math.log2(math.e)
import struct
def f2u(x): return struct.unpack("<I", struct.pack("<f", x))[0]

S_W, S_G, S_MU = 3, 4, 5
P = dict(x=16, wq=18, wk=20, wv=22, wo=24, bx=26, w1=28, b1=30, w2=32, b2=34, gate=36, out=38, dbg=40, ws=42)
SZ = dict(x=2048*1024, wq=512*1024, wk=16384, wv=16384, wo=512*1024, w1=512*3584, b1=3584, w2=1792*1024, b2=1024, gate=1024, out=2048*1024, dbg=256, ws=WS_END)
BIG = 0x40000000

def srd(a, d, name):
    a.i(f"s_mov_b32 s{d}, s{P[name]}")
    a.i(f"s_mov_b32 s{d+1}, s{P[name]+1}")
    a.i(f"s_mov_b32 s{d+2}, {SZ[name]:#x}")
    a.i(f"s_mov_b32 s{d+3}, 0x20000")

def entry(a, end):
    a.i("s_cmp_ge_u32 s2, 256")
    a.i(f"s_cbranch_scc1 {end}")
    a.i("s_load_dwordx16 s[16:31], s[0:1], 0")
    a.i("s_load_dwordx8 s[32:39], s[0:1], 64")
    a.i("s_load_dwordx4 s[40:43], s[0:1], 96")
    a.i("v_lshrrev_b32 v1, 6, v0")
    a.i("v_and_b32 v0, 63, v0")
    a.i(f"v_readfirstlane_b32 s{S_W}, v1")
    a.i("s_and_b32 s6, s2, 7")
    a.i("s_lshr_b32 s7, s2, 3")
    a.i(f"s_and_b32 s{S_MU}, s7, 7")
    a.i("s_lshr_b32 s7, s7, 3")
    a.i("s_lshl_b32 s6, s6, 2")
    a.i(f"s_add_u32 s{S_G}, s6, s7")

STAMP = False
def stamp(a, idx, kidx, vt=(250, 251)):
    if not STAMP: return
    a.i("s_memrealtime s[90:91]")
    a.i(f"s_sub_u32 s92, s{P['dbg']}, {512*kidx}")
    a.i(f"s_subb_u32 s93, s{P['dbg']+1}, 0")
    a.i("s_mov_b32 s94, 256")
    a.i("s_mov_b32 s95, 0x20000")
    a.i("s_mov_b64 s[96:97], exec")
    a.i("s_waitcnt lgkmcnt(0)"); a.lg = []
    a.i("s_mov_b64 exec, 1")
    a.i("s_not_b32 s91, s90")
    a.i(f"v_mov_b32 v{vt[0]}, s91")
    a.i(f"v_mov_b32 v{vt[1]}, s90")
    a.i(f"buffer_atomic_umax v{vt[0]}, off, s[92:95], 0 offset:{8*idx}")
    a.i(f"buffer_atomic_umax v{vt[1]}, off, s[92:95], 0 offset:{8*idx+4}")
    a.i("s_mov_b64 exec, s[96:97]")

def mfma(a, d, A, B, C=None):
    c = v(d, 16) if C is None else C
    a.i(f"v_mfma_f32_32x32x16_bf16 {v(d,16)}, {v(A,4)}, {v(B,4)}, {c}")

def tr_addr(a, dst, t0, t1, rowmul_h, pitch_sh, use_half):
    a.i(f"v_lshrrev_b32 v{t0}, 5, v0")
    a.i(f"v_mul_u32_u24 v{t0}, {rowmul_h}, v{t0}")
    a.i(f"v_bfe_u32 v{t1}, v0, 2, 2")
    a.i(f"v_add_u32 v{t0}, v{t0}, v{t1}")
    a.i(f"v_lshlrev_b32 v{dst}, {pitch_sh}, v{t0}")
    a.i(f"v_and_b32 v{t1}, 3, v0")
    a.i(f"v_lshl_add_u32 v{dst}, v{t1}, 3, v{dst}")
    if use_half:
        a.i(f"v_bfe_u32 v{t1}, v0, 4, 1")
        a.i(f"v_lshl_add_u32 v{dst}, v{t1}, 5, v{dst}")

def xfrag_addr(a, dst, t0, t1):
    a.i(f"v_bfe_u32 v{t0}, v0, 1, 3")
    a.i(f"v_lshrrev_b32 v{t1}, 5, v0")
    a.i(f"v_xor_b32 v{t0}, v{t0}, v{t1}")
    a.i(f"v_and_b32 v{t1}, 31, v0")
    a.i(f"v_lshlrev_b32 v{t1}, 7, v{t1}")
    for q in range(4):
        a.i(f"v_xor_b32 v{dst+q}, {2*q}, v{t0}")
        a.i(f"v_lshl_add_u32 v{dst+q}, v{dst+q}, 4, v{t1}")

def wchunk_addr(a, dst, t0, pitch):
    a.i(f"v_lshrrev_b32 v{t0}, 2, v0")
    a.i(f"v_mul_u32_u24 v{dst}, {pitch}, v{t0}")
    a.i(f"v_and_b32 v{t0}, 3, v0")
    a.i(f"v_lshl_add_u32 v{dst}, v{t0}, 4, v{dst}")

def bias_frags(a, ONE, t0):
    a.i(f"v_mov_b32 v{t0}, 0x3f80")
    a.i("v_cmp_gt_u32 vcc, 32, v0")
    a.i(f"v_mov_b32 v{ONE+1}, 0")
    a.i(f"v_mov_b32 v{ONE+2}, 0")
    a.i(f"v_mov_b32 v{ONE+3}, 0")
    a.i(f"v_cndmask_b32 v{ONE}, 0, v{t0}, vcc")

def front():
    a = Asm()
    END = "L_front_end"
    entry(a, END)
    SX, SWQ, SWKV, SW1, SB1, SGT, SWS = 44, 48, 52, 56, 60, 64, 68
    VXS, VGS, VW1K, VLIN, VW35 = 2, 3, 4, 5, 6
    VXR, VTR, VTRK = 8, 12, 13
    a.i("v_lshrrev_b32 v14, 3, v0")
    a.i(f"s_lshl_b32 s6, s{S_W}, 3")
    a.i("v_add_u32 v14, s6, v14")
    a.i("v_bfe_u32 v15, v14, 1, 3")
    a.i("v_and_b32 v16, 7, v0")
    a.i("v_xor_b32 v15, v15, v16")
    a.i(f"v_lshlrev_b32 v{VGS}, 4, v15")
    a.i(f"s_lshl_b32 s6, s{S_G}, 6")
    a.i("v_add_u32 v14, s6, v14")
    a.i(f"v_lshl_add_u32 v{VXS}, v14, 10, v{VGS}")
    wchunk_addr(a, VW1K, 14, 1024)
    a.i(f"v_lshlrev_b32 v{VLIN}, 4, v0")
    a.i("s_waitcnt lgkmcnt(0)")
    stamp(a, 0, 0)
    srd(a, SX, "x")
    a.i(f"s_lshl_b32 s8, s{S_W}, 10")
    for kb in range(8):
        a.i(f"s_add_u32 m0, s8, {L_X + kb*8192 - kb*128}")
        a.i(f"buffer_load_dwordx4 v{VXS}, s[{SX}:{SX+3}], 0 offen offset:{kb*128} lds", tag="x")
    a.i(f"s_cmp_ge_u32 s{S_MU}, 2")
    a.i(f"s_cselect_b32 s{SWKV}, s{P['wv']}, s{P['wk']}")
    a.i(f"s_cselect_b32 s{SWKV+1}, s{P['wv']+1}, s{P['wk']+1}")
    a.i(f"s_mov_b32 s{SWKV+2}, 16384")
    a.i(f"s_mov_b32 s{SWKV+3}, 0x20000")
    a.i(f"s_lshl_b32 s9, s{S_W}, 11")
    a.i(f"s_cmp_ge_u32 s{S_MU}, 4")
    skip = a.newlabel("nokv")
    a.i(f"s_cbranch_scc1 {skip}")
    for j in range(2):
        a.i(f"s_add_u32 m0, s9, {L_WKV}")
        a.i(f"buffer_load_dwordx4 v{VLIN}, s[{SWKV}:{SWKV+3}], s9 offen offset:{j*1024} lds")
    a.vm = a.vm[:-2]
    a.label(skip)
    srd(a, SWQ, "wq")
    a.i(f"s_lshl_b32 s9, s{S_W}, 16")
    a.i(f"s_lshl_b32 s10, s{S_MU}, 7")
    a.i("s_add_u32 s9, s9, s10")
    a.i(f"s_lshl_b32 s8, s{S_W}, 13")
    for sl in range(4):
        for p in range(2):
            a.i(f"s_add_u32 m0, s8, {L_WQ + (2*sl+p)*1024 - 64*p}")
            a.i(f"buffer_load_dwordx4 v{VW1K}, s[{SWQ}:{SWQ+3}], s9 offen offset:{64*p} lds", tag="wq")
        if sl < 3: a.i("s_add_u32 s9, s9, 16384")
    srd(a, SWS, "ws")
    xfrag_addr(a, VXR, 14, 15)
    tr_addr(a, VTR, 14, 15, 8, 6, True)
    a.i(f"s_cmp_ge_u32 s{S_W}, 4")
    a.i("s_cbranch_scc1 L_front_G")
    vm_at_split = list(a.vm)
    a.i(f"s_and_b32 s6, s{S_W}, 1")
    a.i(f"s_lshr_b32 s7, s{S_W}, 1")
    a.i("s_lshl_b32 s8, s6, 10")
    a.i(f"s_add_u32 s8, s8, {L_WQ}")
    a.i(f"v_add_u32 v{VTR}, s8, v{VTR}")
    a.i("s_lshl_b32 s8, s7, 12")
    for q in range(4): a.i(f"v_add_u32 v{VXR+q}, s8, v{VXR+q}")
    a.wait(vm="all")
    a.i("s_barrier")
    stamp(a, 1, 0)
    def chain(a, ACC, FR, wread, orient):
        NB = 4
        def rd(sx):
            b = FR + 8*(sx % NB)
            wread(sx, b)
            a.i(f"ds_read_b128 {v(b+4,4)}, v{VXR + (sx&3)} offset:{(sx>>2)*8192}", tag=("c", sx))
        for sx in range(NB-1): rd(sx)
        for sx in range(32):
            if sx + NB - 1 < 32: rd(sx + NB - 1)
            a.wait(lg=("c", sx))
            b = FR + 8*(sx % NB)
            A_, B_ = (b, b+4) if orient == 0 else (b+4, b)
            mfma(a, ACC, A_, B_, "0" if sx == 0 else None)
    def wq_read(sx, b):
        a.i(f"ds_read_b64_tr_b16 {v(b,2)}, v{VTR} offset:{sx*2048}")
        a.i(f"ds_read_b64_tr_b16 {v(b+2,2)}, v{VTR} offset:{sx*2048+256}")
    chain(a, 64, 32, wq_read, 0)
    a.i(f"s_lshl_b32 s8, s{S_G}, 3")
    a.i(f"s_add_u32 s8, s8, s{S_MU}")
    a.i("s_lshl_b32 s8, s8, 3")
    a.i("s_lshl_b32 s9, s6, 2")
    a.i("s_add_u32 s8, s8, s9")
    a.i("s_add_u32 s8, s8, s7")
    a.i("s_lshl_b32 s8, s8, 10")
    a.i(f"s_add_u32 s8, s8, {WS_Q}")
    a.i(f"s_mov_b32 s10, {f2u(QSCALE):#x}")
    for r in range(16): a.i(f"v_mul_f32 v{64+r}, s10, v{64+r}")
    for j in range(8): a.i(f"v_cvt_pk_bf16_f32 v{32+j}, v{64+2*j}, v{65+2*j}")
    for e in range(2):
        a.i(f"buffer_store_dwordx4 {v(32+4*e,4)}, v{VLIN}, s[{SWS}:{SWS+3}], s8 offen offset:{2048*e}")
    a.i("s_barrier")
    a.i("s_endpgm")
    a.label("L_front_G")
    a.vm = vm_at_split; a.lg = []
    GW = 6
    a.i(f"s_sub_u32 s{GW}, s{S_W}, 4")
    srd(a, SW1, "w1"); srd(a, SB1, "b1"); srd(a, SGT, "gate")
    GF = 128
    for kb in range(8):
        a.i(f"buffer_load_dwordx4 {v(GF+4*kb,4)}, v{VGS}, s[{SGT}:{SGT+3}], 0 offen offset:{kb*128}", tag="gate")
    BA, ONE = 160, 168
    a.i(f"s_mul_i32 s12, s{S_MU}, 448")
    a.i(f"s_lshl_b32 s9, s{GW}, 7")
    a.i("s_add_u32 s12, s12, s9")
    a.i("s_add_u32 s13, s12, 64")
    a.i(f"s_cmp_eq_u32 s{GW}, 3")
    a.i(f"s_cselect_b32 s13, {BIG:#x}, s13")
    a.i("v_lshlrev_b32 v14, 1, v0")
    a.i("v_cmp_gt_u32 vcc, 32, v0")
    a.i(f"v_mov_b32 v15, {BIG:#x}")
    a.i("v_cndmask_b32 v14, v15, v14, vcc")
    for p in range(2):
        a.i(f"buffer_load_ushort v{BA+4*p}, v14, s[{SB1}:{SB1+3}], s{12+p} offen", tag="b1")
        for r in range(1, 4): a.i(f"v_mov_b32 v{BA+4*p+r}, 0")
    bias_frags(a, ONE, 15)
    wchunk_addr(a, VW35, 14, 3584)
    tr_addr(a, VTRK, 14, 15, 8, 5, False)
    a.i(f"v_add_u32 v{VTRK}, {L_WKV}, v{VTRK}")
    a.wait(vm="wq")
    a.i("s_barrier")
    a.i(f"s_cmp_lg_u32 s{GW}, 0")
    a.i("s_cbranch_scc1 L_front_nokv")
    a.i(f"s_cmp_ge_u32 s{S_MU}, 4")
    a.i("s_cbranch_scc1 L_front_b2")
    vm_save = list(a.vm)
    a.i("s_setprio 2")
    a.i(f"s_and_b32 s7, s{S_MU}, 1")
    a.i("s_lshl_b32 s8, s7, 12")
    XR2 = 16
    for q in range(4): a.i(f"v_add_u32 v{XR2+q}, s8, v{VXR+q}")
    a.i(f"s_lshl_b32 s8, s{S_G}, 1")
    a.i("s_add_u32 s8, s8, s7")
    a.i("s_lshl_b32 s8, s8, 11")
    a.i(f"s_add_u32 s8, s8, {WS_KV}")
    def wk_read(sx, b):
        a.i(f"ds_read_b64_tr_b16 {v(b,2)}, v{VTRK} offset:{sx*512}")
        a.i(f"ds_read_b64_tr_b16 {v(b+2,2)}, v{VTRK} offset:{sx*512+128}")
    VXR_save = VXR
    a.i(f"s_cmp_ge_u32 s{S_MU}, 2")
    a.i("s_cbranch_scc1 L_front_V")
    VXR = XR2
    chain(a, 64, 32, wk_read, 0)
    for j in range(4): a.i(f"v_cvt_pk_bf16_f32 v{32+j}, v{64+2*j}, v{65+2*j}")
    a.i(f"buffer_store_dwordx4 {v(32,4)}, v{VLIN}, s[{SWS}:{SWS+3}], s8 offen")
    a.i("s_setprio 0")
    a.i("s_branch L_front_b2")
    a.label("L_front_V")
    chain(a, 64, 32, wk_read, 1)
    VXR = VXR_save
    a.i("v_and_b32 v14, 16, v0")
    a.i("v_cmp_ne_u32 vcc, 0, v14")
    a.i("v_lshlrev_b32 v14, 5, v14")
    a.i("v_and_b32 v15, 15, v0")
    a.i("v_lshl_add_u32 v14, v15, 4, v14")
    a.i("v_lshrrev_b32 v15, 5, v0")
    a.i("v_lshl_add_u32 v14, v15, 8, v14")
    for j in range(8): a.i(f"v_cvt_pk_bf16_f32 v{32+j}, v{64+2*j}, v{65+2*j}")
    for j in range(4): a.i(f"v_cndmask_b32 v{32+j}, v{32+j}, v{36+j}, vcc")
    a.i(f"buffer_store_dwordx4 {v(32,4)}, v14, s[{SWS}:{SWS+3}], s8 offen offset:1024")
    a.i("s_setprio 0")
    a.i("s_branch L_front_b2")
    a.label("L_front_nokv")
    a.vm = list(vm_save); a.lg = []
    a.i(f"s_cmp_lt_u32 s{GW}, 2")
    a.i("s_cbranch_scc1 L_front_b2")
    a.i(f"s_and_b32 s7, s{GW}, 1")
    a.i("s_lshl_b32 s8, s7, 10")
    a.i(f"v_add_u32 v14, s8, v{VLIN}")
    XG, AC = 32, 20
    for i in range(4): a.i(f"v_mov_b32 v{AC+i}, 0")
    def grd(kb):
        for i in range(4):
            a.i(f"ds_read_b128 {v(XG + 16*(kb&1) + 4*i,4)}, v14 offset:{kb*8192 + i*2048}", tag=("g", kb))
    grd(0)
    a.wait(vm="gate")
    for kb in range(8):
        if kb < 7: grd(kb+1)
        a.wait(lg=("g", kb))
        for r in range(4):
            for i in range(4):
                a.i(f"v_dot2_f32_bf16 v{AC+i}, v{XG + 16*(kb&1) + 4*i + r}, v{GF+4*kb+r}, v{AC+i}")
    for mod in ("quad_perm:[1,0,3,2]", "quad_perm:[2,3,0,1]", "row_half_mirror"):
        for i in range(4):
            a.i(f"v_add_f32_dpp v{AC+i}, v{AC+i}, v{AC+i} {mod} row_mask:0xf bank_mask:0xf")
    a.i(f"s_mov_b32 s10, {f2u(-math.log2(math.e)):#x}")
    for i in range(4): a.i(f"v_mul_f32 v{AC+i}, s10, v{AC+i}")
    for i in range(4): a.i(f"v_exp_f32 v{AC+i}, v{AC+i}")
    for i in range(4): a.i(f"v_add_f32 v{AC+i}, 1.0, v{AC+i}")
    for i in range(4): a.i(f"v_rcp_f32 v{AC+i}, v{AC+i}")
    a.i("v_lshrrev_b32 v15, 3, v0")
    a.i("v_lshlrev_b32 v15, 2, v15")
    a.i(f"s_lshl_b32 s8, s{S_G}, 8")
    a.i("s_lshl_b32 s9, s7, 5")
    a.i("s_add_u32 s8, s8, s9")
    a.i(f"s_add_u32 s8, s8, {WS_G}")
    for i in range(4):
        a.i(f"buffer_store_dword v{AC+i}, v15, s[{SWS}:{SWS+3}], s8 offen offset:{64*i}")
    a.label("L_front_b2")
    a.i("s_waitcnt vmcnt(0) lgkmcnt(0)"); a.vm = []; a.lg = []
    a.i("s_barrier")
    ACC, WF, XF = 64, 32, 48
    a.i(f"s_mul_i32 s14, s{GW}, {RING_W}")
    a.i(f"s_add_u32 s14, s14, {L_RING}")
    a.i(f"v_add_u32 v{VTR}, s14, v{VTR}")
    def dma(sx):
        for p in range(2):
            a.i(f"s_add_u32 m0, s14, {(sx % RD)*2048 + p*1024}")
            a.i(f"buffer_load_dwordx4 v{VW35}, s[{SW1}:{SW1+3}], s{12+p} offen lds", tag=("w", sx))
            a.i(f"s_add_u32 s{12+p}, s{12+p}, {16*3584}")
    for sx in range(RD): dma(sx)
    for p in range(2):
        for rh in range(2): mfma(a, ACC + 32*p + 16*rh, BA + 4*p, ONE, "0")
    def rd(sx):
        a.wait(vm=("w", sx))
        b = sx & 1
        for p in range(2):
            o = (sx % RD)*2048 + p*1024
            a.i(f"ds_read_b64_tr_b16 {v(WF+8*b+4*p,2)}, v{VTR} offset:{o}")
            a.i(f"ds_read_b64_tr_b16 {v(WF+8*b+4*p+2,2)}, v{VTR} offset:{o+256}")
        for rh in range(2):
            a.i(f"ds_read_b128 {v(XF+8*b+4*rh,4)}, v{VXR+(sx&3)} offset:{(sx>>2)*8192 + rh*4096}", tag=("r", sx))
    rd(0)
    for sx in range(32):
        if sx < 31: rd(sx+1)
        a.wait(lg=("r", sx))
        b = sx & 1
        for p in range(2):
            for rh in range(2):
                mfma(a, ACC + 32*p + 16*rh, WF+8*b+4*p, XF+8*b+4*rh)
        if sx + RD < 32: dma(sx + RD)
    a.i(f"s_mul_i32 s8, s{S_G}, 112")
    a.i(f"s_mul_i32 s9, s{S_MU}, 14")
    a.i("s_add_u32 s8, s8, s9")
    a.i(f"s_lshl_b32 s9, s{GW}, 2")
    a.i("s_add_u32 s8, s8, s9")
    a.i("s_lshl_b32 s8, s8, 11")
    a.i(f"s_add_u32 s12, s8, {WS_H}")
    a.i("s_add_u32 s13, s12, 4096")
    a.i(f"s_cmp_eq_u32 s{GW}, 3")
    a.i(f"s_cselect_b32 s13, {BIG:#x}, s13")
    a.i("s_nop 7")
    for p in range(2):
        for rh in range(2):
            t = ACC + 32*p + 16*rh
            o = 128 + 8*(2*p+rh)
            for r in range(16): a.i(f"v_max_f32 v{t+r}, 0, v{t+r}")
            for r in range(0, 16, 2): a.i(f"v_pk_mul_f32 {v(t+r,2)}, {v(t+r,2)}, {v(t+r,2)}")
            for j in range(8): a.i(f"v_cvt_pk_bf16_f32 v{o+j}, v{t+2*j}, v{t+2*j+1}")
            for u in range(2):
                a.i(f"buffer_store_dwordx4 {v(o+4*u,4)}, v{VLIN}, s[{SWS}:{SWS+3}], s{12+p} offen offset:{u*2048 + rh*1024}")
    stamp(a, 2, 0)
    a.label(END)
    a.i("s_endpgm")
    return a.finish()

def attn_slot(a, i, Q, KV, S, Pq, O, cur, nxt, extra):
    Sc = S + 16*(i & 1); Sn = S + 16*((i+1) & 1)
    e = lambda r: a.i(f"v_exp_f32 v{Sc+r}, v{Sc+r}")
    c = lambda j: a.i(f"v_cvt_pk_bf16_f32 v{Pq+j}, v{Sc+2*j}, v{Sc+2*j+1}")
    def ex(k):
        for t in extra.get(k, []):
            t() if callable(t) else a.i(t)
    e(0); e(1)
    ip = (i - 1) % 8
    setp = cur if i > 0 else nxt
    mfma(a, O + 16*ip, KV + 12*setp + 8, Pq + 4)
    ex(0)
    for r in range(2, 7): e(r)
    inx = (i + 1) % 8
    setn = cur if i < 7 else nxt
    mfma(a, Sn, KV + 12*setn, Q + 4*inx, "0")
    ex(1)
    e(7)
    for j in range(4): c(j)
    e(8); e(9)
    mfma(a, O + 16*i, KV + 12*cur + 4, Pq)
    ex(2)
    for r in range(10, 16): e(r)
    for j in range(4, 8): c(j)

def attn():
    a = Asm()
    END = "L_attn_end"
    entry(a, END)
    SWS = 44
    VLIN, VV, VG = 2, 3, 4
    Q, KV, S, Pq, F, O = 8, 40, 64, 96, 104, 128
    a.i(f"v_lshlrev_b32 v{VLIN}, 4, v0")
    a.i("v_and_b32 v6, 15, v0")
    a.i("v_lshrrev_b32 v7, 5, v0")
    a.i("v_lshlrev_b32 v7, 8, v7")
    a.i(f"v_lshl_add_u32 v{VV}, v6, 4, v7")
    a.i("s_mov_b32 s48, 0xffff")
    a.i("s_mov_b32 s49, 0xffff")
    a.i("s_waitcnt lgkmcnt(0)")
    stamp(a, 3, 1, (124, 125))
    srd(a, SWS, "ws")
    a.i(f"s_lshl_b32 s50, s{S_W}, 15")
    a.i(f"s_add_u32 s50, s50, {WS_KV}")
    a.i(f"s_add_u32 s51, s50, {15*2048}")
    a.i("v_and_b32 v6, 16, v0")
    a.i("v_cmp_ne_u32 vcc, 0, v6")
    a.i("v_mov_b32 v7, 0x3f803f80")
    a.i("v_cndmask_b32 v7, 0, v7, vcc")
    for st in range(2):
        for r in range(4, 12): a.i(f"v_mov_b32 v{KV+12*st+r}, v7")
    def kvload(st):
        return [
            lambda: a.i(f"buffer_load_dwordx4 {v(KV+12*st,4)}, v{VLIN}, s[{SWS}:{SWS+3}], s50 offen", tag="kv"),
            "s_mov_b64 exec, s[48:49]",
            lambda: a.i(f"buffer_load_dwordx4 {v(KV+12*st+4,4)}, v{VV}, s[{SWS}:{SWS+3}], s50 offen offset:1024", tag="kv"),
            lambda: a.i(f"buffer_load_dwordx4 {v(KV+12*st+8,4)}, v{VV}, s[{SWS}:{SWS+3}], s50 offen offset:1536", tag="kv"),
            "s_mov_b64 exec, -1"]
    for t in kvload(0): t() if callable(t) else a.i(t)
    a.i(f"s_lshl_b32 s8, s{S_G}, 3")
    a.i(f"s_add_u32 s8, s8, s{S_MU}")
    a.i("s_lshl_b32 s8, s8, 13")
    a.i(f"s_add_u32 s8, s8, {WS_Q}")
    a.i("s_add_u32 s9, s8, 4096")
    for i in range(8):
        a.i(f"buffer_load_dwordx4 {v(Q+4*i,4)}, v{VLIN}, s[{SWS}:{SWS+3}], s{8 + (i>>2)} offen offset:{(i&3)*1024}", tag="q")
    a.i("v_and_b32 v6, 31, v0")
    a.i("v_lshlrev_b32 v6, 2, v6")
    a.i(f"s_lshl_b32 s8, s{S_G}, 8")
    a.i(f"s_add_u32 s8, s8, {WS_G}")
    for rh in range(2):
        a.i(f"buffer_load_dword v{VG+rh}, v6, s[{SWS}:{SWS+3}], s8 offen offset:{128*rh}", tag="g")
    for r in range(128): a.i(f"v_mov_b32 v{O+r}, 0")
    for r in range(4, 8): a.i(f"v_mov_b32 v{Pq+r}, 0")
    a.wait(vm="all")
    stamp(a, 4, 1, (124, 125))
    a.wait(vm="all")
    mfma(a, S, KV, Q, "0")
    a.i("s_mov_b32 s52, 8")
    a.i("s_nop 11")
    a.raw(".p2align 6")
    a.label("L_attn_loop")
    for half in range(2):
        cur, nxt = half, 1 - half
        ld = kvload(nxt)
        for i in range(8):
            extra = {}
            if i == 0:
                extra = {0: ["s_add_u32 s50, s50, 2048"], 1: ["s_min_u32 s50, s50, s51"], 2: [ld[0]]}
            if i == 1:
                extra = {0: ld[1:]}
            if i == 7:
                extra = {0: [lambda: a.wait(vm="all")]}
                if half == 1:
                    extra[1] = ["s_sub_u32 s52, s52, 1"]; extra[2] = ["s_cmp_lg_u32 s52, 0"]
            attn_slot(a, i, Q, KV, S, Pq, O, cur, nxt, extra)
    a.i("s_cbranch_scc1 L_attn_loop")
    a.i("s_nop 0")
    mfma(a, O + 16*7, KV + 12*1 + 8, Pq + 4)
    stamp(a, 5, 1, (124, 125))
    a.i("v_lshlrev_b32 v6, 2, v0")
    FQ = S
    for w in range(4):
        if w < 3:
            a.i(f"s_cmp_lg_u32 s{S_W}, {w}")
            a.i(f"s_cbranch_scc1 L_attn_x{w+1}")
        for i in list(range(8)):
            own = i >> 1
            if own == w: continue
            idx = w if w < own else w - 1
            o = (i*3 + idx)*2304
            a.i(f"ds_write_b128 v{VLIN}, {v(O+16*i,4)} offset:{o}")
            a.i(f"ds_write_b128 v{VLIN}, {v(O+16*i+4,4)} offset:{o+1024}")
            a.i(f"ds_write_b32 v6, v{O+16*i+8} offset:{o+2048}")
        a.i("s_waitcnt lgkmcnt(0)"); a.lg = []
        a.i("s_barrier")
        T = S
        land = [O + 16*((2*w + 2 + k) % 8) for k in range(6)]
        for rh in range(2):
            i = 2*w + rh
            for idx in range(3):
                o = (i*3 + idx)*2304; d = land[rh*3 + idx]
                a.i(f"ds_read_b128 {v(d,4)}, v{VLIN} offset:{o}")
                a.i(f"ds_read_b128 {v(d+4,4)}, v{VLIN} offset:{o+1024}")
                a.i(f"ds_read_b32 v{d+8}, v6 offset:{o+2048}", tag=("x", rh, idx))
        for rh in range(2):
            i = 2*w + rh
            for j in range(4): a.i(f"v_mov_b32 v{F+20+4*rh+j - 0}, v{Q+4*i+j}") if False else None
            a.wait(lg=("x", rh, 1))
            for r in range(9): a.i(f"v_add_f32 v{land[rh*3]+r}, v{land[rh*3]+r}, v{land[rh*3+1]+r}")
            a.wait(lg=("x", rh, 2))
            for r in range(9): a.i(f"v_add_f32 v{O+16*i+r}, v{O+16*i+r}, v{land[rh*3+2]+r}")
            for r in range(9): a.i(f"v_add_f32 v{F+10*rh+r}, v{O+16*i+r}, v{land[rh*3]+r}")
        for rh in range(2):
            i = 2*w + rh
            for j in range(4): a.i(f"v_mov_b32 v{Pq+4*rh+j}, v{Q+4*i+j}")
        if w < 3: a.i("s_branch L_attn_fin")
        if w < 3: a.label(f"L_attn_x{w+1}")
    a.label("L_attn_fin")
    a.i(f"s_lshl_b32 s8, s{S_G}, 5")
    a.i(f"s_lshl_b32 s9, s{S_MU}, 2")
    a.i("s_add_u32 s8, s8, s9")
    a.i(f"s_add_u32 s8, s8, s{S_W}")
    a.i("s_lshl_b32 s8, s8, 11")
    a.i(f"s_add_u32 s8, s8, {WS_O}")
    a.i(f"s_mov_b32 s10, {f2u(2.0**-30):#x}")
    a.i(f"s_mov_b32 s11, {f2u(2.0**100):#x}")
    a.i("s_mov_b32 s12, 0x7f800000")
    for rh in range(2):
        f = F + 10*rh
        a.i(f"v_add_f32 v6, abs(v{f}), abs(v{f+1})")
        for r in range(2, 8): a.i(f"v_add_f32 v6, v6, abs(v{f+r})")
        a.i(f"v_cmp_le_f32 s[54:55], s10, v{f+8}")
        a.i(f"v_cmp_ge_f32 s[56:57], s11, v{f+8}")
        a.i(f"v_cmp_gt_f32 vcc, s12, v6")
        a.i("s_and_b64 s[54:55], s[54:55], s[56:57]")
        a.i("s_and_b64 s[54:55], s[54:55], vcc")
        a.i("s_cmp_eq_u64 s[54:55], -1")
        a.i(f"s_cbranch_scc0 L_attn_slow{rh}")
        a.label(f"L_attn_ok{rh}")
        a.i(f"v_rcp_f32 v6, v{f+8}")
        a.i(f"v_mul_f32 v6, v6, v{VG+rh}")
        for r in range(8): a.i(f"v_mul_f32 v{f+r}, v6, v{f+r}")
        for j in range(4): a.i(f"v_cvt_pk_bf16_f32 v{S+4*rh+j}, v{f+2*j}, v{f+2*j+1}")
        a.i(f"buffer_store_dwordx4 {v(S+4*rh,4)}, v{VLIN}, s[{SWS}:{SWS+3}], s8 offen offset:{1024*rh}")
    a.label(END)
    a.i("s_endpgm")
    for rh in range(2):
        f = F + 10*rh; q = Pq + 4*rh
        SS, CC, OO, PP = O, O + 16, O + 32, O + 48
        a.label(f"L_attn_slow{rh}")
        a.i("s_nop 7")
        a.i(f"s_mov_b32 s50, {WS_KV}")
        a.i("v_mov_b32 v7, 0xff800000")
        a.label(f"L_attn_slow{rh}_a")
        a.i(f"buffer_load_dwordx4 {v(KV,4)}, v{VLIN}, s[{SWS}:{SWS+3}], s50 offen")
        a.i("s_waitcnt vmcnt(0)")
        mfma(a, SS, KV, q, "0")
        a.i("s_nop 15")
        for r in range(0, 16, 2): a.i(f"v_max3_f32 v7, v7, v{SS+r}, v{SS+r+1}")
        a.i("s_add_u32 s50, s50, 2048")
        a.i(f"s_cmp_lt_u32 s50, {WS_KV + 64*2048}")
        a.i(f"s_cbranch_scc1 L_attn_slow{rh}_a")
        a.i("v_mov_b32 v6, v7")
        a.i("s_nop 1")
        a.i("v_permlane32_swap_b32 v6, v7")
        a.i("v_max_f32 v7, v6, v7")
        for r in range(16):
            a.i(f"v_sub_f32 v{CC+r}, 0, v7")
            a.i(f"v_mov_b32 v{OO+r}, 0")
        a.i(f"s_mov_b32 s50, {WS_KV}")
        a.label(f"L_attn_slow{rh}_b")
        for t in kvload(0): t() if callable(t) else a.i(t)
        a.i("s_waitcnt vmcnt(0)")
        mfma(a, SS, KV, q, v(CC, 16))
        a.i("s_nop 15")
        for r in range(16): a.i(f"v_exp_f32 v{SS+r}, v{SS+r}")
        a.i("s_nop 0")
        for j in range(8): a.i(f"v_cvt_pk_bf16_f32 v{PP+j}, v{SS+2*j}, v{SS+2*j+1}")
        a.i("s_nop 1")
        mfma(a, OO, KV + 4, PP)
        mfma(a, OO, KV + 8, PP + 4)
        a.i("s_nop 15")
        a.i("s_add_u32 s50, s50, 2048")
        a.i(f"s_cmp_lt_u32 s50, {WS_KV + 64*2048}")
        a.i(f"s_cbranch_scc1 L_attn_slow{rh}_b")
        for r in range(9): a.i(f"v_mov_b32 v{f+r}, v{OO+r}")
        a.i("s_nop 1")
        a.i(f"s_branch L_attn_ok{rh}")
    a.vm = []; a.lg = []
    return a.finish()

def back():
    a = Asm()
    END = "L_back_end"
    entry(a, END)
    SWS, SW2, SWO, SB2, SOUT = 44, 48, 52, 56, 60
    VLIN, VW1K, VTR, VG = 2, 3, 4, 6
    ACC, WF, HR, BA, ONE = 64, 32, 128, 16, 24
    L_PART = 0; RING0 = 73728
    GW = S_W
    a.i(f"v_lshlrev_b32 v{VLIN}, 4, v0")
    wchunk_addr(a, VW1K, 14, 1024)
    tr_addr(a, VTR, 14, 15, 4, 6, True)
    a.i(f"s_mul_i32 s14, s{GW}, {RING_W}")
    a.i(f"s_add_u32 s14, s14, {RING0}")
    a.i(f"v_add_u32 v{VTR}, s14, v{VTR}")
    a.i("s_waitcnt lgkmcnt(0)")
    stamp(a, 6, 2)
    srd(a, SW2, "w2"); srd(a, SWS, "ws"); srd(a, SWO, "wo"); srd(a, SB2, "b2"); srd(a, SOUT, "out")
    a.i(f"s_mul_i32 s12, s{GW}, {28*16384}")
    a.i(f"s_lshl_b32 s8, s{S_MU}, 7")
    a.i("s_add_u32 s12, s12, s8")
    a.i(f"s_lshl_b32 s15, s{GW}, 17")
    a.i("s_add_u32 s15, s15, s8")
    a.i(f"s_mul_i32 s13, s{S_G}, 112")
    a.i(f"s_mul_i32 s9, s{GW}, 28")
    a.i("s_add_u32 s13, s13, s9")
    a.i("s_lshl_b32 s13, s13, 11")
    a.i(f"s_add_u32 s13, s13, {WS_H}")
    a.i(f"s_lshl_b32 s9, s{S_G}, 2")
    a.i(f"s_add_u32 s9, s9, s{GW}")
    a.i("s_lshl_b32 s9, s9, 14")
    a.i(f"s_add_u32 s9, s9, {WS_O}")
    NS = 36
    def issue(sx):
        wsrd, wso, hso = (SW2, 12, 13) if sx < 28 else (SWO, 15, 9)
        for p in range(2):
            a.i(f"s_add_u32 m0, s14, {(sx % RD)*2048 + p*1024 - 64*p}")
            a.i(f"buffer_load_dwordx4 v{VW1K}, s[{wsrd}:{wsrd+3}], s{wso} offen offset:{64*p} lds")
        a.i(f"s_add_u32 s{wso}, s{wso}, 16384")
        for rh in range(2):
            a.i(f"buffer_load_dwordx4 {v(HR + 8*(sx % RD) + 4*rh,4)}, v{VLIN}, s[{SWS}:{SWS+3}], s{hso} offen offset:{1024*rh}", tag=("w", sx))
        a.i(f"s_add_u32 s{hso}, s{hso}, 2048")
    a.i("v_lshlrev_b32 v14, 1, v0")
    a.i("v_cmp_gt_u32 vcc, 32, v0")
    a.i(f"v_mov_b32 v15, {BIG:#x}")
    a.i("v_cndmask_b32 v14, v15, v14, vcc")
    a.i(f"s_cmp_eq_u32 s{GW}, 0")
    a.i(f"s_cselect_b32 s10, s8, {BIG:#x}")
    for p in range(2):
        a.i(f"buffer_load_ushort v{BA+4*p}, v14, s[{SB2}:{SB2+3}], s10 offen offset:{64*p}", tag="b2")
        for r in range(1, 4): a.i(f"v_mov_b32 v{BA+4*p+r}, 0")
    a.i("v_and_b32 v14, 31, v0")
    a.i("v_lshlrev_b32 v14, 2, v14")
    a.i(f"s_lshl_b32 s10, s{S_G}, 8")
    a.i(f"s_add_u32 s10, s10, {WS_G}")
    for rh in range(2):
        a.i(f"buffer_load_dword v{VG+rh}, v14, s[{SWS}:{SWS+3}], s10 offen offset:{128*rh}", tag="b2")
    for sx in range(RD): issue(sx)
    bias_frags(a, ONE, 15)
    a.wait(vm="b2")
    for p in range(2):
        for rh in range(2): mfma(a, ACC + 32*p + 16*rh, BA + 4*p, ONE, "0")
    for rh in range(2): a.i(f"v_sub_f32 v{VG+rh}, 1.0, v{VG+rh}")
    def rd(sx):
        a.wait(vm=("w", sx))
        b = sx & 1
        for p in range(2):
            o = (sx % RD)*2048 + p*1024
            a.i(f"ds_read_b64_tr_b16 {v(WF+8*b+4*p,2)}, v{VTR} offset:{o}")
            a.i(f"ds_read_b64_tr_b16 {v(WF+8*b+4*p+2,2)}, v{VTR} offset:{o+512}", tag=("r", sx))
    rd(0)
    for sx in range(NS):
        if sx + 1 < NS: rd(sx+1)
        a.wait(lg=("r", sx))
        b = sx & 1
        if sx == 28:
            a.i("s_nop 7")
            for p in range(2):
                for rh in range(2):
                    t = ACC + 32*p + 16*rh
                    for r in range(16): a.i(f"v_mul_f32 v{t+r}, v{VG+rh}, v{t+r}")
        for p in range(2):
            for rh in range(2):
                mfma(a, ACC + 32*p + 16*rh, WF+8*b+4*p, HR + 8*(sx % RD) + 4*rh)
        if sx + RD < NS: issue(sx + RD)
    PITCH = 272; PW = 64*PITCH
    a.i("v_and_b32 v14, 31, v0")
    a.i(f"v_mul_u32_u24 v14, {PITCH}, v14")
    a.i("v_lshrrev_b32 v15, 5, v0")
    a.i("v_lshl_add_u32 v14, v15, 4, v14")
    a.i(f"s_mul_i32 s10, s{GW}, {PW}")
    a.i("v_add_u32 v14, s10, v14")
    a.i("v_lshrrev_b32 v15, 3, v0")
    a.i(f"s_lshl_b32 s10, s{GW}, 4")
    a.i("v_add_u32 v15, s10, v15")
    a.i("v_and_b32 v13, 7, v0")
    a.i(f"v_mul_u32_u24 v12, {PITCH}, v15")
    a.i("v_lshl_add_u32 v12, v13, 5, v12")
    a.i("v_lshlrev_b32 v15, 10, v15")
    a.i("v_lshl_add_u32 v15, v13, 4, v15")
    a.i(f"s_lshl_b32 s10, s{S_G}, 16")
    a.i("s_add_u32 s10, s10, s8")
    a.i("s_add_u32 s11, s10, 8192")
    for p in range(2):
        for rh in range(2):
            for q in range(4):
                a.i(f"ds_write_b128 v14, {v(ACC + 32*p + 16*rh + 4*q,4)} offset:{L_PART + rh*32*PITCH + (32*p + 8*q)*4}")
    a.i("s_waitcnt lgkmcnt(0)"); a.lg = []
    a.i("s_barrier")
    a.i(f"v_add_u32 v13, {2*PW}, v12")
    for rnd in range(2):
        for w in range(4):
            for hf in range(2):
                base = 12 if w < 2 else 13
                a.i(f"ds_read_b128 {v(128 + rnd*32 + w*8 + 4*hf,4)}, v{base} offset:{L_PART + (w&1)*PW + rnd*8*PITCH + 16*hf}", tag=("p", rnd, w))
    for rnd in range(2):
        b = 128 + rnd*32
        a.wait(lg=("p", rnd, 1))
        for r in range(0, 8, 2): a.i(f"v_pk_add_f32 {v(b+r,2)}, {v(b+r,2)}, {v(b+8+r,2)}")
        a.wait(lg=("p", rnd, 3))
        for r in range(0, 8, 2): a.i(f"v_pk_add_f32 {v(b+16+r,2)}, {v(b+16+r,2)}, {v(b+24+r,2)}")
        for r in range(0, 8, 2): a.i(f"v_pk_add_f32 {v(b+r,2)}, {v(b+r,2)}, {v(b+16+r,2)}")
        for j in range(4): a.i(f"v_cvt_pk_bf16_f32 v{b+8+j}, v{b+2*j}, v{b+2*j+1}")
        a.i(f"buffer_store_dwordx4 {v(b+8,4)}, v15, s[{SOUT}:{SOUT+3}], s{10+rnd} offen")
    stamp(a, 7, 2)
    a.label(END)
    a.i("s_endpgm")
    return a.finish()

HEAD = open("cdna_kernels/" + NAME + ".s.ref").read().split("; Override launch")[0]
def kd(name, vg=256):
    return f""".section .rodata,"a"
.p2align 6
.amdhsa_kernel {name}
  .amdhsa_next_free_vgpr {vg}
  .amdhsa_next_free_sgpr 102
  .amdhsa_accum_offset {vg}
  .amdhsa_group_segment_fixed_size 0
  .amdhsa_kernarg_size 112
  .amdhsa_user_sgpr_count 2
  .amdhsa_user_sgpr_kernarg_segment_ptr 1
  .amdhsa_system_sgpr_workgroup_id_x 1
.end_amdhsa_kernel
"""
def build(kernels):
    s_ = HEAD
    for n, blk, lds, body in kernels:
        s_ += f"; @launch kernel={n} grid=(256,1,1) block=({blk},1,1) lds={lds}\n"
    s_ += '.amdgcn_target "amdgcn-amd-amdhsa--gfx950"\n'
    seen = set()
    for n, blk, lds, body in kernels:
        if n in seen: continue
        seen.add(n)
        s_ += f".text\n.globl {n}\n.p2align 8\n.type {n},@function\n{n}:\n{body}" + kd(n)
    return s_

if __name__ == "__main__":
    out = sys.argv[1] if len(sys.argv) > 1 else "v1.s"
    STAMP = len(sys.argv) > 2
    txt = build([("front_kernel", 512, LDS_BYTES, front()), ("attn_kernel", 256, 65536, attn()), ("back_kernel", 256, LDS_BYTES, back())])
    open(out, "w").write(txt)
```

```python
import sys, math
from asmgen import *

NAME = "gated_mix__grouped_kv_mqa__dense_activation_squared_relu__prompt"
WS_KV = 0
WS_G  = 0x20000
WS_Q  = 0x40000
WS_O  = 0x240000
WS_H  = 0x440000
WS_END = WS_H + 32*112*2048
WS_SIZE = 0x10000000
L_X, L_WQ, L_WKV, L_QF, L_G = 0, 65536, 131072, 147456, 155648
L_RING = 65536; RING_W = 20480; RD = 10
LDS_BYTES = 163840
QSCALE = 0.25 * math.log2(math.e)
import struct
def f2u(x): return struct.unpack("<I", struct.pack("<f", x))[0]

S_W, S_G, S_MU = 3, 4, 5
P = dict(x=16, wq=18, wk=20, wv=22, wo=24, bx=26, w1=28, b1=30, w2=32, b2=34, gate=36, out=38, dbg=40, ws=42)
SZ = dict(x=2048*1024, wq=512*1024, wk=16384, wv=16384, wo=512*1024, w1=512*3584, b1=3584, w2=1792*1024, b2=1024, gate=1024, out=2048*1024, dbg=256, ws=WS_END)
BIG = 0x40000000

def srd(a, d, name):
    a.i(f"s_mov_b32 s{d}, s{P[name]}")
    a.i(f"s_mov_b32 s{d+1}, s{P[name]+1}")
    a.i(f"s_mov_b32 s{d+2}, {SZ[name]:#x}")
    a.i(f"s_mov_b32 s{d+3}, 0x20000")

def entry(a, end):
    a.i("s_cmp_ge_u32 s2, 256")
    a.i(f"s_cbranch_scc1 {end}")
    a.i("s_load_dwordx16 s[16:31], s[0:1], 0")
    a.i("s_load_dwordx8 s[32:39], s[0:1], 64")
    a.i("s_load_dwordx4 s[40:43], s[0:1], 96")
    a.i("v_lshrrev_b32 v1, 6, v0")
    a.i("v_and_b32 v0, 63, v0")
    a.i(f"v_readfirstlane_b32 s{S_W}, v1")
    a.i("s_and_b32 s6, s2, 7")
    a.i("s_lshr_b32 s7, s2, 3")
    a.i(f"s_and_b32 s{S_MU}, s7, 7")
    a.i("s_lshr_b32 s7, s7, 3")
    a.i("s_lshl_b32 s6, s6, 2")
    a.i(f"s_add_u32 s{S_G}, s6, s7")

STAMP = False
WS_STAMP = 0xC00000
def stamp(a, idx, kidx, vt=(250, 251)):
    if not STAMP: return
    a.i("s_memrealtime s[90:91]")
    a.i(f"s_mov_b32 s92, s{P['ws']}")
    a.i(f"s_mov_b32 s93, s{P['ws']+1}")
    a.i("s_mov_b32 s94, 0x1000000")
    a.i("s_mov_b32 s95, 0x20000")
    a.i("s_mov_b64 s[96:97], exec")
    a.i("s_lshl_b32 s98, s2, 2")
    a.i(f"s_add_u32 s98, s98, {WS_STAMP + idx*1024}")
    a.i("s_waitcnt lgkmcnt(0)"); a.lg = []
    a.i("s_mov_b64 exec, 1")
    a.i(f"v_mov_b32 v{vt[0]}, s90")
    a.i(f"buffer_store_dword v{vt[0]}, off, s[92:95], s98")
    a.i("s_mov_b64 exec, s[96:97]")

def diag(kidx, n=8):
    a = Asm()
    a.i("s_cmp_ge_u32 s2, 1")
    a.i("s_cbranch_scc1 L_diag_end")
    a.i("s_load_dwordx4 s[40:43], s[0:1], 96")
    a.i("v_lshlrev_b32 v1, 2, v0")
    a.i("v_mov_b32 v2, 0")
    a.i("ds_write_b32 v1, v2")
    a.i("s_waitcnt lgkmcnt(0)")
    a.i("s_barrier")
    a.i("s_mov_b32 s92, s42"); a.i("s_mov_b32 s93, s43"); a.i("s_mov_b32 s94, 0x1000000"); a.i("s_mov_b32 s95, 0x20000")
    for idx in range(n):
        a.i(f"s_mov_b32 s8, {WS_STAMP + idx*1024}")
        a.i(f"buffer_load_dword v3, v1, s[92:95], s8 offen")
        a.i("s_waitcnt vmcnt(0)")
        a.i("v_not_b32 v4, v3")
        a.i(f"ds_max_u32 v2, v4 offset:{8*idx}")
        a.i(f"ds_max_u32 v2, v3 offset:{8*idx+4}")
        a.i("s_waitcnt lgkmcnt(0)")
    a.i("s_barrier")
    a.i("ds_read_b32 v3, v1")
    a.i("s_mov_b32 s92, s40"); a.i("s_mov_b32 s93, s41"); a.i("s_mov_b32 s94, 256")
    a.i("s_waitcnt lgkmcnt(0)")
    a.i("buffer_store_dword v3, v1, s[92:95], 0 offen")
    a.i(f"s_sub_u32 s92, s40, {512*kidx}"); a.i("s_subb_u32 s93, s41, 0")
    a.i("buffer_store_dword v3, v1, s[92:95], 0 offen")
    a.label("L_diag_end")
    a.i("s_endpgm")
    return a.finish()

def mfma(a, d, A, B, C=None):
    c = v(d, 16) if C is None else C
    a.i(f"v_mfma_f32_32x32x16_bf16 {v(d,16)}, {v(A,4)}, {v(B,4)}, {c}")

def tr_addr(a, dst, t0, t1, rowmul_h, pitch_sh, use_half):
    a.i(f"v_lshrrev_b32 v{t0}, 5, v0")
    a.i(f"v_mul_u32_u24 v{t0}, {rowmul_h}, v{t0}")
    a.i(f"v_bfe_u32 v{t1}, v0, 2, 2")
    a.i(f"v_add_u32 v{t0}, v{t0}, v{t1}")
    a.i(f"v_lshlrev_b32 v{dst}, {pitch_sh}, v{t0}")
    a.i(f"v_and_b32 v{t1}, 3, v0")
    a.i(f"v_lshl_add_u32 v{dst}, v{t1}, 3, v{dst}")
    if use_half:
        a.i(f"v_bfe_u32 v{t1}, v0, 4, 1")
        a.i(f"v_lshl_add_u32 v{dst}, v{t1}, 5, v{dst}")

def xfrag_addr(a, dst, t0, t1):
    a.i(f"v_bfe_u32 v{t0}, v0, 1, 3")
    a.i(f"v_lshrrev_b32 v{t1}, 5, v0")
    a.i(f"v_xor_b32 v{t0}, v{t0}, v{t1}")
    a.i(f"v_and_b32 v{t1}, 31, v0")
    a.i(f"v_lshlrev_b32 v{t1}, 7, v{t1}")
    for q in range(4):
        a.i(f"v_xor_b32 v{dst+q}, {2*q}, v{t0}")
        a.i(f"v_lshl_add_u32 v{dst+q}, v{dst+q}, 4, v{t1}")

def wchunk_addr(a, dst, t0, pitch):
    a.i(f"v_lshrrev_b32 v{t0}, 2, v0")
    a.i(f"v_mul_u32_u24 v{dst}, {pitch}, v{t0}")
    a.i(f"v_and_b32 v{t0}, 3, v0")
    a.i(f"v_lshl_add_u32 v{dst}, v{t0}, 4, v{dst}")

def bias_frags(a, ONE, t0):
    a.i(f"v_mov_b32 v{t0}, 0x3f80")
    a.i("v_cmp_gt_u32 vcc, 32, v0")
    a.i(f"v_mov_b32 v{ONE+1}, 0")
    a.i(f"v_mov_b32 v{ONE+2}, 0")
    a.i(f"v_mov_b32 v{ONE+3}, 0")
    a.i(f"v_cndmask_b32 v{ONE}, 0, v{t0}, vcc")

def front():
    a = Asm()
    END = "L_front_end"
    entry(a, END)
    SX, SWQ, SWKV, SW1, SB1, SGT, SWS = 44, 48, 52, 56, 60, 64, 68
    VXS, VGS, VW1K, VLIN, VW35 = 2, 3, 4, 5, 6
    VXR, VTR, VTRK = 8, 12, 13
    a.i("v_lshrrev_b32 v14, 3, v0")
    a.i(f"s_lshl_b32 s6, s{S_W}, 3")
    a.i("v_add_u32 v14, s6, v14")
    a.i("v_bfe_u32 v15, v14, 1, 3")
    a.i("v_and_b32 v16, 7, v0")
    a.i("v_xor_b32 v15, v15, v16")
    a.i(f"v_lshlrev_b32 v{VGS}, 4, v15")
    a.i(f"s_lshl_b32 s6, s{S_G}, 6")
    a.i("v_add_u32 v14, s6, v14")
    a.i(f"v_lshl_add_u32 v{VXS}, v14, 10, v{VGS}")
    wchunk_addr(a, VW1K, 14, 1024)
    a.i(f"v_lshlrev_b32 v{VLIN}, 4, v0")
    a.i("s_waitcnt lgkmcnt(0)")
    stamp(a, 0, 0)
    srd(a, SX, "x")
    a.i(f"s_lshl_b32 s8, s{S_W}, 10")
    for kb in range(8):
        a.i(f"s_add_u32 m0, s8, {L_X + kb*8192 - kb*128}")
        a.i(f"buffer_load_dwordx4 v{VXS}, s[{SX}:{SX+3}], 0 offen offset:{kb*128} lds", tag="x")
    a.i(f"s_cmp_ge_u32 s{S_MU}, 2")
    a.i(f"s_cselect_b32 s{SWKV}, s{P['wv']}, s{P['wk']}")
    a.i(f"s_cselect_b32 s{SWKV+1}, s{P['wv']+1}, s{P['wk']+1}")
    a.i(f"s_mov_b32 s{SWKV+2}, 16384")
    a.i(f"s_mov_b32 s{SWKV+3}, 0x20000")
    a.i(f"s_lshl_b32 s9, s{S_W}, 11")
    a.i(f"s_cmp_ge_u32 s{S_MU}, 4")
    skip = a.newlabel("nokv")
    a.i(f"s_cbranch_scc1 {skip}")
    for j in range(2):
        a.i(f"s_add_u32 m0, s9, {L_WKV}")
        a.i(f"buffer_load_dwordx4 v{VLIN}, s[{SWKV}:{SWKV+3}], s9 offen offset:{j*1024} lds")
    a.vm = a.vm[:-2]
    a.label(skip)
    srd(a, SWQ, "wq")
    a.i(f"s_lshl_b32 s9, s{S_W}, 16")
    a.i(f"s_lshl_b32 s10, s{S_MU}, 7")
    a.i("s_add_u32 s9, s9, s10")
    a.i(f"s_lshl_b32 s8, s{S_W}, 13")
    for sl in range(4):
        for p in range(2):
            a.i(f"s_add_u32 m0, s8, {L_WQ + (2*sl+p)*1024 - 64*p}")
            a.i(f"buffer_load_dwordx4 v{VW1K}, s[{SWQ}:{SWQ+3}], s9 offen offset:{64*p} lds", tag="wq")
        if sl < 3: a.i("s_add_u32 s9, s9, 16384")
    srd(a, SWS, "ws")
    xfrag_addr(a, VXR, 14, 15)
    tr_addr(a, VTR, 14, 15, 8, 6, True)
    a.i(f"s_cmp_ge_u32 s{S_W}, 4")
    a.i("s_cbranch_scc1 L_front_G")
    vm_at_split = list(a.vm)
    a.i(f"s_and_b32 s6, s{S_W}, 1")
    a.i(f"s_lshr_b32 s7, s{S_W}, 1")
    a.i("s_lshl_b32 s8, s6, 10")
    a.i(f"s_add_u32 s8, s8, {L_WQ}")
    a.i(f"v_add_u32 v{VTR}, s8, v{VTR}")
    a.i("s_lshl_b32 s8, s7, 12")
    for q in range(4): a.i(f"v_add_u32 v{VXR+q}, s8, v{VXR+q}")
    a.wait(vm="all")
    a.i("s_barrier")
    stamp(a, 1, 0)
    def chain(a, ACC, FR, wread, orient):
        NB = 4
        def rd(sx):
            b = FR + 8*(sx % NB)
            wread(sx, b)
            a.i(f"ds_read_b128 {v(b+4,4)}, v{VXR + (sx&3)} offset:{(sx>>2)*8192}", tag=("c", sx))
        for sx in range(NB-1): rd(sx)
        for sx in range(32):
            if sx + NB - 1 < 32: rd(sx + NB - 1)
            a.wait(lg=("c", sx))
            b = FR + 8*(sx % NB)
            A_, B_ = (b, b+4) if orient == 0 else (b+4, b)
            mfma(a, ACC, A_, B_, "0" if sx == 0 else None)
    def wq_read(sx, b):
        a.i(f"ds_read_b64_tr_b16 {v(b,2)}, v{VTR} offset:{sx*2048}")
        a.i(f"ds_read_b64_tr_b16 {v(b+2,2)}, v{VTR} offset:{sx*2048+256}")
    chain(a, 64, 32, wq_read, 0)
    a.i(f"s_lshl_b32 s8, s{S_G}, 3")
    a.i(f"s_add_u32 s8, s8, s{S_MU}")
    a.i("s_lshl_b32 s8, s8, 3")
    a.i("s_lshl_b32 s9, s6, 2")
    a.i("s_add_u32 s8, s8, s9")
    a.i("s_add_u32 s8, s8, s7")
    a.i("s_lshl_b32 s8, s8, 10")
    a.i(f"s_add_u32 s8, s8, {WS_Q}")
    a.i(f"s_mov_b32 s10, {f2u(QSCALE):#x}")
    for r in range(16): a.i(f"v_mul_f32 v{64+r}, s10, v{64+r}")
    for j in range(8): a.i(f"v_cvt_pk_bf16_f32 v{32+j}, v{64+2*j}, v{65+2*j}")
    for e in range(2):
        a.i(f"buffer_store_dwordx4 {v(32+4*e,4)}, v{VLIN}, s[{SWS}:{SWS+3}], s8 offen offset:{2048*e}")
    a.i("s_barrier")
    a.i("s_endpgm")
    a.label("L_front_G")
    a.vm = vm_at_split; a.lg = []
    GW = 6
    a.i(f"s_sub_u32 s{GW}, s{S_W}, 4")
    srd(a, SW1, "w1"); srd(a, SB1, "b1"); srd(a, SGT, "gate")
    GF = 128
    for kb in range(8):
        a.i(f"buffer_load_dwordx4 {v(GF+4*kb,4)}, v{VGS}, s[{SGT}:{SGT+3}], 0 offen offset:{kb*128}", tag="gate")
    BA, ONE = 160, 168
    a.i(f"s_mul_i32 s12, s{S_MU}, 448")
    a.i(f"s_lshl_b32 s9, s{GW}, 7")
    a.i("s_add_u32 s12, s12, s9")
    a.i("s_add_u32 s13, s12, 64")
    a.i(f"s_cmp_eq_u32 s{GW}, 3")
    a.i(f"s_cselect_b32 s13, {BIG:#x}, s13")
    a.i("v_lshlrev_b32 v14, 1, v0")
    a.i("v_cmp_gt_u32 vcc, 32, v0")
    a.i(f"v_mov_b32 v15, {BIG:#x}")
    a.i("v_cndmask_b32 v14, v15, v14, vcc")
    for p in range(2):
        a.i(f"buffer_load_ushort v{BA+4*p}, v14, s[{SB1}:{SB1+3}], s{12+p} offen", tag="b1")
        for r in range(1, 4): a.i(f"v_mov_b32 v{BA+4*p+r}, 0")
    bias_frags(a, ONE, 15)
    wchunk_addr(a, VW35, 14, 3584)
    tr_addr(a, VTRK, 14, 15, 8, 5, False)
    a.i(f"v_add_u32 v{VTRK}, {L_WKV}, v{VTRK}")
    a.wait(vm="wq")
    a.i("s_barrier")
    a.i(f"s_cmp_lg_u32 s{GW}, 0")
    a.i("s_cbranch_scc1 L_front_nokv")
    a.i(f"s_cmp_ge_u32 s{S_MU}, 4")
    a.i("s_cbranch_scc1 L_front_b2")
    vm_save = list(a.vm)
    a.i("s_setprio 2")
    a.i(f"s_and_b32 s7, s{S_MU}, 1")
    a.i("s_lshl_b32 s8, s7, 12")
    XR2 = 16
    for q in range(4): a.i(f"v_add_u32 v{XR2+q}, s8, v{VXR+q}")
    a.i(f"s_lshl_b32 s8, s{S_G}, 1")
    a.i("s_add_u32 s8, s8, s7")
    a.i("s_lshl_b32 s8, s8, 11")
    a.i(f"s_add_u32 s8, s8, {WS_KV}")
    def wk_read(sx, b):
        a.i(f"ds_read_b64_tr_b16 {v(b,2)}, v{VTRK} offset:{sx*512}")
        a.i(f"ds_read_b64_tr_b16 {v(b+2,2)}, v{VTRK} offset:{sx*512+128}")
    VXR_save = VXR
    a.i(f"s_cmp_ge_u32 s{S_MU}, 2")
    a.i("s_cbranch_scc1 L_front_V")
    VXR = XR2
    chain(a, 64, 32, wk_read, 0)
    for j in range(4): a.i(f"v_cvt_pk_bf16_f32 v{32+j}, v{64+2*j}, v{65+2*j}")
    a.i(f"buffer_store_dwordx4 {v(32,4)}, v{VLIN}, s[{SWS}:{SWS+3}], s8 offen")
    a.i("s_setprio 0")
    a.i("s_branch L_front_b2")
    a.label("L_front_V")
    chain(a, 64, 32, wk_read, 1)
    VXR = VXR_save
    a.i("v_and_b32 v14, 16, v0")
    a.i("v_cmp_ne_u32 vcc, 0, v14")
    a.i("v_lshlrev_b32 v14, 5, v14")
    a.i("v_and_b32 v15, 15, v0")
    a.i("v_lshl_add_u32 v14, v15, 4, v14")
    a.i("v_lshrrev_b32 v15, 5, v0")
    a.i("v_lshl_add_u32 v14, v15, 8, v14")
    for j in range(8): a.i(f"v_cvt_pk_bf16_f32 v{32+j}, v{64+2*j}, v{65+2*j}")
    for j in range(4): a.i(f"v_cndmask_b32 v{32+j}, v{32+j}, v{36+j}, vcc")
    a.i(f"buffer_store_dwordx4 {v(32,4)}, v14, s[{SWS}:{SWS+3}], s8 offen offset:1024")
    a.i("s_setprio 0")
    a.i("s_branch L_front_b2")
    a.label("L_front_nokv")
    a.vm = list(vm_save); a.lg = []
    a.i(f"s_cmp_lt_u32 s{GW}, 2")
    a.i("s_cbranch_scc1 L_front_b2")
    a.i(f"s_and_b32 s7, s{GW}, 1")
    a.i("s_lshl_b32 s8, s7, 10")
    a.i(f"v_add_u32 v14, s8, v{VLIN}")
    XG, AC = 32, 20
    for i in range(4): a.i(f"v_mov_b32 v{AC+i}, 0")
    def grd(kb):
        for i in range(4):
            a.i(f"ds_read_b128 {v(XG + 16*(kb&1) + 4*i,4)}, v14 offset:{kb*8192 + i*2048}", tag=("g", kb))
    grd(0)
    a.wait(vm="gate")
    for kb in range(8):
        if kb < 7: grd(kb+1)
        a.wait(lg=("g", kb))
        for r in range(4):
            for i in range(4):
                a.i(f"v_dot2_f32_bf16 v{AC+i}, v{XG + 16*(kb&1) + 4*i + r}, v{GF+4*kb+r}, v{AC+i}")
    for mod in ("quad_perm:[1,0,3,2]", "quad_perm:[2,3,0,1]", "row_half_mirror"):
        for i in range(4):
            a.i(f"v_add_f32_dpp v{AC+i}, v{AC+i}, v{AC+i} {mod} row_mask:0xf bank_mask:0xf")
    a.i(f"s_mov_b32 s10, {f2u(-math.log2(math.e)):#x}")
    for i in range(4): a.i(f"v_mul_f32 v{AC+i}, s10, v{AC+i}")
    for i in range(4): a.i(f"v_exp_f32 v{AC+i}, v{AC+i}")
    for i in range(4): a.i(f"v_add_f32 v{AC+i}, 1.0, v{AC+i}")
    for i in range(4): a.i(f"v_rcp_f32 v{AC+i}, v{AC+i}")
    a.i("v_lshrrev_b32 v15, 3, v0")
    a.i("v_lshlrev_b32 v15, 2, v15")
    a.i(f"s_lshl_b32 s8, s{S_G}, 8")
    a.i("s_lshl_b32 s9, s7, 5")
    a.i("s_add_u32 s8, s8, s9")
    a.i(f"s_add_u32 s8, s8, {WS_G}")
    for i in range(4):
        a.i(f"buffer_store_dword v{AC+i}, v15, s[{SWS}:{SWS+3}], s8 offen offset:{64*i}")
    a.label("L_front_b2")
    a.i("s_waitcnt vmcnt(0) lgkmcnt(0)"); a.vm = []; a.lg = []
    a.i("s_barrier")
    ACC, WF, XF = 64, 32, 48
    a.i(f"s_mul_i32 s14, s{GW}, {RING_W}")
    a.i(f"s_add_u32 s14, s14, {L_RING}")
    a.i(f"v_add_u32 v{VTR}, s14, v{VTR}")
    def dma(sx):
        for p in range(2):
            a.i(f"s_add_u32 m0, s14, {(sx % RD)*2048 + p*1024}")
            a.i(f"buffer_load_dwordx4 v{VW35}, s[{SW1}:{SW1+3}], s{12+p} offen lds", tag=("w", sx))
            a.i(f"s_add_u32 s{12+p}, s{12+p}, {16*3584}")
    for sx in range(RD): dma(sx)
    for p in range(2):
        for rh in range(2): mfma(a, ACC + 32*p + 16*rh, BA + 4*p, ONE, "0")
    def rd(sx):
        a.wait(vm=("w", sx))
        b = sx & 1
        for p in range(2):
            o = (sx % RD)*2048 + p*1024
            a.i(f"ds_read_b64_tr_b16 {v(WF+8*b+4*p,2)}, v{VTR} offset:{o}")
            a.i(f"ds_read_b64_tr_b16 {v(WF+8*b+4*p+2,2)}, v{VTR} offset:{o+256}")
        for rh in range(2):
            a.i(f"ds_read_b128 {v(XF+8*b+4*rh,4)}, v{VXR+(sx&3)} offset:{(sx>>2)*8192 + rh*4096}", tag=("r", sx))
    rd(0)
    for sx in range(32):
        if sx < 31: rd(sx+1)
        a.wait(lg=("r", sx))
        b = sx & 1
        for p in range(2):
            for rh in range(2):
                mfma(a, ACC + 32*p + 16*rh, WF+8*b+4*p, XF+8*b+4*rh)
        if sx + RD < 32: dma(sx + RD)
    a.i(f"s_mul_i32 s8, s{S_G}, 112")
    a.i(f"s_mul_i32 s9, s{S_MU}, 14")
    a.i("s_add_u32 s8, s8, s9")
    a.i(f"s_lshl_b32 s9, s{GW}, 2")
    a.i("s_add_u32 s8, s8, s9")
    a.i("s_lshl_b32 s8, s8, 11")
    a.i(f"s_add_u32 s12, s8, {WS_H}")
    a.i("s_add_u32 s13, s12, 4096")
    a.i(f"s_cmp_eq_u32 s{GW}, 3")
    a.i(f"s_cselect_b32 s13, {BIG:#x}, s13")
    a.i("s_nop 7")
    for p in range(2):
        for rh in range(2):
            t = ACC + 32*p + 16*rh
            o = 128 + 8*(2*p+rh)
            for r in range(16): a.i(f"v_max_f32 v{t+r}, 0, v{t+r}")
            for r in range(0, 16, 2): a.i(f"v_pk_mul_f32 {v(t+r,2)}, {v(t+r,2)}, {v(t+r,2)}")
            for j in range(8): a.i(f"v_cvt_pk_bf16_f32 v{o+j}, v{t+2*j}, v{t+2*j+1}")
            for u in range(2):
                a.i(f"buffer_store_dwordx4 {v(o+4*u,4)}, v{VLIN}, s[{SWS}:{SWS+3}], s{12+p} offen offset:{u*2048 + rh*1024}")
    stamp(a, 2, 0)
    a.label(END)
    a.i("s_endpgm")
    return a.finish()

def attn_slot(a, i, Q, KV, S, Pq, O, cur, nxt, extra):
    Sc = S + 16*(i & 1); Sn = S + 16*((i+1) & 1)
    e = lambda r: a.i(f"v_exp_f32 v{Sc+r}, v{Sc+r}")
    c = lambda j: a.i(f"v_cvt_pk_bf16_f32 v{Pq+j}, v{Sc+2*j}, v{Sc+2*j+1}")
    def ex(k):
        for t in extra.get(k, []):
            t() if callable(t) else a.i(t)
    e(0); e(1)
    ip = (i - 1) % 8
    setp = cur if i > 0 else nxt
    mfma(a, O + 16*ip, KV + 12*setp + 8, Pq + 4)
    ex(0)
    for r in range(2, 7): e(r)
    inx = (i + 1) % 8
    setn = cur if i < 7 else nxt
    mfma(a, Sn, KV + 12*setn, Q + 4*inx, "0")
    ex(1)
    e(7)
    for j in range(4): c(j)
    e(8); e(9)
    mfma(a, O + 16*i, KV + 12*cur + 4, Pq)
    ex(2)
    for r in range(10, 16): e(r)
    for j in range(4, 8): c(j)

def attn():
    a = Asm()
    END = "L_attn_end"
    entry(a, END)
    SWS = 44
    VLIN, VV, VG = 2, 3, 4
    Q, KV, S, Pq, F, O = 8, 40, 64, 96, 104, 128
    a.i(f"v_lshlrev_b32 v{VLIN}, 4, v0")
    a.i("v_and_b32 v6, 15, v0")
    a.i("v_lshrrev_b32 v7, 5, v0")
    a.i("v_lshlrev_b32 v7, 8, v7")
    a.i(f"v_lshl_add_u32 v{VV}, v6, 4, v7")
    a.i("s_mov_b32 s48, 0xffff")
    a.i("s_mov_b32 s49, 0xffff")
    a.i("s_waitcnt lgkmcnt(0)")
    stamp(a, 3, 1, (124, 125))
    srd(a, SWS, "ws")
    a.i(f"s_lshl_b32 s50, s{S_W}, 15")
    a.i(f"s_add_u32 s50, s50, {WS_KV}")
    a.i(f"s_add_u32 s51, s50, {15*2048}")
    a.i("v_and_b32 v6, 16, v0")
    a.i("v_cmp_ne_u32 vcc, 0, v6")
    a.i("v_mov_b32 v7, 0x3f803f80")
    a.i("v_cndmask_b32 v7, 0, v7, vcc")
    for st in range(2):
        for r in range(4, 12): a.i(f"v_mov_b32 v{KV+12*st+r}, v7")
    def kvload(st):
        return [
            lambda: a.i(f"buffer_load_dwordx4 {v(KV+12*st,4)}, v{VLIN}, s[{SWS}:{SWS+3}], s50 offen", tag="kv"),
            "s_mov_b64 exec, s[48:49]",
            lambda: a.i(f"buffer_load_dwordx4 {v(KV+12*st+4,4)}, v{VV}, s[{SWS}:{SWS+3}], s50 offen offset:1024", tag="kv"),
            lambda: a.i(f"buffer_load_dwordx4 {v(KV+12*st+8,4)}, v{VV}, s[{SWS}:{SWS+3}], s50 offen offset:1536", tag="kv"),
            "s_mov_b64 exec, -1"]
    for t in kvload(0): t() if callable(t) else a.i(t)
    a.i(f"s_lshl_b32 s8, s{S_G}, 3")
    a.i(f"s_add_u32 s8, s8, s{S_MU}")
    a.i("s_lshl_b32 s8, s8, 13")
    a.i(f"s_add_u32 s8, s8, {WS_Q}")
    a.i("s_add_u32 s9, s8, 4096")
    for i in range(8):
        a.i(f"buffer_load_dwordx4 {v(Q+4*i,4)}, v{VLIN}, s[{SWS}:{SWS+3}], s{8 + (i>>2)} offen offset:{(i&3)*1024}", tag="q")
    a.i("v_and_b32 v6, 31, v0")
    a.i("v_lshlrev_b32 v6, 2, v6")
    a.i(f"s_lshl_b32 s8, s{S_G}, 8")
    a.i(f"s_add_u32 s8, s8, {WS_G}")
    for rh in range(2):
        a.i(f"buffer_load_dword v{VG+rh}, v6, s[{SWS}:{SWS+3}], s8 offen offset:{128*rh}", tag="g")
    for r in range(128): a.i(f"v_mov_b32 v{O+r}, 0")
    for r in range(4, 8): a.i(f"v_mov_b32 v{Pq+r}, 0")
    a.wait(vm="all")
    stamp(a, 4, 1, (124, 125))
    a.wait(vm="all")
    mfma(a, S, KV, Q, "0")
    a.i("s_mov_b32 s52, 8")
    a.i("s_nop 11")
    a.raw(".p2align 6")
    a.label("L_attn_loop")
    for half in range(2):
        cur, nxt = half, 1 - half
        ld = kvload(nxt)
        for i in range(8):
            extra = {}
            if i == 0:
                extra = {0: ["s_add_u32 s50, s50, 2048"], 1: ["s_min_u32 s50, s50, s51"], 2: [ld[0]]}
            if i == 1:
                extra = {0: ld[1:]}
            if i == 7:
                extra = {0: [lambda: a.wait(vm="all")]}
                if half == 1:
                    extra[1] = ["s_sub_u32 s52, s52, 1"]; extra[2] = ["s_cmp_lg_u32 s52, 0"]
            attn_slot(a, i, Q, KV, S, Pq, O, cur, nxt, extra)
    a.i("s_cbranch_scc1 L_attn_loop")
    a.i("s_nop 0")
    mfma(a, O + 16*7, KV + 12*1 + 8, Pq + 4)
    stamp(a, 5, 1, (124, 125))
    a.i("v_lshlrev_b32 v6, 2, v0")
    FQ = S
    for w in range(4):
        if w < 3:
            a.i(f"s_cmp_lg_u32 s{S_W}, {w}")
            a.i(f"s_cbranch_scc1 L_attn_x{w+1}")
        for i in list(range(8)):
            own = i >> 1
            if own == w: continue
            idx = w if w < own else w - 1
            o = (i*3 + idx)*2304
            a.i(f"ds_write_b128 v{VLIN}, {v(O+16*i,4)} offset:{o}")
            a.i(f"ds_write_b128 v{VLIN}, {v(O+16*i+4,4)} offset:{o+1024}")
            a.i(f"ds_write_b32 v6, v{O+16*i+8} offset:{o+2048}")
        a.i("s_waitcnt lgkmcnt(0)"); a.lg = []
        a.i("s_barrier")
        T = S
        land = [O + 16*((2*w + 2 + k) % 8) for k in range(6)]
        for rh in range(2):
            i = 2*w + rh
            for idx in range(3):
                o = (i*3 + idx)*2304; d = land[rh*3 + idx]
                a.i(f"ds_read_b128 {v(d,4)}, v{VLIN} offset:{o}")
                a.i(f"ds_read_b128 {v(d+4,4)}, v{VLIN} offset:{o+1024}")
                a.i(f"ds_read_b32 v{d+8}, v6 offset:{o+2048}", tag=("x", rh, idx))
        for rh in range(2):
            i = 2*w + rh
            for j in range(4): a.i(f"v_mov_b32 v{F+20+4*rh+j - 0}, v{Q+4*i+j}") if False else None
            a.wait(lg=("x", rh, 1))
            for r in range(9): a.i(f"v_add_f32 v{land[rh*3]+r}, v{land[rh*3]+r}, v{land[rh*3+1]+r}")
            a.wait(lg=("x", rh, 2))
            for r in range(9): a.i(f"v_add_f32 v{O+16*i+r}, v{O+16*i+r}, v{land[rh*3+2]+r}")
            for r in range(9): a.i(f"v_add_f32 v{F+10*rh+r}, v{O+16*i+r}, v{land[rh*3]+r}")
        for rh in range(2):
            i = 2*w + rh
            for j in range(4): a.i(f"v_mov_b32 v{Pq+4*rh+j}, v{Q+4*i+j}")
        if w < 3: a.i("s_branch L_attn_fin")
        if w < 3: a.label(f"L_attn_x{w+1}")
    a.label("L_attn_fin")
    a.i(f"s_lshl_b32 s8, s{S_G}, 5")
    a.i(f"s_lshl_b32 s9, s{S_MU}, 2")
    a.i("s_add_u32 s8, s8, s9")
    a.i(f"s_add_u32 s8, s8, s{S_W}")
    a.i("s_lshl_b32 s8, s8, 11")
    a.i(f"s_add_u32 s8, s8, {WS_O}")
    a.i(f"s_mov_b32 s10, {f2u(2.0**-30):#x}")
    a.i(f"s_mov_b32 s11, {f2u(2.0**100):#x}")
    a.i("s_mov_b32 s12, 0x7f800000")
    for rh in range(2):
        f = F + 10*rh
        a.i(f"v_add_f32 v6, abs(v{f}), abs(v{f+1})")
        for r in range(2, 8): a.i(f"v_add_f32 v6, v6, abs(v{f+r})")
        a.i(f"v_cmp_le_f32 s[54:55], s10, v{f+8}")
        a.i(f"v_cmp_ge_f32 s[56:57], s11, v{f+8}")
        a.i(f"v_cmp_gt_f32 vcc, s12, v6")
        a.i("s_and_b64 s[54:55], s[54:55], s[56:57]")
        a.i("s_and_b64 s[54:55], s[54:55], vcc")
        a.i("s_cmp_eq_u64 s[54:55], -1")
        a.i(f"s_cbranch_scc0 L_attn_slow{rh}")
        a.label(f"L_attn_ok{rh}")
        a.i(f"v_rcp_f32 v6, v{f+8}")
        a.i(f"v_mul_f32 v6, v6, v{VG+rh}")
        for r in range(8): a.i(f"v_mul_f32 v{f+r}, v6, v{f+r}")
        for j in range(4): a.i(f"v_cvt_pk_bf16_f32 v{S+4*rh+j}, v{f+2*j}, v{f+2*j+1}")
        a.i(f"buffer_store_dwordx4 {v(S+4*rh,4)}, v{VLIN}, s[{SWS}:{SWS+3}], s8 offen offset:{1024*rh}")
    a.label(END)
    a.i("s_endpgm")
    for rh in range(2):
        f = F + 10*rh; q = Pq + 4*rh
        SS, CC, OO, PP = O, O + 16, O + 32, O + 48
        a.label(f"L_attn_slow{rh}")
        a.i("s_nop 7")
        a.i(f"s_mov_b32 s50, {WS_KV}")
        a.i("v_mov_b32 v7, 0xff800000")
        a.label(f"L_attn_slow{rh}_a")
        a.i(f"buffer_load_dwordx4 {v(KV,4)}, v{VLIN}, s[{SWS}:{SWS+3}], s50 offen")
        a.i("s_waitcnt vmcnt(0)")
        mfma(a, SS, KV, q, "0")
        a.i("s_nop 15")
        for r in range(0, 16, 2): a.i(f"v_max3_f32 v7, v7, v{SS+r}, v{SS+r+1}")
        a.i("s_add_u32 s50, s50, 2048")
        a.i(f"s_cmp_lt_u32 s50, {WS_KV + 64*2048}")
        a.i(f"s_cbranch_scc1 L_attn_slow{rh}_a")
        a.i("v_mov_b32 v6, v7")
        a.i("s_nop 1")
        a.i("v_permlane32_swap_b32 v6, v7")
        a.i("v_max_f32 v7, v6, v7")
        for r in range(16):
            a.i(f"v_sub_f32 v{CC+r}, 0, v7")
            a.i(f"v_mov_b32 v{OO+r}, 0")
        a.i(f"s_mov_b32 s50, {WS_KV}")
        a.label(f"L_attn_slow{rh}_b")
        for t in kvload(0): t() if callable(t) else a.i(t)
        a.i("s_waitcnt vmcnt(0)")
        mfma(a, SS, KV, q, v(CC, 16))
        a.i("s_nop 15")
        for r in range(16): a.i(f"v_exp_f32 v{SS+r}, v{SS+r}")
        a.i("s_nop 0")
        for j in range(8): a.i(f"v_cvt_pk_bf16_f32 v{PP+j}, v{SS+2*j}, v{SS+2*j+1}")
        a.i("s_nop 1")
        mfma(a, OO, KV + 4, PP)
        mfma(a, OO, KV + 8, PP + 4)
        a.i("s_nop 15")
        a.i("s_add_u32 s50, s50, 2048")
        a.i(f"s_cmp_lt_u32 s50, {WS_KV + 64*2048}")
        a.i(f"s_cbranch_scc1 L_attn_slow{rh}_b")
        for r in range(9): a.i(f"v_mov_b32 v{f+r}, v{OO+r}")
        a.i("s_nop 1")
        a.i(f"s_branch L_attn_ok{rh}")
    a.vm = []; a.lg = []
    return a.finish()

def back():
    a = Asm()
    END = "L_back_end"
    entry(a, END)
    SWS, SW2, SWO, SB2, SOUT = 44, 48, 52, 56, 60
    VLIN, VW1K, VTR, VG = 2, 3, 4, 6
    ACC, WF, HR, BA, ONE = 64, 32, 128, 16, 24
    L_PART = 0; RING0 = 73728
    GW = S_W
    a.i(f"v_lshlrev_b32 v{VLIN}, 4, v0")
    wchunk_addr(a, VW1K, 14, 1024)
    tr_addr(a, VTR, 14, 15, 4, 6, True)
    a.i(f"s_mul_i32 s14, s{GW}, {RING_W}")
    a.i(f"s_add_u32 s14, s14, {RING0}")
    a.i(f"v_add_u32 v{VTR}, s14, v{VTR}")
    a.i("s_waitcnt lgkmcnt(0)")
    stamp(a, 6, 2)
    srd(a, SW2, "w2"); srd(a, SWS, "ws"); srd(a, SWO, "wo"); srd(a, SB2, "b2"); srd(a, SOUT, "out")
    a.i(f"s_mul_i32 s12, s{GW}, {28*16384}")
    a.i(f"s_lshl_b32 s8, s{S_MU}, 7")
    a.i("s_add_u32 s12, s12, s8")
    a.i(f"s_lshl_b32 s15, s{GW}, 17")
    a.i("s_add_u32 s15, s15, s8")
    a.i(f"s_mul_i32 s13, s{S_G}, 112")
    a.i(f"s_mul_i32 s9, s{GW}, 28")
    a.i("s_add_u32 s13, s13, s9")
    a.i("s_lshl_b32 s13, s13, 11")
    a.i(f"s_add_u32 s13, s13, {WS_H}")
    a.i(f"s_lshl_b32 s9, s{S_G}, 2")
    a.i(f"s_add_u32 s9, s9, s{GW}")
    a.i("s_lshl_b32 s9, s9, 14")
    a.i(f"s_add_u32 s9, s9, {WS_O}")
    NS = 36
    def issue(sx):
        wsrd, wso, hso = (SW2, 12, 13) if sx < 28 else (SWO, 15, 9)
        for p in range(2):
            a.i(f"s_add_u32 m0, s14, {(sx % RD)*2048 + p*1024 - 64*p}")
            a.i(f"buffer_load_dwordx4 v{VW1K}, s[{wsrd}:{wsrd+3}], s{wso} offen offset:{64*p} lds")
        a.i(f"s_add_u32 s{wso}, s{wso}, 16384")
        for rh in range(2):
            a.i(f"buffer_load_dwordx4 {v(HR + 8*(sx % RD) + 4*rh,4)}, v{VLIN}, s[{SWS}:{SWS+3}], s{hso} offen offset:{1024*rh}", tag=("w", sx))
        a.i(f"s_add_u32 s{hso}, s{hso}, 2048")
    a.i("v_lshlrev_b32 v14, 1, v0")
    a.i("v_cmp_gt_u32 vcc, 32, v0")
    a.i(f"v_mov_b32 v15, {BIG:#x}")
    a.i("v_cndmask_b32 v14, v15, v14, vcc")
    a.i(f"s_cmp_eq_u32 s{GW}, 0")
    a.i(f"s_cselect_b32 s10, s8, {BIG:#x}")
    for p in range(2):
        a.i(f"buffer_load_ushort v{BA+4*p}, v14, s[{SB2}:{SB2+3}], s10 offen offset:{64*p}", tag="b2")
        for r in range(1, 4): a.i(f"v_mov_b32 v{BA+4*p+r}, 0")
    a.i("v_and_b32 v14, 31, v0")
    a.i("v_lshlrev_b32 v14, 2, v14")
    a.i(f"s_lshl_b32 s10, s{S_G}, 8")
    a.i(f"s_add_u32 s10, s10, {WS_G}")
    for rh in range(2):
        a.i(f"buffer_load_dword v{VG+rh}, v14, s[{SWS}:{SWS+3}], s10 offen offset:{128*rh}", tag="b2")
    for sx in range(RD): issue(sx)
    bias_frags(a, ONE, 15)
    a.wait(vm="b2")
    for p in range(2):
        for rh in range(2): mfma(a, ACC + 32*p + 16*rh, BA + 4*p, ONE, "0")
    for rh in range(2): a.i(f"v_sub_f32 v{VG+rh}, 1.0, v{VG+rh}")
    def rd(sx):
        a.wait(vm=("w", sx))
        b = sx & 1
        for p in range(2):
            o = (sx % RD)*2048 + p*1024
            a.i(f"ds_read_b64_tr_b16 {v(WF+8*b+4*p,2)}, v{VTR} offset:{o}")
            a.i(f"ds_read_b64_tr_b16 {v(WF+8*b+4*p+2,2)}, v{VTR} offset:{o+512}", tag=("r", sx))
    rd(0)
    for sx in range(NS):
        if sx + 1 < NS: rd(sx+1)
        a.wait(lg=("r", sx))
        b = sx & 1
        if sx == 28:
            a.i("s_nop 7")
            for p in range(2):
                for rh in range(2):
                    t = ACC + 32*p + 16*rh
                    for r in range(16): a.i(f"v_mul_f32 v{t+r}, v{VG+rh}, v{t+r}")
        for p in range(2):
            for rh in range(2):
                mfma(a, ACC + 32*p + 16*rh, WF+8*b+4*p, HR + 8*(sx % RD) + 4*rh)
        if sx + RD < NS: issue(sx + RD)
    PITCH = 272; PW = 64*PITCH
    a.i("v_and_b32 v14, 31, v0")
    a.i(f"v_mul_u32_u24 v14, {PITCH}, v14")
    a.i("v_lshrrev_b32 v15, 5, v0")
    a.i("v_lshl_add_u32 v14, v15, 4, v14")
    a.i(f"s_mul_i32 s10, s{GW}, {PW}")
    a.i("v_add_u32 v14, s10, v14")
    a.i("v_lshrrev_b32 v15, 3, v0")
    a.i(f"s_lshl_b32 s10, s{GW}, 4")
    a.i("v_add_u32 v15, s10, v15")
    a.i("v_and_b32 v13, 7, v0")
    a.i(f"v_mul_u32_u24 v12, {PITCH}, v15")
    a.i("v_lshl_add_u32 v12, v13, 5, v12")
    a.i("v_lshlrev_b32 v15, 10, v15")
    a.i("v_lshl_add_u32 v15, v13, 4, v15")
    a.i(f"s_lshl_b32 s10, s{S_G}, 16")
    a.i("s_add_u32 s10, s10, s8")
    a.i("s_add_u32 s11, s10, 8192")
    for p in range(2):
        for rh in range(2):
            for q in range(4):
                a.i(f"ds_write_b128 v14, {v(ACC + 32*p + 16*rh + 4*q,4)} offset:{L_PART + rh*32*PITCH + (32*p + 8*q)*4}")
    a.i("s_waitcnt lgkmcnt(0)"); a.lg = []
    a.i("s_barrier")
    a.i(f"v_add_u32 v13, {2*PW}, v12")
    for rnd in range(2):
        for w in range(4):
            for hf in range(2):
                base = 12 if w < 2 else 13
                a.i(f"ds_read_b128 {v(128 + rnd*32 + w*8 + 4*hf,4)}, v{base} offset:{L_PART + (w&1)*PW + rnd*8*PITCH + 16*hf}", tag=("p", rnd, w))
    for rnd in range(2):
        b = 128 + rnd*32
        a.wait(lg=("p", rnd, 1))
        for r in range(0, 8, 2): a.i(f"v_pk_add_f32 {v(b+r,2)}, {v(b+r,2)}, {v(b+8+r,2)}")
        a.wait(lg=("p", rnd, 3))
        for r in range(0, 8, 2): a.i(f"v_pk_add_f32 {v(b+16+r,2)}, {v(b+16+r,2)}, {v(b+24+r,2)}")
        for r in range(0, 8, 2): a.i(f"v_pk_add_f32 {v(b+r,2)}, {v(b+r,2)}, {v(b+16+r,2)}")
        for j in range(4): a.i(f"v_cvt_pk_bf16_f32 v{b+8+j}, v{b+2*j}, v{b+2*j+1}")
        a.i(f"buffer_store_dwordx4 {v(b+8,4)}, v15, s[{SOUT}:{SOUT+3}], s{10+rnd} offen")
    stamp(a, 7, 2)
    a.label(END)
    a.i("s_endpgm")
    return a.finish()

HEAD = open("cdna_kernels/" + NAME + ".s.ref").read().split("; Override launch")[0]
def kd(name, vg=256):
    return f""".section .rodata,"a"
.p2align 6
.amdhsa_kernel {name}
  .amdhsa_next_free_vgpr {vg}
  .amdhsa_next_free_sgpr 102
  .amdhsa_accum_offset {vg}
  .amdhsa_group_segment_fixed_size 0
  .amdhsa_kernarg_size 112
  .amdhsa_user_sgpr_count 2
  .amdhsa_user_sgpr_kernarg_segment_ptr 1
  .amdhsa_system_sgpr_workgroup_id_x 1
.end_amdhsa_kernel
"""
def build(kernels):
    s_ = HEAD
    for n, blk, lds, body in kernels:
        s_ += f"; @launch kernel={n} grid=(256,1,1) block=({blk},1,1) lds={lds}\n"
    s_ += '.amdgcn_target "amdgcn-amd-amdhsa--gfx950"\n'
    seen = set()
    for n, blk, lds, body in kernels:
        if n in seen: continue
        seen.add(n)
        s_ += f".text\n.globl {n}\n.p2align 8\n.type {n},@function\n{n}:\n{body}" + kd(n)
    return s_

if __name__ == "__main__":
    out = sys.argv[1] if len(sys.argv) > 1 else "v1.s"
    STAMP = len(sys.argv) > 2
    txt = build([("front_kernel", 512, LDS_BYTES, front()), ("attn_kernel", 256, 65536, attn()), ("back_kernel", 256, LDS_BYTES, back())] + ([("diag_kernel", 256, 1024, diag(3))] if STAMP else []))
    open(out, "w").write(txt)
```

```python
import re

TRANS = ("v_exp_f32", "v_log_f32", "v_rcp_f32", "v_rsq_f32", "v_sqrt_f32", "v_sin_f32", "v_cos_f32")

def regs(tok, p):
    tok = tok.strip()
    tok = tok.lstrip("-")
    m = re.fullmatch(r"abs\((.*)\)", tok)
    if m: tok = m.group(1)
    m = re.fullmatch(r"\|(.*)\|", tok)
    if m: tok = m.group(1)
    m = re.fullmatch(p + r"(\d+)", tok)
    if m: return {int(m.group(1))}
    m = re.fullmatch(p + r"\[(\d+):(\d+)\]", tok)
    if m: return set(range(int(m.group(1)), int(m.group(2)) + 1))
    return set()

def vset(tok):
    return regs(tok, "v") | {1000 + x for x in regs(tok, "a")}
def sset(tok):
    t = tok.strip()
    if t == "vcc": return {"vcc"}
    if t in ("vcc_lo", "vcc_hi"): return {"vcc"}
    if t == "exec" or t in ("exec_lo", "exec_hi"): return {"exec"}
    if t == "m0": return {"m0"}
    return regs(t, "s")

class Ins:
    def __init__(self, text):
        self.text = text
        t = text.split(";")[0].strip()
        self.label = None; self.op = None
        self.kind = "other"
        self.vw = set(); self.vr = set(); self.sw = set(); self.sr = set()
        self.A = set(); self.B = set(); self.C = set(); self.passes = 0
        self.states = 1
        self.target = None
        self.wide_store = set()
        if not t or t.startswith("."):
            self.kind = "dir"; self.states = 0; return
        if t.endswith(":"):
            self.label = t[:-1]; self.kind = "label"; self.states = 0; return
        parts = t.split(None, 1)
        op = self.op = parts[0]
        rest = parts[1] if len(parts) > 1 else ""
        ops = []; cur = ""; d = 0
        for ch in rest:
            if ch == "[": d += 1
            if ch == "]": d -= 1
            if ch == "," and d == 0: ops.append(cur.strip()); cur = ""
            else: cur += ch
        if cur.strip(): ops.append(cur.strip())
        mods = ""
        if ops:
            last = ops[-1].split(None, 1)
            ops[-1] = last[0]
            mods = last[1] if len(last) > 1 else ""
        self.ops = ops; self.mods = mods
        if op == "s_nop":
            self.kind = "nop"; self.states = int(ops[0], 0) + 1
        elif op.startswith("v_mfma"):
            self.kind = "mfma"
            self.vw = vset(ops[0]); self.A = vset(ops[1]); self.B = vset(ops[2]); self.C = vset(ops[3])
            self.vr = self.A | self.B | self.C
            self.passes = 8 if "32x32x16" in op else 4 if "16x16x32" in op else None
            assert self.passes
        elif op.startswith("v_"):
            self.kind = "valu"
            base = op.replace("_e32", "").replace("_e64", "").replace("_dpp", "").replace("_sdwa", "")
            self.base = base
            if base.startswith("v_cmp"):
                self.sw = sset(ops[0]); srcs = ops[1:]
                if base.startswith("v_cmpx"): self.sw |= {"exec"}
            elif base in ("v_readfirstlane_b32", "v_readlane_b32"):
                self.sw = sset(ops[0]); srcs = ops[1:]
            elif base.startswith("v_permlane") and "swap" in base:
                self.vw = vset(ops[0]) | vset(ops[1]); srcs = ops
            elif base in ("v_add_co_u32", "v_sub_co_u32", "v_addc_co_u32", "v_subb_co_u32"):
                self.vw = vset(ops[0]); self.sw = sset(ops[1]); srcs = ops[2:]
            else:
                self.vw = vset(ops[0]); srcs = ops[1:]
                if base in ("v_fmac_f32", "v_dot2c_f32_bf16", "v_writelane_b32") or "dpp" in op or "dpp" in mods or "row_" in mods or "quad_perm" in mods:
                    srcs = ops
            for s in srcs:
                self.vr |= vset(s); self.sr |= sset(s)
            if base == "v_cndmask_b32" and len(ops) == 3: self.sr |= {"vcc"}
            self.trans = base in TRANS
            self.dpp = ("dpp" in op) or ("row_" in mods) or ("quad_perm" in mods)
            self.dot = base.startswith("v_dot")
        elif op.startswith("buffer_") or op.startswith("global_"):
            self.kind = "vmem"
            lds = re.search(r"\blds\b", mods) is not None or "load_lds" in op
            self.lds = lds
            if op in ("buffer_inv", "buffer_wbl2"):
                pass
            elif "load" in op and not lds:
                self.vw = vset(ops[0])
                if "d16" in op: self.vr |= vset(ops[0])
                for s in ops[1:]: self.vr |= vset(s); self.sr |= sset(s)
            elif "atomic" in op and "sc0" in mods.split():
                self.vw = vset(ops[0])
                for s in ops: self.vr |= vset(s); self.sr |= sset(s)
            else:
                for s in ops: self.vr |= vset(s); self.sr |= sset(s)
                if ("store" in op) and ("x3" in op or "x4" in op):
                    self.wide_store = vset(ops[0]) if op.startswith("buffer_") else vset(ops[1])
            if lds: self.sr |= {"m0"}
        elif op.startswith("ds_"):
            self.kind = "ds"
            if "read" in op or "permute" in op or "swizzle" in op or "_rtn" in op:
                self.vw = vset(ops[0])
                for s in ops[1:]: self.vr |= vset(s)
            else:
                for s in ops: self.vr |= vset(s)
        elif op.startswith("s_"):
            self.kind = "salu"
            if op.startswith("s_cbranch") or op == "s_branch":
                self.kind = "branch"; self.target = ops[0]
            elif op.startswith("s_cmp") or op.startswith("s_bitcmp"):
                for s in ops: self.sr |= sset(s)
            elif op in ("s_waitcnt", "s_barrier", "s_endpgm", "s_setprio", "s_sleep"):
                pass
            else:
                if ops:
                    self.sw = sset(ops[0])
                    for s in ops[1:]: self.sr |= sset(s)
                if "saveexec" in op: self.sw |= {"exec"}

def need(prev, cur):
    n = 0
    pk, ck = prev.kind, cur.kind
    if pk == "valu":
        if ck == "mfma" and prev.vw & cur.vr: n = max(n, 3 if prev.dot else 2)
        if ck == "mfma" and "exec" in prev.sw: n = max(n, 4)
        if ck == "valu":
            if prev.trans and not cur.trans and prev.vw & cur.vr: n = max(n, 1)
            if cur.dpp and prev.vw & cur.vr: n = max(n, 2)
            if cur.dpp and "exec" in prev.sw: n = max(n, 5)
            if cur.base.startswith("v_permlane") and prev.vw & cur.vr: n = max(n, 2)
            if cur.base.startswith("v_permlane") and "exec" in prev.sw: n = max(n, 4)
            if cur.base in ("v_readfirstlane_b32", "v_readlane_b32") and prev.vw & cur.vr: n = max(n, 1)
            if cur.base in ("v_readfirstlane_b32", "v_readlane_b32", "v_writelane_b32") and "exec" in prev.sw: n = max(n, 4)
            if prev.sw & cur.sr:
                n = max(n, 4 if cur.base in ("v_readlane_b32", "v_writelane_b32") else 2)
            if prev.dot and prev.vw & (cur.vr | cur.vw):
                if cur.base == prev.base:
                    srcAB = set()
                    o = cur.ops
                    for s in o[1:3]: srcAB |= vset(s)
                    if prev.vw & srcAB: n = max(n, 3)
                else: n = max(n, 3)
        if ck == "vmem" and prev.sw & cur.sr: n = max(n, 5)
        if ck in ("vmem", "ds") and prev.dot and prev.vw & cur.vr: n = max(n, 3)
        if ck in ("salu", "branch") and prev.sw & cur.sr: n = max(n, 1)
    if pk == "mfma":
        P = prev.passes
        big = {4: 8, 8: 12}[P]
        if ck == "mfma":
            if prev.vw & (cur.A | cur.B): n = max(n, big)
            if prev.vw & cur.C and not (prev.vw == cur.C and cur.passes == P): n = max(n, {4: 6, 8: 10}[P])
            if prev.vw & cur.vw and not (prev.vw & cur.C) : n = max(n, {4: 6, 8: 10}[P] if prev.vw != cur.vw else 0)
        elif ck in ("valu", "vmem", "ds"):
            if prev.vw & (cur.vr | cur.vw): n = max(n, big)
            if ck == "valu" and prev.C & cur.vw: n = max(n, {4: 3, 8: 7}[P])
    if pk == "vmem" and prev.wide_store and prev.wide_store & cur.vw:
        n = max(n, 2 if ck in ("valu", "mfma") else 1)
    if pk == "salu" and "m0" in prev.sw and ck == "vmem" and getattr(cur, "lds", False): n = max(n, 1)
    return n

MAXW = 20
class Asm:
    def __init__(self):
        self.ins = []
        self.vm = []
        self.lg = []
        self.uid = 0
        self.nops = []
    def raw(self, text):
        for line in text.split("\n"):
            if line.strip(): self.ins.append(Ins(line))
    def i(self, text, tag=None):
        x = Ins("    " + text.strip()); self.ins.append(x)
        if x.kind == "vmem": self.vm.append(tag)
        if x.kind == "ds": self.lg.append(tag)
        return x
    def c(self, text): self.ins.append(Ins("    ; " + text))
    def label(self, name): self.ins.append(Ins(name + ":"))
    def newlabel(self, base):
        self.uid += 1; return f"L_{base}_{self.uid}"
    def _cnt(self, q, tags):
        if not isinstance(tags, (list, tuple, set)) or (isinstance(tags, tuple)): tags = [tags]
        idx = -1
        for t in tags:
            for k in range(len(q) - 1, -1, -1):
                if q[k] == t: idx = max(idx, k); break
        return idx
    def wait(self, vm=None, lg=None, force=False):
        parts = []
        if vm is not None:
            k = len(self.vm) - 1 if vm == "all" else self._cnt(self.vm, vm)
            if k >= 0:
                n = len(self.vm) - 1 - k
                n = min(n, 62)
                self.vm = self.vm[len(self.vm) - n:] if n else []
                parts.append(f"vmcnt({n})")
        if lg is not None:
            k = len(self.lg) - 1 if lg == "all" else self._cnt(self.lg, lg)
            if k >= 0:
                n = len(self.lg) - 1 - k
                n = min(n, 14)
                self.lg = self.lg[len(self.lg) - n:] if n else []
                parts.append(f"lgkmcnt({n})")
        if parts: self.i("s_waitcnt " + " ".join(parts))
    def waitall(self):
        self.vm = []; self.lg = []
        self.i("s_waitcnt vmcnt(0) lgkmcnt(0)")
    def _req(self, hist, cur):
        dist = 0; req = 0
        for p in reversed(hist):
            if p.states == 0: continue
            nd = need(p, cur)
            if nd - dist > req: req = nd - dist
            dist += p.states
            if dist >= MAXW: break
        return req
    def finish(self, verbose=True):
        out = []
        sec = "?"
        for x in self.ins:
            if x.kind == "label": sec = x.label
            if x.states and x.kind != "nop":
                hist = []
                for p in reversed(out):
                    if p.op in ("s_branch", "s_endpgm", "s_setpc_b64"): break
                    hist.append(p)
                    if len(hist) > 60: break
                hist.reverse()
                r = self._req(hist, x)
                if r > 0:
                    self.nops.append((sec, r, x.text.strip()))
                    while r > 0:
                        k = min(r, 16); out.append(Ins(f"    s_nop {k-1}")); r -= k
            out.append(x)
        pos = {x.label: i for i, x in enumerate(out) if x.kind == "label"}
        errs = []
        for i, x in enumerate(out):
            if x.kind == "branch" and x.target in pos:
                hist = []
                for p in reversed(out[:i+1]):
                    if p is not x and p.op in ("s_branch", "s_endpgm"): break
                    hist.append(p)
                    if len(hist) > 60: break
                hist.reverse()
                j = pos[x.target]; n = 0
                while j < len(out) and n < MAXW:
                    y = out[j]
                    if y.states:
                        if y.kind != "nop" and self._req(hist, y) > 0:
                            errs.append((x.text.strip(), y.text.strip(), self._req(hist, y)))
                        hist.append(y); n += y.states
                        if y.op in ("s_branch", "s_endpgm"): break
                    j += 1
        if errs:
            for e in errs: print("HAZARD over branch:", e)
            raise SystemExit("hazard over branch edge")
        if verbose and self.nops:
            for s in self.nops:
                if not s[2].endswith(" lds"): print("  nop inserted:", s)
        self.ins = out
        check_pending(out)
        return "\n".join(x.text for x in out) + "\n"

def check_pending(ins):
    pos = {x.label: i for i, x in enumerate(ins) if x.kind == "label"}
    seen = set(); work = [(0, (), ())]; errs = set()
    while work:
        pc, vm, lg = work.pop()
        vm = list(vm); lg = list(lg)
        while pc < len(ins):
            x = ins[pc]
            if x.kind == "label":
                key = (pc, tuple(vm), tuple(lg))
                if key in seen: break
                seen.add(key)
                if len(seen) > 20000: raise SystemExit("check_pending: too many states")
            if x.op == "s_waitcnt":
                m = re.search(r"vmcnt\((\d+)\)", x.text)
                if m:
                    n = int(m.group(1)); vm = vm[len(vm)-n:] if n and n < len(vm) else (vm if n else [])
                m = re.search(r"lgkmcnt\((\d+)\)", x.text)
                if m:
                    n = int(m.group(1)); lg = lg[len(lg)-n:] if n and n < len(lg) else (lg if n else [])
            elif x.states:
                pend = set().union(*vm, *lg) if (vm or lg) else set()
                isload = x.kind in ("vmem", "ds") and x.vw
                bad = (x.vr & pend) | (x.vw & pend if not (isload and "touch" in x.text) else set())
                if bad: errs.add((pc, x.text.strip(), tuple(sorted(bad))))
                if x.kind == "vmem" and x.op not in ("buffer_inv", "buffer_wbl2"): vm.append(frozenset(x.vw)); vm = vm[-70:]
                if x.kind == "ds": lg.append(frozenset(x.vw)); lg = lg[-40:]
                if x.kind == "branch":
                    if x.target in pos: work.append((pos[x.target], tuple(vm), tuple(lg)))
                    if x.op == "s_branch": break
                if x.op == "s_endpgm": break
            pc += 1
    if errs:
        for e in sorted(errs): print("PENDING-LOAD conflict:", e)
        raise SystemExit("register touched while a load to it is in flight")

def v(a, n=1): return f"v{a}" if n == 1 else f"v[{a}:{a+n-1}]"
def s(a, n=1): return f"s{a}" if n == 1 else f"s[{a}:{a+n-1}]"
```

```python
import sys, math
from asmgen import *

NAME = "gated_mix__grouped_kv_mqa__dense_activation_squared_relu__prompt"
WS_KV = 0
WS_G  = 0x20000
WS_Q  = 0x40000
WS_O  = 0x240000
WS_H  = 0x440000
WS_END = WS_H + 32*112*2048
WS_SIZE = 0x10000000
L_X, L_WQ, L_WKV, L_QF, L_G = 0, 65536, 131072, 147456, 155648
L_RING = 65536; RING_W = 20480; RD = 10
LDS_BYTES = 163840
QSCALE = 0.25 * math.log2(math.e)
import struct
def f2u(x): return struct.unpack("<I", struct.pack("<f", x))[0]

S_W, S_G, S_MU = 3, 4, 5
P = dict(x=16, wq=18, wk=20, wv=22, wo=24, bx=26, w1=28, b1=30, w2=32, b2=34, gate=36, out=38, dbg=40, ws=42)
SZ = dict(x=2048*1024, wq=512*1024, wk=16384, wv=16384, wo=512*1024, w1=512*3584, b1=3584, w2=1792*1024, b2=1024, gate=1024, out=2048*1024, dbg=256, ws=WS_END)
BIG = 0x40000000

def srd(a, d, name):
    a.i(f"s_mov_b32 s{d}, s{P[name]}")
    a.i(f"s_mov_b32 s{d+1}, s{P[name]+1}")
    a.i(f"s_mov_b32 s{d+2}, {SZ[name]:#x}")
    a.i(f"s_mov_b32 s{d+3}, 0x20000")

def entry(a, end):
    a.i("s_cmp_ge_u32 s2, 256")
    a.i(f"s_cbranch_scc1 {end}")
    a.i("s_load_dwordx16 s[16:31], s[0:1], 0")
    a.i("s_load_dwordx8 s[32:39], s[0:1], 64")
    a.i("s_load_dwordx4 s[40:43], s[0:1], 96")
    a.i("v_lshrrev_b32 v1, 6, v0")
    a.i("v_and_b32 v0, 63, v0")
    a.i(f"v_readfirstlane_b32 s{S_W}, v1")
    a.i("s_and_b32 s6, s2, 7")
    a.i("s_lshr_b32 s7, s2, 3")
    a.i(f"s_and_b32 s{S_MU}, s7, 7")
    a.i("s_lshr_b32 s7, s7, 3")
    a.i("s_lshl_b32 s6, s6, 2")
    a.i(f"s_add_u32 s{S_G}, s6, s7")

STAMP = False
ONLY = None
OPT = set()
WS_STAMP = 0xC00000
def stamp(a, idx, kidx, vt=(250, 251)):
    if not STAMP or (ONLY is not None and idx != ONLY): return
    a.i("s_memrealtime s[90:91]")
    a.i("s_memtime s[88:89]")
    a.i(f"s_mov_b32 s92, s{P['ws']}")
    a.i(f"s_mov_b32 s93, s{P['ws']+1}")
    a.i("s_mov_b32 s94, 0x1000000")
    a.i("s_mov_b32 s95, 0x20000")
    a.i("s_mov_b64 s[96:97], exec")
    a.i("s_lshl_b32 s98, s2, 2")
    a.i(f"s_add_u32 s98, s98, {WS_STAMP + idx*1024}")
    a.i("s_waitcnt lgkmcnt(0)"); a.lg = []
    a.i("s_mov_b64 exec, 1")
    a.i(f"v_mov_b32 v{vt[0]}, s90")
    a.i(f"v_mov_b32 v{vt[1]}, s88")
    a.i(f"buffer_store_dword v{vt[0]}, off, s[92:95], s98")
    a.i("s_lshl_b32 s98, s2, 3")
    a.i(f"s_add_u32 s98, s98, s{S_W}")
    a.i("s_lshl_b32 s98, s98, 3")
    a.i(f"s_add_u32 s98, s98, {WS_STAMP + 0x10000 + idx*16384}")
    a.i(f"buffer_store_dwordx2 v[{vt[0]}:{vt[1]}], off, s[92:95], s98")
    a.i("s_mov_b64 exec, s[96:97]")

def waitk(idx, ticks=6000):
    a = Asm()
    a.i("s_cmp_ge_u32 s2, 1"); a.i("s_cbranch_scc1 L_w_end")
    a.i("s_load_dwordx2 s[42:43], s[0:1], 104")
    a.i("v_lshlrev_b32 v1, 2, v0")
    a.i("v_mov_b32 v2, 0")
    a.i("ds_write_b32 v2, v2")
    a.i("s_waitcnt lgkmcnt(0)")
    a.i("s_barrier")
    a.i("s_mov_b32 s92, s42"); a.i("s_mov_b32 s93, s43"); a.i("s_mov_b32 s94, 0x1000000"); a.i("s_mov_b32 s95, 0x20000")
    a.i(f"s_mov_b32 s10, {WS_STAMP + idx*1024}")
    a.i("buffer_load_dword v3, v1, s[92:95], s10 offen")
    a.i("s_waitcnt vmcnt(0)")
    a.i("ds_max_u32 v2, v3")
    a.i("s_waitcnt lgkmcnt(0)")
    a.i("s_barrier")
    a.i("ds_read_b32 v3, v2")
    a.i("s_waitcnt lgkmcnt(0)")
    a.i("v_readfirstlane_b32 s11, v3")
    a.i("s_mov_b32 s12, 20000")
    a.label("L_w_loop")
    a.i("s_memrealtime s[8:9]")
    a.i("s_waitcnt lgkmcnt(0)")
    a.i("s_sub_u32 s8, s8, s11")
    a.i(f"s_cmp_ge_u32 s8, {ticks}")
    a.i("s_cbranch_scc1 L_w_end")
    a.i("s_sub_u32 s12, s12, 1")
    a.i("s_cmp_lg_u32 s12, 0")
    a.i("s_cbranch_scc1 L_w_loop")
    a.label("L_w_end"); a.i("s_endpgm")
    return a.finish()

def diag(kidx, n=8):
    a = Asm()
    a.i("s_cmp_ge_u32 s2, 1")
    a.i("s_cbranch_scc1 L_diag_end")
    a.i("s_load_dwordx4 s[40:43], s[0:1], 96")
    a.i("v_lshlrev_b32 v1, 2, v0")
    a.i("v_mov_b32 v2, 0")
    a.i("ds_write_b32 v1, v2")
    a.i("s_waitcnt lgkmcnt(0)")
    a.i("s_barrier")
    a.i("s_mov_b32 s92, s42"); a.i("s_mov_b32 s93, s43"); a.i("s_mov_b32 s94, 0x1000000"); a.i("s_mov_b32 s95, 0x20000")
    for idx in range(n):
        a.i(f"s_mov_b32 s8, {WS_STAMP + idx*1024}")
        a.i(f"buffer_load_dword v3, v1, s[92:95], s8 offen")
        a.i("s_waitcnt vmcnt(0)")
        a.i("v_not_b32 v4, v3")
        a.i(f"ds_max_u32 v2, v4 offset:{8*idx}")
        a.i(f"ds_max_u32 v2, v3 offset:{8*idx+4}")
        a.i("s_waitcnt lgkmcnt(0)")
    a.i("s_barrier")
    a.i("ds_read_b32 v3, v1")
    a.i("s_mov_b32 s92, s40"); a.i("s_mov_b32 s93, s41"); a.i("s_mov_b32 s94, 256")
    a.i("s_waitcnt lgkmcnt(0)")
    a.i("buffer_store_dword v3, v1, s[92:95], 0 offen")
    a.i(f"s_sub_u32 s92, s40, {512*kidx}"); a.i("s_subb_u32 s93, s41, 0")
    a.i("buffer_store_dword v3, v1, s[92:95], 0 offen")
    a.label("L_diag_end")
    a.i("s_endpgm")
    return a.finish()

def mfma(a, d, A, B, C=None):
    c = v(d, 16) if C is None else C
    a.i(f"v_mfma_f32_32x32x16_bf16 {v(d,16)}, {v(A,4)}, {v(B,4)}, {c}")

def tr_addr(a, dst, t0, t1, rowmul_h, pitch_sh, use_half):
    a.i(f"v_lshrrev_b32 v{t0}, 5, v0")
    a.i(f"v_mul_u32_u24 v{t0}, {rowmul_h}, v{t0}")
    a.i(f"v_bfe_u32 v{t1}, v0, 2, 2")
    a.i(f"v_add_u32 v{t0}, v{t0}, v{t1}")
    a.i(f"v_lshlrev_b32 v{dst}, {pitch_sh}, v{t0}")
    a.i(f"v_and_b32 v{t1}, 3, v0")
    a.i(f"v_lshl_add_u32 v{dst}, v{t1}, 3, v{dst}")
    if use_half:
        a.i(f"v_bfe_u32 v{t1}, v0, 4, 1")
        a.i(f"v_lshl_add_u32 v{dst}, v{t1}, 5, v{dst}")

def xfrag_addr(a, dst, t0, t1):
    a.i(f"v_bfe_u32 v{t0}, v0, 1, 3")
    a.i(f"v_lshrrev_b32 v{t1}, 5, v0")
    a.i(f"v_xor_b32 v{t0}, v{t0}, v{t1}")
    a.i(f"v_and_b32 v{t1}, 31, v0")
    a.i(f"v_lshlrev_b32 v{t1}, 7, v{t1}")
    for q in range(4):
        a.i(f"v_xor_b32 v{dst+q}, {2*q}, v{t0}")
        a.i(f"v_lshl_add_u32 v{dst+q}, v{dst+q}, 4, v{t1}")

def wchunk_addr(a, dst, t0, pitch):
    a.i(f"v_lshrrev_b32 v{t0}, 2, v0")
    a.i(f"v_mul_u32_u24 v{dst}, {pitch}, v{t0}")
    a.i(f"v_and_b32 v{t0}, 3, v0")
    a.i(f"v_lshl_add_u32 v{dst}, v{t0}, 4, v{dst}")

def bias_frags(a, ONE, t0):
    a.i(f"v_mov_b32 v{t0}, 0x3f80")
    a.i("v_cmp_gt_u32 vcc, 32, v0")
    a.i(f"v_mov_b32 v{ONE+1}, 0")
    a.i(f"v_mov_b32 v{ONE+2}, 0")
    a.i(f"v_mov_b32 v{ONE+3}, 0")
    a.i(f"v_cndmask_b32 v{ONE}, 0, v{t0}, vcc")

def front():
    a = Asm()
    END = "L_front_end"
    entry(a, END)
    SX, SWQ, SWKV, SW1, SB1, SGT, SWS = 44, 48, 52, 56, 60, 64, 68
    VXS, VGS, VW1K, VLIN, VW35 = 2, 3, 4, 5, 6
    VXR, VTR, VTRK = 8, 12, 13
    a.i("v_lshrrev_b32 v14, 3, v0")
    a.i(f"s_lshl_b32 s6, s{S_W}, 3")
    a.i("v_add_u32 v14, s6, v14")
    a.i("v_bfe_u32 v15, v14, 1, 3")
    a.i("v_and_b32 v16, 7, v0")
    a.i("v_xor_b32 v15, v15, v16")
    a.i(f"v_lshlrev_b32 v{VGS}, 4, v15")
    a.i(f"s_lshl_b32 s6, s{S_G}, 6")
    a.i("v_add_u32 v14, s6, v14")
    a.i(f"v_lshl_add_u32 v{VXS}, v14, 10, v{VGS}")
    wchunk_addr(a, VW1K, 14, 1024)
    a.i(f"v_lshlrev_b32 v{VLIN}, 4, v0")
    a.i("s_waitcnt lgkmcnt(0)")
    stamp(a, 0, 0)
    srd(a, SX, "x")
    a.i(f"s_lshl_b32 s8, s{S_W}, 10")
    for kb in range(8):
        a.i(f"s_add_u32 m0, s8, {L_X + kb*8192 - kb*128}")
        a.i(f"buffer_load_dwordx4 v{VXS}, s[{SX}:{SX+3}], 0 offen offset:{kb*128} lds", tag="x")
    a.i(f"s_cmp_ge_u32 s{S_MU}, 2")
    a.i(f"s_cselect_b32 s{SWKV}, s{P['wv']}, s{P['wk']}")
    a.i(f"s_cselect_b32 s{SWKV+1}, s{P['wv']+1}, s{P['wk']+1}")
    a.i(f"s_mov_b32 s{SWKV+2}, 16384")
    a.i(f"s_mov_b32 s{SWKV+3}, 0x20000")
    a.i(f"s_lshl_b32 s9, s{S_W}, 11")
    a.i(f"s_cmp_ge_u32 s{S_MU}, 4")
    skip = a.newlabel("nokv")
    a.i(f"s_cbranch_scc1 {skip}")
    for j in range(2):
        a.i(f"s_add_u32 m0, s9, {L_WKV}")
        a.i(f"buffer_load_dwordx4 v{VLIN}, s[{SWKV}:{SWKV+3}], s9 offen offset:{j*1024} lds")
    a.vm = a.vm[:-2]
    a.label(skip)
    srd(a, SWQ, "wq")
    a.i(f"s_lshl_b32 s9, s{S_W}, 16")
    a.i(f"s_lshl_b32 s10, s{S_MU}, 7")
    a.i("s_add_u32 s9, s9, s10")
    a.i(f"s_lshl_b32 s8, s{S_W}, 13")
    for sl in range(4):
        for p in range(2):
            a.i(f"s_add_u32 m0, s8, {L_WQ + (2*sl+p)*1024 - 64*p}")
            a.i(f"buffer_load_dwordx4 v{VW1K}, s[{SWQ}:{SWQ+3}], s9 offen offset:{64*p} lds", tag="wq")
        if sl < 3: a.i("s_add_u32 s9, s9, 16384")
    srd(a, SWS, "ws")
    xfrag_addr(a, VXR, 14, 15)
    tr_addr(a, VTR, 14, 15, 8, 6, True)
    a.i(f"s_cmp_ge_u32 s{S_W}, 4")
    a.i("s_cbranch_scc1 L_front_G")
    vm_at_split = list(a.vm)
    a.i(f"s_and_b32 s6, s{S_W}, 1")
    a.i(f"s_lshr_b32 s7, s{S_W}, 1")
    a.i("s_lshl_b32 s8, s6, 10")
    a.i(f"s_add_u32 s8, s8, {L_WQ}")
    a.i(f"v_add_u32 v{VTR}, s8, v{VTR}")
    a.i("s_lshl_b32 s8, s7, 12")
    for q in range(4): a.i(f"v_add_u32 v{VXR+q}, s8, v{VXR+q}")
    a.wait(vm="all")
    a.i("s_barrier")
    stamp(a, 1, 0)
    def chain(a, ACC, FR, wread, orient):
        NB = 4
        def rd(sx):
            b = FR + 8*(sx % NB)
            wread(sx, b)
            a.i(f"ds_read_b128 {v(b+4,4)}, v{VXR + (sx&3)} offset:{(sx>>2)*8192}", tag=("c", sx))
        for sx in range(NB-1): rd(sx)
        for sx in range(32):
            if sx + NB - 1 < 32: rd(sx + NB - 1)
            a.wait(lg=("c", sx))
            b = FR + 8*(sx % NB)
            A_, B_ = (b, b+4) if orient == 0 else (b+4, b)
            mfma(a, ACC, A_, B_, "0" if sx == 0 else None)
    def wq_read(sx, b):
        a.i(f"ds_read_b64_tr_b16 {v(b,2)}, v{VTR} offset:{sx*2048}")
        a.i(f"ds_read_b64_tr_b16 {v(b+2,2)}, v{VTR} offset:{sx*2048+256}")
    chain(a, 64, 32, wq_read, 0)
    a.i(f"s_lshl_b32 s8, s{S_G}, 3")
    a.i(f"s_add_u32 s8, s8, s{S_MU}")
    a.i("s_lshl_b32 s8, s8, 3")
    a.i("s_lshl_b32 s9, s6, 2")
    a.i("s_add_u32 s8, s8, s9")
    a.i("s_add_u32 s8, s8, s7")
    a.i("s_lshl_b32 s8, s8, 10")
    a.i(f"s_add_u32 s8, s8, {WS_Q}")
    a.i(f"s_mov_b32 s10, {f2u(QSCALE):#x}")
    for r in range(16): a.i(f"v_mul_f32 v{64+r}, s10, v{64+r}")
    for j in range(8): a.i(f"v_cvt_pk_bf16_f32 v{32+j}, v{64+2*j}, v{65+2*j}")
    for e in range(2):
        a.i(f"buffer_store_dwordx4 {v(32+4*e,4)}, v{VLIN}, s[{SWS}:{SWS+3}], s8 offen offset:{2048*e}")
    a.i("s_barrier")
    a.i("s_endpgm")
    a.label("L_front_G")
    a.vm = vm_at_split; a.lg = []
    GW = 6
    a.i(f"s_sub_u32 s{GW}, s{S_W}, 4")
    srd(a, SW1, "w1"); srd(a, SB1, "b1"); srd(a, SGT, "gate")
    GF = 128
    for kb in range(8):
        a.i(f"buffer_load_dwordx4 {v(GF+4*kb,4)}, v{VGS}, s[{SGT}:{SGT+3}], 0 offen offset:{kb*128}", tag="gate")
    BA, ONE = 160, 168
    a.i(f"s_mul_i32 s12, s{S_MU}, 448")
    a.i(f"s_lshl_b32 s9, s{GW}, 7")
    a.i("s_add_u32 s12, s12, s9")
    a.i("s_add_u32 s13, s12, 64")
    a.i(f"s_cmp_eq_u32 s{GW}, 3")
    a.i(f"s_cselect_b32 s13, {BIG:#x}, s13")
    a.i("v_lshlrev_b32 v14, 1, v0")
    a.i("v_cmp_gt_u32 vcc, 32, v0")
    a.i(f"v_mov_b32 v15, {BIG:#x}")
    a.i("v_cndmask_b32 v14, v15, v14, vcc")
    for p in range(2):
        a.i(f"buffer_load_ushort v{BA+4*p}, v14, s[{SB1}:{SB1+3}], s{12+p} offen", tag="b1")
        for r in range(1, 4): a.i(f"v_mov_b32 v{BA+4*p+r}, 0")
    bias_frags(a, ONE, 15)
    wchunk_addr(a, VW35, 14, 3584)
    tr_addr(a, VTRK, 14, 15, 8, 5, False)
    a.i(f"v_add_u32 v{VTRK}, {L_WKV}, v{VTRK}")
    a.wait(vm="wq")
    a.i("s_barrier")
    a.i(f"s_cmp_lg_u32 s{GW}, 0")
    a.i("s_cbranch_scc1 L_front_nokv")
    a.i(f"s_cmp_ge_u32 s{S_MU}, 4")
    a.i("s_cbranch_scc1 L_front_b2")
    vm_save = list(a.vm)
    a.i("s_setprio 2")
    a.i(f"s_and_b32 s7, s{S_MU}, 1")
    a.i("s_lshl_b32 s8, s7, 12")
    XR2 = 16
    for q in range(4): a.i(f"v_add_u32 v{XR2+q}, s8, v{VXR+q}")
    a.i(f"s_lshl_b32 s8, s{S_G}, 1")
    a.i("s_add_u32 s8, s8, s7")
    a.i("s_lshl_b32 s8, s8, 11")
    a.i(f"s_add_u32 s8, s8, {WS_KV}")
    def wk_read(sx, b):
        a.i(f"ds_read_b64_tr_b16 {v(b,2)}, v{VTRK} offset:{sx*512}")
        a.i(f"ds_read_b64_tr_b16 {v(b+2,2)}, v{VTRK} offset:{sx*512+128}")
    VXR_save = VXR
    a.i(f"s_cmp_ge_u32 s{S_MU}, 2")
    a.i("s_cbranch_scc1 L_front_V")
    VXR = XR2
    chain(a, 64, 32, wk_read, 0)
    for j in range(4): a.i(f"v_cvt_pk_bf16_f32 v{32+j}, v{64+2*j}, v{65+2*j}")
    a.i(f"buffer_store_dwordx4 {v(32,4)}, v{VLIN}, s[{SWS}:{SWS+3}], s8 offen")
    a.i("s_setprio 0")
    a.i("s_branch L_front_b2")
    a.label("L_front_V")
    chain(a, 64, 32, wk_read, 1)
    VXR = VXR_save
    a.i("v_and_b32 v14, 16, v0")
    a.i("v_cmp_ne_u32 vcc, 0, v14")
    a.i("v_lshlrev_b32 v14, 5, v14")
    a.i("v_and_b32 v15, 15, v0")
    a.i("v_lshl_add_u32 v14, v15, 4, v14")
    a.i("v_lshrrev_b32 v15, 5, v0")
    a.i("v_lshl_add_u32 v14, v15, 8, v14")
    for j in range(8): a.i(f"v_cvt_pk_bf16_f32 v{32+j}, v{64+2*j}, v{65+2*j}")
    for j in range(4): a.i(f"v_cndmask_b32 v{32+j}, v{32+j}, v{36+j}, vcc")
    a.i(f"buffer_store_dwordx4 {v(32,4)}, v14, s[{SWS}:{SWS+3}], s8 offen offset:1024")
    a.i("s_setprio 0")
    a.i("s_branch L_front_b2")
    a.label("L_front_nokv")
    a.vm = list(vm_save); a.lg = []
    a.i(f"s_cmp_lt_u32 s{GW}, 2")
    a.i("s_cbranch_scc1 L_front_b2")
    a.i(f"s_and_b32 s7, s{GW}, 1")
    a.i("s_lshl_b32 s8, s7, 10")
    a.i(f"v_add_u32 v14, s8, v{VLIN}")
    XG, AC = 32, 20
    for i in range(4): a.i(f"v_mov_b32 v{AC+i}, 0")
    def grd(kb):
        for i in range(4):
            a.i(f"ds_read_b128 {v(XG + 16*(kb&1) + 4*i,4)}, v14 offset:{kb*8192 + i*2048}", tag=("g", kb))
    grd(0)
    a.wait(vm="gate")
    for kb in range(8):
        if kb < 7: grd(kb+1)
        a.wait(lg=("g", kb))
        for r in range(4):
            for i in range(4):
                a.i(f"v_dot2_f32_bf16 v{AC+i}, v{XG + 16*(kb&1) + 4*i + r}, v{GF+4*kb+r}, v{AC+i}")
    for mod in ("quad_perm:[1,0,3,2]", "quad_perm:[2,3,0,1]", "row_half_mirror"):
        for i in range(4):
            a.i(f"v_add_f32_dpp v{AC+i}, v{AC+i}, v{AC+i} {mod} row_mask:0xf bank_mask:0xf")
    a.i(f"s_mov_b32 s10, {f2u(-math.log2(math.e)):#x}")
    for i in range(4): a.i(f"v_mul_f32 v{AC+i}, s10, v{AC+i}")
    for i in range(4): a.i(f"v_exp_f32 v{AC+i}, v{AC+i}")
    for i in range(4): a.i(f"v_add_f32 v{AC+i}, 1.0, v{AC+i}")
    for i in range(4): a.i(f"v_rcp_f32 v{AC+i}, v{AC+i}")
    a.i("v_lshrrev_b32 v15, 3, v0")
    a.i("v_lshlrev_b32 v15, 2, v15")
    a.i(f"s_lshl_b32 s8, s{S_G}, 8")
    a.i("s_lshl_b32 s9, s7, 5")
    a.i("s_add_u32 s8, s8, s9")
    a.i(f"s_add_u32 s8, s8, {WS_G}")
    for i in range(4):
        a.i(f"buffer_store_dword v{AC+i}, v15, s[{SWS}:{SWS+3}], s8 offen offset:{64*i}")
    a.label("L_front_b2")
    a.i("s_waitcnt vmcnt(0) lgkmcnt(0)"); a.vm = []; a.lg = []
    a.i("s_barrier")
    ACC, WF, XF = 64, 32, 48
    a.i(f"s_mul_i32 s14, s{GW}, {RING_W}")
    a.i(f"s_add_u32 s14, s14, {L_RING}")
    a.i(f"v_add_u32 v{VTR}, s14, v{VTR}")
    def dma(sx):
        for p in range(2):
            a.i(f"s_add_u32 m0, s14, {(sx % RD)*2048 + p*1024}")
            a.i(f"buffer_load_dwordx4 v{VW35}, s[{SW1}:{SW1+3}], s{12+p} offen lds", tag=("w", sx))
            a.i(f"s_add_u32 s{12+p}, s{12+p}, {16*3584}")
    for sx in range(RD): dma(sx)
    for p in range(2):
        for rh in range(2): mfma(a, ACC + 32*p + 16*rh, BA + 4*p, ONE, "0")
    def rd(sx):
        a.wait(vm=("w", sx))
        b = sx & 1
        for p in range(2):
            o = (sx % RD)*2048 + p*1024
            a.i(f"ds_read_b64_tr_b16 {v(WF+8*b+4*p,2)}, v{VTR} offset:{o}")
            a.i(f"ds_read_b64_tr_b16 {v(WF+8*b+4*p+2,2)}, v{VTR} offset:{o+256}")
        for rh in range(2):
            a.i(f"ds_read_b128 {v(XF+8*b+4*rh,4)}, v{VXR+(sx&3)} offset:{(sx>>2)*8192 + rh*4096}", tag=("r", sx))
    rd(0)
    for sx in range(32):
        if sx < 31: rd(sx+1)
        a.wait(lg=("r", sx))
        b = sx & 1
        for p in range(2):
            for rh in range(2):
                mfma(a, ACC + 32*p + 16*rh, WF+8*b+4*p, XF+8*b+4*rh)
        if sx + RD < 32: dma(sx + RD)
    a.i(f"s_mul_i32 s8, s{S_G}, 112")
    a.i(f"s_mul_i32 s9, s{S_MU}, 14")
    a.i("s_add_u32 s8, s8, s9")
    a.i(f"s_lshl_b32 s9, s{GW}, 2")
    a.i("s_add_u32 s8, s8, s9")
    a.i("s_lshl_b32 s8, s8, 11")
    a.i(f"s_add_u32 s12, s8, {WS_H}")
    a.i("s_add_u32 s13, s12, 4096")
    a.i(f"s_cmp_eq_u32 s{GW}, 3")
    a.i(f"s_cselect_b32 s13, {BIG:#x}, s13")
    a.i("s_nop 7")
    for p in range(2):
        for rh in range(2):
            t = ACC + 32*p + 16*rh
            o = 128 + 8*(2*p+rh)
            for r in range(16): a.i(f"v_max_f32 v{t+r}, 0, v{t+r}")
            for r in range(0, 16, 2): a.i(f"v_pk_mul_f32 {v(t+r,2)}, {v(t+r,2)}, {v(t+r,2)}")
            for j in range(8): a.i(f"v_cvt_pk_bf16_f32 v{o+j}, v{t+2*j}, v{t+2*j+1}")
            for u in range(2):
                a.i(f"buffer_store_dwordx4 {v(o+4*u,4)}, v{VLIN}, s[{SWS}:{SWS+3}], s{12+p} offen offset:{u*2048 + rh*1024}")
    stamp(a, 2, 0)
    a.label(END)
    a.i("s_endpgm")
    return a.finish()

def attn_slot(a, i, Q, KV, S, Pq, O, cur, nxt, extra):
    Sc = S + 16*(i & 1); Sn = S + 16*((i+1) & 1)
    e = lambda r: a.i(f"v_exp_f32 v{Sc+r}, v{Sc+r}") if "noexp" not in OPT else (a.i(f"v_mul_f32 v{Sc+r}, 1.0, v{Sc+r}"), a.i("s_nop 0"))
    c = lambda j: a.i(f"v_cvt_pk_bf16_f32 v{Pq+j}, v{Sc+2*j}, v{Sc+2*j+1}")
    def ex(k):
        for t in extra.get(k, []):
            t() if callable(t) else a.i(t)
    e(0); e(1)
    ip = (i - 1) % 8
    setp = cur if i > 0 else nxt
    if "nopv" not in OPT: mfma(a, O + 16*ip, KV + 12*setp + 8, Pq + 4)
    ex(0)
    for r in range(2, 7): e(r)
    inx = (i + 1) % 8
    setn = cur if i < 7 else nxt
    mfma(a, Sn, KV + 12*setn, Q + 4*inx, "0")
    ex(1)
    e(7)
    for j in range(4): c(j)
    e(8); e(9)
    if "nopv" not in OPT and "nopv0" not in OPT: mfma(a, O + 16*i, KV + 12*cur + 4, Pq)
    ex(2)
    for r in range(10, 16): e(r)
    for j in range(4, 8): c(j)

def attn():
    a = Asm()
    END = "L_attn_end"
    entry(a, END)
    SWS = 44
    VLIN, VV, VG = 2, 3, 4
    Q, KV, S, Pq, F, O = 8, 40, 64, 96, 104, 128
    a.i(f"v_lshlrev_b32 v{VLIN}, 4, v0")
    a.i("v_and_b32 v6, 15, v0")
    a.i("v_lshrrev_b32 v7, 5, v0")
    a.i("v_lshlrev_b32 v7, 8, v7")
    a.i(f"v_lshl_add_u32 v{VV}, v6, 4, v7")
    a.i("s_mov_b32 s48, 0xffff")
    a.i("s_mov_b32 s49, 0xffff")
    a.i("s_waitcnt lgkmcnt(0)")
    stamp(a, 3, 1, (124, 125))
    srd(a, SWS, "ws")
    a.i(f"s_lshl_b32 s50, s{S_W}, 15")
    a.i(f"s_add_u32 s50, s50, {WS_KV}")
    a.i(f"s_add_u32 s51, s50, {15*2048}")
    if "zrows" in OPT:
        a.i("v_and_b32 v6, 27, v0")
        a.i("v_cmp_eq_u32 vcc, 16, v6")
    else:
        a.i("v_and_b32 v6, 16, v0")
        a.i("v_cmp_ne_u32 vcc, 0, v6")
    a.i("v_mov_b32 v7, 0x3f803f80")
    a.i("v_cndmask_b32 v7, 0, v7, vcc")
    for st in range(2):
        for r in range(4, 12): a.i(f"v_mov_b32 v{KV+12*st+r}, v7")
    def kvload(st):
        return [
            lambda: a.i(f"buffer_load_dwordx4 {v(KV+12*st,4)}, v{VLIN}, s[{SWS}:{SWS+3}], s50 offen", tag="kv"),
            "s_mov_b64 exec, s[48:49]",
            lambda: a.i(f"buffer_load_dwordx4 {v(KV+12*st+4,4)}, v{VV}, s[{SWS}:{SWS+3}], s50 offen offset:1024", tag="kv"),
            lambda: a.i(f"buffer_load_dwordx4 {v(KV+12*st+8,4)}, v{VV}, s[{SWS}:{SWS+3}], s50 offen offset:1536", tag="kv"),
            "s_mov_b64 exec, -1"]
    for t in kvload(0): t() if callable(t) else a.i(t)
    a.i(f"s_lshl_b32 s8, s{S_G}, 3")
    a.i(f"s_add_u32 s8, s8, s{S_MU}")
    a.i("s_lshl_b32 s8, s8, 13")
    a.i(f"s_add_u32 s8, s8, {WS_Q}")
    a.i("s_add_u32 s9, s8, 4096")
    for i in range(8):
        a.i(f"buffer_load_dwordx4 {v(Q+4*i,4)}, v{VLIN}, s[{SWS}:{SWS+3}], s{8 + (i>>2)} offen offset:{(i&3)*1024}", tag="q")
    a.i("v_and_b32 v6, 31, v0")
    a.i("v_lshlrev_b32 v6, 2, v6")
    a.i(f"s_lshl_b32 s8, s{S_G}, 8")
    a.i(f"s_add_u32 s8, s8, {WS_G}")
    for rh in range(2):
        a.i(f"buffer_load_dword v{VG+rh}, v6, s[{SWS}:{SWS+3}], s8 offen offset:{128*rh}", tag="g")
    for r in range(128): a.i(f"v_mov_b32 v{O+r}, 0")
    for r in range(4, 8): a.i(f"v_mov_b32 v{Pq+r}, 0")
    a.wait(vm="all")
    stamp(a, 4, 1, (124, 125))
    a.wait(vm="all")
    mfma(a, S, KV, Q, "0")
    a.i("s_mov_b32 s52, 8")
    a.i("s_nop 11")
    a.raw(".p2align 6")
    a.label("L_attn_loop")
    for half in ([0, 1]*8 if "itstamp" in OPT else range(2)):
        if "itstamp" in OPT and half == 0:
            k = getattr(a, "itk", 0); a.itk = k + 1
            a.i(f"s_memrealtime s[{56+4*k}:{57+4*k}]"); a.i(f"s_memtime s[{58+4*k}:{59+4*k}]")
        cur, nxt = half, 1 - half
        ld = kvload(nxt)
        for i in range(8):
            extra = {}
            if i == 0:
                extra = {0: ["s_add_u32 s50, s50, 2048"], 1: ["s_min_u32 s50, s50, s51"], 2: [ld[0]]}
            if i == 1:
                extra = {0: ld[1:]}
            if i == 7:
                extra = {0: [lambda: a.wait(vm="all")]}
                if half == 1:
                    extra[1] = ["s_sub_u32 s52, s52, 1"]; extra[2] = ["s_cmp_lg_u32 s52, 0"]
            attn_slot(a, i, Q, KV, S, Pq, O, cur, nxt, extra)
    if "itstamp" not in OPT: a.i("s_cbranch_scc1 L_attn_loop")
    else:
        a.i("s_waitcnt lgkmcnt(0)")
        a.i("s_lshl_b32 s98, s2, 3"); a.i(f"s_add_u32 s98, s98, s{S_W}"); a.i("s_lshl_b32 s98, s98, 6"); a.i(f"s_add_u32 s98, s98, {0xE00000}")
        a.i(f"s_mov_b32 s92, s{P['ws']}"); a.i(f"s_mov_b32 s93, s{P['ws']+1}"); a.i("s_mov_b32 s94, 0x1000000"); a.i("s_mov_b32 s95, 0x20000")
        for k in range(8):
            a.i(f"v_mov_b32 v124, s{56+4*k}"); a.i(f"v_mov_b32 v125, s{58+4*k}")
            a.i(f"buffer_store_dwordx2 v[124:125], off, s[92:95], s98 offset:{8*k}")
            a.i("s_waitcnt vmcnt(0)")
    a.i("s_nop 1")
    mfma(a, O + 16*7, KV + 12*1 + 8, Pq + 4)
    stamp(a, 5, 1, (124, 125))
    a.i("v_lshlrev_b32 v6, 2, v0")
    FQ = S
    for w in range(4):
        if w < 3:
            a.i(f"s_cmp_lg_u32 s{S_W}, {w}")
            a.i(f"s_cbranch_scc1 L_attn_x{w+1}")
        for i in list(range(8)):
            own = i >> 1
            if own == w: continue
            idx = w if w < own else w - 1
            o = (i*3 + idx)*2304
            a.i(f"ds_write_b128 v{VLIN}, {v(O+16*i,4)} offset:{o}")
            a.i(f"ds_write_b128 v{VLIN}, {v(O+16*i+4,4)} offset:{o+1024}")
            a.i(f"ds_write_b32 v6, v{O+16*i+8} offset:{o+2048}")
        a.i("s_waitcnt lgkmcnt(0)"); a.lg = []
        a.i("s_barrier")
        T = S
        land = [O + 16*((2*w + 2 + k) % 8) for k in range(6)]
        for rh in range(2):
            i = 2*w + rh
            for idx in range(3):
                o = (i*3 + idx)*2304; d = land[rh*3 + idx]
                a.i(f"ds_read_b128 {v(d,4)}, v{VLIN} offset:{o}")
                a.i(f"ds_read_b128 {v(d+4,4)}, v{VLIN} offset:{o+1024}")
                a.i(f"ds_read_b32 v{d+8}, v6 offset:{o+2048}", tag=("x", rh, idx))
        for rh in range(2):
            i = 2*w + rh
            for j in range(4): a.i(f"v_mov_b32 v{F+20+4*rh+j - 0}, v{Q+4*i+j}") if False else None
            a.wait(lg=("x", rh, 1))
            for r in range(9): a.i(f"v_add_f32 v{land[rh*3]+r}, v{land[rh*3]+r}, v{land[rh*3+1]+r}")
            a.wait(lg=("x", rh, 2))
            for r in range(9): a.i(f"v_add_f32 v{O+16*i+r}, v{O+16*i+r}, v{land[rh*3+2]+r}")
            for r in range(9): a.i(f"v_add_f32 v{F+10*rh+r}, v{O+16*i+r}, v{land[rh*3]+r}")
        for rh in range(2):
            i = 2*w + rh
            for j in range(4): a.i(f"v_mov_b32 v{Pq+4*rh+j}, v{Q+4*i+j}")
        if w < 3: a.i("s_branch L_attn_fin")
        if w < 3: a.label(f"L_attn_x{w+1}")
    a.label("L_attn_fin")
    a.i(f"s_lshl_b32 s8, s{S_G}, 5")
    a.i(f"s_lshl_b32 s9, s{S_MU}, 2")
    a.i("s_add_u32 s8, s8, s9")
    a.i(f"s_add_u32 s8, s8, s{S_W}")
    a.i("s_lshl_b32 s8, s8, 11")
    a.i(f"s_add_u32 s8, s8, {WS_O}")
    a.i(f"s_mov_b32 s10, {f2u(2.0**-30):#x}")
    a.i(f"s_mov_b32 s11, {f2u(2.0**100):#x}")
    a.i("s_mov_b32 s12, 0x7f800000")
    for rh in range(2):
        f = F + 10*rh
        a.i(f"v_add_f32 v6, abs(v{f}), abs(v{f+1})")
        for r in range(2, 8): a.i(f"v_add_f32 v6, v6, abs(v{f+r})")
        a.i(f"v_cmp_le_f32 s[54:55], s10, v{f+8}")
        a.i(f"v_cmp_ge_f32 s[56:57], s11, v{f+8}")
        a.i(f"v_cmp_gt_f32 vcc, s12, v6")
        a.i("s_and_b64 s[54:55], s[54:55], s[56:57]")
        a.i("s_and_b64 s[54:55], s[54:55], vcc")
        a.i("s_cmp_eq_u64 s[54:55], -1")
        a.i(f"s_cbranch_scc0 L_attn_slow{rh}")
        a.label(f"L_attn_ok{rh}")
        a.i(f"v_rcp_f32 v6, v{f+8}")
        a.i(f"v_mul_f32 v6, v6, v{VG+rh}")
        for r in range(8): a.i(f"v_mul_f32 v{f+r}, v6, v{f+r}")
        for j in range(4): a.i(f"v_cvt_pk_bf16_f32 v{S+4*rh+j}, v{f+2*j}, v{f+2*j+1}")
        a.i(f"buffer_store_dwordx4 {v(S+4*rh,4)}, v{VLIN}, s[{SWS}:{SWS+3}], s8 offen offset:{1024*rh}")
    a.label(END)
    a.i("s_endpgm")
    for rh in range(2):
        f = F + 10*rh; q = Pq + 4*rh
        SS, CC, OO, PP = O, O + 16, O + 32, O + 48
        a.label(f"L_attn_slow{rh}")
        a.i("s_nop 7")
        a.i(f"s_mov_b32 s50, {WS_KV}")
        a.i("v_mov_b32 v7, 0xff800000")
        a.label(f"L_attn_slow{rh}_a")
        a.i(f"buffer_load_dwordx4 {v(KV,4)}, v{VLIN}, s[{SWS}:{SWS+3}], s50 offen")
        a.i("s_waitcnt vmcnt(0)")
        mfma(a, SS, KV, q, "0")
        a.i("s_nop 15")
        for r in range(0, 16, 2): a.i(f"v_max3_f32 v7, v7, v{SS+r}, v{SS+r+1}")
        a.i("s_add_u32 s50, s50, 2048")
        a.i(f"s_cmp_lt_u32 s50, {WS_KV + 64*2048}")
        a.i(f"s_cbranch_scc1 L_attn_slow{rh}_a")
        a.i("v_mov_b32 v6, v7")
        a.i("s_nop 1")
        a.i("v_permlane32_swap_b32 v6, v7")
        a.i("v_max_f32 v7, v6, v7")
        for r in range(16):
            a.i(f"v_sub_f32 v{CC+r}, 0, v7")
            a.i(f"v_mov_b32 v{OO+r}, 0")
        a.i(f"s_mov_b32 s50, {WS_KV}")
        a.label(f"L_attn_slow{rh}_b")
        for t in kvload(0): t() if callable(t) else a.i(t)
        a.i("s_waitcnt vmcnt(0)")
        mfma(a, SS, KV, q, v(CC, 16))
        a.i("s_nop 15")
        for r in range(16): a.i(f"v_exp_f32 v{SS+r}, v{SS+r}")
        a.i("s_nop 0")
        for j in range(8): a.i(f"v_cvt_pk_bf16_f32 v{PP+j}, v{SS+2*j}, v{SS+2*j+1}")
        a.i("s_nop 1")
        mfma(a, OO, KV + 4, PP)
        mfma(a, OO, KV + 8, PP + 4)
        a.i("s_nop 15")
        a.i("s_add_u32 s50, s50, 2048")
        a.i(f"s_cmp_lt_u32 s50, {WS_KV + 64*2048}")
        a.i(f"s_cbranch_scc1 L_attn_slow{rh}_b")
        for r in range(9): a.i(f"v_mov_b32 v{f+r}, v{OO+r}")
        a.i("s_nop 1")
        a.i(f"s_branch L_attn_ok{rh}")
    a.vm = []; a.lg = []
    return a.finish()

def back():
    a = Asm()
    END = "L_back_end"
    entry(a, END)
    SWS, SW2, SWO, SB2, SOUT = 44, 48, 52, 56, 60
    VLIN, VW1K, VTR, VG = 2, 3, 4, 6
    ACC, WF, HR, BA, ONE = 64, 32, 128, 16, 24
    L_PART = 0; RING0 = 73728
    GW = S_W
    a.i(f"v_lshlrev_b32 v{VLIN}, 4, v0")
    wchunk_addr(a, VW1K, 14, 1024)
    tr_addr(a, VTR, 14, 15, 4, 6, True)
    a.i(f"s_mul_i32 s14, s{GW}, {RING_W}")
    a.i(f"s_add_u32 s14, s14, {RING0}")
    a.i(f"v_add_u32 v{VTR}, s14, v{VTR}")
    a.i("s_waitcnt lgkmcnt(0)")
    stamp(a, 6, 2)
    srd(a, SW2, "w2"); srd(a, SWS, "ws"); srd(a, SWO, "wo"); srd(a, SB2, "b2"); srd(a, SOUT, "out")
    a.i(f"s_mul_i32 s12, s{GW}, {28*16384}")
    a.i(f"s_lshl_b32 s8, s{S_MU}, 7")
    a.i("s_add_u32 s12, s12, s8")
    a.i(f"s_lshl_b32 s15, s{GW}, 17")
    a.i("s_add_u32 s15, s15, s8")
    a.i(f"s_mul_i32 s13, s{S_G}, 112")
    a.i(f"s_mul_i32 s9, s{GW}, 28")
    a.i("s_add_u32 s13, s13, s9")
    a.i("s_lshl_b32 s13, s13, 11")
    a.i(f"s_add_u32 s13, s13, {WS_H}")
    a.i(f"s_lshl_b32 s9, s{S_G}, 2")
    a.i(f"s_add_u32 s9, s9, s{GW}")
    a.i("s_lshl_b32 s9, s9, 14")
    a.i(f"s_add_u32 s9, s9, {WS_O}")
    NS = 36
    def issue(sx):
        wsrd, wso, hso = (SW2, 12, 13) if sx < 28 else (SWO, 15, 9)
        for p in range(2):
            a.i(f"s_add_u32 m0, s14, {(sx % RD)*2048 + p*1024 - 64*p}")
            a.i(f"buffer_load_dwordx4 v{VW1K}, s[{wsrd}:{wsrd+3}], s{wso} offen offset:{64*p} lds")
        a.i(f"s_add_u32 s{wso}, s{wso}, 16384")
        for rh in range(2):
            a.i(f"buffer_load_dwordx4 {v(HR + 8*(sx % RD) + 4*rh,4)}, v{VLIN}, s[{SWS}:{SWS+3}], s{hso} offen offset:{1024*rh}", tag=("w", sx))
        a.i(f"s_add_u32 s{hso}, s{hso}, 2048")
    a.i("v_lshlrev_b32 v14, 1, v0")
    a.i("v_cmp_gt_u32 vcc, 32, v0")
    a.i(f"v_mov_b32 v15, {BIG:#x}")
    a.i("v_cndmask_b32 v14, v15, v14, vcc")
    a.i(f"s_cmp_eq_u32 s{GW}, 0")
    a.i(f"s_cselect_b32 s10, s8, {BIG:#x}")
    for p in range(2):
        a.i(f"buffer_load_ushort v{BA+4*p}, v14, s[{SB2}:{SB2+3}], s10 offen offset:{64*p}", tag="b2")
        for r in range(1, 4): a.i(f"v_mov_b32 v{BA+4*p+r}, 0")
    a.i("v_and_b32 v14, 31, v0")
    a.i("v_lshlrev_b32 v14, 2, v14")
    a.i(f"s_lshl_b32 s10, s{S_G}, 8")
    a.i(f"s_add_u32 s10, s10, {WS_G}")
    for rh in range(2):
        a.i(f"buffer_load_dword v{VG+rh}, v14, s[{SWS}:{SWS+3}], s10 offen offset:{128*rh}", tag="b2")
    for sx in range(RD): issue(sx)
    bias_frags(a, ONE, 15)
    a.wait(vm="b2")
    for p in range(2):
        for rh in range(2): mfma(a, ACC + 32*p + 16*rh, BA + 4*p, ONE, "0")
    for rh in range(2): a.i(f"v_sub_f32 v{VG+rh}, 1.0, v{VG+rh}")
    def rd(sx):
        a.wait(vm=("w", sx))
        b = sx & 1
        for p in range(2):
            o = (sx % RD)*2048 + p*1024
            a.i(f"ds_read_b64_tr_b16 {v(WF+8*b+4*p,2)}, v{VTR} offset:{o}")
            a.i(f"ds_read_b64_tr_b16 {v(WF+8*b+4*p+2,2)}, v{VTR} offset:{o+512}", tag=("r", sx))
    rd(0)
    for sx in range(NS):
        if sx + 1 < NS: rd(sx+1)
        a.wait(lg=("r", sx))
        b = sx & 1
        if sx == 28:
            a.i("s_nop 7")
            for p in range(2):
                for rh in range(2):
                    t = ACC + 32*p + 16*rh
                    for r in range(16): a.i(f"v_mul_f32 v{t+r}, v{VG+rh}, v{t+r}")
        for p in range(2):
            for rh in range(2):
                mfma(a, ACC + 32*p + 16*rh, WF+8*b+4*p, HR + 8*(sx % RD) + 4*rh)
        if sx + RD < NS: issue(sx + RD)
    PITCH = 272; PW = 64*PITCH
    a.i("v_and_b32 v14, 31, v0")
    a.i(f"v_mul_u32_u24 v14, {PITCH}, v14")
    a.i("v_lshrrev_b32 v15, 5, v0")
    a.i("v_lshl_add_u32 v14, v15, 4, v14")
    a.i(f"s_mul_i32 s10, s{GW}, {PW}")
    a.i("v_add_u32 v14, s10, v14")
    a.i("v_lshrrev_b32 v15, 3, v0")
    a.i(f"s_lshl_b32 s10, s{GW}, 4")
    a.i("v_add_u32 v15, s10, v15")
    a.i("v_and_b32 v13, 7, v0")
    a.i(f"v_mul_u32_u24 v12, {PITCH}, v15")
    a.i("v_lshl_add_u32 v12, v13, 5, v12")
    a.i("v_lshlrev_b32 v15, 10, v15")
    a.i("v_lshl_add_u32 v15, v13, 4, v15")
    a.i(f"s_lshl_b32 s10, s{S_G}, 16")
    a.i("s_add_u32 s10, s10, s8")
    a.i("s_add_u32 s11, s10, 8192")
    for p in range(2):
        for rh in range(2):
            for q in range(4):
                a.i(f"ds_write_b128 v14, {v(ACC + 32*p + 16*rh + 4*q,4)} offset:{L_PART + rh*32*PITCH + (32*p + 8*q)*4}")
    a.i("s_waitcnt lgkmcnt(0)"); a.lg = []
    a.i("s_barrier")
    a.i(f"v_add_u32 v13, {2*PW}, v12")
    for rnd in range(2):
        for w in range(4):
            for hf in range(2):
                base = 12 if w < 2 else 13
                a.i(f"ds_read_b128 {v(128 + rnd*32 + w*8 + 4*hf,4)}, v{base} offset:{L_PART + (w&1)*PW + rnd*8*PITCH + 16*hf}", tag=("p", rnd, w))
    for rnd in range(2):
        b = 128 + rnd*32
        a.wait(lg=("p", rnd, 1))
        for r in range(0, 8, 2): a.i(f"v_pk_add_f32 {v(b+r,2)}, {v(b+r,2)}, {v(b+8+r,2)}")
        a.wait(lg=("p", rnd, 3))
        for r in range(0, 8, 2): a.i(f"v_pk_add_f32 {v(b+16+r,2)}, {v(b+16+r,2)}, {v(b+24+r,2)}")
        for r in range(0, 8, 2): a.i(f"v_pk_add_f32 {v(b+r,2)}, {v(b+r,2)}, {v(b+16+r,2)}")
        for j in range(4): a.i(f"v_cvt_pk_bf16_f32 v{b+8+j}, v{b+2*j}, v{b+2*j+1}")
        a.i(f"buffer_store_dwordx4 {v(b+8,4)}, v15, s[{SOUT}:{SOUT+3}], s{10+rnd} offen")
    stamp(a, 7, 2)
    a.label(END)
    a.i("s_endpgm")
    return a.finish()

HEAD = open("cdna_kernels/" + NAME + ".s.ref").read().split("; Override launch")[0]
def kd(name, vg=256):
    return f""".section .rodata,"a"
.p2align 6
.amdhsa_kernel {name}
  .amdhsa_next_free_vgpr {vg}
  .amdhsa_next_free_sgpr 102
  .amdhsa_accum_offset {vg}
  .amdhsa_group_segment_fixed_size 0
  .amdhsa_kernarg_size 112
  .amdhsa_user_sgpr_count 2
  .amdhsa_user_sgpr_kernarg_segment_ptr 1
  .amdhsa_system_sgpr_workgroup_id_x 1
.end_amdhsa_kernel
"""
def build(kernels):
    s_ = HEAD
    for n, blk, lds, body in kernels:
        s_ += f"; @launch kernel={n} grid=(256,1,1) block=({blk},1,1) lds={lds}\n"
    s_ += '.amdgcn_target "amdgcn-amd-amdhsa--gfx950"\n'
    seen = set()
    for n, blk, lds, body in kernels:
        if n in seen: continue
        seen.add(n)
        s_ += f".text\n.globl {n}\n.p2align 8\n.type {n},@function\n{n}:\n{body}" + kd(n)
    return s_

if __name__ == "__main__":
    out = sys.argv[1] if len(sys.argv) > 1 else "v1.s"
    STAMP = 'stamp' in sys.argv[2:]
    OPT = set(sys.argv[2:])
    txt = build([("front_kernel", 512, LDS_BYTES, front()), ("attn_kernel", 256, 65536, attn()), ("back_kernel", 256, LDS_BYTES, back())] + ([("diag_kernel", 256, 1024, diag(3))] if STAMP else []))
    open(out, "w").write(txt)
```

```python
import sys, math, struct
from asmgen import *

NAME = "gated_mix__grouped_kv_mqa__dense_activation_squared_relu__prompt"
WS_KV = 0
WS_HF = 0x20000
WS_O  = 0x40000
WS_H  = 0x240000
WS_END = WS_H + 32*112*2048
L_X, L_WQ, L_WKV, L_G = 0, 65536, 131072, 147456
L_QF = 148480
L_RING = 65536; RING_W = 20480; RD = 10
LDS_BYTES = 163840
QSCALE = 0.25 * math.log2(math.e)
def f2u(x): return struct.unpack("<I", struct.pack("<f", x))[0]
S_W, S_G, S_MU = 3, 4, 5
P = dict(x=16, wq=18, wk=20, wv=22, wo=24, bx=26, w1=28, b1=30, w2=32, b2=34, gate=36, out=38, dbg=40, ws=42)
SZ = dict(x=2048*1024, wq=512*1024, wo=512*1024, w1=512*3584, b1=3584, w2=1792*1024, b2=1024, gate=1024, out=2048*1024, dbg=256, ws=WS_END)
BIG = 0x40000000
SPIN = 40000
STAMP = False; ONLY = None; OPT = set()
PRM = dict(D1=3, D2W=2, D2H=2, DO=3, rot=1, hsleep=4, gp=0)
KBO = 76
S_J = 15
WS_STAMP = 0xC00000

def srd(a, d, name):
    a.i(f"s_mov_b32 s{d}, s{P[name]}")
    a.i(f"s_mov_b32 s{d+1}, s{P[name]+1}")
    a.i(f"s_mov_b32 s{d+2}, {SZ[name]:#x}")
    a.i(f"s_mov_b32 s{d+3}, 0x20000")
def R(d): return f"s[{d}:{d+3}]"

def stamp(a, idx, vt):
    if not STAMP or (ONLY is not None and idx != ONLY): return
    a.i("s_memrealtime s[90:91]")
    a.i("s_memtime s[88:89]")
    a.i(f"s_mov_b32 s92, s{P['ws']}")
    a.i(f"s_mov_b32 s93, s{P['ws']+1}")
    a.i("s_mov_b32 s94, 0x1000000")
    a.i("s_mov_b32 s95, 0x20000")
    a.i("s_mov_b64 s[96:97], exec")
    a.i("s_lshl_b32 s98, s2, 2")
    a.i(f"s_add_u32 s98, s98, {WS_STAMP + idx*1024}")
    a.i("s_waitcnt lgkmcnt(0)"); a.lg = []
    a.i("s_mov_b64 exec, 1")
    a.i(f"v_mov_b32 v{vt}, s90")
    a.i(f"v_mov_b32 v{vt+1}, s88")
    a.i(f"buffer_store_dword v{vt}, off, s[92:95], s98")
    a.i("s_lshl_b32 s98, s2, 3")
    a.i(f"s_add_u32 s98, s98, s{S_W}")
    a.i("s_lshl_b32 s98, s98, 3")
    a.i(f"s_add_u32 s98, s98, {WS_STAMP + 0x10000 + idx*16384}")
    a.i(f"buffer_store_dwordx2 v[{vt}:{vt+1}], off, s[92:95], s98")
    a.i("s_mov_b64 exec, s[96:97]")

def mfma(a, d, A, B, C=None):
    c = v(d, 16) if C is None else C
    a.i(f"v_mfma_f32_32x32x16_bf16 {v(d,16)}, {v(A,4)}, {v(B,4)}, {c}")
def mfma16(a, d, A, B, C=None):
    c = v(d, 4) if C is None else C
    a.i(f"v_mfma_f32_16x16x32_bf16 {v(d,4)}, {v(A,4)}, {v(B,4)}, {c}")

def tr_addr(a, dst, t0, t1, rowmul_h):
    a.i(f"v_lshrrev_b32 v{t0}, 5, v0")
    a.i(f"v_mul_u32_u24 v{t0}, {rowmul_h}, v{t0}")
    a.i(f"v_bfe_u32 v{t1}, v0, 2, 2")
    a.i(f"v_add_u32 v{t0}, v{t0}, v{t1}")
    a.i(f"v_lshlrev_b32 v{dst}, 6, v{t0}")
    a.i(f"v_and_b32 v{t1}, 3, v0")
    a.i(f"v_lshl_add_u32 v{dst}, v{t1}, 3, v{dst}")
    a.i(f"v_bfe_u32 v{t1}, v0, 4, 1")
    a.i(f"v_lshl_add_u32 v{dst}, v{t1}, 5, v{dst}")

def xfrag_addr(a, dst, t0, t1):
    a.i(f"v_bfe_u32 v{t0}, v0, 1, 3")
    a.i(f"v_lshrrev_b32 v{t1}, 5, v0")
    a.i(f"v_xor_b32 v{t0}, v{t0}, v{t1}")
    a.i(f"v_and_b32 v{t1}, 31, v0")
    a.i(f"v_lshlrev_b32 v{t1}, 7, v{t1}")
    for q in range(4):
        a.i(f"v_xor_b32 v{dst+q}, {2*q}, v{t0}")
        a.i(f"v_lshl_add_u32 v{dst+q}, v{dst+q}, 4, v{t1}")

def wchunk_addr(a, dst, t0, pitch):
    a.i(f"v_lshrrev_b32 v{t0}, 2, v0")
    a.i(f"v_mul_u32_u24 v{dst}, {pitch}, v{t0}")
    a.i(f"v_and_b32 v{t0}, 3, v0")
    a.i(f"v_lshl_add_u32 v{dst}, v{t0}, 4, v{dst}")

def run(a, items):
    for t in items: t() if callable(t) else a.i(t)

def spin_tail(a, cnt, again, done, sleep=0):
    a.i(f"s_sub_u32 s{cnt}, s{cnt}, 1")
    a.i(f"s_cmp_eq_u32 s{cnt}, 0")
    a.i(f"s_cbranch_scc1 {done}")
    if sleep: a.i(f"s_sleep {sleep}")
    a.i(f"s_branch {again}")

SX, SWQ, SWKV, SW1, SB1, SGT, SWS, SDBG, SW2, SWO, SOUT = 44, 48, 52, 56, 60, 64, 68, 72, 76, 80, 84
SB2 = 48
VLIN = 2
PITCH = 272

def final_stage(a, T):
    RA, RB, SO = T, T+1, T+2
    B = T + 4
    for w in range(4):
        for hf in range(2):
            a.i(f"ds_read_b128 {v(B + w*8 + 4*hf,4)}, v{RA if w < 2 else RB} offset:{(w&1)*RING_W + 16*hf}", tag=("p", w))
    a.wait(lg=("p", 1))
    for r in range(0, 8, 2): a.i(f"v_pk_add_f32 {v(B+r,2)}, {v(B+r,2)}, {v(B+8+r,2)}")
    a.wait(lg=("p", 3))
    for r in range(0, 8, 2): a.i(f"v_pk_add_f32 {v(B+16+r,2)}, {v(B+16+r,2)}, {v(B+24+r,2)}")
    for r in range(0, 8, 2): a.i(f"v_pk_add_f32 {v(B+r,2)}, {v(B+r,2)}, {v(B+16+r,2)}")
    for j in range(4): a.i(f"v_cvt_pk_bf16_f32 v{B+8+j}, v{B+2*j}, v{B+2*j+1}")
    a.i(f"buffer_store_dwordx4 {v(B+8,4)}, v{SO}, {R(SOUT)}, s10 offen")
def final_addr(a, T):
    RA, RB, SO, t = T, T+1, T+2, T+3
    a.i(f"v_lshrrev_b32 v{SO}, 3, v0")
    a.i(f"s_lshl_b32 s10, s{S_W}, 3")
    a.i(f"v_add_u32 v{SO}, s10, v{SO}")
    a.i(f"v_and_b32 v{t}, 7, v0")
    a.i(f"v_mul_u32_u24 v{RA}, {PITCH}, v{SO}")
    a.i(f"v_lshl_add_u32 v{RA}, v{t}, 5, v{RA}")
    a.i(f"v_add_u32 v{RA}, {L_RING}, v{RA}")
    a.i(f"v_add_u32 v{RB}, {2*RING_W}, v{RA}")
    a.i(f"v_lshlrev_b32 v{SO}, 10, v{SO}")
    a.i(f"v_lshl_add_u32 v{SO}, v{t}, 4, v{SO}")
    a.i(f"s_lshl_b32 s10, s{S_G}, 16")
    a.i(f"s_lshl_b32 s11, s{S_MU}, 7")
    a.i("s_add_u32 s10, s10, s11")
    srd(a, SOUT, "out")

def attn_slot(a, i, Q, S, Pq, O, prv, cur, nxt, extra):
    Sc = S + 16*(i & 1); Sn = S + 16*((i+1) & 1)
    e = lambda r: a.i(f"v_exp_f32 v{Sc+r}, v{Sc+r}")
    c = lambda j: a.i(f"v_cvt_pk_bf16_f32 v{Pq+j}, v{Sc+2*j}, v{Sc+2*j+1}")
    ex = lambda k: run(a, extra.get(k, []))
    e(0); e(1)
    ip = (i - 1) % 8
    setp = cur if i > 0 else prv
    mfma(a, O + 16*ip, setp + 8, Pq + 4)
    ex(0)
    for r in range(2, 7): e(r)
    inx = (i + 1) % 8
    setn = cur if i < 7 else nxt
    ex("pre1")
    mfma(a, Sn, setn, Q + 4*inx, "0")
    ex(1)
    e(7)
    for j in range(4): c(j)
    e(8); e(9)
    mfma(a, O + 16*i, cur + 4, Pq)
    ex(2)
    for r in range(10, 16): e(r)
    for j in range(4, 8): c(j)

def kernel():
    a = Asm()
    END = "L_end"
    a.i("s_cmp_ge_u32 s2, 256")
    a.i(f"s_cbranch_scc1 {END}")
    a.i("s_load_dwordx16 s[16:31], s[0:1], 0")
    a.i("s_load_dwordx8 s[32:39], s[0:1], 64")
    a.i("s_load_dwordx4 s[40:43], s[0:1], 96")
    a.i("v_lshrrev_b32 v1, 6, v0")
    a.i("v_and_b32 v0, 63, v0")
    a.i(f"v_readfirstlane_b32 s{S_W}, v1")
    a.i("s_and_b32 s6, s2, 7")
    a.i("s_lshr_b32 s7, s2, 3")
    a.i(f"s_and_b32 s{S_MU}, s7, 7")
    a.i("s_lshr_b32 s7, s7, 3")
    a.i("s_lshl_b32 s6, s6, 2")
    a.i(f"s_add_u32 s{S_G}, s6, s7")
    a.i(f"s_and_b32 s{S_J}, s{S_G}, {3 if PRM['rot'] else 0}")
    a.i(f"s_lshl_b32 s6, s{S_J}, 8")
    for i in range(8):
        a.i(f"s_add_u32 s7, s6, {128*i}")
        a.i(f"s_and_b32 s{KBO+i}, s7, 0x380")
    VGE, VXE, VXO, VXF = 8, 9, 10, 11
    a.i(f"v_lshlrev_b32 v{VLIN}, 4, v0")
    a.i("v_bfe_u32 v14, v0, 4, 2")
    a.i("v_and_b32 v15, 7, v0")
    a.i("v_xor_b32 v14, v14, v15")
    a.i(f"v_lshlrev_b32 v{VGE}, 4, v14")
    a.i("v_lshrrev_b32 v14, 3, v0")
    a.i(f"s_lshl_b32 s6, s{S_G}, 6")
    a.i("v_add_u32 v14, s6, v14")
    a.i(f"v_lshl_add_u32 v{VXE}, v14, 10, v{VGE}")
    a.i(f"v_xor_b32 v{VXO}, 64, v{VXE}")
    a.i(f"s_and_b32 s6, s{S_W}, 1")
    a.i("s_lshl_b32 s7, s6, 6")
    a.i(f"v_xor_b32 v{VXF}, s7, v{VXE}")
    a.i(f"s_and_b32 s12, s{S_MU}, 3")
    a.i("s_lshl_b32 s7, s12, 1")
    a.i("s_add_u32 s7, s7, s6")
    a.i(f"s_lshr_b32 s8, s{S_W}, 1")
    a.i("s_lshl_b32 s9, s7, 13")
    a.i(f"s_add_u32 s10, s8, s{S_J}")
    a.i("s_and_b32 s10, s10, 3")
    a.i("s_lshl_b32 s10, s10, 8")
    a.i("s_add_u32 s9, s9, s10")
    a.i("s_lshl_b32 s10, s8, 14")
    a.i("s_lshl_b32 s11, s7, 10")
    a.i("s_add_u32 s10, s10, s11")
    a.i(f"s_lshl_b32 s11, s{S_W}, 11")
    a.i("s_waitcnt lgkmcnt(0)")
    stamp(a, 0, 250)
    srd(a, SWS, "ws")
    a.i(f"s_lshl_b32 s13, s{S_MU}, 3")
    a.i(f"s_add_u32 s13, s13, s{S_W}")
    a.i("s_cmp_lg_u32 s13, 3")
    a.i("s_cbranch_scc1 L_noinv")
    for r in range(4): a.i(f"v_mov_b32 v{16+r}, -1")
    a.i("v_mov_b32 v20, 0")
    a.i("v_mov_b32 v21, 0")
    a.i("v_lshlrev_b32 v22, 3, v0")
    a.i(f"s_lshl_b32 s14, s{S_G}, 12")
    for j in range(4):
        a.i(f"buffer_store_dwordx4 v[16:19], v{VLIN}, {R(SWS)}, s14 offen offset:{j*1024} sc1")
    a.i(f"s_lshl_b32 s14, s{S_G}, 9")
    a.i(f"s_add_u32 s14, s14, {WS_HF}")
    a.i(f"buffer_store_dwordx2 v[20:21], v22, {R(SWS)}, s14 offen sc1")
    a.label("L_noinv")
    a.vm = a.vm[:-5]
    srd(a, SX, "x")
    for j in range(2):
        a.i(f"s_add_u32 m0, s10, {L_X + j*8192 - j*128}")
        a.i(f"buffer_load_dwordx4 v{VXF}, {R(SX)}, s9 offen offset:{j*128} lds", tag="p1")
    a.i(f"s_cmp_ge_u32 s{S_MU}, 4")
    a.i(f"s_cselect_b32 s{SWKV}, s{P['wv']}, s{P['wk']}")
    a.i(f"s_cselect_b32 s{SWKV+1}, s{P['wv']+1}, s{P['wk']+1}")
    a.i(f"s_mov_b32 s{SWKV+2}, 16384")
    a.i(f"s_mov_b32 s{SWKV+3}, 0x20000")
    a.i(f"s_add_u32 m0, s11, {L_WKV}")
    a.i(f"s_lshl_b32 s14, s{S_J}, 12")
    a.i("s_add_u32 s11, s11, s14")
    a.i("s_and_b32 s11, s11, 0x3fff")
    for j in range(2):
        a.i(f"buffer_load_dwordx4 v{VLIN}, {R(SWKV)}, s11 offen offset:{j*1024} lds", tag="p1")
    srd(a, SDBG, "dbg")
    a.i(f"s_cmp_ge_u32 s{S_W}, 4")
    a.i("s_cbranch_scc1 L_G")
    vm0 = list(a.vm)
    a_waves(a)
    a.label("L_G")
    a.vm = vm0; a.lg = []
    g_waves(a, VGE, VXE, VXO)
    a.label(END)
    a.i("s_endpgm")
    a_slow(a)
    return a.finish()

VV, VG, T0, T1 = 3, 4, 6, 7
Q, KV, S, Pq, F, O = 8, 40, 64, 96, 104, 128
KVS = [40, 52, 104, 116]
AST = 94
SM, SKO, SKL, SIT, SSP, SKC = 60, 62, 63, 64, 65, 66
def kvload(a, st, so=SKO, off=0):
    b = KVS[st]
    return [
        lambda: a.i(f"buffer_load_dwordx4 {v(b,4)}, v{VLIN}, {R(SWS)}, s{so} offen offset:{off} sc1", tag=("kv", st)),
        f"s_mov_b64 exec, s[{SM}:{SM+1}]",
        lambda: a.i(f"buffer_load_dwordx4 {v(b+4,4)}, v{VV}, {R(SWS)}, s{so} offen offset:{off+1024} sc1", tag=("kv", st)),
        lambda: a.i(f"buffer_load_dwordx4 {v(b+8,4)}, v{VV}, {R(SWS)}, s{so} offen offset:{off+1536} sc1", tag=("kv", st)),
        "s_mov_b64 exec, -1"]
def kvcheck(st):
    b = KVS[st]
    return [f"v_max3_u32 v{T0}, v{b}, v{b+4}, v{b+8}", f"v_cmp_eq_u32 vcc, -1, v{T0}"]
def kvretry(a, st, name, back):
    a.label(name)
    a.i("s_waitcnt vmcnt(0)")
    a.label(name + "_a")
    run(a, kvload(a, st, SKC))
    a.i("s_waitcnt vmcnt(0)"); a.vm = []
    run(a, kvcheck(st))
    a.i(f"s_cbranch_vccz {back}")
    spin_tail(a, SSP, name + "_a", back)
def kvfirst(a):
    run(a, kvload(a, 0, SKC)); run(a, kvload(a, 1, SKC, 2048)); run(a, kvload(a, 2, SKO))
def kvfirstcheck(a):
    b0, b1, b2 = KVS[:3]
    a.i(f"v_max3_u32 v{T0}, v{b0}, v{b0+4}, v{b0+8}")
    a.i(f"v_max3_u32 v{T1}, v{b1}, v{b1+4}, v{b1+8}")
    a.i(f"v_max3_u32 v{T0}, v{T0}, v{b2}, v{b2+4}")
    a.i(f"v_max3_u32 v{T0}, v{T0}, v{T1}, v{b2+8}")
    a.i(f"v_cmp_eq_u32 vcc, -1, v{T0}")

def a_waves(a):
    VW1K, VXR, VTR, VGA = 12, 88, 92, 93
    wchunk_addr(a, VW1K, 14, 1024)
    srd(a, SWQ, "wq")
    a.i(f"s_add_u32 s9, s{S_W}, s{S_J}")
    a.i("s_and_b32 s9, s9, 3")
    a.i("s_lshl_b32 s9, s9, 17")
    a.i(f"s_lshl_b32 s10, s{S_MU}, 7")
    a.i("s_add_u32 s9, s9, s10")
    a.i(f"s_lshl_b32 s8, s{S_W}, 14")
    a.i(f"s_add_u32 s8, s8, {L_WQ}")
    for sl in range(8):
        a.i(f"s_lshl_b32 s10, s{KBO+sl}, 4")
        a.i("s_add_u32 s10, s10, s8")
        a.i(f"s_lshl_b32 s11, s{KBO+sl}, 7")
        a.i("s_add_u32 s11, s11, s9")
        for p in range(2):
            a.i(f"s_add_u32 m0, s10, {p*1024 - 64*p}")
            a.i(f"buffer_load_dwordx4 v{VW1K}, {R(SWQ)}, s11 offen offset:{64*p} lds", tag="wq")
    a.i("s_cmp_lg_u32 s13, 3")
    a.i("s_cbranch_scc1 L_noinv2")
    a.i("s_waitcnt vmcnt(20)")
    a.i("v_mov_b32 v20, 1")
    a.i(f"s_lshl_b32 s14, s{S_G}, 2")
    a.i("s_mov_b64 exec, 1")
    a.i(f"buffer_store_dword v20, off, {R(SDBG)}, s14 sc1")
    a.i("s_mov_b64 exec, -1")
    a.i("s_waitcnt vmcnt(17)")
    a.i("s_branch L_inv3")
    a.label("L_noinv2")
    a.vm = a.vm[:-1]
    a.wait(vm="p1")
    a.label("L_inv3")
    a.i("s_barrier")
    stamp(a, 1, AST)
    xfrag_addr(a, VXR, 14, 15)
    tr_addr(a, VTR, 14, 15, 8)
    a.i(f"s_and_b32 s6, s{S_W}, 1")
    a.i(f"s_lshr_b32 s7, s{S_W}, 1")
    a.i("s_lshl_b32 s8, s6, 10")
    a.i(f"s_add_u32 s8, s8, {L_WQ}")
    a.i(f"v_add_u32 v{VTR}, s8, v{VTR}")
    a.i("s_lshl_b32 s8, s7, 12")
    for q in range(4): a.i(f"v_add_u32 v{VXR+q}, s8, v{VXR+q}")
    a.i(f"v_and_b32 v{T0}, 15, v0")
    a.i(f"v_lshrrev_b32 v{T1}, 5, v0")
    a.i(f"v_lshlrev_b32 v{T1}, 8, v{T1}")
    a.i(f"v_lshl_add_u32 v{VV}, v{T0}, 4, v{T1}")
    a.i(f"s_mov_b32 s{SM}, 0xffff")
    a.i(f"s_mov_b32 s{SM+1}, 0xffff")
    a.i(f"s_lshl_b32 s{SKC}, s{S_W}, 15")
    a.i(f"s_add_u32 s{SKO}, s{SKC}, {2*2048}")
    a.i(f"s_add_u32 s{SKL}, s{SKC}, {15*2048}")
    a.i(f"s_mov_b32 s{SSP}, {SPIN}")
    a.i(f"v_and_b32 v{T0}, 27, v0")
    a.i(f"v_cmp_eq_u32 vcc, 16, v{T0}")
    a.i(f"v_mov_b32 v{T1}, 0x3f803f80")
    for r in range(4, 8): a.i(f"v_mov_b32 v{Pq+r}, 0")
    a.i(f"v_cndmask_b32 v{T1}, 0, v{T1}, vcc")
    for st in range(4):
        for r in range(4, 12): a.i(f"v_mov_b32 v{KVS[st]+r}, v{T1}")
    for r in range(128): a.i(f"v_mov_b32 v{O+r}, 0")
    a.i("s_waitcnt vmcnt(0)"); a.vm = []
    a.i("s_barrier")
    stamp(a, 2, AST)
    a.i("s_setprio 1")
    FRS = [8, 16, 24, 32]; NB = 4
    def rd(sx):
        b = FRS[sx % NB]
        a.i(f"ds_read_b64_tr_b16 {v(b,2)}, v{VTR} offset:{sx*2048}")
        a.i(f"ds_read_b64_tr_b16 {v(b+2,2)}, v{VTR} offset:{sx*2048+256}")
        a.i(f"ds_read_b128 {v(b+4,4)}, v{VXR + (sx&3)} offset:{(sx>>2)*8192}", tag=("c", sx))
    for sx in range(NB-1): rd(sx)
    for sx in range(32):
        if sx + NB - 1 < 32: rd(sx + NB - 1)
        if sx == 24: kvfirst(a)
        a.wait(lg=("c", sx))
        b = FRS[sx % NB]
        mfma(a, S, b, b+4, "0" if sx == 0 else None)
    a.i("s_lshl_b32 s8, s6, 12")
    a.i("s_lshl_b32 s9, s7, 10")
    a.i("s_add_u32 s8, s8, s9")
    a.i(f"s_add_u32 s8, s8, {L_QF}")
    a.i(f"v_add_u32 v{T0}, s8, v{VLIN}")
    a.i(f"s_mov_b32 s10, {f2u(QSCALE):#x}")
    a.i(f"v_add_u32 v{T1}, {L_QF}, v{VLIN}")
    a.i(f"v_and_b32 v{VGA}, 31, v0")
    a.i(f"v_lshlrev_b32 v{VGA}, 2, v{VGA}")
    a.i(f"v_add_u32 v{VGA}, {L_G}, v{VGA}")
    for r in range(16): a.i(f"v_mul_f32 v{S+r}, s10, v{S+r}")
    for j in range(8): a.i(f"v_cvt_pk_bf16_f32 v{80+j}, v{S+2*j}, v{S+2*j+1}")
    for e in range(2): a.i(f"ds_write_b128 v{T0}, {v(80+4*e,4)} offset:{2048*e}")
    a.i("s_waitcnt lgkmcnt(0)"); a.lg = []
    a.i("s_barrier")
    stamp(a, 3, AST)
    for i in range(8): a.i(f"ds_read_b128 {v(Q+4*i,4)}, v{T1} offset:{1024*i}", tag=("q", i))
    for rh in range(2): a.i(f"ds_read_b32 v{VG+rh}, v{VGA} offset:{128*rh}", tag="g")
    a.i("s_waitcnt vmcnt(0)"); a.vm = []
    kvfirstcheck(a)
    a.i("s_cbranch_vccnz L_kvr_first")
    a.label("L_kv_first_ok")
    a.i("s_barrier")
    a.wait(lg="all")
    stamp(a, 4, AST)
    mfma(a, S, KV, Q, "0")
    a.i(f"s_mov_b32 s{SIT}, 4")
    if "prof" in OPT:
        for r in range(80, 84): a.i(f"s_mov_b32 s{r}, 0")
    a.i("s_nop 11")
    a.raw(".p2align 6")
    a.label("L_attn_loop")
    a.vm = [("kv", 1)]*3 + [("kv", 2)]*3
    for t in range(4):
        prv, cur, nxt = (t-1) % 4, t, (t+1) % 4
        ld = kvload(a, prv)
        if "nokv" in OPT: ld = ["s_nop 0"]*2
        def prof(items, acc):
            return ["s_memtime s[76:77]", "s_waitcnt lgkmcnt(0)"] + items + ["s_memtime s[78:79]", "s_waitcnt lgkmcnt(0)", "s_sub_u32 s78, s78, s76", f"s_add_u32 s{acc}, s{acc}, s78", f"s_max_u32 s{acc+1}, s{acc+1}, s78"]
        for i in range(8):
            extra = {}
            if i == 0:
                extra = {0: [f"s_add_u32 s{SKO}, s{SKO}, 2048"], 1: [f"s_min_u32 s{SKO}, s{SKO}, s{SKL}"], 2: [ld[0]]}
            if i == 1:
                extra = {0: ld[1:], 1: [f"s_add_u32 s{SKC}, s{SKC}, 2048"], 2: [f"s_min_u32 s{SKC}, s{SKC}, s{SKL}"]}
            if "prof" in OPT and i == 0: extra[2] = prof(extra[2], 80)
            if "prof" in OPT and i == 1: extra[0] = prof(extra[0], 80)
            if i == 7:
                extra = {0: (prof([lambda: a.wait(vm=("kv", nxt))], 82) if "prof" in OPT else [lambda: a.wait(vm=("kv", nxt))]) + kvcheck(nxt),
                         "pre1": [f"s_cbranch_vccnz L_kvr{t}", lambda: a.label(f"L_kvok{t}")]}
                if t == 3:
                    extra[1] = [f"s_sub_u32 s{SIT}, s{SIT}, 1"]; extra[2] = [f"s_cmp_lg_u32 s{SIT}, 0"]
            attn_slot(a, i, Q, S, Pq, O, KVS[prv], KVS[cur], KVS[nxt], extra)
    a.i("s_cbranch_scc1 L_attn_loop")
    a.i("s_nop 0")
    mfma(a, O + 16*7, KVS[3] + 8, Pq + 4)
    stamp(a, 5, AST)
    a.i("s_waitcnt vmcnt(%d)" % (2 if STAMP and ONLY in (None, 5) else 0)); a.vm = []
    if "prof" in OPT:
        a.i(f"s_sub_u32 s79, {SPIN}, s{SSP}")
        a.i("s_lshl_b32 s79, s79, 24"); a.i("s_or_b32 s81, s81, s79")
        for r in range(4): a.i(f"v_mov_b32 v{64+r}, s{80+r}")
        a.i("s_lshl_b32 s98, s2, 3"); a.i(f"s_add_u32 s98, s98, s{S_W}"); a.i("s_lshl_b32 s98, s98, 4"); a.i(f"s_add_u32 s98, s98, {0xE00000}")
        a.i("buffer_store_dwordx4 v[64:67], off, s[92:95], s98")
    a.i(f"v_lshlrev_b32 v{T0}, 2, v0")
    a.i("s_barrier")
    for w in range(4):
        if w < 3:
            a.i(f"s_cmp_lg_u32 s{S_W}, {w}")
            a.i(f"s_cbranch_scc1 L_attn_x{w+1}")
        for i in range(8):
            own = i >> 1
            if own == w: continue
            idx = w if w < own else w - 1
            o = (i*3 + idx)*2304
            if i == 7: a.i("s_nop 3")
            a.i(f"ds_write_b128 v{VLIN}, {v(O+16*i,4)} offset:{o}")
            a.i(f"ds_write_b128 v{VLIN}, {v(O+16*i+4,4)} offset:{o+1024}")
            a.i(f"ds_write_b32 v{T0}, v{O+16*i+8} offset:{o+2048}")
        a.i("s_waitcnt lgkmcnt(0)"); a.lg = []
        a.i("s_barrier")
        land = [O + 16*((2*w + 2 + k) % 8) for k in range(6)]
        for rh in range(2):
            i = 2*w + rh
            for idx in range(3):
                o = (i*3 + idx)*2304; d = land[rh*3 + idx]
                a.i(f"ds_read_b128 {v(d,4)}, v{VLIN} offset:{o}")
                a.i(f"ds_read_b128 {v(d+4,4)}, v{VLIN} offset:{o+1024}")
                a.i(f"ds_read_b32 v{d+8}, v{T0} offset:{o+2048}", tag=("x", rh, idx))
        for rh in range(2):
            i = 2*w + rh
            for j in range(4): a.i(f"v_mov_b32 v{Pq+4*rh+j}, v{Q+4*i+j}")
        for rh in range(2):
            i = 2*w + rh
            a.wait(lg=("x", rh, 1))
            for r in range(9): a.i(f"v_add_f32 v{land[rh*3]+r}, v{land[rh*3]+r}, v{land[rh*3+1]+r}")
            a.wait(lg=("x", rh, 2))
            for r in range(9): a.i(f"v_add_f32 v{O+16*i+r}, v{O+16*i+r}, v{land[rh*3+2]+r}")
            for r in range(9): a.i(f"v_add_f32 v{F+10*rh+r}, v{O+16*i+r}, v{land[rh*3]+r}")
        if w < 3: a.i("s_branch L_attn_fin")
        if w < 3: a.label(f"L_attn_x{w+1}")
    a.label("L_attn_fin")
    a.i(f"s_lshl_b32 s8, s{S_G}, 5")
    a.i(f"s_lshl_b32 s9, s{S_MU}, 2")
    a.i("s_add_u32 s8, s8, s9")
    a.i(f"s_add_u32 s8, s8, s{S_W}")
    a.i("s_lshl_b32 s8, s8, 11")
    a.i(f"s_add_u32 s8, s8, {WS_O}")
    a.i(f"s_mov_b32 s10, {f2u(2.0**-30):#x}")
    a.i(f"s_mov_b32 s11, {f2u(2.0**100):#x}")
    a.i("s_mov_b32 s12, 0x7f800000")
    for rh in range(2):
        f = F + 10*rh
        a.i(f"v_add_f32 v{T0}, abs(v{f}), abs(v{f+1})")
        for r in range(2, 8): a.i(f"v_add_f32 v{T0}, v{T0}, abs(v{f+r})")
        a.i(f"v_cmp_le_f32 s[54:55], s10, v{f+8}")
        a.i(f"v_cmp_ge_f32 s[56:57], s11, v{f+8}")
        a.i(f"v_cmp_gt_f32 vcc, s12, v{T0}")
        a.i("s_and_b64 s[54:55], s[54:55], s[56:57]")
        a.i("s_and_b64 s[54:55], s[54:55], vcc")
        a.i("s_cmp_eq_u64 s[54:55], -1")
        a.i(f"s_cbranch_scc0 L_slow{rh}")
        a.label(f"L_ok{rh}")
        a.i(f"v_rcp_f32 v{T0}, v{f+8}")
        a.i("s_nop 0")
        a.i(f"v_mul_f32 v{T0}, v{T0}, v{VG+rh}")
        for r in range(8): a.i(f"v_mul_f32 v{f+r}, v{T0}, v{f+r}")
        for j in range(4): a.i(f"v_cvt_pk_bf16_f32 v{S+4*rh+j}, v{f+2*j}, v{f+2*j+1}")
        a.i(f"v_min_u32 v{S+4*rh}, -2, v{S+4*rh}")
        a.i(f"buffer_store_dwordx4 {v(S+4*rh,4)}, v{VLIN}, {R(SWS)}, s8 offen offset:{1024*rh} sc1")
    stamp(a, 6, AST)
    final_addr(a, 8)
    a.i("s_barrier")
    final_stage(a, 8)
    stamp(a, 7, AST)
    a.i("s_endpgm")
    a.label("L_kvr_first")
    kvfirst(a)
    a.i("s_waitcnt vmcnt(0)"); a.vm = []
    kvfirstcheck(a)
    a.i("s_cbranch_vccz L_kv_first_ok")
    spin_tail(a, SSP, "L_kvr_first", "L_kv_first_ok")
    for t in range(4): kvretry(a, (t+1) % 4, f"L_kvr{t}", f"L_kvok{t}")

def a_slow(a):
    for rh in range(2):
        f = F + 10*rh; q = Pq + 4*rh
        SS, CC, OO, PP = O, O + 16, O + 32, O + 48
        a.label(f"L_slow{rh}")
        a.i("s_nop 7")
        a.i(f"s_mov_b32 s{SKO}, {WS_KV}")
        a.i(f"v_mov_b32 v{T1}, 0xff800000")
        a.label(f"L_slow{rh}_a")
        a.i(f"buffer_load_dwordx4 {v(KV,4)}, v{VLIN}, {R(SWS)}, s{SKO} offen sc1")
        a.i("s_waitcnt vmcnt(0)")
        mfma(a, SS, KV, q, "0")
        a.i("s_nop 15")
        for r in range(0, 16, 2): a.i(f"v_max3_f32 v{T1}, v{T1}, v{SS+r}, v{SS+r+1}")
        a.i(f"s_add_u32 s{SKO}, s{SKO}, 2048")
        a.i(f"s_cmp_lt_u32 s{SKO}, {WS_KV + 64*2048}")
        a.i(f"s_cbranch_scc1 L_slow{rh}_a")
        a.i(f"v_mov_b32 v{T0}, v{T1}")
        a.i("s_nop 1")
        a.i(f"v_permlane32_swap_b32 v{T0}, v{T1}")
        a.i(f"v_max_f32 v{T1}, v{T0}, v{T1}")
        for r in range(16):
            a.i(f"v_sub_f32 v{CC+r}, 0, v{T1}")
            a.i(f"v_mov_b32 v{OO+r}, 0")
        a.i(f"s_mov_b32 s{SKO}, {WS_KV}")
        a.label(f"L_slow{rh}_b")
        run(a, kvload(a, 0))
        a.i("s_waitcnt vmcnt(0)")
        mfma(a, SS, KV, q, v(CC, 16))
        a.i("s_nop 15")
        for r in range(16): a.i(f"v_exp_f32 v{SS+r}, v{SS+r}")
        a.i("s_nop 0")
        for j in range(8): a.i(f"v_cvt_pk_bf16_f32 v{PP+j}, v{SS+2*j}, v{SS+2*j+1}")
        a.i("s_nop 1")
        mfma(a, OO, KV + 4, PP)
        mfma(a, OO, KV + 8, PP + 4)
        a.i("s_nop 15")
        a.i(f"s_add_u32 s{SKO}, s{SKO}, 2048")
        a.i(f"s_cmp_lt_u32 s{SKO}, {WS_KV + 64*2048}")
        a.i(f"s_cbranch_scc1 L_slow{rh}_b")
        for r in range(9): a.i(f"v_mov_b32 v{f+r}, v{OO+r}")
        a.i("s_nop 1")
        a.i(f"s_branch L_ok{rh}")
    a.vm = []; a.lg = []

def g_waves(a, VGE, VXE, VXO):
    GW, GSP = 6, 99
    VW35, VW1K, VTR, VTRP, VGG = 3, 4, 5, 6, 12
    VXR = 16
    GF, BA1, BA2, ONE = 128, 160, 168, 176
    a.i(f"s_sub_u32 s{GW}, s{S_W}, 4")
    a.i(f"s_mov_b32 s{GSP}, {SPIN}")
    a.i("s_setprio 2")
    def small_loads():
        srd(a, SB1, "b1"); srd(a, SGT, "gate"); srd(a, SB2, "b2"); srd(a, SW1, "w1")
        a.i(f"s_and_b32 s7, s{GW}, 1")
        a.i("s_lshl_b32 s8, s7, 6")
        a.i(f"v_xor_b32 v{VGE}, s8, v{VGE}")
        for kb in range(8):
            a.i(f"buffer_load_dwordx4 {v(GF+4*kb,4)}, v{VGE}, {R(SGT)}, s{KBO+kb} offen", tag="gate")
        a.i(f"s_mul_i32 s12, s{S_MU}, 448")
        a.i(f"s_lshl_b32 s9, s{GW}, 7")
        a.i("s_add_u32 s12, s12, s9")
        a.i("s_add_u32 s13, s12, 64")
        a.i(f"s_cmp_eq_u32 s{GW}, 3")
        a.i(f"s_cselect_b32 s13, {BIG:#x}, s13")
        a.i("v_lshlrev_b32 v14, 1, v0")
        a.i("v_cmp_gt_u32 vcc, 32, v0")
        a.i(f"v_mov_b32 v15, {BIG:#x}")
        a.i(f"s_lshl_b32 s8, s{S_MU}, 7")
        a.i("v_cndmask_b32 v14, v15, v14, vcc")
        a.i(f"s_cmp_eq_u32 s{GW}, 0")
        a.i(f"s_cselect_b32 s10, s8, {BIG:#x}")
        for p in range(2):
            a.i(f"buffer_load_ushort v{BA1+4*p}, v14, {R(SB1)}, s{12+p} offen", tag="b")
            a.i(f"buffer_load_ushort v{BA2+4*p}, v14, {R(SB2)}, s10 offen offset:{64*p}", tag="b")
        if "touch" in OPT:
            a.i("v_lshrrev_b32 v14, 1, v0")
            a.i("v_mul_u32_u24 v14, 3584, v14")
            a.i("v_and_b32 v15, 1, v0")
            a.i("v_lshl_add_u32 v14, v15, 6, v14")
            a.i("s_mov_b32 s9, s12")
            for i in range(16):
                a.i(f"buffer_load_dword v255, v14, {R(SW1)}, s9 offen ; touch", tag="touch")
                if i < 15: a.i(f"s_add_u32 s9, s9, {32*3584}")
    def setup():
        for b in (BA1, BA1+4, BA2, BA2+4, ONE):
            for r in range(1, 4): a.i(f"v_mov_b32 v{b+r}, 0")
        a.i("v_mov_b32 v15, 0x3f80")
        a.i("v_cmp_gt_u32 vcc, 32, v0")
        wchunk_addr(a, VW35, 14, 3584)
        a.i(f"v_cndmask_b32 v{ONE}, 0, v15, vcc")
        wchunk_addr(a, VW1K, 14, 1024)
        xfrag_addr(a, VXR, 14, 15)
        tr_addr(a, VTR, 14, 15, 8)
        tr_addr(a, VTRP, 14, 15, 4)
        a.i(f"s_mul_i32 s14, s{GW}, {RING_W}")
        a.i(f"s_add_u32 s14, s14, {L_RING}")
        a.i(f"v_add_u32 v{VTR}, s14, v{VTR}")
        a.i(f"v_add_u32 v{VTRP}, s14, v{VTRP}")
    a.i(f"s_cmp_eq_u32 s{GW}, 0")
    a.i("s_cbranch_scc1 L_G0")
    vm0 = list(a.vm)
    a.i(f"s_add_u32 s7, s12, s{GW}")
    a.i("s_and_b32 s7, s7, 3")
    a.i("s_lshl_b32 s8, s7, 14")
    a.i("s_add_u32 s9, s8, 8192")
    a.i(f"v_add_u32 v{VXE}, s8, v{VXE}")
    a.i(f"v_add_u32 v{VXO}, s9, v{VXO}")
    a.i("s_lshl_b32 s10, s7, 11")
    for e in range(2):
        for kb in range(8):
            a.i(f"s_add_u32 m0, s10, {L_X + kb*8192 + e*1024}")
            a.i(f"buffer_load_dwordx4 v{VXO if e else VXE}, {R(SX)}, s{KBO+kb} offen lds", tag="x2")
    small_loads()
    a.wait(vm="p1")
    a.i("s_barrier")
    setup()
    a.wait(vm="x2")
    vm_g123 = list(a.vm)
    a.i("s_branch L_G_b1")
    a.label("L_G0")
    a.vm = vm0; a.lg = []
    XA, TA = 20, 22
    a.i("v_bfe_u32 v14, v0, 1, 3")
    a.i("v_lshrrev_b32 v15, 4, v0")
    a.i("v_xor_b32 v14, v14, v15")
    a.i("v_and_b32 v24, 15, v0")
    a.i("s_lshl_b32 s7, s12, 4")
    a.i("v_add_u32 v25, s7, v24")
    a.i("v_lshlrev_b32 v25, 7, v25")
    a.i(f"v_lshl_add_u32 v{XA}, v14, 4, v25")
    a.i(f"v_xor_b32 v{XA+1}, 64, v{XA}")
    a.i("v_bfe_u32 v14, v0, 2, 2")
    a.i("v_lshl_add_u32 v14, v15, 3, v14")
    a.i(f"v_lshlrev_b32 v{TA}, 5, v14")
    a.i("v_and_b32 v14, 3, v0")
    a.i(f"v_lshl_add_u32 v{TA}, v14, 3, v{TA}")
    a.i(f"v_add_u32 v{TA}, {L_WKV}, v{TA}")
    a.i(f"s_cmp_ge_u32 s{S_MU}, 4")
    a.i("s_cselect_b32 s8, 8, 9")
    a.i("s_cselect_b32 s9, 9, 8")
    a.i("s_cselect_b32 s10, 1024, 0")
    a.i("s_and_b32 s11, s12, 1")
    a.i("s_lshl_b32 s11, s11, s9")
    a.i("s_add_u32 s10, s10, s11")
    a.i(f"s_lshl_b32 s11, s{S_G}, 1")
    a.i("s_lshr_b32 s9, s12, 1")
    a.i("s_add_u32 s11, s11, s9")
    a.i("s_lshl_b32 s11, s11, 11")
    a.i("s_add_u32 s11, s11, s10")
    a.i("v_and_b32 v15, 1, v15")
    a.i("v_lshlrev_b32 v15, s8, v15")
    a.i("v_lshl_add_u32 v23, v24, 4, v15")
    a.i("v_and_b32 v24, 31, v0")
    a.i("v_lshlrev_b32 v24, 2, v24")
    a.wait(vm="p1")
    a.i("s_barrier")
    a.i(f"buffer_load_dword v26, v24, {R(SDBG)}, 0 offen sc1", tag="inv")
    a.i(f"s_cmp_ge_u32 s{S_MU}, 4")
    a.i("s_cbranch_scc1 L_G0_V")
    vm1 = list(a.vm)
    for orient in range(2):
        if orient:
            a.label("L_G0_V"); a.vm = list(vm1); a.lg = []
        NB = 5
        def rd(sx):
            b = 64 + 8*(sx % NB)
            a.i(f"ds_read_b64_tr_b16 {v(b,2)}, v{TA} offset:{sx*1024}")
            a.i(f"ds_read_b64_tr_b16 {v(b+2,2)}, v{TA} offset:{sx*1024+128}")
            a.i(f"ds_read_b128 {v(b+4,4)}, v{XA + (sx&1)} offset:{(sx>>1)*8192}", tag=("c", sx))
        for sx in range(NB-1): rd(sx)
        for sx in range(16):
            if sx + NB - 1 < 16: rd(sx + NB - 1)
            a.wait(lg=("c", sx))
            b = 64 + 8*(sx % NB)
            mfma16(a, 28, *((b, b+4) if orient == 0 else (b+4, b)), "0" if sx == 0 else None)
        if orient == 0: a.i("s_branch L_G0_pub")
    a.label("L_G0_pub")
    a.wait(vm="inv")
    a.i("v_cmp_eq_u32 vcc, 0, v26")
    a.i("v_mov_b32 v34, 0")
    a.i("v_mov_b32 v35, 0")
    a.i("s_cbranch_vccnz L_G0_inv")
    a.label("L_G0_go")
    a.i("s_nop 3")
    a.i("v_cvt_pk_bf16_f32 v32, v28, v29")
    a.i("v_cvt_pk_bf16_f32 v33, v30, v31")
    a.i("v_min_u32 v32, -2, v32")
    a.i("s_nop 0")
    a.i("v_permlane32_swap_b32 v33, v35")
    a.i("v_permlane32_swap_b32 v32, v34")
    a.i("s_mov_b32 exec_hi, 0")
    a.i(f"buffer_store_dwordx4 v[32:35], v23, {R(SWS)}, s11 offen sc1")
    a.i("s_mov_b32 exec_hi, -1")
    stamp(a, 8, 250)
    a.i("s_barrier")
    small_loads()
    setup()
    a.i("s_branch L_G_b2")
    a.label("L_G_b1")
    a.vm = vm_g123; a.lg = []
    a.i("s_barrier")
    a.i(f"s_cmp_lt_u32 s{GW}, 2")
    a.i("s_cbranch_scc1 L_G_b2")
    vm2 = list(a.vm)
    a.i("s_lshl_b32 s8, s7, 10")
    a.i(f"v_add_u32 v14, s8, v{VLIN}")
    XG, AC = 32, 20
    for i in range(4): a.i(f"v_mov_b32 v{AC+i}, 0")
    def grd(kb):
        for i in range(4):
            a.i(f"ds_read_b128 {v(XG + 16*(kb&1) + 4*i,4)}, v14 offset:{kb*8192 + i*2048}", tag=("g", kb))
    grd(0)
    a.wait(vm="gate")
    for kb in range(8):
        if kb < 7: grd(kb+1)
        a.wait(lg=("g", kb))
        for r in range(4):
            for i in range(4):
                a.i(f"v_dot2_f32_bf16 v{AC+i}, v{XG + 16*(kb&1) + 4*i + r}, v{GF+4*kb+r}, v{AC+i}")
    for mod in ("quad_perm:[1,0,3,2]", "quad_perm:[2,3,0,1]", "row_half_mirror"):
        for i in range(4):
            a.i(f"v_add_f32_dpp v{AC+i}, v{AC+i}, v{AC+i} {mod} row_mask:0xf bank_mask:0xf")
    a.i(f"s_mov_b32 s10, {f2u(-math.log2(math.e)):#x}")
    for i in range(4): a.i(f"v_mul_f32 v{AC+i}, s10, v{AC+i}")
    for i in range(4): a.i(f"v_exp_f32 v{AC+i}, v{AC+i}")
    a.i("v_lshrrev_b32 v15, 3, v0")
    for i in range(4): a.i(f"v_add_f32 v{AC+i}, 1.0, v{AC+i}")
    for i in range(4): a.i(f"v_rcp_f32 v{AC+i}, v{AC+i}")
    a.i("s_lshl_b32 s9, s7, 5")
    a.i(f"s_add_u32 s9, s9, {L_G}")
    a.i("v_lshl_add_u32 v15, v15, 2, s9")
    for i in range(4): a.i(f"ds_write_b32 v15, v{AC+i} offset:{64*i}")
    a.i("s_waitcnt lgkmcnt(0)")
    a.label("L_G_b2")
    a.vm = vm2; a.lg = []
    a.i("s_barrier")
    a.i("s_barrier")
    if "gidle" in OPT:
        a.i("s_waitcnt vmcnt(0)"); srd(a, SW2, "w2"); srd(a, SWO, "wo"); a.i("s_branch L_gidle")
    ACC, WF, XF, HR = 64, 32, 48, 192
    HD = 8
    D1, D2W, D2H = PRM["D1"], PRM["D2W"], PRM["D2H"]
    if "goob" in OPT: a.i(f"s_mov_b32 s{SW1+2}, 0")
    a.i("s_sub_u32 s13, s13, s12")
    a.i(f"s_add_u32 s77, s12, {32*16*3584}")
    a.i(f"s_mul_i32 s76, s{S_J}, {8*16*3584}")
    a.i("s_add_u32 s76, s76, s12")
    def dma1(sx):
        a.i(f"s_add_u32 m0, s14, {(sx % RD)*2048}")
        a.i("s_add_u32 s78, s76, s13")
        a.i(f"buffer_load_dwordx4 v{VW35}, {R(SW1)}, s76 offen lds", tag=("w", sx))
        a.i(f"s_add_u32 m0, s14, {(sx % RD)*2048 + 1024}")
        a.i(f"s_add_u32 s76, s76, {16*3584}")
        a.i(f"buffer_load_dwordx4 v{VW35}, {R(SW1)}, s78 offen lds", tag=("w", sx))
        a.i("s_cmp_eq_u32 s76, s77")
        a.i("s_cselect_b32 s76, s12, s76")
    for sx in range(D1): dma1(sx)
    a.i(f"s_lshl_b32 s8, s{S_G}, 5")
    a.i(f"s_lshl_b32 s9, s{S_MU}, 2")
    a.i("s_add_u32 s8, s8, s9")
    a.i(f"s_add_u32 s8, s8, s{GW}")
    a.i("s_lshl_b32 s8, s8, 11")
    a.i(f"s_add_u32 s8, s8, {WS_O}")
    for r in range(4): a.i(f"v_mov_b32 v{20+r}, -1")
    a.i("v_and_b32 v14, 31, v0")
    a.i("v_lshlrev_b32 v14, 2, v14")
    a.i(f"v_add_u32 v15, {L_G}, v14")
    for rh in range(2):
        a.i(f"buffer_store_dwordx4 v[20:23], v{VLIN}, {R(SWS)}, s8 offen offset:{1024*rh} sc1")
        a.i(f"ds_read_b32 v{VGG+rh}, v15 offset:{128*rh}", tag="gg")
    a.wait(vm="b", lg="gg")
    for p in range(2):
        for rh in range(2): mfma(a, ACC + 32*p + 16*rh, BA1 + 4*p, ONE, "0")
    for rh in range(2): a.i(f"v_sub_f32 v{VGG+rh}, 1.0, v{VGG+rh}")
    def rd1(sx):
        a.wait(vm=("w", sx))
        if "gnods" in OPT: return
        b = sx & 1
        for p in range(2):
            o = (sx % RD)*2048 + p*1024
            a.i(f"ds_read_b64_tr_b16 {v(WF+8*b+4*p,2)}, v{VTR} offset:{o}")
            a.i(f"ds_read_b64_tr_b16 {v(WF+8*b+4*p+2,2)}, v{VTR} offset:{o+256}")
        for rh in range(2):
            a.i(f"ds_read_b128 {v(XF+8*b+4*rh,4)}, v{VXR+(sx&3)} offset:{(sx>>2)*8192 + rh*4096}", tag=("r", sx))
    a.i(f"s_setprio {PRM['gp']}")
    rd1(0)
    for sx in range(32):
        if sx < 31: rd1(sx+1)
        a.wait(lg=("r", sx))
        b = sx & 1
        for p in range(2):
            for rh in range(2):
                if 'gnomfma' not in OPT: mfma(a, ACC + 32*p + 16*rh, WF+8*b+4*p, XF+8*b+4*rh)
        if sx + D1 < 32: dma1(sx + D1)
    a.i("s_setprio 2")
    stamp(a, 9, 250)
    srd(a, SW2, "w2"); srd(a, SWO, "wo")
    if "goob" in OPT: a.i(f"s_mov_b32 s{SW2+2}, 0"); a.i(f"s_mov_b32 s{SWO+2}, 0")
    a.i(f"s_mul_i32 s66, s{GW}, {28*16384}")
    a.i(f"s_lshl_b32 s8, s{S_MU}, 7")
    a.i("s_add_u32 s66, s66, s8")
    a.i(f"s_lshl_b32 s67, s{GW}, 17")
    a.i("s_add_u32 s67, s67, s8")
    a.i(f"s_mul_i32 s60, s{S_J}, 7")
    a.i(f"s_mul_i32 s61, s{S_MU}, {7 if PRM['rot'] else 0}")
    a.i("s_lshr_b32 s61, s61, 1")
    a.i("s_add_u32 s60, s60, s61")
    a.i("s_sub_u32 s61, s60, 28")
    a.i("s_cselect_b32 s60, s60, s61")
    a.i("s_mov_b32 s61, s66")
    a.i(f"s_add_u32 s62, s66, {28*16384}")
    a.i("s_lshl_b32 s63, s60, 14")
    a.i("s_add_u32 s66, s66, s63")
    def dma2(sx):
        wsrd, wso = (SW2, 66) if sx < 28 else (SWO, 67)
        a.i(f"s_add_u32 m0, s14, {(sx % RD)*2048}")
        a.i(f"s_add_u32 s63, s{wso}, 16384")
        a.i(f"buffer_load_dwordx4 v{VW1K}, {R(wsrd)}, s{wso} offen lds", tag=("w", sx))
        a.i(f"s_add_u32 m0, s14, {(sx % RD)*2048 + 1024 - 64}")
        a.i("s_cmp_eq_u32 s63, s62" if sx < 28 else "s_nop 0")
        a.i(f"buffer_load_dwordx4 v{VW1K}, {R(wsrd)}, s{wso} offen offset:64 lds", tag=("w", sx))
        a.i("s_cselect_b32 s66, s61, s63" if sx < 28 else "s_mov_b32 s67, s63")
    def hload(sx):
        for rh in range(2):
            a.i(f"buffer_load_dwordx4 {v(HR + 8*(sx % HD) + 4*rh,4)}, v{VLIN}, {R(SWS)}, s9 offen offset:{1024*rh} sc1", tag=("h", sx))
        a.i("s_add_u32 s9, s9, 2048")
        a.i("s_cmp_eq_u32 s9, s65")
        a.i("s_cselect_b32 s9, s64, s9")
    a.i(f"s_mul_i32 s8, s{S_G}, 112")
    a.i(f"s_mul_i32 s9, s{S_MU}, 14")
    a.i("s_add_u32 s10, s8, s9")
    a.i(f"s_lshl_b32 s9, s{GW}, 2")
    a.i("s_add_u32 s10, s10, s9")
    a.i("s_lshl_b32 s10, s10, 11")
    a.i(f"s_add_u32 s12, s10, {WS_H}")
    a.i("s_add_u32 s13, s12, 4096")
    a.i(f"s_cmp_eq_u32 s{GW}, 3")
    a.i(f"s_cselect_b32 s13, {BIG:#x}, s13")
    a.i(f"s_mul_i32 s9, s{GW}, 28")
    a.i("s_add_u32 s9, s9, s8")
    a.i("s_lshl_b32 s9, s9, 11")
    a.i(f"s_add_u32 s64, s9, {WS_H}")
    a.i(f"s_add_u32 s65, s64, {28*2048}")
    a.i("s_lshl_b32 s9, s60, 11")
    a.i("s_add_u32 s9, s9, s64")
    if "goob" in OPT: a.i(f"s_mov_b32 s9, {BIG}"); a.i(f"s_mov_b32 s12, {BIG}"); a.i(f"s_mov_b32 s13, {BIG}")
    for p in range(2):
        for rh in range(2):
            t = ACC + 32*p + 16*rh
            o = 192 + 8*(2*p+rh)
            if "gnovalu" not in OPT:
              for r in range(16): a.i(f"v_max_f32 v{t+r}, 0, v{t+r}")
              for r in range(0, 16, 2): a.i(f"v_pk_mul_f32 {v(t+r,2)}, {v(t+r,2)}, {v(t+r,2)}")
              for j in range(8): a.i(f"v_cvt_pk_bf16_f32 v{o+j}, v{t+2*j}, v{t+2*j+1}")
            for u in range(2):
                a.i(f"buffer_store_dwordx4 {v(o+4*u,4)}, v{VLIN}, {R(SWS)}, s{12+p} offen offset:{u*2048 + rh*1024} sc1", tag="hst")
    for p in range(2):
        for rh in range(2): mfma(a, ACC + 32*p + 16*rh, BA2 + 4*p, ONE, "0")
    a.i(f"s_lshl_b32 s11, s{S_G}, 9")
    a.i(f"s_add_u32 s11, s11, {WS_HF}")
    a.i(f"s_lshr_b32 s10, s{S_MU}, 1")
    a.i("s_lshl_b32 s10, s10, 7")
    a.i("s_add_u32 s10, s10, s11")
    a.i(f"s_and_b32 s8, s{S_MU}, 1")
    a.i("s_lshl_b32 s8, s8, 2")
    a.i(f"s_add_u32 s8, s8, s{GW}")
    a.i("s_lshl_b32 s8, s8, 2")
    a.i("s_add_u32 s10, s10, s8")
    a.i(f"s_lshl_b32 s8, s{GW}, 7")
    a.i("s_add_u32 s11, s11, s8")
    a.i("v_and_b32 v14, 7, v0")
    a.i("v_lshlrev_b32 v14, 2, v14")
    a.i("v_mov_b32 v20, 1")
    a.wait(vm="hst")
    a.i("s_mov_b64 exec, 1")
    a.i(f"buffer_store_dword v20, off, {R(SWS)}, s10 sc1")
    a.i("s_mov_b64 exec, -1")
    WOF, OF = 128, 192
    def rd2(sx, dst):
        a.wait(vm=[("w", sx)])
        if "gnods" in OPT: return
        for p in range(2):
            o = (sx % RD)*2048 + p*1024
            a.i(f"ds_read_b64_tr_b16 {v(dst+4*p,2)}, v{VTRP} offset:{o}")
            a.i(f"ds_read_b64_tr_b16 {v(dst+4*p+2,2)}, v{VTRP} offset:{o+512}", tag=("r", sx))
    DO = PRM["DO"]
    for k in range(DO): dma2(28 + k)
    for k in range(8):
        rd2(28 + k, WOF + 8*k)
        if k + DO < 8: dma2(28 + k + DO)
        if k >= 2: a.wait(lg=("r", 28 + k - 2))
    a.wait(lg="all")
    for sx in range(D2W): dma2(sx)
    a.label("L_hpoll")
    a.i(f"buffer_load_dword v21, v14, {R(SWS)}, s11 offen sc1")
    a.i("s_waitcnt vmcnt(0)"); a.vm = []
    a.i("v_cmp_eq_u32 vcc, 0, v21")
    a.i("s_cbranch_vccz L_hok")
    spin_tail(a, GSP, "L_hpoll", "L_hok", sleep=PRM["hsleep"])
    a.label("L_hok")
    stamp(a, 10, 250)
    for sx in range(D2H): hload(sx)
    a.i(f"s_setprio {PRM['gp']}")
    rd2(0, WF)
    for sx in range(28):
        if sx + 1 < 28: rd2(sx+1, WF + 8*((sx+1) & 1))
        a.wait(vm=("h", sx), lg=("r", sx))
        b = sx & 1
        for p in range(2):
            for rh in range(2):
                if 'gnomfma' not in OPT: mfma(a, ACC + 32*p + 16*rh, WF+8*b+4*p, HR + 8*(sx % HD) + 4*rh)
        if sx + D2H < 28: hload(sx + D2H)
        if sx + D2W < 28: dma2(sx + D2W)
    a.i("s_setprio 2")
    a.i("s_nop 7")
    for p in range(2):
        for rh in range(2):
            t = ACC + 32*p + 16*rh
            for r in range(16 if "gnovalu" not in OPT else 0): a.i(f"v_mul_f32 v{t+r}, v{VGG+rh}, v{t+r}")
    a.label("L_gidle")
    a.i(f"s_lshl_b32 s12, s{S_G}, 2")
    a.i(f"s_add_u32 s12, s12, s{GW}")
    a.i("s_lshl_b32 s12, s12, 14")
    a.i(f"s_add_u32 s12, s12, {WS_O}")
    for k in range(1, 4): a.i(f"s_add_u32 s{66+k-1 if k < 3 else 13}, s12, {4096*k}")
    OSO = [12, 66, 67, 13]
    final_addr(a, 8)
    a.i("v_and_b32 v14, 31, v0")
    a.i(f"v_mul_u32_u24 v14, {PITCH}, v14")
    a.i("v_lshrrev_b32 v15, 5, v0")
    a.i("v_lshl_add_u32 v14, v15, 4, v14")
    a.i("v_add_u32 v14, s14, v14")
    a.wait(lg="all")
    stamp(a, 11, 250)
    a.i("s_barrier")
    a.i("s_barrier")
    def oload(rh):
        for k in range(8):
            a.i(f"buffer_load_dwordx4 {v(OF + 32*rh + 4*k,4)}, v{VLIN}, {R(SWS)}, s{OSO[k>>1]} offen offset:{(k&1)*2048 + rh*1024} sc1", tag=("o", rh))
    def ocheck(rh):
        b = OF + 32*rh
        a.i(f"v_max3_u32 v20, v{b}, v{b+4}, v{b+8}")
        a.i(f"v_max3_u32 v21, v{b+12}, v{b+16}, v{b+20}")
        a.i(f"v_max3_u32 v20, v20, v{b+24}, v{b+28}")
        a.i("v_max_u32 v20, v20, v21")
        a.i("v_cmp_eq_u32 vcc, -1, v20")
    if "osleep" in OPT: a.i("s_sleep 8")
    oload(0); oload(1)
    def pwrite(rh, p, q):
        a.i(f"ds_write_b128 v14, {v(ACC + 32*p + 16*rh + 4*q,4)} offset:{rh*32*PITCH + (32*p + 8*q)*4}")
    for rh in range(2):
        a.wait(vm=("o", rh))
        ocheck(rh)
        a.i(f"s_cbranch_vccnz L_or{rh}")
        a.label(f"L_ook{rh}")
        if rh == 0: stamp(a, 12, 22)
        for k in range(8):
            for p in range(2):
                mfma(a, ACC + 32*p + 16*rh, WOF + 8*k + 4*p, OF + 32*rh + 4*k)
                if rh == 1 and k >= 4: pwrite(0, p, k - 4)
    a.i("s_nop 7")
    for p in range(2):
        for q in range(4): pwrite(1, p, q)
    a.i("s_waitcnt lgkmcnt(0)"); a.lg = []
    stamp(a, 13, 22)
    a.i("s_barrier")
    final_stage(a, 8)
    stamp(a, 7, 250)
    a.i("s_endpgm")
    for rh in range(2):
        a.label(f"L_or{rh}")
        a.i("s_waitcnt vmcnt(0)")
        a.label(f"L_or{rh}_a")
        oload(rh)
        a.i("s_waitcnt vmcnt(0)"); a.vm = []
        ocheck(rh)
        a.i(f"s_cbranch_vccz L_ook{rh}")
        spin_tail(a, GSP, f"L_or{rh}_a", f"L_ook{rh}")
    a.label("L_G0_inv")
    a.i(f"buffer_load_dword v26, v24, {R(SDBG)}, 0 offen sc1")
    a.i("s_waitcnt vmcnt(0)"); a.vm = []
    a.i("v_cmp_eq_u32 vcc, 0, v26")
    a.i("s_cbranch_vccz L_G0_go")
    spin_tail(a, GSP, "L_G0_inv", "L_G0_go", sleep=2)

HEAD = open("cdna_kernels/" + NAME + ".s.ref").read().split("; Override launch")[0]
def kd(name, vg=256):
    return f""".section .rodata,"a"
.p2align 6
.amdhsa_kernel {name}
  .amdhsa_next_free_vgpr {vg}
  .amdhsa_next_free_sgpr 102
  .amdhsa_accum_offset {vg}
  .amdhsa_group_segment_fixed_size 0
  .amdhsa_kernarg_size 112
  .amdhsa_user_sgpr_count 2
  .amdhsa_user_sgpr_kernarg_segment_ptr 1
  .amdhsa_system_sgpr_workgroup_id_x 1
.end_amdhsa_kernel
"""
def build(kernels):
    s_ = HEAD
    if len(kernels) == 1:
        n, blk, lds, body = kernels[0]
        s_ += f"; @launch grid=(256,1,1) block=({blk},1,1) lds={lds}\n"
    else:
        for n, blk, lds, body in kernels:
            s_ += f"; @launch kernel={n} grid=(256,1,1) block=({blk},1,1) lds={lds}\n"
    s_ += '.amdgcn_target "amdgcn-amd-amdhsa--gfx950"\n'
    for n, blk, lds, body in kernels:
        s_ += f".text\n.globl {n}\n.p2align 8\n.type {n},@function\n{n}:\n{body}" + kd(n)
    return s_

if __name__ == "__main__":
    out = sys.argv[1]
    OPT = set(sys.argv[2:])
    STAMP = "stamp" in OPT
    for o in OPT:
        if "=" in o and o.split("=")[0] in PRM: PRM[o.split("=")[0]] = int(o.split("=")[1])
    ks = [(NAME + "_kernel", 512, LDS_BYTES, None)]
    for o in OPT:
        if o.startswith("only="):
            STAMP = True; ONLY = int(o[5:])
            import gen1
            ks.append(("wait_kernel", 256, 1024, gen1.waitk(ONLY)))
    ks[0] = ks[0][:3] + (kernel(),)
    open(out, "w").write(build(ks))
```

```python
import sys, math, struct
from asmgen import *

NAME = "gated_mix__grouped_kv_mqa__dense_activation_squared_relu__prompt"
TS = 2304
WS_KV = 0
WS_NONCE = 0x2c000
WS_HF = 0x28000
WS_O  = 0x40000
WS_H  = 0x240000
WS_END = WS_H + 32*112*2048
L_X, L_WQ, L_RING, RING_W, RD = 0, 65536, 65536, 17408, 8
L_WKV = 135168; L_STG = L_WKV; L_QF = L_WKV + 8192
L_G = 151552; L_GW = L_G + 1024; L_CNT = L_G + 256
C_Q, C_F, C_T, C_K = 16, 20, 24, 28
CT = [8, 3, 3, 4]
LDS_BYTES = 163840
XO, XK = 13824, 4608
QSCALE = 0.25 * math.log2(math.e)
def f2u(x): return struct.unpack("<I", struct.pack("<f", x))[0]
S_W, S_G, S_MU, S_J, S_M4, S_TAG = 3, 4, 5, 15, 58, 59
P = dict(x=16, wq=18, wk=20, wv=22, wo=24, bx=26, w1=28, b1=30, w2=32, b2=34, gate=36, out=38, dbg=40, ws=42)
SZ = dict(x=2048*1024, wq=512*1024, wo=512*1024, w1=512*3584, b1=3584, w2=1792*1024, b2=1024, gate=1024, out=2048*1024, dbg=256, ws=WS_END)
BIG = 0x40000000
SPIN = 40000
STAMP = False; ONLY = None; OPT = set()
PRM = dict(w1pos=3, apf=0, w1wait=1, tagat=33, NPRE=0, gp0=0, b3b=1, D1=4, D2W=3, D2H=2, DO=3, DOV=0, hpace=0, ND=8, hsleep=4, osleep=0, isleep=4, gpx=8, tsleep=0)
WS_STAMP = 0xC00000
SX, SWQ, SWKV, SW1, SB1, SGT, SWS, SDBG, SW2, SWO, SOUT = 44, 48, 52, 56, 60, 64, 68, 72, 76, 80, 84
SB2 = 48
VLIN = 2
PITCH = 272

def srd(a, d, name):
    a.i(f"s_mov_b32 s{d}, s{P[name]}")
    a.i(f"s_mov_b32 s{d+1}, s{P[name]+1}")
    a.i(f"s_mov_b32 s{d+2}, {SZ[name]:#x}")
    a.i(f"s_mov_b32 s{d+3}, 0x20000")
def R(d): return f"s[{d}:{d+3}]"

ST_A = {0: 100, 1: 88, 2: 90, 3: 92, 4: 94, 5: 96, 6: 98, 7: 44}
CY_A = {4: 46, 5: 72}
ST_G = {0: 100, 15: 88, 8: 90, 14: 92, 16: 94, 17: 96, 18: 98, 19: 26, 9: 18, 10: 20, 11: 22, 12: 72, 13: 74, 7: 44}
NST = 20
def stamping(idx): return STAMP and (ONLY is None or idx == ONLY)
def stamp_init(a, role):
    if not STAMP: return
    for i, r in (ST_A if role == "A" else ST_G).items():
        if r >= 88 and i: a.i(f"s_mov_b32 s{r}, -1")
def stamp(a, idx, role, first=False):
    if not stamping(idx) or first: return
    role = "A" if role == AST else "G"
    r = (ST_A if role == "A" else ST_G)[idx]
    a.i(f"s_memrealtime s[{r}:{r+1}]")
    if role == "A" and idx in CY_A: a.i(f"s_memtime s[{CY_A[idx]}:{CY_A[idx]+1}]")
def stamp_dump(a, role):
    if not STAMP: return
    T = ST_A if role == "A" else ST_G
    a.i("s_waitcnt vmcnt(0) lgkmcnt(0)")
    a.i(f"s_mov_b32 s{SWS+2}, 0x1000000")
    a.i("s_lshl_b32 s8, s2, 3")
    a.i(f"s_add_u32 s8, s8, s{S_W}")
    a.i("s_lshl_b32 s8, s8, 3")
    a.i(f"s_add_u32 s8, s8, {WS_STAMP + 0x10000}")
    a.i("s_mov_b64 exec, 1")
    for idx in range(NST):
        if stamping(idx):
            a.i(f"v_mov_b32 v{2*idx}, {'s%d' % T[idx] if idx in T else -1}")
            a.i(f"v_mov_b32 v{2*idx+1}, {'s%d' % CY_A[idx] if role == 'A' and idx in CY_A else 0}")
            a.i(f"s_add_u32 s9, s8, {idx*16384}")
            a.i(f"buffer_store_dwordx2 v[{2*idx}:{2*idx+1}], off, {R(SWS)}, s9")
def waitk(idx, ticks=6000):
    a = Asm()
    a.i("s_cmp_ge_u32 s2, 1"); a.i("s_cbranch_scc1 L_w_end")
    a.i("s_load_dwordx2 s[42:43], s[0:1], 104")
    a.i("v_lshlrev_b32 v1, 6, v0")
    a.i("v_mov_b32 v2, 0")
    a.i("ds_write_b32 v2, v2")
    a.i("s_waitcnt lgkmcnt(0)")
    a.i("s_barrier")
    a.i("s_mov_b32 s92, s42"); a.i("s_mov_b32 s93, s43"); a.i("s_mov_b32 s94, 0x1000000"); a.i("s_mov_b32 s95, 0x20000")
    a.i(f"s_mov_b32 s10, {WS_STAMP + 0x10000 + idx*16384}")
    for k in range(4): a.i(f"buffer_load_dwordx4 v[{8+4*k}:{11+4*k}], v1, s[92:95], s10 offen offset:{16*k}")
    a.i("s_waitcnt vmcnt(0)")
    for k in range(8):
        a.i(f"v_add_u32 v3, 1, v{8+2*k}")
        a.i("ds_max_u32 v2, v3")
        a.i("s_waitcnt lgkmcnt(0)")
    a.i("s_barrier")
    a.i("ds_read_b32 v3, v2")
    a.i("s_waitcnt lgkmcnt(0)")
    a.i("v_readfirstlane_b32 s11, v3")
    a.i("s_mov_b32 s12, 20000")
    a.label("L_w_loop")
    a.i("s_memrealtime s[8:9]")
    a.i("s_waitcnt lgkmcnt(0)")
    a.i("s_sub_u32 s8, s8, s11")
    a.i(f"s_cmp_ge_u32 s8, {ticks}")
    a.i("s_cbranch_scc1 L_w_end")
    a.i("s_sub_u32 s12, s12, 1")
    a.i("s_cmp_lg_u32 s12, 0")
    a.i("s_cbranch_scc1 L_w_loop")
    a.label("L_w_end"); a.i("s_endpgm")
    return a.finish()

def mfma(a, d, A, B, C=None):
    c = v(d, 16) if C is None else C
    a.i(f"v_mfma_f32_32x32x16_bf16 {v(d,16)}, {v(A,4)}, {v(B,4)}, {c}")
def mfma16(a, d, A, B, C=None):
    c = v(d, 4) if C is None else C
    a.i(f"v_mfma_f32_16x16x32_bf16 {v(d,4)}, {v(A,4)}, {v(B,4)}, {c}")

def tr_addr(a, dst, t0, t1, rowmul_h):
    a.i(f"v_lshrrev_b32 v{t0}, 5, v0")
    a.i(f"v_mul_u32_u24 v{t0}, {rowmul_h}, v{t0}")
    a.i(f"v_bfe_u32 v{t1}, v0, 2, 2")
    a.i(f"v_add_u32 v{t0}, v{t0}, v{t1}")
    a.i(f"v_lshlrev_b32 v{dst}, 7, v{t0}")
    a.i(f"v_and_b32 v{t1}, 3, v0")
    a.i(f"v_lshl_add_u32 v{dst}, v{t1}, 3, v{dst}")
    a.i(f"v_bfe_u32 v{t1}, v0, 4, 1")
    a.i(f"v_lshl_add_u32 v{dst}, v{t1}, 5, v{dst}")
    a.i(f"v_bfe_u32 v{t1}, v0, 3, 1")
    a.i(f"v_lshl_add_u32 v{dst}, v{t1}, 6, v{dst}")

def xfrag_addr(a, dst, t0, t1):
    a.i(f"v_bfe_u32 v{t0}, v0, 1, 3")
    a.i(f"v_lshrrev_b32 v{t1}, 5, v0")
    a.i(f"v_xor_b32 v{t0}, v{t0}, v{t1}")
    a.i(f"v_and_b32 v{t1}, 31, v0")
    a.i(f"v_lshlrev_b32 v{t1}, 7, v{t1}")
    for q in range(4):
        a.i(f"v_xor_b32 v{dst+q}, {2*q}, v{t0}")
        a.i(f"v_lshl_add_u32 v{dst+q}, v{dst+q}, 4, v{t1}")

def wchunk_addr(a, dst, t0, pitch):
    a.i(f"v_lshrrev_b32 v{t0}, 3, v0")
    a.i(f"v_mul_u32_u24 v{dst}, {pitch}, v{t0}")
    a.i(f"v_bfe_u32 v{t0}, v0, 4, 1")
    a.i(f"v_lshlrev_b32 v{t0}, 2, v{t0}")
    a.i(f"v_xor_b32 v{t0}, v{t0}, v0")
    a.i(f"v_and_b32 v{t0}, 7, v{t0}")
    a.i(f"v_lshl_add_u32 v{dst}, v{t0}, 4, v{dst}")
    a.i(f"v_add_u32 v{dst+1}, {8*pitch - 1024}, v{dst}")
def wstep(a, va, srd_, so, dst=None, tag=None):
    if dst is None:
        a.i(f"buffer_load_dwordx4 v{va}, {R(srd_)}, s{so} offen lds", tag=tag)
        a.i(f"buffer_load_dwordx4 v{va+1}, {R(srd_)}, s{so} offen offset:1024 lds", tag=tag)
    else:
        a.i(f"buffer_load_dwordx4 {v(dst,4)}, v{va}, {R(srd_)}, s{so} offen", tag=tag)
        a.i(f"buffer_load_dwordx4 {v(dst+4,4)}, v{va+1}, {R(srd_)}, s{so} offen offset:1024", tag=tag)

def run(a, items):
    for t in items: t() if callable(t) else a.i(t)

def spin_tail(a, cnt, again, done, sleep=0):
    a.i(f"s_sub_u32 s{cnt}, s{cnt}, 1")
    a.i(f"s_cmp_eq_u32 s{cnt}, 0")
    a.i(f"s_cbranch_scc1 {done}")
    if sleep: a.i(f"s_sleep {sleep}")
    a.i(f"s_branch {again}")

def cnt_add(a, vc, vone, off):
    a.i("s_mov_b64 exec, 1")
    a.i(f"ds_add_u32 v{vc}, v{vone} offset:{off}")
    a.i("s_mov_b64 exec, -1")
def cnt_wait(a, vc, vt, off, n, name, st, extra=None):
    a.label(name)
    a.i(f"ds_read_b32 v{vt}, v{vc} offset:{off}")
    if extra: extra()
    a.i("s_waitcnt lgkmcnt(0)"); a.lg = []
    a.i(f"v_readfirstlane_b32 s{st}, v{vt}")
    a.i(f"s_cmp_ge_u32 s{st}, {n}")
    a.i(f"s_cbranch_scc0 {name}")

def xpairs(a, VE, VO, sbase, st, tagf):
    for sl in range(8):
        a.i(f"s_add_u32 m0, s{sbase}, {L_X + sl*8192}")
        if sl:
            a.i(f"s_add_u32 s{st}, s{st}, 128")
            a.i(f"s_and_b32 s{st}, s{st}, 0x380")
        a.i(f"buffer_load_dwordx4 v{VE}, {R(SX)}, s{st} offen lds")
        a.i(f"buffer_load_dwordx4 v{VO}, {R(SX)}, s{st} offen offset:1024 lds", tag=tagf(sl))

def final_stage(a, T):
    RA, RB, SO = T, T+1, T+2
    B = T + 4
    for w in range(4):
        for hf in range(2):
            a.i(f"ds_read_b128 {v(B + w*8 + 4*hf,4)}, v{RA if w < 2 else RB} offset:{(w&1)*RING_W + 16*hf}", tag=("p", w))
    a.wait(lg=("p", 1))
    for r in range(0, 8, 2): a.i(f"v_pk_add_f32 {v(B+r,2)}, {v(B+r,2)}, {v(B+8+r,2)}")
    a.wait(lg=("p", 3))
    for r in range(0, 8, 2): a.i(f"v_pk_add_f32 {v(B+16+r,2)}, {v(B+16+r,2)}, {v(B+24+r,2)}")
    for r in range(0, 8, 2): a.i(f"v_pk_add_f32 {v(B+r,2)}, {v(B+r,2)}, {v(B+16+r,2)}")
    for j in range(4): a.i(f"v_cvt_pk_bf16_f32 v{B+8+j}, v{B+2*j}, v{B+2*j+1}")
    a.i(f"buffer_store_dwordx4 {v(B+8,4)}, v{SO}, {R(SOUT)}, s10 offen")
def final_addr(a, T):
    RA, RB, SO, t = T, T+1, T+2, T+3
    a.i(f"v_lshrrev_b32 v{SO}, 3, v0")
    a.i(f"s_lshl_b32 s10, s{S_W}, 3")
    a.i(f"v_add_u32 v{SO}, s10, v{SO}")
    a.i(f"v_and_b32 v{t}, 7, v0")
    a.i(f"v_mul_u32_u24 v{RA}, {PITCH}, v{SO}")
    a.i(f"v_lshl_add_u32 v{RA}, v{t}, 5, v{RA}")
    a.i(f"v_add_u32 v{RA}, {L_RING}, v{RA}")
    a.i(f"v_add_u32 v{RB}, {2*RING_W}, v{RA}")
    a.i(f"v_lshlrev_b32 v{SO}, 10, v{SO}")
    a.i(f"v_lshl_add_u32 v{SO}, v{t}, 4, v{SO}")
    a.i(f"s_lshl_b32 s10, s{S_G}, 16")
    a.i(f"s_lshl_b32 s11, s{S_MU}, 7")
    a.i("s_add_u32 s10, s10, s11")
    srd(a, SOUT, "out")

VV1, VV0, VG, T0, T1 = 1, 3, 4, 6, 7
Q, S, Pq, F, O = 8, 64, 96, 104, 128
KVS = [40, 52, 104, 116]
AST = 94
SKO, SKL, SIT, SSP, SKC = 62, 63, 64, 65, 66
VW1K_A = 12

def wq_round(a, r):
    a.i(f"s_add_u32 s10, s9, {r << 17}")
    a.i("s_and_b32 s10, s10, 0x7ffff")
    a.i("s_add_u32 s11, s10, 16384")
    for e in range(2):
        a.i(f"s_add_u32 m0, s8, {r*16384 + e*2048}")
        wstep(a, VW1K_A, SWQ, 10+e, tag=("wq", r))

def kernel():
    a = Asm()
    if STAMP: a.i("s_memrealtime s[100:101]")
    a.i("s_cmp_ge_u32 s2, 256")
    a.i("s_cbranch_scc1 L_end")
    a.i("s_load_dwordx16 s[16:31], s[0:1], 0")
    a.i("s_load_dwordx8 s[32:39], s[0:1], 64")
    a.i("s_load_dwordx4 s[40:43], s[0:1], 96")
    a.i("s_getpc_b64 s[44:45]")
    a.label("L_pc")
    a.i("s_mov_b32 s46, L_code_end-L_pc")
    a.i("s_mov_b32 s47, 0x20000")
    a.i("s_lshr_b32 s7, s2, 3")
    a.i("s_lshl_b32 s6, s7, 11")
    a.i("v_lshlrev_b32 v1, 2, v0")
    a.i("buffer_load_dword v255, v1, s[44:47], s6 offen ; touch")
    a.i("v_lshrrev_b32 v1, 6, v0")
    a.i("v_and_b32 v0, 63, v0")
    a.i(f"v_readfirstlane_b32 s{S_W}, v1")
    if PRM["gpx"] == 4:
        a.i("s_and_b32 s6, s2, 7")
        a.i(f"s_and_b32 s{S_MU}, s7, 7")
        a.i(f"s_lshr_b32 s{S_J}, s7, 3")
        a.i("s_lshl_b32 s6, s6, 2")
        a.i(f"s_add_u32 s{S_G}, s6, s{S_J}")
        a.i(f"s_lshl_b32 s{S_J}, s{S_J}, 1")
    else:
        a.i("s_and_b32 s6, s2, 1")
        a.i("s_lshl_b32 s6, s6, 2")
        a.i(f"s_and_b32 s{S_MU}, s7, 3")
        a.i(f"s_add_u32 s{S_MU}, s{S_MU}, s6")
        a.i(f"s_lshr_b32 s{S_J}, s7, 2")
        a.i("s_and_b32 s6, s2, 6")
        a.i("s_lshl_b32 s6, s6, 2")
        a.i(f"s_add_u32 s{S_G}, s6, s{S_J}")
    a.i(f"v_lshlrev_b32 v{VLIN}, 4, v0")
    a.i(f"s_cmp_ge_u32 s{S_W}, 4")
    a.i("s_cbranch_scc1 L_G")
    vm0 = list(a.vm)
    stamp_init(a, "A")
    wchunk_addr(a, VW1K_A, 14, 1024)
    a.i(f"s_lshl_b32 s9, s{S_W}, 15")
    a.i(f"s_lshl_b32 s10, s{S_MU}, 7")
    a.i("s_add_u32 s9, s9, s10")
    a.i(f"s_lshl_b32 s10, s{S_J}, 16")
    a.i("s_add_u32 s9, s9, s10")
    a.i(f"s_lshl_b32 s8, s{S_W}, 12")
    a.i(f"s_add_u32 s8, s8, {L_WQ}")
    a.i("s_waitcnt lgkmcnt(0)")
    srd(a, SWQ, "wq")
    wq_round(a, 0)
    vmA = list(a.vm)
    a.i("s_branch L_A")
    a.label("L_G")
    stamp_init(a, "G")
    if STAMP: a.i("s_waitcnt lgkmcnt(0)"); a.i("s_mov_b32 s26, -1")
    a.vm = list(vm0)
    VGE, VXE, VXO = 8, 9, 10
    a.i("v_bfe_u32 v14, v0, 4, 2")
    a.i("v_and_b32 v15, 7, v0")
    a.i("v_xor_b32 v14, v14, v15")
    a.i(f"v_lshlrev_b32 v{VGE}, 4, v14")
    a.i("v_lshrrev_b32 v14, 3, v0")
    a.i(f"s_sub_u32 s6, s{S_W}, 4")
    a.i(f"s_add_u32 s12, s{S_MU}, s6")
    a.i("s_and_b32 s12, s12, 3")
    a.i(f"s_lshl_b32 s7, s{S_G}, 2")
    a.i("s_add_u32 s7, s7, s12")
    a.i("s_lshl_b32 s7, s7, 4")
    a.i("v_add_u32 v14, s7, v14")
    a.i(f"v_lshl_add_u32 v{VXE}, v14, 10, v{VGE}")
    a.i(f"v_xor_b32 v{VXO}, 64, v{VXE}")
    a.i(f"v_add_u32 v{VXO}, {8192-1024}, v{VXO}")
    a.i("s_lshl_b32 s10, s12, 11")
    a.i(f"s_lshl_b32 s11, s{S_J}, 7")
    a.i(f"s_lshl_b32 s9, s{S_J}, 11")
    a.i("s_setprio 2")
    a.i(f"s_lshl_b32 s13, s{S_G}, 6")
    a.i(f"s_lshl_b32 s14, s{S_MU}, 3")
    a.i("s_add_u32 s13, s13, s14")
    a.i(f"s_add_u32 s13, s13, s{S_W}")
    a.i("s_cmp_lg_u32 s13, 5")
    a.i("s_waitcnt lgkmcnt(0)")
    a.i("s_cbranch_scc1 L_notag")
    a.i(f"s_load_dword s13, s[{P['ws']}:{P['ws']+1}], {WS_NONCE} glc")
    srd(a, SWS, "ws"); srd(a, SDBG, "dbg")
    a.i(f"s_mov_b32 s14, {WS_NONCE}")
    a.i("s_waitcnt lgkmcnt(0)")
    a.i("s_add_u32 s13, s13, 0x9e3779b9")
    a.i("s_max_u32 s13, s13, 1")
    a.i("v_mov_b32 v16, s13")
    a.i("s_mov_b64 exec, 1")
    a.i(f"buffer_store_dword v16, off, {R(SDBG)}, 0 sc1")
    a.i(f"buffer_store_dword v16, off, {R(SWS)}, s14 sc1")
    a.i("s_mov_b64 exec, -1")
    a.vm = a.vm[:-2]
    a.label("L_notag")
    a.i("s_cmp_lg_u32 s6, 0")
    srd(a, SX, "x")
    a.i("s_cbranch_scc1 L_G123")
    vmG = list(a.vm)
    g0_front(a, VXE, VXO)
    a_waves(a, vmA)
    g_waves(a, VGE, VXE, VXO, vmG)
    a.label("L_end")
    a.i("s_endpgm")
    a_slow(a)
    a.label("L_code_end")
    return a.finish()

GW, GSP = 6, 99
def g0_front(a, VXE, VXO):
    a.i("s_setprio 3")
    a.i(f"s_cmp_ge_u32 s{S_MU}, 4")
    a.i(f"s_cselect_b32 s{SWKV}, s{P['wv']}, s{P['wk']}")
    a.i(f"s_cselect_b32 s{SWKV+1}, s{P['wv']+1}, s{P['wk']+1}")
    a.i(f"s_mov_b32 s{SWKV+2}, 16384")
    a.i(f"s_mov_b32 m0, {L_WKV}")
    a.i(f"s_mov_b32 s{SWKV+3}, 0x20000")
    def wpair(q):
        if q:
            a.i(f"s_mov_b32 m0, {L_WKV + q*2048}")
            a.i("s_add_u32 s9, s9, 2048")
            a.i("s_and_b32 s9, s9, 0x3fff")
        for i in range(2):
            a.i(f"buffer_load_dwordx4 v{VLIN}, {R(SWKV)}, s9 offen offset:{i*1024} lds", tag=("wk", 2*q+i))
    wpair(0)
    xpairs(a, VXE, VXO, 10, 11, lambda sl: ("x", sl))
    wpair(1)
    srd(a, SGT, "gate")
    a.i(f"s_lshl_b32 s8, s{S_J}, 7")
    a.i(f"v_add_u32 v14, s8, v{VLIN}")
    a.i(f"s_mov_b32 m0, {L_GW}")
    a.i("v_and_b32 v14, 0x3ff, v14")
    a.i(f"buffer_load_dwordx4 v14, {R(SGT)}, 0 offen lds")
    for q in range(2, 8): wpair(q)
    srd(a, SDBG, "dbg")
    a.i(f"buffer_load_dword v40, off, {R(SDBG)}, 0 sc1", tag="tag")
    a.i("s_barrier")
    stamp(a, 0, 250, first=True)
    XA, TA = 20, 22
    a.i("v_bfe_u32 v14, v0, 1, 3")
    a.i("v_lshrrev_b32 v15, 4, v0")
    a.i("v_xor_b32 v14, v14, v15")
    a.i("v_and_b32 v24, 15, v0")
    a.i("s_lshl_b32 s7, s12, 4")
    a.i("v_add_u32 v25, s7, v24")
    a.i("v_lshlrev_b32 v25, 7, v25")
    a.i(f"v_lshl_add_u32 v{XA}, v14, 4, v25")
    a.i(f"v_xor_b32 v{XA+1}, 64, v{XA}")
    a.i("v_bfe_u32 v14, v0, 2, 2")
    a.i("v_lshl_add_u32 v14, v15, 3, v14")
    a.i(f"v_lshlrev_b32 v{TA}, 5, v14")
    a.i("v_and_b32 v14, 3, v0")
    a.i(f"v_lshl_add_u32 v{TA}, v14, 3, v{TA}")
    a.i(f"v_add_u32 v{TA}, {L_WKV}, v{TA}")
    a.i(f"s_cmp_ge_u32 s{S_MU}, 4")
    a.i("s_cselect_b32 s8, 8, 9")
    a.i("s_cselect_b32 s9, 9, 8")
    a.i("s_cselect_b32 s10, 1024, 0")
    a.i("s_and_b32 s11, s12, 1")
    a.i("s_lshl_b32 s11, s11, s9")
    a.i("s_add_u32 s10, s10, s11")
    a.i(f"s_lshl_b32 s11, s{S_G}, 1")
    a.i("s_lshr_b32 s9, s12, 1")
    a.i("s_add_u32 s11, s11, s9")
    a.i(f"s_mul_i32 s11, s11, {TS}")
    a.i("s_add_u32 s11, s11, s10")
    a.i("v_and_b32 v15, 1, v15")
    a.i("v_lshlrev_b32 v15, s8, v15")
    a.i("v_lshl_add_u32 v23, v24, 4, v15")
    srd(a, SWS, "ws")
    a.i(f"s_mov_b32 s{GSP}, {SPIN}")
    for r in range(34, 36): a.i(f"v_mov_b32 v{r}, 0")
    a.i(f"v_mov_b32 v14, {L_CNT}")
    a.i("v_mov_b32 v15, 1")
    a.i(f"s_cmp_ge_u32 s{S_MU}, 4")
    a.i("s_cbranch_scc1 L_G0_V")
    vm1 = list(a.vm); lg1 = list(a.lg)
    for orient in range(2):
        if orient:
            a.label("L_G0_V"); a.vm = list(vm1); a.lg = list(lg1)
        NB_ = 4
        def rd(sx):
            b = 64 + 8*(sx % NB_)
            a.wait(vm=[("wk", sx), ("x", sx >> 1)])
            if sx == 4: cnt_add(a, 14, 15, 0)
            a.i(f"ds_read_b64_tr_b16 {v(b,2)}, v{TA} offset:{sx*1024}")
            a.i(f"ds_read_b64_tr_b16 {v(b+2,2)}, v{TA} offset:{sx*1024+128}")
            a.i(f"ds_read_b128 {v(b+4,4)}, v{XA + (sx&1)} offset:{(sx>>1)*8192}", tag=("c", sx))
        for sx in range(NB_): rd(sx)
        for sx in range(16):
            a.wait(lg=("c", sx))
            b = 64 + 8*(sx % NB_)
            mfma16(a, 28, *((b, b+4) if orient == 0 else (b+4, b)), "0" if sx == 0 else None)
            if sx + NB_ < 16: rd(sx + NB_)
        if orient == 0: a.i("s_branch L_G0_pub")
    a.label("L_G0_pub")
    cnt_add(a, 14, 15, 12)
    stamp(a, 15, 250)
    a.i("v_cmp_gt_u32 vcc, 32, v0")
    a.i("v_mov_b32 v36, 0x3f803f80")
    a.i("s_sub_u32 s9, 2048, s10")
    a.i("v_mov_b32 v37, s9")
    a.i("v_cndmask_b32 v23, v37, v23, vcc")
    a.i("v_cvt_pk_bf16_f32 v32, v28, v29")
    a.i("v_cvt_pk_bf16_f32 v33, v30, v31")
    a.i(f"s_lshr_b32 s8, s{S_MU}, 2")
    a.i("s_lshl_b32 s8, s8, 1")
    a.i("v_permlane32_swap_b32 v32, v34")
    a.i("v_permlane32_swap_b32 v33, v35")
    a.i("s_and_b32 s7, s12, 1")
    a.i("s_add_u32 s8, s8, s7")
    for r in range(32, 36): a.i(f"v_cndmask_b32 v{r}, v36, v{r}, vcc")
    a.i("s_lshl_b32 s8, s8, 2")
    a.i(f"buffer_store_dwordx4 v[32:35], v23, {R(SWS)}, s11 offen sc1")
    a.i("s_add_u32 s8, s8, s9")
    a.i("s_add_u32 s67, s8, s11")
    g_setup(a)
    a.i("s_waitcnt vmcnt(0)"); a.vm = []
    a.i(f"v_readfirstlane_b32 s66, v40")
    a.i("s_cmp_eq_u32 s66, 0")
    a.i("s_cbranch_scc1 L_G0_inv")
    a.label("L_G0_go")
    a.i("s_mov_b64 exec, 1")
    a.i(f"buffer_store_dword v40, off, {R(SWS)}, s67 offset:128 sc1")
    a.i(f"ds_write_b32 v{GVC}, v40 offset:{C_T}")
    a.i("s_mov_b64 exec, -1")
    a.i("s_setprio 2")
    stamp(a, 8, 14)
    if PRM["w1pos"] != 3: g_w1first(a, "L_G0_now1")
    a.i("s_branch L_G_ffn1")

def kvload(a, st, so=SKO, off=0):
    b = KVS[st]
    return [
        lambda: a.i(f"buffer_load_dwordx4 {v(b,4)}, v{VLIN}, {R(SWS)}, s{so} offen offset:{off} sc1", tag=("kv", st)),
        lambda: a.i(f"buffer_load_dwordx4 {v(b+4,4)}, v{VV0}, {R(SWS)}, s{so} offen offset:{off+1024} sc1", tag=("kv", st)),
        lambda: a.i(f"buffer_load_dwordx4 {v(b+8,4)}, v{VV1}, {R(SWS)}, s{so} offen offset:{off+1024} sc1", tag=("kv", st))]
def kvfirst(a):
    run(a, kvload(a, 0, SKC)); run(a, kvload(a, 1, SKC, TS)); run(a, kvload(a, 2, SKO))

def attn_slot(a, i, prv, cur, nxt, extra, last=False):
    Sc = S + 16*(i & 1); Sn = S + 16*((i+1) & 1)
    e = lambda r: a.i(f"v_exp_f32 v{Sc+r}, v{Sc+r}")
    c = lambda j: a.i(f"v_cvt_pk_bf16_f32 v{Pq+j}, v{Sc+2*j}, v{Sc+2*j+1}")
    ex = lambda k: run(a, extra.get(k, []))
    e(0); e(1)
    mfma(a, O + 16*((i - 1) % 8), (cur if i > 0 else prv) + 8, Pq + 4)
    ex(0)
    for r in range(2, 7): e(r)
    ex("pre1")
    if not (last and i == 7): mfma(a, Sn, cur if i < 7 else nxt, Q + 4*((i + 1) % 8), "0")
    ex(1)
    e(7)
    for j in range(4): c(j)
    e(8); e(9)
    mfma(a, O + 16*i, cur + 4, Pq)
    ex(2)
    for r in range(10, 16): e(r)
    for j in range(4, 8): c(j)

def a_waves(a, vmA):
    VXR, VTR, VC = 88, 92, 93
    a.label("L_A")
    a.vm = list(vmA); a.lg = []
    if PRM["apf"]:
        srd(a, SW1, "w1")
        wchunk_addr(a, 16, 14, 3584)
        a.i(f"s_lshr_b32 s12, s{S_MU}, 1")
        a.i("s_mul_i32 s12, s12, 7")
        a.i(f"s_and_b32 s13, s{S_MU}, 1")
        a.i("s_lshl_b32 s13, s13, 2")
        a.i("s_add_u32 s12, s12, s13")
        a.i("s_lshl_b32 s12, s12, 7")
        a.i(f"s_lshl_b32 s13, s{S_J}, 2")
        a.i(f"s_add_u32 s13, s13, s{S_W}")
        a.i(f"s_mul_i32 s13, s13, {16*3584}")
        a.i("s_add_u32 s12, s12, s13")
    a.i("s_barrier")
    if PRM["apf"]: wstep(a, 16, SW1, 12, 104, "apf")
    srd(a, SWS, "ws")
    xfrag_addr(a, VXR, 14, 15)
    tr_addr(a, VTR, 14, 15, 8)
    a.i(f"s_and_b32 s6, s{S_W}, 1")
    a.i(f"s_lshr_b32 s7, s{S_W}, 1")
    a.i("s_lshl_b32 s12, s6, 6")
    a.i(f"v_xor_b32 v{VTR}, s12, v{VTR}")
    a.i(f"v_add_u32 v{VTR}, {L_WQ}, v{VTR}")
    a.i("s_lshl_b32 s12, s7, 12")
    for q in range(4): a.i(f"v_add_u32 v{VXR+q}, s12, v{VXR+q}")
    a.i(f"v_and_b32 v{T0}, 15, v0")
    a.i(f"v_lshrrev_b32 v{T1}, 5, v0")
    a.i(f"v_lshlrev_b32 v{T1}, 8, v{T1}")
    a.i(f"v_lshl_add_u32 v{VV0}, v{T0}, 4, v{T1}")
    a.i(f"v_add_u32 v{VV1}, 512, v{VV0}")
    a.i(f"v_and_b32 v{T0}, 27, v0")
    a.i(f"v_cmp_eq_u32 vcc, 16, v{T0}")
    a.i(f"v_mov_b32 v{T1}, {BIG:#x}")
    a.i("v_mov_b32 v14, 1024")
    a.i(f"v_cndmask_b32 v{T1}, v{T1}, v14, vcc")
    a.i(f"v_and_b32 v{T0}, 16, v0")
    a.i(f"v_cmp_eq_u32 vcc, 0, v{T0}")
    a.i(f"s_mul_i32 s{SKC}, s{S_W}, {16*TS}")
    a.i(f"s_add_u32 s{SKO}, s{SKC}, {2*TS}")
    a.i(f"v_cndmask_b32 v{VV0}, v{T1}, v{VV0}, vcc")
    a.i(f"v_cndmask_b32 v{VV1}, v{T1}, v{VV1}, vcc")
    a.i(f"s_add_u32 s{SKL}, s{SKC}, {15*TS}")
    a.i(f"s_mov_b32 s{SSP}, {SPIN}")
    a.i(f"v_mov_b32 v{VC}, {L_CNT}")
    for r in range(4, 8): a.i(f"v_mov_b32 v{Pq+r}, 0")
    for r in range(8, 12): a.i(f"v_mov_b32 v{KVS[3]+r}, 0")
    for r in range(127): a.i(f"v_mov_b32 v{O+r}, 0")
    GWA = 95
    a.i("v_bfe_u32 v14, v0, 4, 2")
    a.i("v_and_b32 v15, 7, v0")
    a.i("v_xor_b32 v14, v14, v15")
    a.i("s_lshl_b32 s12, s6, 2")
    a.i("v_xor_b32 v14, s12, v14")
    a.i("v_lshlrev_b32 v14, 4, v14")
    a.i(f"v_add_u32 v99, {L_GW}, v14")
    a.i(f"v_lshrrev_b32 v{VG}, 2, v0")
    a.i(f"v_mul_u32_u24 v{VG}, {TS}, v{VG}")
    a.i(f"v_and_b32 v{VG+1}, 3, v0")
    a.i(f"v_lshl_add_u32 v{VG}, v{VG+1}, 2, v{VG}")
    a.i(f"v_add_u32 v{VG}, {2048 + 128}, v{VG}")
    a.i(f"v_mov_b32 v{T1}, 1")
    a.wait(vm=("wq", 0))
    cnt_add(a, VC, T1, 0)
    a.i(f"v_mov_b32 v{O+127}, 0")
    a.i("s_setprio 1")
    cnt_wait(a, VC, T0, 0, CT[0], "L_k0", 8)
    stamp(a, 1, AST)
    FRS = [8, 16, 24, 32]; NB_ = 4
    def rd(sx):
        b = FRS[sx % NB_]
        a.i(f"ds_read_b64_tr_b16 {v(b,2)}, v{VTR} offset:{sx*2048}")
        a.i(f"ds_read_b64_tr_b16 {v(b+2,2)}, v{VTR} offset:{sx*2048+512}")
        a.i(f"ds_read_b128 {v(b+4,4)}, v{VXR + (sx&3)} offset:{(sx>>2)*8192}", tag=("c", sx))
    for sx in range(NB_-1): rd(sx)
    for sx in range(32):
        nx = sx + NB_ - 1
        if nx < 32 and nx % 8 == 4 and nx < 24: a.i(f"ds_read_b32 v{T0}, v{VC} offset:{4*(nx//8 + 1)}")
        if nx < 32 and nx % 8 == 0:
            a.i(f"v_readfirstlane_b32 s8, v{T0}")
            a.i(f"s_cmp_ge_u32 s8, {CT[nx//8]}")
            a.i(f"s_cbranch_scc0 L_k{nx//8}")
            a.label(f"L_k{nx//8}_ok")
        if nx < 32: rd(nx)
        if sx == PRM["tagat"]: a.i(f"buffer_load_dword v{VG+1}, v{VG}, {R(SWS)}, s{SKC} offen sc1", tag="tag")
        a.wait(lg=("c", sx))
        b = FRS[sx % NB_]
        mfma(a, S, b, b+4, "0" if sx == 0 else None)
    stamp(a, 2, AST)
    a.i("s_lshl_b32 s8, s6, 12")
    a.i("s_lshl_b32 s9, s7, 10")
    a.i("s_add_u32 s8, s8, s9")
    a.i(f"s_add_u32 s8, s8, {L_QF}")
    a.i(f"v_add_u32 v{T0}, s8, v{VLIN}")
    a.i(f"s_mov_b32 s10, {f2u(QSCALE):#x}")
    for k in range(4):
        a.i(f"s_add_u32 s8, s{S_W}, {k+1}")
        a.i("s_and_b32 s8, s8, 3")
        a.i("s_lshl_b32 s8, s8, 11")
        a.i(f"s_add_u32 s8, s8, {L_QF}")
        a.i(f"v_add_u32 v{VXR+k}, s8, v{VLIN}")
    a.i(f"v_mov_b32 v{T1}, 1")
    for r in range(16): a.i(f"v_mul_f32 v{S+r}, s10, v{S+r}")
    for j in range(8): a.i(f"v_cvt_pk_bf16_f32 v{80+j}, v{S+2*j}, v{S+2*j+1}")
    for e in range(2): a.i(f"ds_write_b128 v{T0}, {v(80+4*e,4)} offset:{2048*e}")
    cnt_add(a, VC, T1, C_Q)
    XG, AC, GA = 64, 96, 98
    GFA = [8 + 4*k for k in range(8)]
    def gfr():
        for kb in range(8): a.i(f"ds_read_b128 {v(GFA[kb],4)}, v99 offset:{128*kb}")
    cnt_wait(a, VC, T0, C_T, 1, "L_tagw", S_TAG, gfr)
    def tagcheck():
        a.wait(vm="tag")
        a.i(f"v_cmp_ne_u32 vcc, s{S_TAG}, v{VG+1}")
        a.i("s_cbranch_vccnz L_tagr")
        a.label("L_tag_ok")
        stamp(a, 3, AST)
        a.vm = []
        kvfirst(a)
        if PRM["w1pos"] == 3: cnt_add(a, VC, T1, C_K)
    def tagpoll(): a.i(f"buffer_load_dword v{VG+1}, v{VG}, {R(SWS)}, s{SKC} offen sc1", tag="tag")
    if PRM["tagat"] < 32: tagcheck()
    if PRM["tagat"] == 32: tagpoll()
    a.i(f"s_lshl_b32 s8, s{S_W}, 10")
    a.i(f"v_add_u32 v{GA}, s8, v{VLIN}")
    for i in range(2): a.i(f"v_mov_b32 v{AC+i}, 0")
    def grd(kb):
        for i in range(2):
            a.i(f"ds_read_b128 {v(XG + 8*(kb % 3) + 4*i,4)}, v{GA} offset:{kb*8192 + i*4096}", tag=("g", kb))
    grd(0); grd(1)
    for kb in range(8):
        if kb < 6: grd(kb+2)
        a.wait(lg=("g", kb))
        for r in range(4):
            for i in range(2):
                a.i(f"v_dot2_f32_bf16 v{AC+i}, v{XG + 8*(kb % 3) + 4*i + r}, v{GFA[kb]+r}, v{AC+i}")
    a.i(f"v_lshrrev_b32 v{GA}, 3, v0")
    a.i(f"s_lshl_b32 s9, s{S_W}, 5")
    a.i(f"s_add_u32 s9, s9, {L_G}")
    for mod in ("quad_perm:[1,0,3,2]", "quad_perm:[2,3,0,1]", "row_half_mirror"):
        for i in range(2):
            a.i(f"v_add_f32_dpp v{AC+i}, v{AC+i}, v{AC+i} {mod} row_mask:0xf bank_mask:0xf")
    a.i(f"s_mov_b32 s10, {f2u(-math.log2(math.e)):#x}")
    for i in range(2): a.i(f"v_mul_f32 v{AC+i}, s10, v{AC+i}")
    for i in range(2): a.i(f"v_exp_f32 v{AC+i}, v{AC+i}")
    a.i(f"v_lshl_add_u32 v{GA}, v{GA}, 2, s9")
    for i in range(2): a.i(f"v_add_f32 v{AC+i}, 1.0, v{AC+i}")
    for i in range(2): a.i(f"v_rcp_f32 v{AC+i}, v{AC+i}")
    a.i("s_nop 0")
    for i in range(2): a.i(f"ds_write_b32 v{GA}, v{AC+i} offset:{128*i}")
    if PRM["tagat"] == 33: tagpoll()
    if PRM["tagat"] >= 32: tagcheck()
    def qreads():
        for i in range(8): a.i(f"ds_read_b128 {v(Q+4*i,4)}, v{VXR + (i>>1)} offset:{1024*(i&1)}")
    cnt_wait(a, VC, VTR, C_Q, 4, "L_qwait", 8, qreads)
    a.i(f"v_mov_b32 v{VG}, v{VC}")
    a.wait(vm=("kv", 0))
    stamp(a, 4, AST)
    mfma(a, S, KVS[0], Q, "0")
    a.i(f"s_mov_b32 s{SIT}, 4")
    a.i("s_nop 9")
    a.i("s_branch L_attn_in")
    def tile(t, last=False):
        prv, cur, nxt = (t-1) % 4, t, (t+1) % 4
        ld = kvload(a, prv)
        XA = KVS[2]
        for i in range(8):
            extra = {}
            if not last:
                if i == 0: extra = {0: [f"s_add_u32 s{SKO}, s{SKO}, {TS}"], 1: [f"s_min_u32 s{SKO}, s{SKO}, s{SKL}"], 2: [ld[0]]}
                if i == 1: extra = {0: [ld[1]], 1: [ld[2]]}
                if i == 7:
                    extra = {0: [lambda: a.wait(vm=("kv", nxt))]}
                    if t == 2:
                        extra[1] = [f"s_sub_u32 s{SIT}, s{SIT}, 1"]; extra[2] = [f"s_cmp_lg_u32 s{SIT}, 0"]
                if t == 2 and i == 5: extra = {0: [f"ds_read_b32 v{VG+1}, v{VG} offset:{C_F}"]}
                if t == 2 and i == 6: extra = {0: ["s_waitcnt lgkmcnt(0)"]}
            elif i >= 2:
                j = i - 2; k = j >> 1; o = k*XK + (j & 1)*2048
                extra = {0: [f"ds_write_b128 v{XA+k}, {v(O+16*j,4)} offset:{o}"],
                         1: [f"ds_write_b128 v{XA+k}, {v(O+16*j+4,4)} offset:{o+1024}"]}
                if j & 1: extra[2] = [f"ds_write2st64_b32 v{XA+3+k}, v{O+16*j-8}, v{O+16*j+8} offset0:{k*XK//256} offset1:{k*XK//256+1}"]
            attn_slot(a, i, KVS[prv], KVS[cur], KVS[nxt], extra, last)
    a.raw(".p2align 6")
    a.label("L_attn_loop")
    a.vm = [("kv", 0)]*3 + [("kv", 1)]*3; a.lg = []
    tile(3)
    a.label("L_attn_in")
    for t in range(3): tile(t)
    a.i("s_cbranch_scc1 L_attn_loop")
    a.lg = []
    a.i(f"v_readfirstlane_b32 s8, v{VG+1}")
    XA = KVS[2]
    a.i(f"v_lshlrev_b32 v{T1}, 2, v0")
    for k in range(3):
        a.i(f"s_add_u32 s9, s{S_W}, {k+1}")
        a.i("s_and_b32 s9, s9, 3")
        a.i(f"s_mul_i32 s9, s9, {XO}")
        a.i(f"v_add_u32 v{XA+k}, s9, v{VLIN}")
        a.i("s_add_u32 s9, s9, 4096")
        a.i(f"v_add_u32 v{XA+3+k}, s9, v{T1}")
    a.i("s_cmp_ge_u32 s8, 4")
    a.i("s_cbranch_scc0 L_xwait")
    a.label("L_xok")
    tile(3, last=True)
    a.i(f"s_mul_i32 s9, s{S_W}, {XO}")
    a.i(f"v_add_u32 v{XA}, s9, v{VLIN}")
    mfma(a, O + 16*7, KVS[3] + 8, Pq + 4)
    a.i("s_add_u32 s9, s9, 4096")
    a.i(f"v_add_u32 v{XA+1}, s9, v{T1}")
    a.i(f"v_and_b32 v{T1}, 31, v0")
    a.i(f"v_lshlrev_b32 v{T1}, 2, v{T1}")
    a.i(f"v_add_u32 v{T1}, {L_G}, v{T1}")
    a.i("s_waitcnt lgkmcnt(0)"); a.lg = []
    stamp(a, 5, AST)
    a.i("s_barrier")
    a.i("s_setprio 3")
    LL = O + 16*5 + 10
    for rh in range(2):
        for k in range(3):
            o = k*XK + rh*2048; d = O + 16*(rh*3 + k)
            a.i(f"ds_read_b128 {v(d,4)}, v{XA} offset:{o}")
            a.i(f"ds_read_b128 {v(d+4,4)}, v{XA} offset:{o+1024}", tag=("x", rh, k))
        if rh == 0:
            for k in range(3): a.i(f"ds_read2st64_b32 {v(LL+2*k,2)}, v{XA+1} offset0:{k*XK//256} offset1:{k*XK//256+1}")
            a.i(f"ds_read2_b32 {v(VG,2)}, v{T1} offset0:0 offset1:32", tag="l")
    a.i(f"s_lshl_b32 s8, s{S_G}, 5")
    a.i(f"s_lshl_b32 s9, s{S_MU}, 2")
    a.i("s_add_u32 s8, s8, s9")
    a.i(f"s_add_u32 s8, s8, s{S_W}")
    a.i("s_lshl_b32 s8, s8, 11")
    a.i(f"s_add_u32 s8, s8, {WS_O}")
    a.i(f"s_mov_b32 s10, {f2u(2.0**-30):#x}")
    a.i(f"s_mov_b32 s11, {f2u(2.0**100):#x}")
    a.i("s_mov_b32 s12, 0x7f800000")
    for rh in range(2):
        f = O + 16*(6 + rh); d = O + 48*rh
        a.wait(lg=("x", rh, 1))
        for r in range(0, 8, 2): a.i(f"v_pk_add_f32 {v(d+r,2)}, {v(d+r,2)}, {v(d+16+r,2)}")
        a.wait(lg=("x", rh, 2))
        for r in range(0, 8, 2): a.i(f"v_pk_add_f32 {v(f+r,2)}, {v(f+r,2)}, {v(d+32+r,2)}")
        if rh == 0:
            a.wait(lg="l")
            a.i(f"v_pk_add_f32 {v(LL,2)}, {v(LL,2)}, {v(LL+2,2)}")
            a.i(f"v_pk_add_f32 {v(LL,2)}, {v(LL,2)}, {v(LL+4,2)}")
        a.i(f"v_add_f32 v{f+8}, v{f+8}, v{LL+rh}")
        for r in range(0, 8, 2): a.i(f"v_pk_add_f32 {v(f+r,2)}, {v(f+r,2)}, {v(d+r,2)}")
        a.i(f"v_cmp_le_f32 s[54:55], s10, v{f+8}")
        a.i(f"v_cmp_ge_f32 s[56:57], s11, v{f+8}")
        a.i(f"v_add_f32 v{T0}, abs(v{f}), abs(v{f+1})")
        for r in range(2, 8): a.i(f"v_add_f32 v{T0}, v{T0}, abs(v{f+r})")
        a.i("s_and_b64 s[54:55], s[54:55], s[56:57]")
        a.i(f"v_cmp_gt_f32 vcc, s12, v{T0}")
        a.i(f"v_rcp_f32 v{T0}, v{f+8}")
        a.i("s_and_b64 s[54:55], s[54:55], vcc")
        a.i("s_cmp_eq_u64 s[54:55], -1")
        a.i(f"s_cbranch_scc0 L_slow{rh}")
        a.label(f"L_ok{rh}")
        a.i(f"v_mul_f32 v{T0}, v{T0}, v{VG+rh}")
        for r in range(0, 8, 2): a.i(f"v_pk_mul_f32 {v(f+r,2)}, {v(f+r,2)}, {v(T0,2)} op_sel_hi:[1,0]")
        for j in range(4): a.i(f"v_cvt_pk_bf16_f32 v{S+4*rh+j}, v{f+2*j}, v{f+2*j+1}")
        a.i(f"v_min_u32 v{S+4*rh}, -2, v{S+4*rh}")
        a.i(f"buffer_store_dwordx4 {v(S+4*rh,4)}, v{VLIN}, {R(SWS)}, s8 offen offset:{1024*rh} sc1")
    if PRM["b3b"]: a.i("s_barrier")
    stamp(a, 6, AST)
    a.i("s_setprio 0")
    final_addr(a, 8)
    a.i("s_waitcnt vmcnt(0)"); a.vm = []
    a.i("s_barrier")
    final_stage(a, 8)
    stamp(a, 7, AST)
    stamp_dump(a, "A")
    a.i("s_endpgm")
    a.label("L_tagr")
    if PRM["tsleep"]: a.i(f"s_sleep {PRM['tsleep']}")
    a.i(f"buffer_load_dword v{T0}, v{VG}, {R(SWS)}, s{SKC} offen sc1")
    a.i("s_waitcnt vmcnt(0)"); a.vm = []
    a.i(f"v_cmp_ne_u32 vcc, s{S_TAG}, v{T0}")
    a.i("s_cbranch_vccz L_tag_ok")
    spin_tail(a, SSP, "L_tagr", "L_tag_ok")
    cnt_wait(a, VG, VG+1, C_F, 4, "L_xwait", 8)
    a.i("s_branch L_xok")
    for q in range(1, 4):
        cnt_wait(a, VC, T0, 4*q, CT[q], f"L_k{q}", 8)
        a.i(f"s_branch L_k{q}_ok")

def a_slow(a):
    KV = KVS[0]
    for rh in range(2):
        f = O + 16*(6 + rh); q = Q + 4*(6 + rh)
        SS, CC, OO, PP = S + 16, KVS[2], O, Pq
        a.label(f"L_slow{rh}")
        a.i("s_waitcnt vmcnt(0)" + (" lgkmcnt(0)" if rh == 0 else ""))
        a.i(f"s_mov_b32 s{SKO}, {WS_KV}")
        a.i(f"v_mov_b32 v{T1}, 0xff800000")
        a.label(f"L_slow{rh}_a")
        a.i(f"buffer_load_dwordx4 {v(KV,4)}, v{VLIN}, {R(SWS)}, s{SKO} offen sc1")
        a.i("s_waitcnt vmcnt(0)")
        mfma(a, SS, KV, q, "0")
        a.i("s_nop 15")
        for r in range(0, 16, 2): a.i(f"v_max3_f32 v{T1}, v{T1}, v{SS+r}, v{SS+r+1}")
        a.i(f"s_add_u32 s{SKO}, s{SKO}, {TS}")
        a.i(f"s_cmp_lt_u32 s{SKO}, {WS_KV + 64*TS}")
        a.i(f"s_cbranch_scc1 L_slow{rh}_a")
        a.i(f"v_mov_b32 v{T0}, v{T1}")
        a.i("s_nop 1")
        a.i(f"v_permlane32_swap_b32 v{T0}, v{T1}")
        a.i(f"v_max_f32 v{T1}, v{T0}, v{T1}")
        for r in range(16):
            a.i(f"v_sub_f32 v{CC+r}, 0, v{T1}")
            a.i(f"v_mov_b32 v{OO+r}, 0")
        a.i(f"s_mov_b32 s{SKO}, {WS_KV}")
        a.label(f"L_slow{rh}_b")
        run(a, kvload(a, 0))
        a.i("s_waitcnt vmcnt(0)")
        mfma(a, SS, KV, q, v(CC, 16))
        a.i("s_nop 15")
        for r in range(16): a.i(f"v_exp_f32 v{SS+r}, v{SS+r}")
        a.i("s_nop 0")
        for j in range(8): a.i(f"v_cvt_pk_bf16_f32 v{PP+j}, v{SS+2*j}, v{SS+2*j+1}")
        a.i("s_nop 1")
        mfma(a, OO, KV + 4, PP)
        mfma(a, OO, KV + 8, PP + 4)
        a.i("s_nop 15")
        a.i(f"s_add_u32 s{SKO}, s{SKO}, {TS}")
        a.i(f"s_cmp_lt_u32 s{SKO}, {WS_KV + 64*TS}")
        a.i(f"s_cbranch_scc1 L_slow{rh}_b")
        for r in range(9): a.i(f"v_mov_b32 v{f+r}, v{OO+r}")
        a.i(f"v_rcp_f32 v{T0}, v{f+8}")
        a.i("s_nop 1")
        a.i(f"s_branch L_ok{rh}")
    a.vm = []; a.lg = []

VW35, VW1K, VSW, GVC, VGG = 4, 6, 3, 12, 12
VTR_G, VTRP, VST = 224, 226, 228
VXR_G, BA1, ONE = 16, 20, 28
ACC, WF, XF, PRE, PD = 64, 32, 48, 128, 12
def g_setup(a):
    srd(a, SW1, "w1"); srd(a, SB1, "b1")
    wchunk_addr(a, VW35, 14, 3584)
    wchunk_addr(a, VW1K, 14, 1024)
    a.i(f"s_lshr_b32 s12, s{S_MU}, 1")
    a.i("s_mul_i32 s12, s12, 7")
    a.i(f"s_and_b32 s9, s{S_MU}, 1")
    a.i("s_lshl_b32 s9, s9, 2")
    a.i(f"s_add_u32 s13, s9, s{GW}")
    a.i("s_add_u32 s12, s12, s13")
    a.i("s_lshl_b32 s12, s12, 7")
    a.i(f"s_add_u32 s77, s12, {32*16*3584}")
    a.i(f"s_mul_i32 s76, s{S_J}, {4*16*3584}")
    a.i("s_add_u32 s76, s76, s12")
    a.i("v_lshlrev_b32 v14, 1, v0")
    a.i("v_cmp_gt_u32 vcc, 32, v0")
    a.i(f"v_mov_b32 v15, {BIG:#x}")
    a.i(f"v_mov_b32 v{GVC}, {L_CNT}")
    a.i("v_cndmask_b32 v11, v15, v14, vcc")
    a.i("v_mov_b32 v15, 0x3f80")
    a.i(f"v_cndmask_b32 v{ONE}, 0, v15, vcc")
    for b in (BA1, BA1+4, ONE):
        for r in range(1, 4): a.i(f"v_mov_b32 v{b+r}, 0")
    xfrag_addr(a, VXR_G, 14, 15)
    tr_addr(a, VTR_G, 14, 15, 8)
    tr_addr(a, VTRP, 14, 15, 4)
    a.i(f"s_lshl_b32 s8, s{GW}, 11")
    a.i(f"s_add_u32 s8, s8, {L_STG}")
    a.i(f"v_add_u32 v{VSW}, s8, v{VLIN}")
    a.i(f"v_add_u32 v{VST}, s8, v{VTR_G}")
    a.i(f"s_mul_i32 s14, s{GW}, {RING_W}")
    a.i(f"s_add_u32 s14, s14, {L_RING}")
    a.i(f"v_add_u32 v{VTR_G}, s14, v{VTR_G}")
    a.i(f"v_add_u32 v{VTRP}, s14, v{VTRP}")
    for r in (VTR_G, VTRP, VST): a.i(f"v_xor_b32 v{r+1}, 64, v{r}")
    a.i("v_mov_b32 v8, 1")
def w1load(a, sx):
    pre = sx < PRM["NPRE"]
    if not pre: a.i(f"s_add_u32 m0, s14, {(sx % RD)*2048}")
    a.i(f"s_add_u32 s78, s76, {16*3584}")
    wstep(a, VW35, SW1, 76, PRE+8*(sx % PD) if pre else None, ("w", sx))
    a.i("s_cmp_eq_u32 s78, s77")
    a.i("s_cselect_b32 s76, s12, s78")
def g_w1first(a, name):
    assert (PRM["D1"] <= PRM["NPRE"] < 32 and PRM["D1"] < PD) or (PRM["NPRE"] == 0 and PRM["w1pos"] == 3)
    a.i("s_cmp_eq_u32 s13, 7")
    a.i(f"s_cbranch_scc1 {name}")
    n = len(a.vm)
    for p in range(2): a.i(f"buffer_load_ushort v{BA1+4*p}, v11, {R(SB1)}, s12 offen offset:{64*p}", tag="b")
    for sx in range(PRM["D1"]): w1load(a, sx)
    a.label(name)

def g_waves(a, VGE, VXE, VXO, vmG):
    VTR, VXR, VC = VTR_G, VXR_G, GVC
    NPRE, D1, D2W, D2H, DO, ND = (PRM[k] for k in ("NPRE", "D1", "D2W", "D2H", "DO", "ND"))
    a.label("L_G123")
    a.vm = list(vmG); a.lg = []
    for r in range(32, 36): a.i(f"v_mov_b32 v{r}, 0")
    a.i(f"v_mov_b32 v14, {L_CNT}")
    a.i("ds_write_b128 v14, v[32:35]")
    a.i("ds_write_b128 v14, v[32:35] offset:16")
    g_setup(a)
    srd(a, SWS, "ws"); srd(a, SWQ, "wq")
    a.i(f"s_mov_b32 s{GSP}, {SPIN}")
    for k in range(3):
        a.i(f"s_add_u32 s8, s{GW}, {3*k - 1}")
        a.i("s_min_u32 s8, s8, 7")
        a.i(f"s_lshl_b32 s{60+k}, s8, 11") if False else None
        a.i(f"s_lshl_b32 s{52+k}, s8, 11")
        a.i(f"s_add_u32 s{52+k}, s{52+k}, {L_WQ}")
        a.i("s_lshl_b32 s8, s8, 14")
        a.i(f"s_lshl_b32 s9, s{S_J}, 16")
        a.i("s_add_u32 s8, s8, s9")
        a.i(f"s_lshl_b32 s9, s{S_MU}, 7")
        a.i(f"s_add_u32 s{64+k}, s8, s9")
    a.i("s_waitcnt lgkmcnt(0)"); a.lg = []
    a.i("s_barrier")
    if PRM["w1pos"] == 0:
        n0 = len(a.vm); g_w1first(a, "L_G_now1"); a.vm = a.vm[:n0]
    for q in range(4):
        for sl in (2*q, 2*q+1):
            a.i(f"s_add_u32 m0, s10, {L_X + sl*8192}")
            if sl:
                a.i("s_add_u32 s11, s11, 128")
                a.i("s_and_b32 s11, s11, 0x380")
            a.i(f"buffer_load_dwordx4 v{VXE}, {R(SX)}, s11 offen lds")
            a.i(f"buffer_load_dwordx4 v{VXO}, {R(SX)}, s11 offen offset:1024 lds", tag=("k", q))
        for k in range(3 if q else 0):
            a.i(f"s_add_u32 s8, s{64+k}, {q << 17}")
            a.i(f"s_add_u32 m0, s{52+k}, {q*16384}")
            a.i("s_and_b32 s8, s8, 0x7ffff")
            wstep(a, VW1K, SWQ, 8, tag=("k", q))
        if q:
            a.wait(vm=("k", q-1))
            cnt_add(a, VC, 8, 4*(q-1))
    if PRM["w1pos"] == 2:
        if PRM["w1wait"]: cnt_wait(a, VC, 14, C_T, 1, "L_G_tagw", 8)
        a.i("s_cmp_eq_u32 s13, 7")
        a.i("s_cbranch_scc0 L_G_w1")
        a.i("s_waitcnt vmcnt(0)")
        a.label("L_G_w1")
        g_w1first(a, "L_G_now1")
    a.wait(vm=("k", 3))
    cnt_add(a, VC, 8, 12)
    stamp(a, 0, 14, first=True)
    a.label("L_G_ffn1")
    a.vm = ["b"]*2 + [("w", sx) for sx in range(D1) for _ in range(2)]
    a.label("L_G_xw")
    a.i(f"ds_read_b128 v[32:35], v{VC}")
    a.i("s_waitcnt lgkmcnt(0)"); a.lg = []
    a.i("v_add_u32 v32, -5, v32")
    a.i("v_add_u32 v35, -1, v35")
    a.i("v_min3_i32 v33, v33, v34, v35")
    a.i("v_min_i32 v32, v32, v33")
    a.i("v_readfirstlane_b32 s8, v32")
    a.i("s_cmp_ge_i32 s8, 3")
    a.i("s_cbranch_scc0 L_G_xw")
    stamp(a, 14, 14)
    a.i("s_cmp_eq_u32 s13, 7")
    a.i("s_cbranch_scc1 L_G_idle")
    if PRM["w1pos"] == 3:
        a.label("L_G_kw")
        a.i("s_sleep 2")
        cnt_wait(a, VC, 14, C_K, 4, "L_G_kw1", 8)
        a.ins[-1] = Ins("    s_cbranch_scc0 L_G_kw")
        a.vm = []
        g_w1first(a, "L_G3_now1")
    a.wait(vm="b")
    for p in range(2):
        for rh in range(2): mfma(a, ACC + 32*p + 16*rh, BA1 + 4*p, ONE, "0")
    def rd1(sx):
        a.wait(vm=("w", sx))
        b = sx & 1
        if sx < NPRE:
            for p in range(2): a.i(f"ds_write_b128 v{VSW}, {v(PRE+8*(sx % PD)+4*p,4)} offset:{p*1024}")
        for p in range(2):
            o = 0 if sx < NPRE else (sx % RD)*2048
            ar = (VST if sx < NPRE else VTR) + p
            a.i(f"ds_read_b64_tr_b16 {v(WF+8*b+4*p,2)}, v{ar} offset:{o}")
            a.i(f"ds_read_b64_tr_b16 {v(WF+8*b+4*p+2,2)}, v{ar} offset:{o+512}")
        for rh in range(2):
            a.i(f"ds_read_b128 {v(XF+8*b+4*rh,4)}, v{VXR+(sx&3)} offset:{(sx>>2)*8192 + rh*4096}", tag=("r", sx))
    def ringgate():
        a.i("s_setprio 2")
        cnt_wait(a, VC, 14, C_Q, 4, a.newlabel("G_ring"), 8)
        a.i("s_setprio 0")
    a.i(f"s_setprio {PRM['gp0']}")
    rd1(0)
    for sx in range(32):
        if sx in (1, 4, 8, 16): stamp(a, {1: 16, 4: 17, 8: 18, 16: 19}[sx], 14)
        if sx + D1 < NPRE: w1load(a, sx + D1)
        if sx < 31: rd1(sx+1)
        a.wait(lg=("r", sx))
        b = sx & 1
        for p in range(2):
            for rh in range(2):
                mfma(a, ACC + 32*p + 16*rh, WF+8*b+4*p, XF+8*b+4*rh)
        if sx + D1 == NPRE and PRM['w1pos'] != 3: ringgate()
        if NPRE <= sx + D1 < 32: w1load(a, sx + D1)
    a.i("s_setprio 2")
    cnt_add(a, VC, 8, C_F)
    if NPRE >= 32: ringgate(); a.i("s_setprio 2")
    a.label("L_G_ffn1_end")
    cnt_wait(a, VC, 8, C_T, 1, "L_G_tag", S_TAG)
    stamp(a, 9, 250)
    srd(a, SW2, "w2"); srd(a, SWO, "wo"); srd(a, SB2, "b2")
    BA2 = BA1
    a.i(f"s_lshl_b32 s8, s{S_MU}, 7")
    a.i(f"s_cmp_eq_u32 s{GW}, 0")
    a.i(f"s_cselect_b32 s10, s8, {BIG:#x}")
    for p in range(2): a.i(f"buffer_load_ushort v{BA2+4*p}, v11, {R(SB2)}, s10 offen offset:{64*p}", tag="b")
    a.i(f"s_lshl_b32 s10, s{S_G}, 5")
    a.i(f"s_lshl_b32 s9, s{S_MU}, 2")
    a.i("s_add_u32 s10, s10, s9")
    a.i(f"s_add_u32 s10, s10, s{GW}")
    a.i("s_lshl_b32 s10, s10, 11")
    a.i(f"s_add_u32 s10, s10, {WS_O}")
    for r in range(4): a.i(f"v_mov_b32 v{XF+r}, -1")
    for rh in range(2): a.i(f"buffer_store_dwordx4 {v(XF,4)}, v{VLIN}, {R(SWS)}, s10 offen offset:{1024*rh} sc1")
    a.i(f"s_mul_i32 s66, s{GW}, {28*16384}")
    a.i("s_add_u32 s66, s66, s8")
    a.i(f"s_lshl_b32 s58, s{GW}, 17")
    a.i("s_add_u32 s58, s58, s8")
    a.i(f"s_and_b32 s55, s{S_J}, 3" if PRM["gpx"] == 8 else f"s_lshr_b32 s55, s{S_J}, 1")
    a.i("s_lshl_b32 s67, s55, 15")
    a.i(f"s_mul_i32 s60, s{S_J}, 7")
    if PRM["gpx"] == 4: a.i(f"s_mul_i32 s61, s{S_MU}, 7")
    else:
        a.i(f"s_and_b32 s61, s{S_MU}, 3")
        a.i("s_mul_i32 s61, s61, 14")
    a.i("s_add_u32 s60, s60, s61")
    a.i("s_lshr_b32 s60, s60, 1")
    a.i("s_sub_u32 s61, s60, 28")
    a.i("s_cselect_b32 s60, s60, s61")
    a.i("s_mov_b32 s61, s66")
    a.i(f"s_add_u32 s62, s66, {28*16384}")
    a.i("s_lshl_b32 s63, s60, 14")
    a.i("s_add_u32 s66, s66, s63")
    HR, HD = 192, 8
    def dma2(sx):
        a.i(f"s_add_u32 m0, s14, {(sx % RD)*2048}")
        if sx < 28:
            a.i("s_add_u32 s63, s66, 16384")
            wstep(a, VW1K, SW2, 66, tag=("w", sx))
            a.i("s_cmp_eq_u32 s63, s62")
            a.i("s_cselect_b32 s66, s61, s63")
        else:
            a.i("s_add_u32 s63, s58, s67")
            wstep(a, VW1K, SWO, 63, tag=("w", sx))
            a.i("s_add_u32 s67, s67, 16384")
            a.i("s_and_b32 s67, s67, 0x1ffff")
    def hload(sx):
        for rh in range(2):
            a.i(f"buffer_load_dwordx4 {v(HR + 8*(sx % HD) + 4*rh,4)}, v{VLIN}, {R(SWS)}, s9 offen offset:{1024*rh} sc1", tag=("h", sx))
        a.i("s_add_u32 s9, s9, 2048")
        a.i("s_cmp_eq_u32 s9, s65")
        a.i("s_cselect_b32 s9, s64, s9")
    VTRP2 = XF + 6
    for p in range(2): a.i(f"v_mov_b32 v{VTRP2+p}, v{VTRP+p}")
    a.i(f"s_mul_i32 s8, s{S_G}, 112")
    a.i("s_lshl_b32 s10, s8, 11")
    a.i("s_lshl_b32 s9, s12, 6")
    a.i("s_add_u32 s10, s10, s9")
    a.i(f"s_add_u32 s12, s10, {WS_H}")
    a.i("s_cmp_eq_u32 s13, 7")
    a.i("s_cselect_b32 s56, 1, 0")
    a.i("s_add_u32 s13, s12, 4096")
    a.i(f"s_mul_i32 s9, s{GW}, 28")
    a.i("s_add_u32 s9, s9, s8")
    a.i("s_lshl_b32 s9, s9, 11")
    a.i(f"s_add_u32 s64, s9, {WS_H}")
    a.i(f"s_add_u32 s65, s64, {28*2048}")
    a.i("s_lshl_b32 s9, s60, 11")
    a.i("s_add_u32 s9, s9, s64")
    a.i(f"s_lshl_b32 s11, s{S_G}, 9")
    a.i(f"s_add_u32 s11, s11, {WS_HF}")
    a.i(f"s_lshr_b32 s10, s{S_MU}, 1")
    a.i("s_lshl_b32 s10, s10, 7")
    a.i("s_add_u32 s10, s10, s11")
    a.i(f"s_and_b32 s8, s{S_MU}, 1")
    a.i("s_lshl_b32 s8, s8, 2")
    a.i(f"s_add_u32 s8, s8, s{GW}")
    a.i("s_lshl_b32 s8, s8, 2")
    a.i("s_add_u32 s57, s10, s8")
    a.i(f"s_lshl_b32 s8, s{GW}, 7")
    a.i("s_add_u32 s11, s11, s8")
    a.i("v_and_b32 v14, 7, v0")
    a.i("v_lshlrev_b32 v14, 2, v14")
    a.i("s_cmp_eq_u32 s56, 1")
    a.i("s_cbranch_scc1 L_G_noh")
    for p in range(2):
        for rh in range(2):
            t = ACC + 32*p + 16*rh
            o = 192 + 8*(2*p+rh)
            for r in range(16): a.i(f"v_max_f32 v{t+r}, 0, v{t+r}")
            for r in range(0, 16, 2): a.i(f"v_pk_mul_f32 {v(t+r,2)}, {v(t+r,2)}, {v(t+r,2)}")
            for j in range(8): a.i(f"v_cvt_pk_bf16_f32 v{o+j}, v{t+2*j}, v{t+2*j+1}")
            if PRM["hpace"] and 2*p + rh >= PRM["hpace"]: a.i(f"s_waitcnt vmcnt({2*PRM['hpace'] - 2})")
            for u in range(2):
                a.i(f"buffer_store_dwordx4 {v(o+4*u,4)}, v{VLIN}, {R(SWS)}, s{12+p} offen offset:{u*2048 + rh*1024} sc1", tag="hst")
    a.label("L_G_noh")
    a.vm = []
    for k in range(PRM["DOV"]): dma2(28 + k)
    a.i(f"s_waitcnt vmcnt({2*PRM['DOV']})")
    a.i("s_mov_b64 exec, 1")
    a.i(f"buffer_store_dword v8, off, {R(SWS)}, s57 sc1")
    a.i("s_mov_b64 exec, -1")
    for k in range(PRM["DOV"], DO): dma2(28 + k)
    for p in range(2):
        for rh in range(2): mfma(a, ACC + 32*p + 16*rh, BA2 + 4*p, ONE, "0")
    WOF, OF = 128, 192
    def rd2(sx, dst):
        a.wait(vm=[("w", sx)])
        for p in range(2):
            o = (sx % RD)*2048
            a.i(f"ds_read_b64_tr_b16 {v(dst+4*p,2)}, v{VTRP2+p} offset:{o}")
            a.i(f"ds_read_b64_tr_b16 {v(dst+4*p+2,2)}, v{VTRP2+p} offset:{o+1024}", tag=("r", sx))
    for k in range(8):
        rd2(28 + k, WOF + 8*k)
        if k + DO < 8: dma2(28 + k + DO)
        if k >= 2: a.wait(lg=("r", 28 + k - 2))
    a.wait(lg="all")
    for sx in range(D2W): dma2(sx)
    a.label("L_hpoll")
    a.i(f"buffer_load_dword v15, v14, {R(SWS)}, s11 offen sc1")
    a.i("s_waitcnt vmcnt(0)"); a.vm = []
    a.i(f"v_cmp_ne_u32 vcc, s{S_TAG}, v15")
    a.i("s_cbranch_vccz L_hok")
    spin_tail(a, GSP, "L_hpoll", "L_hok", sleep=PRM["hsleep"])
    a.label("L_hok")
    stamp(a, 10, 250)
    for sx in range(D2H): hload(sx)
    a.i(f"s_lshl_b32 s12, s{S_G}, 2")
    a.i(f"s_add_u32 s12, s12, s{GW}")
    a.i("s_lshl_b32 s12, s12, 14")
    a.i(f"s_add_u32 s12, s12, {WS_O}")
    OSO = [12, 56, 57, 13]
    a.i("s_mov_b32 s8, s12")
    for k in range(4):
        a.i(f"s_add_u32 s9, s55, {k}") if False else None
        a.i(f"s_add_u32 s11, s55, {k}")
        a.i("s_and_b32 s11, s11, 3")
        a.i("s_lshl_b32 s11, s11, 12")
        a.i(f"s_add_u32 s{OSO[k]}, s8, s11")
    final_addr(a, 8)
    a.i("v_and_b32 v14, 31, v0")
    a.i("v_lshlrev_b32 v3, 2, v14")
    a.i(f"v_add_u32 v3, {L_G}, v3")
    a.i(f"v_mul_u32_u24 v14, {PITCH}, v14")
    a.i("v_lshrrev_b32 v15, 5, v0")
    a.i("v_lshl_add_u32 v14, v15, 4, v14")
    a.i("v_add_u32 v14, s14, v14")
    a.i("s_setprio 0")
    NM = 28 - ND
    def step2(sx):
        if sx + 1 < 28 and sx + 1 != NM: rd2(sx+1, WF + 8*((sx+1) & 1))
        a.wait(vm=("h", sx), lg=("r", sx))
        b = sx & 1
        for p in range(2):
            for rh in range(2):
                mfma(a, ACC + 32*p + 16*rh, WF+8*b+4*p, HR + 8*(sx % HD) + 4*rh)
    if NM: rd2(0, WF)
    for sx in range(28):
        if sx < NM: step2(sx)
        else: a.wait(vm=[("w", sx), ("h", sx)])
        if sx + D2H < 28: hload(sx + D2H)
        if sx + D2W < 28: dma2(sx + D2W)
    stamp(a, 11, 48)
    a.i("s_barrier")
    if PRM["b3b"]: a.i("s_barrier")
    a.i(f"ds_read2_b32 {v(VGG,2)}, v3 offset0:0 offset1:32", tag="g")
    if ND: rd2(NM, WF + 8*(NM & 1))
    for sx in range(NM, 28): step2(sx)
    def oload(rh):
        for k in range(8):
            a.i(f"buffer_load_dwordx4 {v(OF + 32*rh + 4*k,4)}, v{VLIN}, {R(SWS)}, s{OSO[k>>1]} offen offset:{(k&1)*2048 + rh*1024} sc1", tag=("o", rh))
    def ocheck(rh):
        b = OF + 32*rh
        a.i(f"v_max3_u32 v20, v{b}, v{b+4}, v{b+8}")
        a.i(f"v_max3_u32 v21, v{b+12}, v{b+16}, v{b+20}")
        a.i(f"v_max3_u32 v20, v20, v{b+24}, v{b+28}")
        a.i("v_max_u32 v20, v20, v21")
        a.i("v_cmp_eq_u32 vcc, -1, v20")
    if PRM["osleep"]: a.i(f"s_sleep {PRM['osleep']}")
    a.i("s_setprio 2")
    a.wait(lg="all")
    oload(0); oload(1)
    for rh in range(2): a.i(f"v_sub_f32 v{16+2*rh}, 1.0, v{VGG+rh}")
    for rh in range(2):
        for p in range(2):
            t = ACC + 32*p + 16*rh
            for r in range(0, 16, 2): a.i(f"v_pk_mul_f32 {v(t+r,2)}, {v(t+r,2)}, {v(16+2*rh,2)} op_sel_hi:[1,0]")
    def pwrite(rh, p, q):
        a.i(f"ds_write_b128 v14, {v(ACC + 32*p + 16*rh + 4*q,4)} offset:{rh*32*PITCH + (32*p + 8*q)*4}")
    for rh in range(2):
        a.wait(vm=("o", rh))
        ocheck(rh)
        a.i(f"s_cbranch_vccnz L_or{rh}")
        a.label(f"L_ook{rh}")
        if rh == 0: stamp(a, 12, 22)
        for k in range(8):
            for p in range(2):
                mfma(a, ACC + 32*p + 16*rh, WOF + 8*k + 4*p, OF + 32*rh + 4*k)
                if rh == 1 and k >= 4: pwrite(0, p, k - 4)
    a.i("s_nop 8")
    for p in range(2):
        for q in range(4): pwrite(1, p, q)
    a.i("s_waitcnt lgkmcnt(0)"); a.lg = []
    stamp(a, 13, 22)
    a.i("s_barrier")
    final_stage(a, 8)
    stamp(a, 7, 250)
    stamp_dump(a, "G")
    a.i("s_endpgm")
    for rh in range(2):
        a.label(f"L_or{rh}")
        a.i("s_waitcnt vmcnt(0)")
        a.label(f"L_or{rh}_a")
        oload(rh)
        a.i("s_waitcnt vmcnt(0)"); a.vm = []
        ocheck(rh)
        a.i(f"s_cbranch_vccz L_ook{rh}")
        spin_tail(a, GSP, f"L_or{rh}_a", f"L_ook{rh}")
    a.label("L_G_idle")
    a.i("s_waitcnt vmcnt(0)")
    cnt_add(a, VC, 8, C_F)
    a.label("L_G_idle_a")
    a.i("s_sleep 8")
    a.i(f"ds_read_b32 v14, v{VC} offset:{C_F}")
    a.i("s_waitcnt lgkmcnt(0)")
    a.i("v_readfirstlane_b32 s8, v14")
    a.i("s_cmp_ge_u32 s8, 4")
    a.i("s_cbranch_scc0 L_G_idle_a")
    a.i("s_branch L_G_ffn1_end")
    a.label("L_G0_inv")
    a.i(f"buffer_load_dword v40, off, {R(SDBG)}, 0 sc1")
    a.i("s_waitcnt vmcnt(0)")
    a.i(f"v_readfirstlane_b32 s66, v40")
    a.i("s_cmp_lg_u32 s66, 0")
    a.i("s_cbranch_scc1 L_G0_go")
    spin_tail(a, GSP, "L_G0_inv", "L_G0_go", sleep=PRM["isleep"])

HEAD = open("cdna_kernels/" + NAME + ".s.ref").read().split("; Override launch")[0]
def kd(name, vg=256):
    return f""".section .rodata,"a"
.p2align 6
.amdhsa_kernel {name}
  .amdhsa_next_free_vgpr {vg}
  .amdhsa_next_free_sgpr 102
  .amdhsa_accum_offset {vg}
  .amdhsa_group_segment_fixed_size 0
  .amdhsa_kernarg_size 112
  .amdhsa_user_sgpr_count 2
  .amdhsa_user_sgpr_kernarg_segment_ptr 1
  .amdhsa_system_sgpr_workgroup_id_x 1
.end_amdhsa_kernel
"""
def build(kernels):
    s_ = HEAD
    if len(kernels) == 1:
        n, blk, lds, body = kernels[0]
        s_ += f"; @launch grid=(256,1,1) block=({blk},1,1) lds={lds}\n"
    else:
        for n, blk, lds, body in kernels:
            s_ += f"; @launch kernel={n} grid=(256,1,1) block=({blk},1,1) lds={lds}\n"
    s_ += '.amdgcn_target "amdgcn-amd-amdhsa--gfx950"\n'
    for n, blk, lds, body in kernels:
        s_ += f".text\n.globl {n}\n.p2align 8\n.type {n},@function\n{n}:\n{body}" + kd(n)
    return s_

if __name__ == "__main__":
    out = sys.argv[1]
    OPT = set(sys.argv[2:])
    STAMP = "stamp" in OPT
    ks = [(NAME + "_kernel", 512, LDS_BYTES, None)]
    for o in OPT:
        if "=" in o and o.split("=")[0] in PRM: PRM[o.split("=")[0]] = int(o.split("=")[1])
        if o.startswith("only="):
            STAMP = True; ONLY = int(o[5:])
            ks.append(("wait_kernel", 256, 1024, waitk(ONLY)))
    ks[0] = ks[0][:3] + (kernel(),)
    open(out, "w").write(build(ks))
```

```python
import sys, math, struct
from asmgen import *

NAME = "gated_mix__grouped_kv_mqa__dense_activation_squared_relu__prompt"
TS = 2304
WS_KV = 0
WS_NONCE = 0x2c000
WS_HF = 0x28000
WS_O  = 0x40000
WS_H  = 0x240000
WS_END = WS_H + 32*112*2048
L_X, L_WQ, L_RING, RING_W, RD = 0, 65536, 65536, 17408, 8
L_WKV = 135168; L_STG = L_WKV; L_QF = L_WKV + 8192
L_G = 151552; L_GW = L_G + 1024; L_CNT = L_G + 256
C_Q, C_F, C_T, C_K = 16, 20, 24, 28
CT = [8, 3, 3, 4]
LDS_BYTES = 163840
XO, XK = 13824, 4608
QSCALE = 0.25 * math.log2(math.e)
def f2u(x): return struct.unpack("<I", struct.pack("<f", x))[0]
S_W, S_G, S_MU, S_J, S_M4, S_TAG = 3, 4, 5, 15, 58, 59
P = dict(x=16, wq=18, wk=20, wv=22, wo=24, bx=26, w1=28, b1=30, w2=32, b2=34, gate=36, out=38, dbg=40, ws=42)
SZ = dict(x=2048*1024, wq=512*1024, wo=512*1024, w1=512*3584, b1=3584, w2=1792*1024, b2=1024, gate=1024, out=2048*1024, dbg=256, ws=WS_END)
BIG = 0x40000000
SPIN = 8000
STAMP = False; ONLY = None; OPT = set()
PRM = dict(w1pos=3, apf=0, w1wait=1, tagat=33, NPRE=0, gp0=0, b3b=1, D1=4, D2W=3, D2H=2, DO=3, DOV=0, hpace=3, ost=0, ND=8, hsleep=4, osleep=0, isleep=4, gpx=8, tsleep=0)
WS_STAMP = 0xC00000
SX, SWQ, SWKV, SW1, SB1, SGT, SWS, SDBG, SW2, SWO, SOUT = 44, 48, 52, 56, 60, 64, 68, 72, 76, 80, 84
SB2 = 48
VLIN = 2
PITCH = 272

def srd(a, d, name):
    a.i(f"s_mov_b32 s{d}, s{P[name]}")
    a.i(f"s_mov_b32 s{d+1}, s{P[name]+1}")
    a.i(f"s_mov_b32 s{d+2}, {SZ[name]:#x}")
    a.i(f"s_mov_b32 s{d+3}, 0x20000")
def R(d): return f"s[{d}:{d+3}]"

ST_A = {0: 100, 1: 88, 2: 90, 3: 92, 4: 94, 5: 96, 6: 98, 7: 44}
CY_A = {4: 46, 5: 72}
ST_G = {0: 100, 15: 88, 8: 90, 14: 92, 16: 94, 17: 96, 18: 98, 19: 26, 9: 18, 10: 20, 11: 22, 12: 72, 13: 74, 7: 44}
NST = 20
def stamping(idx): return STAMP and (ONLY is None or idx == ONLY)
def stamp_init(a, role):
    if not STAMP: return
    for i, r in (ST_A if role == "A" else ST_G).items():
        if r >= 88 and i: a.i(f"s_mov_b32 s{r}, -1")
def stamp(a, idx, role, first=False):
    if not stamping(idx) or first: return
    role = "A" if role == AST else "G"
    r = (ST_A if role == "A" else ST_G)[idx]
    a.i(f"s_memrealtime s[{r}:{r+1}]")
    if role == "A" and idx in CY_A: a.i(f"s_memtime s[{CY_A[idx]}:{CY_A[idx]+1}]")
def stamp_dump(a, role):
    if not STAMP: return
    T = ST_A if role == "A" else ST_G
    a.i("s_waitcnt vmcnt(0) lgkmcnt(0)")
    a.i(f"s_mov_b32 s{SWS+2}, 0x1000000")
    a.i("s_lshl_b32 s8, s2, 3")
    a.i(f"s_add_u32 s8, s8, s{S_W}")
    a.i("s_lshl_b32 s8, s8, 3")
    a.i(f"s_add_u32 s8, s8, {WS_STAMP + 0x10000}")
    a.i("s_mov_b64 exec, 1")
    for idx in range(NST):
        if stamping(idx):
            a.i(f"v_mov_b32 v{2*idx}, {'s%d' % T[idx] if idx in T else -1}")
            a.i(f"v_mov_b32 v{2*idx+1}, {'s%d' % CY_A[idx] if role == 'A' and idx in CY_A else 0}")
            a.i(f"s_add_u32 s9, s8, {idx*16384}")
            a.i(f"buffer_store_dwordx2 v[{2*idx}:{2*idx+1}], off, {R(SWS)}, s9")
def waitk(idx, ticks=6000):
    a = Asm()
    a.i("s_cmp_ge_u32 s2, 1"); a.i("s_cbranch_scc1 L_w_end")
    a.i("s_load_dwordx2 s[42:43], s[0:1], 104")
    a.i("v_lshlrev_b32 v1, 6, v0")
    a.i("v_mov_b32 v2, 0")
    a.i("ds_write_b32 v2, v2")
    a.i("s_waitcnt lgkmcnt(0)")
    a.i("s_barrier")
    a.i("s_mov_b32 s92, s42"); a.i("s_mov_b32 s93, s43"); a.i("s_mov_b32 s94, 0x1000000"); a.i("s_mov_b32 s95, 0x20000")
    a.i(f"s_mov_b32 s10, {WS_STAMP + 0x10000 + idx*16384}")
    for k in range(4): a.i(f"buffer_load_dwordx4 v[{8+4*k}:{11+4*k}], v1, s[92:95], s10 offen offset:{16*k}")
    a.i("s_waitcnt vmcnt(0)")
    for k in range(8):
        a.i(f"v_add_u32 v3, 1, v{8+2*k}")
        a.i("ds_max_u32 v2, v3")
        a.i("s_waitcnt lgkmcnt(0)")
    a.i("s_barrier")
    a.i("ds_read_b32 v3, v2")
    a.i("s_waitcnt lgkmcnt(0)")
    a.i("v_readfirstlane_b32 s11, v3")
    a.i("s_mov_b32 s12, 20000")
    a.label("L_w_loop")
    a.i("s_memrealtime s[8:9]")
    a.i("s_waitcnt lgkmcnt(0)")
    a.i("s_sub_u32 s8, s8, s11")
    a.i(f"s_cmp_ge_u32 s8, {ticks}")
    a.i("s_cbranch_scc1 L_w_end")
    a.i("s_sub_u32 s12, s12, 1")
    a.i("s_cmp_lg_u32 s12, 0")
    a.i("s_cbranch_scc1 L_w_loop")
    a.label("L_w_end"); a.i("s_endpgm")
    return a.finish()

def mfma(a, d, A, B, C=None):
    c = v(d, 16) if C is None else C
    a.i(f"v_mfma_f32_32x32x16_bf16 {v(d,16)}, {v(A,4)}, {v(B,4)}, {c}")
def mfma16(a, d, A, B, C=None):
    c = v(d, 4) if C is None else C
    a.i(f"v_mfma_f32_16x16x32_bf16 {v(d,4)}, {v(A,4)}, {v(B,4)}, {c}")

def tr_addr(a, dst, t0, t1, rowmul_h):
    a.i(f"v_lshrrev_b32 v{t0}, 5, v0")
    a.i(f"v_mul_u32_u24 v{t0}, {rowmul_h}, v{t0}")
    a.i(f"v_bfe_u32 v{t1}, v0, 2, 2")
    a.i(f"v_add_u32 v{t0}, v{t0}, v{t1}")
    a.i(f"v_lshlrev_b32 v{dst}, 7, v{t0}")
    a.i(f"v_and_b32 v{t1}, 3, v0")
    a.i(f"v_lshl_add_u32 v{dst}, v{t1}, 3, v{dst}")
    a.i(f"v_bfe_u32 v{t1}, v0, 4, 1")
    a.i(f"v_lshl_add_u32 v{dst}, v{t1}, 5, v{dst}")
    a.i(f"v_bfe_u32 v{t1}, v0, 3, 1")
    a.i(f"v_lshl_add_u32 v{dst}, v{t1}, 6, v{dst}")

def xfrag_addr(a, dst, t0, t1):
    a.i(f"v_bfe_u32 v{t0}, v0, 1, 3")
    a.i(f"v_lshrrev_b32 v{t1}, 5, v0")
    a.i(f"v_xor_b32 v{t0}, v{t0}, v{t1}")
    a.i(f"v_and_b32 v{t1}, 31, v0")
    a.i(f"v_lshlrev_b32 v{t1}, 7, v{t1}")
    for q in range(4):
        a.i(f"v_xor_b32 v{dst+q}, {2*q}, v{t0}")
        a.i(f"v_lshl_add_u32 v{dst+q}, v{dst+q}, 4, v{t1}")

def wchunk_addr(a, dst, t0, pitch):
    a.i(f"v_lshrrev_b32 v{t0}, 3, v0")
    a.i(f"v_mul_u32_u24 v{dst}, {pitch}, v{t0}")
    a.i(f"v_bfe_u32 v{t0}, v0, 4, 1")
    a.i(f"v_lshlrev_b32 v{t0}, 2, v{t0}")
    a.i(f"v_xor_b32 v{t0}, v{t0}, v0")
    a.i(f"v_and_b32 v{t0}, 7, v{t0}")
    a.i(f"v_lshl_add_u32 v{dst}, v{t0}, 4, v{dst}")
    a.i(f"v_add_u32 v{dst+1}, {8*pitch - 1024}, v{dst}")
def wstep(a, va, srd_, so, dst=None, tag=None):
    if dst is None:
        a.i(f"buffer_load_dwordx4 v{va}, {R(srd_)}, s{so} offen lds", tag=tag)
        a.i(f"buffer_load_dwordx4 v{va+1}, {R(srd_)}, s{so} offen offset:1024 lds", tag=tag)
    else:
        a.i(f"buffer_load_dwordx4 {v(dst,4)}, v{va}, {R(srd_)}, s{so} offen", tag=tag)
        a.i(f"buffer_load_dwordx4 {v(dst+4,4)}, v{va+1}, {R(srd_)}, s{so} offen offset:1024", tag=tag)

def run(a, items):
    for t in items: t() if callable(t) else a.i(t)

def spin_tail(a, cnt, again, done, sleep=0):
    a.i(f"s_sub_u32 s{cnt}, s{cnt}, 1")
    a.i(f"s_cmp_eq_u32 s{cnt}, 0")
    a.i(f"s_cbranch_scc1 {done}")
    if sleep: a.i(f"s_sleep {sleep}")
    a.i(f"s_branch {again}")

def cnt_add(a, vc, vone, off):
    a.i("s_mov_b64 exec, 1")
    a.i(f"ds_add_u32 v{vc}, v{vone} offset:{off}")
    a.i("s_mov_b64 exec, -1")
def cnt_wait(a, vc, vt, off, n, name, st, extra=None):
    a.label(name)
    a.i(f"ds_read_b32 v{vt}, v{vc} offset:{off}")
    if extra: extra()
    a.i("s_waitcnt lgkmcnt(0)"); a.lg = []
    a.i(f"v_readfirstlane_b32 s{st}, v{vt}")
    a.i(f"s_cmp_ge_u32 s{st}, {n}")
    a.i(f"s_cbranch_scc0 {name}")

def xpairs(a, VE, VO, sbase, st, tagf):
    for sl in range(8):
        a.i(f"s_add_u32 m0, s{sbase}, {L_X + sl*8192}")
        if sl:
            a.i(f"s_add_u32 s{st}, s{st}, 128")
            a.i(f"s_and_b32 s{st}, s{st}, 0x380")
        a.i(f"buffer_load_dwordx4 v{VE}, {R(SX)}, s{st} offen lds")
        a.i(f"buffer_load_dwordx4 v{VO}, {R(SX)}, s{st} offen offset:1024 lds", tag=tagf(sl))

def final_stage(a, T):
    RA, RB, SO = T, T+1, T+2
    B = T + 4
    for w in range(4):
        for hf in range(2):
            a.i(f"ds_read_b128 {v(B + w*8 + 4*hf,4)}, v{RA if w < 2 else RB} offset:{(w&1)*RING_W + 16*hf}", tag=("p", w))
    a.wait(lg=("p", 1))
    for r in range(0, 8, 2): a.i(f"v_pk_add_f32 {v(B+r,2)}, {v(B+r,2)}, {v(B+8+r,2)}")
    a.wait(lg=("p", 3))
    for r in range(0, 8, 2): a.i(f"v_pk_add_f32 {v(B+16+r,2)}, {v(B+16+r,2)}, {v(B+24+r,2)}")
    for r in range(0, 8, 2): a.i(f"v_pk_add_f32 {v(B+r,2)}, {v(B+r,2)}, {v(B+16+r,2)}")
    for j in range(4): a.i(f"v_cvt_pk_bf16_f32 v{B+8+j}, v{B+2*j}, v{B+2*j+1}")
    a.i(f"buffer_store_dwordx4 {v(B+8,4)}, v{SO}, {R(SOUT)}, s10 offen{["", " sc1", " nt", " sc0 sc1", " sc0 sc1 nt"][PRM["ost"]]}")
def final_addr(a, T):
    RA, RB, SO, t = T, T+1, T+2, T+3
    a.i(f"v_lshrrev_b32 v{SO}, 3, v0")
    a.i(f"s_lshl_b32 s10, s{S_W}, 3")
    a.i(f"v_add_u32 v{SO}, s10, v{SO}")
    a.i(f"v_and_b32 v{t}, 7, v0")
    a.i(f"v_mul_u32_u24 v{RA}, {PITCH}, v{SO}")
    a.i(f"v_lshl_add_u32 v{RA}, v{t}, 5, v{RA}")
    a.i(f"v_add_u32 v{RA}, {L_RING}, v{RA}")
    a.i(f"v_add_u32 v{RB}, {2*RING_W}, v{RA}")
    a.i(f"v_lshlrev_b32 v{SO}, 10, v{SO}")
    a.i(f"v_lshl_add_u32 v{SO}, v{t}, 4, v{SO}")
    a.i(f"s_lshl_b32 s10, s{S_G}, 16")
    a.i(f"s_lshl_b32 s11, s{S_MU}, 7")
    a.i("s_add_u32 s10, s10, s11")
    srd(a, SOUT, "out")

VV1, VV0, VG, T0, T1 = 1, 3, 4, 6, 7
Q, S, Pq, F, O = 8, 64, 96, 104, 128
KVS = [40, 52, 104, 116]
AST = 94
SKO, SKL, SIT, SSP, SKC = 62, 63, 64, 65, 66
VW1K_A = 12

def wq_round(a, r):
    a.i(f"s_add_u32 s10, s9, {r << 17}")
    a.i("s_and_b32 s10, s10, 0x7ffff")
    a.i("s_add_u32 s11, s10, 16384")
    for e in range(2):
        a.i(f"s_add_u32 m0, s8, {r*16384 + e*2048}")
        wstep(a, VW1K_A, SWQ, 10+e, tag=("wq", r))

def kernel():
    a = Asm()
    if STAMP: a.i("s_memrealtime s[100:101]")
    a.i("s_cmp_ge_u32 s2, 256")
    a.i("s_cbranch_scc1 L_end")
    a.i("s_load_dwordx16 s[16:31], s[0:1], 0")
    a.i("s_load_dwordx8 s[32:39], s[0:1], 64")
    a.i("s_load_dwordx4 s[40:43], s[0:1], 96")
    a.i("s_getpc_b64 s[44:45]")
    a.label("L_pc")
    a.i("s_mov_b32 s46, L_code_end-L_pc")
    a.i("s_mov_b32 s47, 0x20000")
    a.i("s_lshr_b32 s7, s2, 3")
    a.i("s_lshl_b32 s6, s7, 11")
    a.i("v_lshlrev_b32 v1, 2, v0")
    a.i("buffer_load_dword v255, v1, s[44:47], s6 offen ; touch")
    a.i("v_lshrrev_b32 v1, 6, v0")
    a.i("v_and_b32 v0, 63, v0")
    a.i(f"v_readfirstlane_b32 s{S_W}, v1")
    if PRM["gpx"] == 4:
        a.i("s_and_b32 s6, s2, 7")
        a.i(f"s_and_b32 s{S_MU}, s7, 7")
        a.i(f"s_lshr_b32 s{S_J}, s7, 3")
        a.i("s_lshl_b32 s6, s6, 2")
        a.i(f"s_add_u32 s{S_G}, s6, s{S_J}")
        a.i(f"s_lshl_b32 s{S_J}, s{S_J}, 1")
    else:
        a.i("s_and_b32 s6, s2, 1")
        a.i("s_lshl_b32 s6, s6, 2")
        a.i(f"s_and_b32 s{S_MU}, s7, 3")
        a.i(f"s_add_u32 s{S_MU}, s{S_MU}, s6")
        a.i(f"s_lshr_b32 s{S_J}, s7, 2")
        a.i("s_and_b32 s6, s2, 6")
        a.i("s_lshl_b32 s6, s6, 2")
        a.i(f"s_add_u32 s{S_G}, s6, s{S_J}")
    a.i(f"v_lshlrev_b32 v{VLIN}, 4, v0")
    a.i(f"s_cmp_ge_u32 s{S_W}, 4")
    a.i("s_cbranch_scc1 L_G")
    vm0 = list(a.vm)
    stamp_init(a, "A")
    wchunk_addr(a, VW1K_A, 14, 1024)
    a.i(f"s_lshl_b32 s9, s{S_W}, 15")
    a.i(f"s_lshl_b32 s10, s{S_MU}, 7")
    a.i("s_add_u32 s9, s9, s10")
    a.i(f"s_lshl_b32 s10, s{S_J}, 16")
    a.i("s_add_u32 s9, s9, s10")
    a.i(f"s_lshl_b32 s8, s{S_W}, 12")
    a.i(f"s_add_u32 s8, s8, {L_WQ}")
    a.i("s_waitcnt lgkmcnt(0)")
    srd(a, SWQ, "wq")
    wq_round(a, 0)
    vmA = list(a.vm)
    a.i("s_branch L_A")
    a.label("L_G")
    stamp_init(a, "G")
    if STAMP: a.i("s_waitcnt lgkmcnt(0)"); a.i("s_mov_b32 s26, -1")
    a.vm = list(vm0)
    VGE, VXE, VXO = 8, 9, 10
    a.i("v_bfe_u32 v14, v0, 4, 2")
    a.i("v_and_b32 v15, 7, v0")
    a.i("v_xor_b32 v14, v14, v15")
    a.i(f"v_lshlrev_b32 v{VGE}, 4, v14")
    a.i("v_lshrrev_b32 v14, 3, v0")
    a.i(f"s_sub_u32 s6, s{S_W}, 4")
    a.i(f"s_add_u32 s12, s{S_MU}, s6")
    a.i("s_and_b32 s12, s12, 3")
    a.i(f"s_lshl_b32 s7, s{S_G}, 2")
    a.i("s_add_u32 s7, s7, s12")
    a.i("s_lshl_b32 s7, s7, 4")
    a.i("v_add_u32 v14, s7, v14")
    a.i(f"v_lshl_add_u32 v{VXE}, v14, 10, v{VGE}")
    a.i(f"v_xor_b32 v{VXO}, 64, v{VXE}")
    a.i(f"v_add_u32 v{VXO}, {8192-1024}, v{VXO}")
    a.i("s_lshl_b32 s10, s12, 11")
    a.i(f"s_lshl_b32 s11, s{S_J}, 7")
    a.i(f"s_lshl_b32 s9, s{S_J}, 11")
    a.i("s_setprio 2")
    a.i(f"s_lshl_b32 s13, s{S_G}, 6")
    a.i(f"s_lshl_b32 s14, s{S_MU}, 3")
    a.i("s_add_u32 s13, s13, s14")
    a.i(f"s_add_u32 s13, s13, s{S_W}")
    a.i("s_cmp_lg_u32 s13, 5")
    a.i("s_waitcnt lgkmcnt(0)")
    a.i("s_cbranch_scc1 L_notag")
    a.i(f"s_load_dword s13, s[{P['ws']}:{P['ws']+1}], {WS_NONCE} glc")
    srd(a, SWS, "ws"); srd(a, SDBG, "dbg")
    a.i(f"s_mov_b32 s14, {WS_NONCE}")
    a.i("s_waitcnt lgkmcnt(0)")
    a.i("s_add_u32 s13, s13, 0x9e3779b9")
    a.i("s_max_u32 s13, s13, 1")
    a.i("v_mov_b32 v16, s13")
    a.i("s_mov_b64 exec, 1")
    a.i(f"buffer_store_dword v16, off, {R(SDBG)}, 0 sc1")
    a.i(f"buffer_store_dword v16, off, {R(SWS)}, s14 sc1")
    a.i("s_mov_b64 exec, -1")
    a.vm = a.vm[:-2]
    a.label("L_notag")
    a.i("s_cmp_lg_u32 s6, 0")
    srd(a, SX, "x")
    a.i("s_cbranch_scc1 L_G123")
    vmG = list(a.vm)
    g0_front(a, VXE, VXO)
    a_waves(a, vmA)
    g_waves(a, VGE, VXE, VXO, vmG)
    a.label("L_end")
    a.i("s_endpgm")
    a_slow(a)
    a.label("L_code_end")
    return a.finish()

GW, GSP = 6, 99
def g0_front(a, VXE, VXO):
    a.i("s_setprio 3")
    a.i(f"s_cmp_ge_u32 s{S_MU}, 4")
    a.i(f"s_cselect_b32 s{SWKV}, s{P['wv']}, s{P['wk']}")
    a.i(f"s_cselect_b32 s{SWKV+1}, s{P['wv']+1}, s{P['wk']+1}")
    a.i(f"s_mov_b32 s{SWKV+2}, 16384")
    a.i(f"s_mov_b32 m0, {L_WKV}")
    a.i(f"s_mov_b32 s{SWKV+3}, 0x20000")
    def wpair(q):
        if q:
            a.i(f"s_mov_b32 m0, {L_WKV + q*2048}")
            a.i("s_add_u32 s9, s9, 2048")
            a.i("s_and_b32 s9, s9, 0x3fff")
        for i in range(2):
            a.i(f"buffer_load_dwordx4 v{VLIN}, {R(SWKV)}, s9 offen offset:{i*1024} lds", tag=("wk", 2*q+i))
    wpair(0)
    xpairs(a, VXE, VXO, 10, 11, lambda sl: ("x", sl))
    wpair(1)
    srd(a, SGT, "gate")
    a.i(f"s_lshl_b32 s8, s{S_J}, 7")
    a.i(f"v_add_u32 v14, s8, v{VLIN}")
    a.i(f"s_mov_b32 m0, {L_GW}")
    a.i("v_and_b32 v14, 0x3ff, v14")
    a.i(f"buffer_load_dwordx4 v14, {R(SGT)}, 0 offen lds")
    for q in range(2, 8): wpair(q)
    srd(a, SDBG, "dbg")
    a.i(f"buffer_load_dword v40, off, {R(SDBG)}, 0 sc1", tag="tag")
    a.i("s_barrier")
    stamp(a, 0, 250, first=True)
    XA, TA = 20, 22
    a.i("v_bfe_u32 v14, v0, 1, 3")
    a.i("v_lshrrev_b32 v15, 4, v0")
    a.i("v_xor_b32 v14, v14, v15")
    a.i("v_and_b32 v24, 15, v0")
    a.i("s_lshl_b32 s7, s12, 4")
    a.i("v_add_u32 v25, s7, v24")
    a.i("v_lshlrev_b32 v25, 7, v25")
    a.i(f"v_lshl_add_u32 v{XA}, v14, 4, v25")
    a.i(f"v_xor_b32 v{XA+1}, 64, v{XA}")
    a.i("v_bfe_u32 v14, v0, 2, 2")
    a.i("v_lshl_add_u32 v14, v15, 3, v14")
    a.i(f"v_lshlrev_b32 v{TA}, 5, v14")
    a.i("v_and_b32 v14, 3, v0")
    a.i(f"v_lshl_add_u32 v{TA}, v14, 3, v{TA}")
    a.i(f"v_add_u32 v{TA}, {L_WKV}, v{TA}")
    a.i(f"s_cmp_ge_u32 s{S_MU}, 4")
    a.i("s_cselect_b32 s8, 8, 9")
    a.i("s_cselect_b32 s9, 9, 8")
    a.i("s_cselect_b32 s10, 1024, 0")
    a.i("s_and_b32 s11, s12, 1")
    a.i("s_lshl_b32 s11, s11, s9")
    a.i("s_add_u32 s10, s10, s11")
    a.i(f"s_lshl_b32 s11, s{S_G}, 1")
    a.i("s_lshr_b32 s9, s12, 1")
    a.i("s_add_u32 s11, s11, s9")
    a.i(f"s_mul_i32 s11, s11, {TS}")
    a.i("s_add_u32 s11, s11, s10")
    a.i("v_and_b32 v15, 1, v15")
    a.i("v_lshlrev_b32 v15, s8, v15")
    a.i("v_lshl_add_u32 v23, v24, 4, v15")
    srd(a, SWS, "ws")
    a.i(f"s_mov_b32 s{GSP}, {SPIN}")
    for r in range(34, 36): a.i(f"v_mov_b32 v{r}, 0")
    a.i(f"v_mov_b32 v14, {L_CNT}")
    a.i("v_mov_b32 v15, 1")
    a.i(f"s_cmp_ge_u32 s{S_MU}, 4")
    a.i("s_cbranch_scc1 L_G0_V")
    vm1 = list(a.vm); lg1 = list(a.lg)
    for orient in range(2):
        if orient:
            a.label("L_G0_V"); a.vm = list(vm1); a.lg = list(lg1)
        NB_ = 4
        def rd(sx):
            b = 64 + 8*(sx % NB_)
            a.wait(vm=[("wk", sx), ("x", sx >> 1)])
            if sx == 4: cnt_add(a, 14, 15, 0)
            a.i(f"ds_read_b64_tr_b16 {v(b,2)}, v{TA} offset:{sx*1024}")
            a.i(f"ds_read_b64_tr_b16 {v(b+2,2)}, v{TA} offset:{sx*1024+128}")
            a.i(f"ds_read_b128 {v(b+4,4)}, v{XA + (sx&1)} offset:{(sx>>1)*8192}", tag=("c", sx))
        for sx in range(NB_): rd(sx)
        for sx in range(16):
            a.wait(lg=("c", sx))
            b = 64 + 8*(sx % NB_)
            mfma16(a, 28, *((b, b+4) if orient == 0 else (b+4, b)), "0" if sx == 0 else None)
            if sx + NB_ < 16: rd(sx + NB_)
        if orient == 0: a.i("s_branch L_G0_pub")
    a.label("L_G0_pub")
    cnt_add(a, 14, 15, 12)
    stamp(a, 15, 250)
    a.i("v_cmp_gt_u32 vcc, 32, v0")
    a.i("v_mov_b32 v36, 0x3f803f80")
    a.i("s_sub_u32 s9, 2048, s10")
    a.i("v_mov_b32 v37, s9")
    a.i("v_cndmask_b32 v23, v37, v23, vcc")
    a.i("v_cvt_pk_bf16_f32 v32, v28, v29")
    a.i("v_cvt_pk_bf16_f32 v33, v30, v31")
    a.i(f"s_lshr_b32 s8, s{S_MU}, 2")
    a.i("s_lshl_b32 s8, s8, 1")
    a.i("v_permlane32_swap_b32 v32, v34")
    a.i("v_permlane32_swap_b32 v33, v35")
    a.i("s_and_b32 s7, s12, 1")
    a.i("s_add_u32 s8, s8, s7")
    for r in range(32, 36): a.i(f"v_cndmask_b32 v{r}, v36, v{r}, vcc")
    a.i("s_lshl_b32 s8, s8, 2")
    a.i(f"buffer_store_dwordx4 v[32:35], v23, {R(SWS)}, s11 offen sc1")
    a.i("s_add_u32 s8, s8, s9")
    a.i("s_add_u32 s67, s8, s11")
    g_setup(a)
    a.i("s_waitcnt vmcnt(0)"); a.vm = []
    a.i(f"v_readfirstlane_b32 s66, v40")
    a.i("s_cmp_eq_u32 s66, 0")
    a.i("s_cbranch_scc1 L_G0_inv")
    a.label("L_G0_go")
    a.i("s_mov_b64 exec, 1")
    a.i(f"buffer_store_dword v40, off, {R(SWS)}, s67 offset:128 sc1")
    a.i(f"ds_write_b32 v{GVC}, v40 offset:{C_T}")
    a.i("s_mov_b64 exec, -1")
    a.i("s_setprio 2")
    stamp(a, 8, 14)
    if PRM["w1pos"] != 3: g_w1first(a, "L_G0_now1")
    a.i("s_branch L_G_ffn1")

def kvload(a, st, so=SKO, off=0):
    b = KVS[st]
    return [
        lambda: a.i(f"buffer_load_dwordx4 {v(b,4)}, v{VLIN}, {R(SWS)}, s{so} offen offset:{off} sc1", tag=("kv", st)),
        lambda: a.i(f"buffer_load_dwordx4 {v(b+4,4)}, v{VV0}, {R(SWS)}, s{so} offen offset:{off+1024} sc1", tag=("kv", st)),
        lambda: a.i(f"buffer_load_dwordx4 {v(b+8,4)}, v{VV1}, {R(SWS)}, s{so} offen offset:{off+1024} sc1", tag=("kv", st))]
def kvfirst(a):
    run(a, kvload(a, 0, SKC)); run(a, kvload(a, 1, SKC, TS)); run(a, kvload(a, 2, SKO))

def attn_slot(a, i, prv, cur, nxt, extra, last=False):
    Sc = S + 16*(i & 1); Sn = S + 16*((i+1) & 1)
    e = lambda r: a.i(f"v_exp_f32 v{Sc+r}, v{Sc+r}")
    c = lambda j: a.i(f"v_cvt_pk_bf16_f32 v{Pq+j}, v{Sc+2*j}, v{Sc+2*j+1}")
    ex = lambda k: run(a, extra.get(k, []))
    e(0); e(1)
    mfma(a, O + 16*((i - 1) % 8), (cur if i > 0 else prv) + 8, Pq + 4)
    ex(0)
    for r in range(2, 7): e(r)
    ex("pre1")
    if not (last and i == 7): mfma(a, Sn, cur if i < 7 else nxt, Q + 4*((i + 1) % 8), "0")
    ex(1)
    e(7)
    for j in range(4): c(j)
    e(8); e(9)
    mfma(a, O + 16*i, cur + 4, Pq)
    ex(2)
    for r in range(10, 16): e(r)
    for j in range(4, 8): c(j)

def a_waves(a, vmA):
    VXR, VTR, VC = 88, 92, 93
    a.label("L_A")
    a.vm = list(vmA); a.lg = []
    if PRM["apf"]:
        srd(a, SW1, "w1")
        wchunk_addr(a, 16, 14, 3584)
        a.i(f"s_lshr_b32 s12, s{S_MU}, 1")
        a.i("s_mul_i32 s12, s12, 7")
        a.i(f"s_and_b32 s13, s{S_MU}, 1")
        a.i("s_lshl_b32 s13, s13, 2")
        a.i("s_add_u32 s12, s12, s13")
        a.i("s_lshl_b32 s12, s12, 7")
        a.i(f"s_lshl_b32 s13, s{S_J}, 2")
        a.i(f"s_add_u32 s13, s13, s{S_W}")
        a.i(f"s_mul_i32 s13, s13, {16*3584}")
        a.i("s_add_u32 s12, s12, s13")
    a.i("s_barrier")
    if PRM["apf"]: wstep(a, 16, SW1, 12, 104, "apf")
    srd(a, SWS, "ws")
    xfrag_addr(a, VXR, 14, 15)
    tr_addr(a, VTR, 14, 15, 8)
    a.i(f"s_and_b32 s6, s{S_W}, 1")
    a.i(f"s_lshr_b32 s7, s{S_W}, 1")
    a.i("s_lshl_b32 s12, s6, 6")
    a.i(f"v_xor_b32 v{VTR}, s12, v{VTR}")
    a.i(f"v_add_u32 v{VTR}, {L_WQ}, v{VTR}")
    a.i("s_lshl_b32 s12, s7, 12")
    for q in range(4): a.i(f"v_add_u32 v{VXR+q}, s12, v{VXR+q}")
    a.i(f"v_and_b32 v{T0}, 15, v0")
    a.i(f"v_lshrrev_b32 v{T1}, 5, v0")
    a.i(f"v_lshlrev_b32 v{T1}, 8, v{T1}")
    a.i(f"v_lshl_add_u32 v{VV0}, v{T0}, 4, v{T1}")
    a.i(f"v_add_u32 v{VV1}, 512, v{VV0}")
    a.i(f"v_and_b32 v{T0}, 27, v0")
    a.i(f"v_cmp_eq_u32 vcc, 16, v{T0}")
    a.i(f"v_mov_b32 v{T1}, {BIG:#x}")
    a.i("v_mov_b32 v14, 1024")
    a.i(f"v_cndmask_b32 v{T1}, v{T1}, v14, vcc")
    a.i(f"v_and_b32 v{T0}, 16, v0")
    a.i(f"v_cmp_eq_u32 vcc, 0, v{T0}")
    a.i(f"s_mul_i32 s{SKC}, s{S_W}, {16*TS}")
    a.i(f"s_add_u32 s{SKO}, s{SKC}, {2*TS}")
    a.i(f"v_cndmask_b32 v{VV0}, v{T1}, v{VV0}, vcc")
    a.i(f"v_cndmask_b32 v{VV1}, v{T1}, v{VV1}, vcc")
    a.i(f"s_add_u32 s{SKL}, s{SKC}, {15*TS}")
    a.i(f"s_mov_b32 s{SSP}, {SPIN}")
    a.i(f"v_mov_b32 v{VC}, {L_CNT}")
    for r in range(4, 8): a.i(f"v_mov_b32 v{Pq+r}, 0")
    for r in range(8, 12): a.i(f"v_mov_b32 v{KVS[3]+r}, 0")
    for r in range(127): a.i(f"v_mov_b32 v{O+r}, 0")
    GWA = 95
    a.i("v_bfe_u32 v14, v0, 4, 2")
    a.i("v_and_b32 v15, 7, v0")
    a.i("v_xor_b32 v14, v14, v15")
    a.i("s_lshl_b32 s12, s6, 2")
    a.i("v_xor_b32 v14, s12, v14")
    a.i("v_lshlrev_b32 v14, 4, v14")
    a.i(f"v_add_u32 v99, {L_GW}, v14")
    a.i(f"v_lshrrev_b32 v{VG}, 2, v0")
    a.i(f"v_mul_u32_u24 v{VG}, {TS}, v{VG}")
    a.i(f"v_and_b32 v{VG+1}, 3, v0")
    a.i(f"v_lshl_add_u32 v{VG}, v{VG+1}, 2, v{VG}")
    a.i(f"v_add_u32 v{VG}, {2048 + 128}, v{VG}")
    a.i(f"v_mov_b32 v{T1}, 1")
    a.wait(vm=("wq", 0))
    cnt_add(a, VC, T1, 0)
    a.i(f"v_mov_b32 v{O+127}, 0")
    a.i("s_setprio 1")
    cnt_wait(a, VC, T0, 0, CT[0], "L_k0", 8)
    stamp(a, 1, AST)
    FRS = [8, 16, 24, 32]; NB_ = 4
    def rd(sx):
        b = FRS[sx % NB_]
        a.i(f"ds_read_b64_tr_b16 {v(b,2)}, v{VTR} offset:{sx*2048}")
        a.i(f"ds_read_b64_tr_b16 {v(b+2,2)}, v{VTR} offset:{sx*2048+512}")
        a.i(f"ds_read_b128 {v(b+4,4)}, v{VXR + (sx&3)} offset:{(sx>>2)*8192}", tag=("c", sx))
    for sx in range(NB_-1): rd(sx)
    for sx in range(32):
        nx = sx + NB_ - 1
        if nx < 32 and nx % 8 == 4 and nx < 24: a.i(f"ds_read_b32 v{T0}, v{VC} offset:{4*(nx//8 + 1)}")
        if nx < 32 and nx % 8 == 0:
            a.i(f"v_readfirstlane_b32 s8, v{T0}")
            a.i(f"s_cmp_ge_u32 s8, {CT[nx//8]}")
            a.i(f"s_cbranch_scc0 L_k{nx//8}")
            a.label(f"L_k{nx//8}_ok")
        if nx < 32: rd(nx)
        if sx == PRM["tagat"]: a.i(f"buffer_load_dword v{VG+1}, v{VG}, {R(SWS)}, s{SKC} offen sc1", tag="tag")
        a.wait(lg=("c", sx))
        b = FRS[sx % NB_]
        mfma(a, S, b, b+4, "0" if sx == 0 else None)
    stamp(a, 2, AST)
    a.i("s_lshl_b32 s8, s6, 12")
    a.i("s_lshl_b32 s9, s7, 10")
    a.i("s_add_u32 s8, s8, s9")
    a.i(f"s_add_u32 s8, s8, {L_QF}")
    a.i(f"v_add_u32 v{T0}, s8, v{VLIN}")
    a.i(f"s_mov_b32 s10, {f2u(QSCALE):#x}")
    for k in range(4):
        a.i(f"s_add_u32 s8, s{S_W}, {k+1}")
        a.i("s_and_b32 s8, s8, 3")
        a.i("s_lshl_b32 s8, s8, 11")
        a.i(f"s_add_u32 s8, s8, {L_QF}")
        a.i(f"v_add_u32 v{VXR+k}, s8, v{VLIN}")
    a.i(f"v_mov_b32 v{T1}, 1")
    for r in range(16): a.i(f"v_mul_f32 v{S+r}, s10, v{S+r}")
    for j in range(8): a.i(f"v_cvt_pk_bf16_f32 v{80+j}, v{S+2*j}, v{S+2*j+1}")
    for e in range(2): a.i(f"ds_write_b128 v{T0}, {v(80+4*e,4)} offset:{2048*e}")
    cnt_add(a, VC, T1, C_Q)
    XG, AC, GA = 64, 96, 98
    GFA = [8 + 4*k for k in range(8)]
    def gfr():
        for kb in range(8): a.i(f"ds_read_b128 {v(GFA[kb],4)}, v99 offset:{128*kb}")
    cnt_wait(a, VC, T0, C_T, 1, "L_tagw", S_TAG, gfr)
    def tagcheck():
        a.wait(vm="tag")
        a.i(f"v_cmp_ne_u32 vcc, s{S_TAG}, v{VG+1}")
        a.i("s_cbranch_vccnz L_tagr")
        a.label("L_tag_ok")
        stamp(a, 3, AST)
        a.vm = []
        kvfirst(a)
        if PRM["w1pos"] == 3: cnt_add(a, VC, T1, C_K)
    def tagpoll(): a.i(f"buffer_load_dword v{VG+1}, v{VG}, {R(SWS)}, s{SKC} offen sc1", tag="tag")
    if PRM["tagat"] < 32: tagcheck()
    if PRM["tagat"] == 32: tagpoll()
    a.i(f"s_lshl_b32 s8, s{S_W}, 10")
    a.i(f"v_add_u32 v{GA}, s8, v{VLIN}")
    for i in range(2): a.i(f"v_mov_b32 v{AC+i}, 0")
    def grd(kb):
        for i in range(2):
            a.i(f"ds_read_b128 {v(XG + 8*(kb % 3) + 4*i,4)}, v{GA} offset:{kb*8192 + i*4096}", tag=("g", kb))
    grd(0); grd(1)
    for kb in range(8):
        if kb < 6: grd(kb+2)
        a.wait(lg=("g", kb))
        for r in range(4):
            for i in range(2):
                a.i(f"v_dot2_f32_bf16 v{AC+i}, v{XG + 8*(kb % 3) + 4*i + r}, v{GFA[kb]+r}, v{AC+i}")
    a.i(f"v_lshrrev_b32 v{GA}, 3, v0")
    a.i(f"s_lshl_b32 s9, s{S_W}, 5")
    a.i(f"s_add_u32 s9, s9, {L_G}")
    for mod in ("quad_perm:[1,0,3,2]", "quad_perm:[2,3,0,1]", "row_half_mirror"):
        for i in range(2):
            a.i(f"v_add_f32_dpp v{AC+i}, v{AC+i}, v{AC+i} {mod} row_mask:0xf bank_mask:0xf")
    a.i(f"s_mov_b32 s10, {f2u(-math.log2(math.e)):#x}")
    for i in range(2): a.i(f"v_mul_f32 v{AC+i}, s10, v{AC+i}")
    for i in range(2): a.i(f"v_exp_f32 v{AC+i}, v{AC+i}")
    a.i(f"v_lshl_add_u32 v{GA}, v{GA}, 2, s9")
    for i in range(2): a.i(f"v_add_f32 v{AC+i}, 1.0, v{AC+i}")
    for i in range(2): a.i(f"v_rcp_f32 v{AC+i}, v{AC+i}")
    a.i("s_nop 0")
    for i in range(2): a.i(f"ds_write_b32 v{GA}, v{AC+i} offset:{128*i}")
    if PRM["tagat"] == 33: tagpoll()
    if PRM["tagat"] >= 32: tagcheck()
    def qreads():
        for i in range(8): a.i(f"ds_read_b128 {v(Q+4*i,4)}, v{VXR + (i>>1)} offset:{1024*(i&1)}")
    cnt_wait(a, VC, VTR, C_Q, 4, "L_qwait", 8, qreads)
    a.i(f"v_mov_b32 v{VG}, v{VC}")
    a.wait(vm=("kv", 0))
    stamp(a, 4, AST)
    mfma(a, S, KVS[0], Q, "0")
    a.i(f"s_mov_b32 s{SIT}, 4")
    a.i("s_nop 9")
    a.i("s_branch L_attn_in")
    def tile(t, last=False):
        prv, cur, nxt = (t-1) % 4, t, (t+1) % 4
        ld = kvload(a, prv)
        XA = KVS[2]
        for i in range(8):
            extra = {}
            if not last:
                if i == 0: extra = {0: [f"s_add_u32 s{SKO}, s{SKO}, {TS}"], 1: [f"s_min_u32 s{SKO}, s{SKO}, s{SKL}"], 2: [ld[0]]}
                if i == 1: extra = {0: [ld[1]], 1: [ld[2]]}
                if i == 7:
                    extra = {0: [lambda: a.wait(vm=("kv", nxt))]}
                    if t == 2:
                        extra[1] = [f"s_sub_u32 s{SIT}, s{SIT}, 1"]; extra[2] = [f"s_cmp_lg_u32 s{SIT}, 0"]
                if t == 2 and i == 5: extra = {0: [f"ds_read_b32 v{VG+1}, v{VG} offset:{C_F}"]}
                if t == 2 and i == 6: extra = {0: ["s_waitcnt lgkmcnt(0)"]}
            elif i >= 2:
                j = i - 2; k = j >> 1; o = k*XK + (j & 1)*2048
                extra = {0: [f"ds_write_b128 v{XA+k}, {v(O+16*j,4)} offset:{o}"],
                         1: [f"ds_write_b128 v{XA+k}, {v(O+16*j+4,4)} offset:{o+1024}"]}
                if j & 1: extra[2] = [f"ds_write2st64_b32 v{XA+3+k}, v{O+16*j-8}, v{O+16*j+8} offset0:{k*XK//256} offset1:{k*XK//256+1}"]
            attn_slot(a, i, KVS[prv], KVS[cur], KVS[nxt], extra, last)
    a.raw(".p2align 6")
    a.label("L_attn_loop")
    a.vm = [("kv", 0)]*3 + [("kv", 1)]*3; a.lg = []
    tile(3)
    a.label("L_attn_in")
    for t in range(3): tile(t)
    a.i("s_cbranch_scc1 L_attn_loop")
    a.lg = []
    a.i(f"v_readfirstlane_b32 s8, v{VG+1}")
    XA = KVS[2]
    a.i(f"v_lshlrev_b32 v{T1}, 2, v0")
    for k in range(3):
        a.i(f"s_add_u32 s9, s{S_W}, {k+1}")
        a.i("s_and_b32 s9, s9, 3")
        a.i(f"s_mul_i32 s9, s9, {XO}")
        a.i(f"v_add_u32 v{XA+k}, s9, v{VLIN}")
        a.i("s_add_u32 s9, s9, 4096")
        a.i(f"v_add_u32 v{XA+3+k}, s9, v{T1}")
    a.i("s_cmp_ge_u32 s8, 4")
    a.i("s_cbranch_scc0 L_xwait")
    a.label("L_xok")
    tile(3, last=True)
    a.i(f"s_mul_i32 s9, s{S_W}, {XO}")
    a.i(f"v_add_u32 v{XA}, s9, v{VLIN}")
    mfma(a, O + 16*7, KVS[3] + 8, Pq + 4)
    a.i("s_add_u32 s9, s9, 4096")
    a.i(f"v_add_u32 v{XA+1}, s9, v{T1}")
    a.i(f"v_and_b32 v{T1}, 31, v0")
    a.i(f"v_lshlrev_b32 v{T1}, 2, v{T1}")
    a.i(f"v_add_u32 v{T1}, {L_G}, v{T1}")
    a.i("s_waitcnt lgkmcnt(0)"); a.lg = []
    stamp(a, 5, AST)
    a.i("s_barrier")
    a.i("s_setprio 3")
    LL = O + 16*5 + 10
    for rh in range(2):
        for k in range(3):
            o = k*XK + rh*2048; d = O + 16*(rh*3 + k)
            a.i(f"ds_read_b128 {v(d,4)}, v{XA} offset:{o}")
            a.i(f"ds_read_b128 {v(d+4,4)}, v{XA} offset:{o+1024}", tag=("x", rh, k))
        if rh == 0:
            for k in range(3): a.i(f"ds_read2st64_b32 {v(LL+2*k,2)}, v{XA+1} offset0:{k*XK//256} offset1:{k*XK//256+1}")
            a.i(f"ds_read2_b32 {v(VG,2)}, v{T1} offset0:0 offset1:32", tag="l")
    a.i(f"s_lshl_b32 s8, s{S_G}, 5")
    a.i(f"s_lshl_b32 s9, s{S_MU}, 2")
    a.i("s_add_u32 s8, s8, s9")
    a.i(f"s_add_u32 s8, s8, s{S_W}")
    a.i("s_lshl_b32 s8, s8, 11")
    a.i(f"s_add_u32 s8, s8, {WS_O}")
    a.i(f"s_mov_b32 s10, {f2u(2.0**-30):#x}")
    a.i(f"s_mov_b32 s11, {f2u(2.0**100):#x}")
    a.i("s_mov_b32 s12, 0x7f800000")
    for rh in range(2):
        f = O + 16*(6 + rh); d = O + 48*rh
        a.wait(lg=("x", rh, 1))
        for r in range(0, 8, 2): a.i(f"v_pk_add_f32 {v(d+r,2)}, {v(d+r,2)}, {v(d+16+r,2)}")
        a.wait(lg=("x", rh, 2))
        for r in range(0, 8, 2): a.i(f"v_pk_add_f32 {v(f+r,2)}, {v(f+r,2)}, {v(d+32+r,2)}")
        if rh == 0:
            a.wait(lg="l")
            a.i(f"v_pk_add_f32 {v(LL,2)}, {v(LL,2)}, {v(LL+2,2)}")
            a.i(f"v_pk_add_f32 {v(LL,2)}, {v(LL,2)}, {v(LL+4,2)}")
        a.i(f"v_add_f32 v{f+8}, v{f+8}, v{LL+rh}")
        for r in range(0, 8, 2): a.i(f"v_pk_add_f32 {v(f+r,2)}, {v(f+r,2)}, {v(d+r,2)}")
        a.i(f"v_cmp_le_f32 s[54:55], s10, v{f+8}")
        a.i(f"v_cmp_ge_f32 s[56:57], s11, v{f+8}")
        a.i(f"v_add_f32 v{T0}, abs(v{f}), abs(v{f+1})")
        for r in range(2, 8): a.i(f"v_add_f32 v{T0}, v{T0}, abs(v{f+r})")
        a.i("s_and_b64 s[54:55], s[54:55], s[56:57]")
        a.i(f"v_cmp_gt_f32 vcc, s12, v{T0}")
        a.i(f"v_rcp_f32 v{T0}, v{f+8}")
        a.i("s_and_b64 s[54:55], s[54:55], vcc")
        a.i("s_cmp_eq_u64 s[54:55], -1")
        a.i(f"s_cbranch_scc0 L_slow{rh}")
        a.label(f"L_ok{rh}")
        a.i(f"v_mul_f32 v{T0}, v{T0}, v{VG+rh}")
        for r in range(0, 8, 2): a.i(f"v_pk_mul_f32 {v(f+r,2)}, {v(f+r,2)}, {v(T0,2)} op_sel_hi:[1,0]")
        for j in range(4): a.i(f"v_cvt_pk_bf16_f32 v{S+4*rh+j}, v{f+2*j}, v{f+2*j+1}")
        a.i(f"v_min_u32 v{S+4*rh}, -2, v{S+4*rh}")
        a.i(f"buffer_store_dwordx4 {v(S+4*rh,4)}, v{VLIN}, {R(SWS)}, s8 offen offset:{1024*rh} sc1")
    if PRM["b3b"]: a.i("s_barrier")
    stamp(a, 6, AST)
    a.i("s_setprio 0")
    final_addr(a, 8)
    a.i("s_waitcnt vmcnt(0)"); a.vm = []
    a.i("s_barrier")
    final_stage(a, 8)
    stamp(a, 7, AST)
    stamp_dump(a, "A")
    a.i("s_endpgm")
    a.label("L_tagr")
    if PRM["tsleep"]: a.i(f"s_sleep {PRM['tsleep']}")
    a.i(f"buffer_load_dword v{T0}, v{VG}, {R(SWS)}, s{SKC} offen sc1")
    a.i("s_waitcnt vmcnt(0)"); a.vm = []
    a.i(f"v_cmp_ne_u32 vcc, s{S_TAG}, v{T0}")
    a.i("s_cbranch_vccz L_tag_ok")
    spin_tail(a, SSP, "L_tagr", "L_tag_ok")
    cnt_wait(a, VG, VG+1, C_F, 4, "L_xwait", 8)
    a.i("s_branch L_xok")
    for q in range(1, 4):
        cnt_wait(a, VC, T0, 4*q, CT[q], f"L_k{q}", 8)
        a.i(f"s_branch L_k{q}_ok")

def a_slow(a):
    KV = KVS[0]
    for rh in range(2):
        f = O + 16*(6 + rh); q = Q + 4*(6 + rh)
        SS, CC, OO, PP = S + 16, KVS[2], O, Pq
        a.label(f"L_slow{rh}")
        a.i("s_waitcnt vmcnt(0)" + (" lgkmcnt(0)" if rh == 0 else ""))
        a.i(f"s_mov_b32 s{SKO}, {WS_KV}")
        a.i(f"v_mov_b32 v{T1}, 0xff800000")
        a.label(f"L_slow{rh}_a")
        a.i(f"buffer_load_dwordx4 {v(KV,4)}, v{VLIN}, {R(SWS)}, s{SKO} offen sc1")
        a.i("s_waitcnt vmcnt(0)")
        mfma(a, SS, KV, q, "0")
        a.i("s_nop 15")
        for r in range(0, 16, 2): a.i(f"v_max3_f32 v{T1}, v{T1}, v{SS+r}, v{SS+r+1}")
        a.i(f"s_add_u32 s{SKO}, s{SKO}, {TS}")
        a.i(f"s_cmp_lt_u32 s{SKO}, {WS_KV + 64*TS}")
        a.i(f"s_cbranch_scc1 L_slow{rh}_a")
        a.i(f"v_mov_b32 v{T0}, v{T1}")
        a.i("s_nop 1")
        a.i(f"v_permlane32_swap_b32 v{T0}, v{T1}")
        a.i(f"v_max_f32 v{T1}, v{T0}, v{T1}")
        for r in range(16):
            a.i(f"v_sub_f32 v{CC+r}, 0, v{T1}")
            a.i(f"v_mov_b32 v{OO+r}, 0")
        a.i(f"s_mov_b32 s{SKO}, {WS_KV}")
        a.label(f"L_slow{rh}_b")
        run(a, kvload(a, 0))
        a.i("s_waitcnt vmcnt(0)")
        mfma(a, SS, KV, q, v(CC, 16))
        a.i("s_nop 15")
        for r in range(16): a.i(f"v_exp_f32 v{SS+r}, v{SS+r}")
        a.i("s_nop 0")
        for j in range(8): a.i(f"v_cvt_pk_bf16_f32 v{PP+j}, v{SS+2*j}, v{SS+2*j+1}")
        a.i("s_nop 1")
        mfma(a, OO, KV + 4, PP)
        mfma(a, OO, KV + 8, PP + 4)
        a.i("s_nop 15")
        a.i(f"s_add_u32 s{SKO}, s{SKO}, {TS}")
        a.i(f"s_cmp_lt_u32 s{SKO}, {WS_KV + 64*TS}")
        a.i(f"s_cbranch_scc1 L_slow{rh}_b")
        for r in range(9): a.i(f"v_mov_b32 v{f+r}, v{OO+r}")
        a.i(f"v_rcp_f32 v{T0}, v{f+8}")
        a.i("s_nop 1")
        a.i(f"s_branch L_ok{rh}")
    a.vm = []; a.lg = []

VW35, VW1K, VSW, GVC, VGG = 4, 6, 3, 12, 12
VTR_G, VTRP, VST = 224, 226, 228
VXR_G, BA1, ONE = 16, 20, 28
ACC, WF, XF, PRE, PD = 64, 32, 48, 128, 12
def g_setup(a):
    srd(a, SW1, "w1"); srd(a, SB1, "b1")
    wchunk_addr(a, VW35, 14, 3584)
    wchunk_addr(a, VW1K, 14, 1024)
    a.i(f"s_lshr_b32 s12, s{S_MU}, 1")
    a.i("s_mul_i32 s12, s12, 7")
    a.i(f"s_and_b32 s9, s{S_MU}, 1")
    a.i("s_lshl_b32 s9, s9, 2")
    a.i(f"s_add_u32 s13, s9, s{GW}")
    a.i("s_add_u32 s12, s12, s13")
    a.i("s_lshl_b32 s12, s12, 7")
    a.i(f"s_add_u32 s77, s12, {32*16*3584}")
    a.i(f"s_mul_i32 s76, s{S_J}, {4*16*3584}")
    a.i("s_add_u32 s76, s76, s12")
    a.i("v_lshlrev_b32 v14, 1, v0")
    a.i("v_cmp_gt_u32 vcc, 32, v0")
    a.i(f"v_mov_b32 v15, {BIG:#x}")
    a.i(f"v_mov_b32 v{GVC}, {L_CNT}")
    a.i("v_cndmask_b32 v11, v15, v14, vcc")
    a.i("v_mov_b32 v15, 0x3f80")
    a.i(f"v_cndmask_b32 v{ONE}, 0, v15, vcc")
    for b in (BA1, BA1+4, ONE):
        for r in range(1, 4): a.i(f"v_mov_b32 v{b+r}, 0")
    xfrag_addr(a, VXR_G, 14, 15)
    tr_addr(a, VTR_G, 14, 15, 8)
    tr_addr(a, VTRP, 14, 15, 4)
    a.i(f"s_lshl_b32 s8, s{GW}, 11")
    a.i(f"s_add_u32 s8, s8, {L_STG}")
    a.i(f"v_add_u32 v{VSW}, s8, v{VLIN}")
    a.i(f"v_add_u32 v{VST}, s8, v{VTR_G}")
    a.i(f"s_mul_i32 s14, s{GW}, {RING_W}")
    a.i(f"s_add_u32 s14, s14, {L_RING}")
    a.i(f"v_add_u32 v{VTR_G}, s14, v{VTR_G}")
    a.i(f"v_add_u32 v{VTRP}, s14, v{VTRP}")
    for r in (VTR_G, VTRP, VST): a.i(f"v_xor_b32 v{r+1}, 64, v{r}")
    a.i("v_mov_b32 v8, 1")
def w1load(a, sx):
    pre = sx < PRM["NPRE"]
    if not pre: a.i(f"s_add_u32 m0, s14, {(sx % RD)*2048}")
    a.i(f"s_add_u32 s78, s76, {16*3584}")
    wstep(a, VW35, SW1, 76, PRE+8*(sx % PD) if pre else None, ("w", sx))
    a.i("s_cmp_eq_u32 s78, s77")
    a.i("s_cselect_b32 s76, s12, s78")
def g_w1first(a, name):
    assert (PRM["D1"] <= PRM["NPRE"] < 32 and PRM["D1"] < PD) or (PRM["NPRE"] == 0 and PRM["w1pos"] == 3)
    a.i("s_cmp_eq_u32 s13, 7")
    a.i(f"s_cbranch_scc1 {name}")
    n = len(a.vm)
    for p in range(2): a.i(f"buffer_load_ushort v{BA1+4*p}, v11, {R(SB1)}, s12 offen offset:{64*p}", tag="b")
    for sx in range(PRM["D1"]): w1load(a, sx)
    a.label(name)

def g_waves(a, VGE, VXE, VXO, vmG):
    VTR, VXR, VC = VTR_G, VXR_G, GVC
    NPRE, D1, D2W, D2H, DO, ND = (PRM[k] for k in ("NPRE", "D1", "D2W", "D2H", "DO", "ND"))
    a.label("L_G123")
    a.vm = list(vmG); a.lg = []
    for r in range(32, 36): a.i(f"v_mov_b32 v{r}, 0")
    a.i(f"v_mov_b32 v14, {L_CNT}")
    a.i("ds_write_b128 v14, v[32:35]")
    a.i("ds_write_b128 v14, v[32:35] offset:16")
    g_setup(a)
    srd(a, SWS, "ws"); srd(a, SWQ, "wq")
    a.i(f"s_mov_b32 s{GSP}, {SPIN}")
    for k in range(3):
        a.i(f"s_add_u32 s8, s{GW}, {3*k - 1}")
        a.i("s_min_u32 s8, s8, 7")
        a.i(f"s_lshl_b32 s{60+k}, s8, 11") if False else None
        a.i(f"s_lshl_b32 s{52+k}, s8, 11")
        a.i(f"s_add_u32 s{52+k}, s{52+k}, {L_WQ}")
        a.i("s_lshl_b32 s8, s8, 14")
        a.i(f"s_lshl_b32 s9, s{S_J}, 16")
        a.i("s_add_u32 s8, s8, s9")
        a.i(f"s_lshl_b32 s9, s{S_MU}, 7")
        a.i(f"s_add_u32 s{64+k}, s8, s9")
    a.i("s_waitcnt lgkmcnt(0)"); a.lg = []
    a.i("s_barrier")
    if PRM["w1pos"] == 0:
        n0 = len(a.vm); g_w1first(a, "L_G_now1"); a.vm = a.vm[:n0]
    for q in range(4):
        for sl in (2*q, 2*q+1):
            a.i(f"s_add_u32 m0, s10, {L_X + sl*8192}")
            if sl:
                a.i("s_add_u32 s11, s11, 128")
                a.i("s_and_b32 s11, s11, 0x380")
            a.i(f"buffer_load_dwordx4 v{VXE}, {R(SX)}, s11 offen lds")
            a.i(f"buffer_load_dwordx4 v{VXO}, {R(SX)}, s11 offen offset:1024 lds", tag=("k", q))
        for k in range(3 if q else 0):
            a.i(f"s_add_u32 s8, s{64+k}, {q << 17}")
            a.i(f"s_add_u32 m0, s{52+k}, {q*16384}")
            a.i("s_and_b32 s8, s8, 0x7ffff")
            wstep(a, VW1K, SWQ, 8, tag=("k", q))
        if q:
            a.wait(vm=("k", q-1))
            cnt_add(a, VC, 8, 4*(q-1))
    if PRM["w1pos"] == 2:
        if PRM["w1wait"]: cnt_wait(a, VC, 14, C_T, 1, "L_G_tagw", 8)
        a.i("s_cmp_eq_u32 s13, 7")
        a.i("s_cbranch_scc0 L_G_w1")
        a.i("s_waitcnt vmcnt(0)")
        a.label("L_G_w1")
        g_w1first(a, "L_G_now1")
    a.wait(vm=("k", 3))
    cnt_add(a, VC, 8, 12)
    stamp(a, 0, 14, first=True)
    a.label("L_G_ffn1")
    a.vm = ["b"]*2 + [("w", sx) for sx in range(D1) for _ in range(2)]
    a.label("L_G_xw")
    a.i(f"ds_read_b128 v[32:35], v{VC}")
    a.i("s_waitcnt lgkmcnt(0)"); a.lg = []
    a.i("v_add_u32 v32, -5, v32")
    a.i("v_add_u32 v35, -1, v35")
    a.i("v_min3_i32 v33, v33, v34, v35")
    a.i("v_min_i32 v32, v32, v33")
    a.i("v_readfirstlane_b32 s8, v32")
    a.i("s_cmp_ge_i32 s8, 3")
    a.i("s_cbranch_scc0 L_G_xw")
    stamp(a, 14, 14)
    a.i("s_cmp_eq_u32 s13, 7")
    a.i("s_cbranch_scc1 L_G_idle")
    if PRM["w1pos"] == 3:
        a.label("L_G_kw")
        a.i("s_sleep 2")
        cnt_wait(a, VC, 14, C_K, 4, "L_G_kw1", 8)
        a.ins[-1] = Ins("    s_cbranch_scc0 L_G_kw")
        a.vm = []
        g_w1first(a, "L_G3_now1")
    a.wait(vm="b")
    for p in range(2):
        for rh in range(2): mfma(a, ACC + 32*p + 16*rh, BA1 + 4*p, ONE, "0")
    def rd1(sx):
        a.wait(vm=("w", sx))
        b = sx & 1
        if sx < NPRE:
            for p in range(2): a.i(f"ds_write_b128 v{VSW}, {v(PRE+8*(sx % PD)+4*p,4)} offset:{p*1024}")
        for p in range(2):
            o = 0 if sx < NPRE else (sx % RD)*2048
            ar = (VST if sx < NPRE else VTR) + p
            a.i(f"ds_read_b64_tr_b16 {v(WF+8*b+4*p,2)}, v{ar} offset:{o}")
            a.i(f"ds_read_b64_tr_b16 {v(WF+8*b+4*p+2,2)}, v{ar} offset:{o+512}")
        for rh in range(2):
            a.i(f"ds_read_b128 {v(XF+8*b+4*rh,4)}, v{VXR+(sx&3)} offset:{(sx>>2)*8192 + rh*4096}", tag=("r", sx))
    def ringgate():
        a.i("s_setprio 2")
        cnt_wait(a, VC, 14, C_Q, 4, a.newlabel("G_ring"), 8)
        a.i("s_setprio 0")
    a.i(f"s_setprio {PRM['gp0']}")
    rd1(0)
    for sx in range(32):
        if sx in (1, 4, 8, 16): stamp(a, {1: 16, 4: 17, 8: 18, 16: 19}[sx], 14)
        if sx + D1 < NPRE: w1load(a, sx + D1)
        if sx < 31: rd1(sx+1)
        a.wait(lg=("r", sx))
        b = sx & 1
        for p in range(2):
            for rh in range(2):
                mfma(a, ACC + 32*p + 16*rh, WF+8*b+4*p, XF+8*b+4*rh)
        if sx + D1 == NPRE and PRM['w1pos'] != 3: ringgate()
        if NPRE <= sx + D1 < 32: w1load(a, sx + D1)
    a.i("s_setprio 2")
    cnt_add(a, VC, 8, C_F)
    if NPRE >= 32: ringgate(); a.i("s_setprio 2")
    a.label("L_G_ffn1_end")
    cnt_wait(a, VC, 8, C_T, 1, "L_G_tag", S_TAG)
    stamp(a, 9, 250)
    srd(a, SW2, "w2"); srd(a, SWO, "wo"); srd(a, SB2, "b2")
    BA2 = BA1
    a.i(f"s_lshl_b32 s8, s{S_MU}, 7")
    a.i(f"s_cmp_eq_u32 s{GW}, 0")
    a.i(f"s_cselect_b32 s10, s8, {BIG:#x}")
    for p in range(2): a.i(f"buffer_load_ushort v{BA2+4*p}, v11, {R(SB2)}, s10 offen offset:{64*p}", tag="b")
    a.i(f"s_lshl_b32 s10, s{S_G}, 5")
    a.i(f"s_lshl_b32 s9, s{S_MU}, 2")
    a.i("s_add_u32 s10, s10, s9")
    a.i(f"s_add_u32 s10, s10, s{GW}")
    a.i("s_lshl_b32 s10, s10, 11")
    a.i(f"s_add_u32 s10, s10, {WS_O}")
    for r in range(4): a.i(f"v_mov_b32 v{XF+r}, -1")
    for rh in range(2): a.i(f"buffer_store_dwordx4 {v(XF,4)}, v{VLIN}, {R(SWS)}, s10 offen offset:{1024*rh} sc1")
    a.i(f"s_mul_i32 s66, s{GW}, {28*16384}")
    a.i("s_add_u32 s66, s66, s8")
    a.i(f"s_lshl_b32 s58, s{GW}, 17")
    a.i("s_add_u32 s58, s58, s8")
    a.i(f"s_and_b32 s55, s{S_J}, 3" if PRM["gpx"] == 8 else f"s_lshr_b32 s55, s{S_J}, 1")
    a.i("s_lshl_b32 s67, s55, 15")
    a.i(f"s_mul_i32 s60, s{S_J}, 7")
    if PRM["gpx"] == 4: a.i(f"s_mul_i32 s61, s{S_MU}, 7")
    else:
        a.i(f"s_and_b32 s61, s{S_MU}, 3")
        a.i("s_mul_i32 s61, s61, 14")
    a.i("s_add_u32 s60, s60, s61")
    a.i("s_lshr_b32 s60, s60, 1")
    a.i("s_sub_u32 s61, s60, 28")
    a.i("s_cselect_b32 s60, s60, s61")
    a.i("s_mov_b32 s61, s66")
    a.i(f"s_add_u32 s62, s66, {28*16384}")
    a.i("s_lshl_b32 s63, s60, 14")
    a.i("s_add_u32 s66, s66, s63")
    HR, HD = 192, 8
    def dma2(sx):
        a.i(f"s_add_u32 m0, s14, {(sx % RD)*2048}")
        if sx < 28:
            a.i("s_add_u32 s63, s66, 16384")
            wstep(a, VW1K, SW2, 66, tag=("w", sx))
            a.i("s_cmp_eq_u32 s63, s62")
            a.i("s_cselect_b32 s66, s61, s63")
        else:
            a.i("s_add_u32 s63, s58, s67")
            wstep(a, VW1K, SWO, 63, tag=("w", sx))
            a.i("s_add_u32 s67, s67, 16384")
            a.i("s_and_b32 s67, s67, 0x1ffff")
    def hload(sx):
        for rh in range(2):
            a.i(f"buffer_load_dwordx4 {v(HR + 8*(sx % HD) + 4*rh,4)}, v{VLIN}, {R(SWS)}, s9 offen offset:{1024*rh} sc1", tag=("h", sx))
        a.i("s_add_u32 s9, s9, 2048")
        a.i("s_cmp_eq_u32 s9, s65")
        a.i("s_cselect_b32 s9, s64, s9")
    VTRP2 = XF + 6
    for p in range(2): a.i(f"v_mov_b32 v{VTRP2+p}, v{VTRP+p}")
    a.i(f"s_mul_i32 s8, s{S_G}, 112")
    a.i("s_lshl_b32 s10, s8, 11")
    a.i("s_lshl_b32 s9, s12, 6")
    a.i("s_add_u32 s10, s10, s9")
    a.i(f"s_add_u32 s12, s10, {WS_H}")
    a.i("s_cmp_eq_u32 s13, 7")
    a.i("s_cselect_b32 s56, 1, 0")
    a.i("s_add_u32 s13, s12, 4096")
    a.i(f"s_mul_i32 s9, s{GW}, 28")
    a.i("s_add_u32 s9, s9, s8")
    a.i("s_lshl_b32 s9, s9, 11")
    a.i(f"s_add_u32 s64, s9, {WS_H}")
    a.i(f"s_add_u32 s65, s64, {28*2048}")
    a.i("s_lshl_b32 s9, s60, 11")
    a.i("s_add_u32 s9, s9, s64")
    a.i(f"s_lshl_b32 s11, s{S_G}, 9")
    a.i(f"s_add_u32 s11, s11, {WS_HF}")
    a.i(f"s_lshr_b32 s10, s{S_MU}, 1")
    a.i("s_lshl_b32 s10, s10, 7")
    a.i("s_add_u32 s10, s10, s11")
    a.i(f"s_and_b32 s8, s{S_MU}, 1")
    a.i("s_lshl_b32 s8, s8, 2")
    a.i(f"s_add_u32 s8, s8, s{GW}")
    a.i("s_lshl_b32 s8, s8, 2")
    a.i("s_add_u32 s57, s10, s8")
    a.i(f"s_lshl_b32 s8, s{GW}, 7")
    a.i("s_add_u32 s11, s11, s8")
    a.i("v_and_b32 v14, 7, v0")
    a.i("v_lshlrev_b32 v14, 2, v14")
    a.i("s_cmp_eq_u32 s56, 1")
    a.i("s_cbranch_scc1 L_G_noh")
    for p in range(2):
        for rh in range(2):
            t = ACC + 32*p + 16*rh
            o = 192 + 8*(2*p+rh)
            for r in range(16): a.i(f"v_max_f32 v{t+r}, 0, v{t+r}")
            for r in range(0, 16, 2): a.i(f"v_pk_mul_f32 {v(t+r,2)}, {v(t+r,2)}, {v(t+r,2)}")
            for j in range(8): a.i(f"v_cvt_pk_bf16_f32 v{o+j}, v{t+2*j}, v{t+2*j+1}")
            if PRM["hpace"] and 2*p + rh >= PRM["hpace"]: a.i(f"s_waitcnt vmcnt({2*PRM['hpace'] - 2})")
            for u in range(2):
                a.i(f"buffer_store_dwordx4 {v(o+4*u,4)}, v{VLIN}, {R(SWS)}, s{12+p} offen offset:{u*2048 + rh*1024} sc1", tag="hst")
    a.label("L_G_noh")
    a.vm = []
    for k in range(PRM["DOV"]): dma2(28 + k)
    a.i(f"s_waitcnt vmcnt({2*PRM['DOV']})")
    a.i("s_mov_b64 exec, 1")
    a.i(f"buffer_store_dword v8, off, {R(SWS)}, s57 sc1")
    a.i("s_mov_b64 exec, -1")
    for k in range(PRM["DOV"], DO): dma2(28 + k)
    for p in range(2):
        for rh in range(2): mfma(a, ACC + 32*p + 16*rh, BA2 + 4*p, ONE, "0")
    WOF, OF = 128, 192
    def rd2(sx, dst):
        a.wait(vm=[("w", sx)])
        for p in range(2):
            o = (sx % RD)*2048
            a.i(f"ds_read_b64_tr_b16 {v(dst+4*p,2)}, v{VTRP2+p} offset:{o}")
            a.i(f"ds_read_b64_tr_b16 {v(dst+4*p+2,2)}, v{VTRP2+p} offset:{o+1024}", tag=("r", sx))
    for k in range(8):
        rd2(28 + k, WOF + 8*k)
        if k + DO < 8: dma2(28 + k + DO)
        if k >= 2: a.wait(lg=("r", 28 + k - 2))
    a.wait(lg="all")
    for sx in range(D2W): dma2(sx)
    a.label("L_hpoll")
    a.i(f"buffer_load_dword v15, v14, {R(SWS)}, s11 offen sc1")
    a.i("s_waitcnt vmcnt(0)"); a.vm = []
    a.i(f"v_cmp_ne_u32 vcc, s{S_TAG}, v15")
    a.i("s_cbranch_vccz L_hok")
    spin_tail(a, GSP, "L_hpoll", "L_hok", sleep=PRM["hsleep"])
    a.label("L_hok")
    stamp(a, 10, 250)
    for sx in range(D2H): hload(sx)
    a.i(f"s_lshl_b32 s12, s{S_G}, 2")
    a.i(f"s_add_u32 s12, s12, s{GW}")
    a.i("s_lshl_b32 s12, s12, 14")
    a.i(f"s_add_u32 s12, s12, {WS_O}")
    OSO = [12, 56, 57, 13]
    a.i("s_mov_b32 s8, s12")
    for k in range(4):
        a.i(f"s_add_u32 s9, s55, {k}") if False else None
        a.i(f"s_add_u32 s11, s55, {k}")
        a.i("s_and_b32 s11, s11, 3")
        a.i("s_lshl_b32 s11, s11, 12")
        a.i(f"s_add_u32 s{OSO[k]}, s8, s11")
    final_addr(a, 8)
    a.i("v_and_b32 v14, 31, v0")
    a.i("v_lshlrev_b32 v3, 2, v14")
    a.i(f"v_add_u32 v3, {L_G}, v3")
    a.i(f"v_mul_u32_u24 v14, {PITCH}, v14")
    a.i("v_lshrrev_b32 v15, 5, v0")
    a.i("v_lshl_add_u32 v14, v15, 4, v14")
    a.i("v_add_u32 v14, s14, v14")
    a.i("s_setprio 0")
    NM = 28 - ND
    def step2(sx):
        if sx + 1 < 28 and sx + 1 != NM: rd2(sx+1, WF + 8*((sx+1) & 1))
        a.wait(vm=("h", sx), lg=("r", sx))
        b = sx & 1
        for p in range(2):
            for rh in range(2):
                mfma(a, ACC + 32*p + 16*rh, WF+8*b+4*p, HR + 8*(sx % HD) + 4*rh)
    if NM: rd2(0, WF)
    for sx in range(28):
        if sx < NM: step2(sx)
        else: a.wait(vm=[("w", sx), ("h", sx)])
        if sx + D2H < 28: hload(sx + D2H)
        if sx + D2W < 28: dma2(sx + D2W)
    stamp(a, 11, 48)
    a.i("s_barrier")
    if PRM["b3b"]: a.i("s_barrier")
    a.i(f"ds_read2_b32 {v(VGG,2)}, v3 offset0:0 offset1:32", tag="g")
    if ND: rd2(NM, WF + 8*(NM & 1))
    for sx in range(NM, 28): step2(sx)
    def oload(rh):
        for k in range(8):
            a.i(f"buffer_load_dwordx4 {v(OF + 32*rh + 4*k,4)}, v{VLIN}, {R(SWS)}, s{OSO[k>>1]} offen offset:{(k&1)*2048 + rh*1024} sc1", tag=("o", rh))
    def ocheck(rh):
        b = OF + 32*rh
        a.i(f"v_max3_u32 v20, v{b}, v{b+4}, v{b+8}")
        a.i(f"v_max3_u32 v21, v{b+12}, v{b+16}, v{b+20}")
        a.i(f"v_max3_u32 v20, v20, v{b+24}, v{b+28}")
        a.i("v_max_u32 v20, v20, v21")
        a.i("v_cmp_eq_u32 vcc, -1, v20")
    if PRM["osleep"]: a.i(f"s_sleep {PRM['osleep']}")
    a.i("s_setprio 2")
    a.wait(lg="all")
    oload(0); oload(1)
    for rh in range(2): a.i(f"v_sub_f32 v{16+2*rh}, 1.0, v{VGG+rh}")
    for rh in range(2):
        for p in range(2):
            t = ACC + 32*p + 16*rh
            for r in range(0, 16, 2): a.i(f"v_pk_mul_f32 {v(t+r,2)}, {v(t+r,2)}, {v(16+2*rh,2)} op_sel_hi:[1,0]")
    def pwrite(rh, p, q):
        a.i(f"ds_write_b128 v14, {v(ACC + 32*p + 16*rh + 4*q,4)} offset:{rh*32*PITCH + (32*p + 8*q)*4}")
    for rh in range(2):
        a.wait(vm=("o", rh))
        ocheck(rh)
        a.i(f"s_cbranch_vccnz L_or{rh}")
        a.label(f"L_ook{rh}")
        if rh == 0: stamp(a, 12, 22)
        for k in range(8):
            for p in range(2):
                mfma(a, ACC + 32*p + 16*rh, WOF + 8*k + 4*p, OF + 32*rh + 4*k)
                if rh == 1 and k >= 4: pwrite(0, p, k - 4)
    a.i("s_nop 8")
    for p in range(2):
        for q in range(4): pwrite(1, p, q)
    a.i("s_waitcnt lgkmcnt(0)"); a.lg = []
    stamp(a, 13, 22)
    a.i("s_barrier")
    final_stage(a, 8)
    stamp(a, 7, 250)
    stamp_dump(a, "G")
    a.i("s_endpgm")
    for rh in range(2):
        a.label(f"L_or{rh}")
        a.i("s_waitcnt vmcnt(0)")
        a.label(f"L_or{rh}_a")
        oload(rh)
        a.i("s_waitcnt vmcnt(0)"); a.vm = []
        ocheck(rh)
        a.i(f"s_cbranch_vccz L_ook{rh}")
        spin_tail(a, GSP, f"L_or{rh}_a", f"L_ook{rh}")
    a.label("L_G_idle")
    a.i("s_waitcnt vmcnt(0)")
    cnt_add(a, VC, 8, C_F)
    a.label("L_G_idle_a")
    a.i("s_sleep 8")
    a.i(f"ds_read_b32 v14, v{VC} offset:{C_F}")
    a.i("s_waitcnt lgkmcnt(0)")
    a.i("v_readfirstlane_b32 s8, v14")
    a.i("s_cmp_ge_u32 s8, 4")
    a.i("s_cbranch_scc0 L_G_idle_a")
    a.i("s_branch L_G_ffn1_end")
    a.label("L_G0_inv")
    a.i(f"buffer_load_dword v40, off, {R(SDBG)}, 0 sc1")
    a.i("s_waitcnt vmcnt(0)")
    a.i(f"v_readfirstlane_b32 s66, v40")
    a.i("s_cmp_lg_u32 s66, 0")
    a.i("s_cbranch_scc1 L_G0_go")
    spin_tail(a, GSP, "L_G0_inv", "L_G0_go", sleep=PRM["isleep"])

HEAD = open("cdna_kernels/" + NAME + ".s.ref").read().split("; Override launch")[0]
def kd(name, vg=256):
    return f""".section .rodata,"a"
.p2align 6
.amdhsa_kernel {name}
  .amdhsa_next_free_vgpr {vg}
  .amdhsa_next_free_sgpr 102
  .amdhsa_accum_offset {vg}
  .amdhsa_group_segment_fixed_size 0
  .amdhsa_kernarg_size 112
  .amdhsa_user_sgpr_count 2
  .amdhsa_user_sgpr_kernarg_segment_ptr 1
  .amdhsa_system_sgpr_workgroup_id_x 1
.end_amdhsa_kernel
"""
def build(kernels):
    s_ = HEAD
    if len(kernels) == 1:
        n, blk, lds, body = kernels[0]
        s_ += f"; @launch grid=(256,1,1) block=({blk},1,1) lds={lds}\n"
    else:
        for n, blk, lds, body in kernels:
            s_ += f"; @launch kernel={n} grid=(256,1,1) block=({blk},1,1) lds={lds}\n"
    s_ += '.amdgcn_target "amdgcn-amd-amdhsa--gfx950"\n'
    for n, blk, lds, body in kernels:
        s_ += f".text\n.globl {n}\n.p2align 8\n.type {n},@function\n{n}:\n{body}" + kd(n)
    return s_

if __name__ == "__main__":
    out = sys.argv[1]
    OPT = set(sys.argv[2:])
    STAMP = "stamp" in OPT
    ks = [(NAME + "_kernel", 512, LDS_BYTES, None)]
    for o in OPT:
        if "=" in o and o.split("=")[0] in PRM: PRM[o.split("=")[0]] = int(o.split("=")[1])
        if o.startswith("only="):
            STAMP = True; ONLY = int(o[5:])
            ks.append(("wait_kernel", 256, 1024, waitk(ONLY)))
    ks[0] = ks[0][:3] + (kernel(),)
    open(out, "w").write(build(ks))
```

```python
import sys, math, struct
from asmgen import *

NAME = "gated_mix__grouped_kv_mqa__dense_activation_squared_relu__prompt"
TS = 2304
WS_KV = 0
WS_NONCE = 0x2c000
WS_HF = 0x28000
WS_O  = 0x40000
WS_H  = 0x240000
WS_END = WS_H + 32*112*2048
L_X, L_WQ, L_RING, RING_W, RD = 0, 65536, 65536, 17408, 8
L_WKV = 135168; L_STG = L_WKV; L_QF = L_WKV + 8192
L_G = 151552; L_GW = L_G + 1024; L_CNT = L_G + 256
C_Q, C_F, C_T, C_K = 16, 20, 24, 28
CT = [8, 3, 3, 4]
LDS_BYTES = 163840
XO, XK = 13824, 4608
QSCALE = 0.25 * math.log2(math.e)
def f2u(x): return struct.unpack("<I", struct.pack("<f", x))[0]
S_W, S_G, S_MU, S_J, S_M4, S_TAG = 3, 4, 5, 15, 58, 59
P = dict(x=16, wq=18, wk=20, wv=22, wo=24, bx=26, w1=28, b1=30, w2=32, b2=34, gate=36, out=38, dbg=40, ws=42)
SZ = dict(x=2048*1024, wq=512*1024, wo=512*1024, w1=512*3584, b1=3584, w2=1792*1024, b2=1024, gate=1024, out=2048*1024, dbg=256, ws=WS_END)
BIG = 0x40000000
SPIN = 8000
STAMP = False; ONLY = None; OPT = set()
PRM = dict(w1pos=3, apf=0, w1wait=1, tagat=33, NPRE=0, gp0=0, b3b=1, D1=4, D2W=3, D2H=2, DO=3, DOV=0, hpace=3, ost=0, ND=8, hsleep=4, osleep=0, isleep=4, gpx=8, tsleep=0)
WS_STAMP = 0xC00000
SX, SWQ, SWKV, SW1, SB1, SGT, SWS, SDBG, SW2, SWO, SOUT = 44, 48, 52, 56, 60, 64, 68, 72, 76, 80, 84
SB2 = 48
VLIN = 2
PITCH = 272

def srd(a, d, name):
    a.i(f"s_mov_b32 s{d}, s{P[name]}")
    a.i(f"s_mov_b32 s{d+1}, s{P[name]+1}")
    a.i(f"s_mov_b32 s{d+2}, {SZ[name]:#x}")
    a.i(f"s_mov_b32 s{d+3}, 0x20000")
def R(d): return f"s[{d}:{d+3}]"

ST_A = {0: 100, 1: 88, 2: 90, 3: 92, 4: 94, 5: 96, 6: 98, 7: 44}
CY_A = {4: 46, 5: 72}
ST_G = {0: 100, 15: 88, 8: 90, 14: 92, 16: 94, 17: 96, 18: 98, 19: 26, 9: 18, 10: 20, 11: 22, 12: 72, 13: 74, 7: 44}
NST = 20
def stamping(idx): return STAMP and (ONLY is None or idx == ONLY)
def stamp_init(a, role):
    if not STAMP: return
    for i, r in (ST_A if role == "A" else ST_G).items():
        if r >= 88 and i: a.i(f"s_mov_b32 s{r}, -1")
def stamp(a, idx, role, first=False):
    if not stamping(idx) or first: return
    role = "A" if role == AST else "G"
    r = (ST_A if role == "A" else ST_G)[idx]
    a.i(f"s_memrealtime s[{r}:{r+1}]")
    if role == "A" and idx in CY_A: a.i(f"s_memtime s[{CY_A[idx]}:{CY_A[idx]+1}]")
def stamp_dump(a, role):
    if not STAMP: return
    T = ST_A if role == "A" else ST_G
    a.i("s_waitcnt vmcnt(0) lgkmcnt(0)")
    a.i(f"s_mov_b32 s{SWS+2}, 0x1000000")
    a.i("s_lshl_b32 s8, s2, 3")
    a.i(f"s_add_u32 s8, s8, s{S_W}")
    a.i("s_lshl_b32 s8, s8, 3")
    a.i(f"s_add_u32 s8, s8, {WS_STAMP + 0x10000}")
    a.i("s_mov_b64 exec, 1")
    for idx in range(NST):
        if stamping(idx):
            a.i(f"v_mov_b32 v{2*idx}, {'s%d' % T[idx] if idx in T else -1}")
            a.i(f"v_mov_b32 v{2*idx+1}, {'s%d' % CY_A[idx] if role == 'A' and idx in CY_A else 0}")
            a.i(f"s_add_u32 s9, s8, {idx*16384}")
            a.i(f"buffer_store_dwordx2 v[{2*idx}:{2*idx+1}], off, {R(SWS)}, s9")
def waitk(idx, ticks=6000):
    a = Asm()
    a.i("s_cmp_ge_u32 s2, 1"); a.i("s_cbranch_scc1 L_w_end")
    a.i("s_load_dwordx2 s[42:43], s[0:1], 104")
    a.i("v_lshlrev_b32 v1, 6, v0")
    a.i("v_mov_b32 v2, 0")
    a.i("ds_write_b32 v2, v2")
    a.i("s_waitcnt lgkmcnt(0)")
    a.i("s_barrier")
    a.i("s_mov_b32 s92, s42"); a.i("s_mov_b32 s93, s43"); a.i("s_mov_b32 s94, 0x1000000"); a.i("s_mov_b32 s95, 0x20000")
    a.i(f"s_mov_b32 s10, {WS_STAMP + 0x10000 + idx*16384}")
    for k in range(4): a.i(f"buffer_load_dwordx4 v[{8+4*k}:{11+4*k}], v1, s[92:95], s10 offen offset:{16*k}")
    a.i("s_waitcnt vmcnt(0)")
    for k in range(8):
        a.i(f"v_add_u32 v3, 1, v{8+2*k}")
        a.i("ds_max_u32 v2, v3")
        a.i("s_waitcnt lgkmcnt(0)")
    a.i("s_barrier")
    a.i("ds_read_b32 v3, v2")
    a.i("s_waitcnt lgkmcnt(0)")
    a.i("v_readfirstlane_b32 s11, v3")
    a.i("s_mov_b32 s12, 20000")
    a.label("L_w_loop")
    a.i("s_memrealtime s[8:9]")
    a.i("s_waitcnt lgkmcnt(0)")
    a.i("s_sub_u32 s8, s8, s11")
    a.i(f"s_cmp_ge_u32 s8, {ticks}")
    a.i("s_cbranch_scc1 L_w_end")
    a.i("s_sub_u32 s12, s12, 1")
    a.i("s_cmp_lg_u32 s12, 0")
    a.i("s_cbranch_scc1 L_w_loop")
    a.label("L_w_end"); a.i("s_endpgm")
    return a.finish()

def mfma(a, d, A, B, C=None):
    c = v(d, 16) if C is None else C
    a.i(f"v_mfma_f32_32x32x16_bf16 {v(d,16)}, {v(A,4)}, {v(B,4)}, {c}")
def mfma16(a, d, A, B, C=None):
    c = v(d, 4) if C is None else C
    a.i(f"v_mfma_f32_16x16x32_bf16 {v(d,4)}, {v(A,4)}, {v(B,4)}, {c}")

def tr_addr(a, dst, t0, t1, rowmul_h):
    a.i(f"v_lshrrev_b32 v{t0}, 5, v0")
    a.i(f"v_mul_u32_u24 v{t0}, {rowmul_h}, v{t0}")
    a.i(f"v_bfe_u32 v{t1}, v0, 2, 2")
    a.i(f"v_add_u32 v{t0}, v{t0}, v{t1}")
    a.i(f"v_lshlrev_b32 v{dst}, 7, v{t0}")
    a.i(f"v_and_b32 v{t1}, 3, v0")
    a.i(f"v_lshl_add_u32 v{dst}, v{t1}, 3, v{dst}")
    a.i(f"v_bfe_u32 v{t1}, v0, 4, 1")
    a.i(f"v_lshl_add_u32 v{dst}, v{t1}, 5, v{dst}")
    a.i(f"v_bfe_u32 v{t1}, v0, 3, 1")
    a.i(f"v_lshl_add_u32 v{dst}, v{t1}, 6, v{dst}")

def xfrag_addr(a, dst, t0, t1):
    a.i(f"v_bfe_u32 v{t0}, v0, 1, 3")
    a.i(f"v_lshrrev_b32 v{t1}, 5, v0")
    a.i(f"v_xor_b32 v{t0}, v{t0}, v{t1}")
    a.i(f"v_and_b32 v{t1}, 31, v0")
    a.i(f"v_lshlrev_b32 v{t1}, 7, v{t1}")
    for q in range(4):
        a.i(f"v_xor_b32 v{dst+q}, {2*q}, v{t0}")
        a.i(f"v_lshl_add_u32 v{dst+q}, v{dst+q}, 4, v{t1}")

def wchunk_addr(a, dst, t0, pitch):
    a.i(f"v_lshrrev_b32 v{t0}, 3, v0")
    a.i(f"v_mul_u32_u24 v{dst}, {pitch}, v{t0}")
    a.i(f"v_bfe_u32 v{t0}, v0, 4, 1")
    a.i(f"v_lshlrev_b32 v{t0}, 2, v{t0}")
    a.i(f"v_xor_b32 v{t0}, v{t0}, v0")
    a.i(f"v_and_b32 v{t0}, 7, v{t0}")
    a.i(f"v_lshl_add_u32 v{dst}, v{t0}, 4, v{dst}")
    a.i(f"v_add_u32 v{dst+1}, {8*pitch - 1024}, v{dst}")
def wstep(a, va, srd_, so, dst=None, tag=None):
    if dst is None:
        a.i(f"buffer_load_dwordx4 v{va}, {R(srd_)}, s{so} offen lds", tag=tag)
        a.i(f"buffer_load_dwordx4 v{va+1}, {R(srd_)}, s{so} offen offset:1024 lds", tag=tag)
    else:
        a.i(f"buffer_load_dwordx4 {v(dst,4)}, v{va}, {R(srd_)}, s{so} offen", tag=tag)
        a.i(f"buffer_load_dwordx4 {v(dst+4,4)}, v{va+1}, {R(srd_)}, s{so} offen offset:1024", tag=tag)

def run(a, items):
    for t in items: t() if callable(t) else a.i(t)

def spin_tail(a, cnt, again, done, sleep=0):
    a.i(f"s_sub_u32 s{cnt}, s{cnt}, 1")
    a.i(f"s_cmp_eq_u32 s{cnt}, 0")
    a.i(f"s_cbranch_scc1 {done}")
    if sleep: a.i(f"s_sleep {sleep}")
    a.i(f"s_branch {again}")

def cnt_add(a, vc, vone, off):
    a.i("s_mov_b64 exec, 1")
    a.i(f"ds_add_u32 v{vc}, v{vone} offset:{off}")
    a.i("s_mov_b64 exec, -1")
def cnt_wait(a, vc, vt, off, n, name, st, extra=None):
    a.label(name)
    a.i(f"ds_read_b32 v{vt}, v{vc} offset:{off}")
    if extra: extra()
    a.i("s_waitcnt lgkmcnt(0)"); a.lg = []
    a.i(f"v_readfirstlane_b32 s{st}, v{vt}")
    a.i(f"s_cmp_ge_u32 s{st}, {n}")
    a.i(f"s_cbranch_scc0 {name}")

def xpairs(a, VE, VO, sbase, st, tagf):
    for sl in range(8):
        a.i(f"s_add_u32 m0, s{sbase}, {L_X + sl*8192}")
        if sl:
            a.i(f"s_add_u32 s{st}, s{st}, 128")
            a.i(f"s_and_b32 s{st}, s{st}, 0x380")
        a.i(f"buffer_load_dwordx4 v{VE}, {R(SX)}, s{st} offen lds")
        a.i(f"buffer_load_dwordx4 v{VO}, {R(SX)}, s{st} offen offset:1024 lds", tag=tagf(sl))

def final_stage(a, T):
    RA, RB, SO = T, T+1, T+2
    B = T + 4
    for w in range(4):
        for hf in range(2):
            a.i(f"ds_read_b128 {v(B + w*8 + 4*hf,4)}, v{RA if w < 2 else RB} offset:{(w&1)*RING_W + 16*hf}", tag=("p", w))
    a.wait(lg=("p", 1))
    for r in range(0, 8, 2): a.i(f"v_pk_add_f32 {v(B+r,2)}, {v(B+r,2)}, {v(B+8+r,2)}")
    a.wait(lg=("p", 3))
    for r in range(0, 8, 2): a.i(f"v_pk_add_f32 {v(B+16+r,2)}, {v(B+16+r,2)}, {v(B+24+r,2)}")
    for r in range(0, 8, 2): a.i(f"v_pk_add_f32 {v(B+r,2)}, {v(B+r,2)}, {v(B+16+r,2)}")
    for j in range(4): a.i(f"v_cvt_pk_bf16_f32 v{B+8+j}, v{B+2*j}, v{B+2*j+1}")
    a.i(f"buffer_store_dwordx4 {v(B+8,4)}, v{SO}, {R(SOUT)}, s10 offen" + ["", " sc1", " nt", " sc0 sc1", " sc0 sc1 nt"][PRM["ost"]])
def final_addr(a, T):
    RA, RB, SO, t = T, T+1, T+2, T+3
    a.i(f"v_lshrrev_b32 v{SO}, 3, v0")
    a.i(f"s_lshl_b32 s10, s{S_W}, 3")
    a.i(f"v_add_u32 v{SO}, s10, v{SO}")
    a.i(f"v_and_b32 v{t}, 7, v0")
    a.i(f"v_mul_u32_u24 v{RA}, {PITCH}, v{SO}")
    a.i(f"v_lshl_add_u32 v{RA}, v{t}, 5, v{RA}")
    a.i(f"v_add_u32 v{RA}, {L_RING}, v{RA}")
    a.i(f"v_add_u32 v{RB}, {2*RING_W}, v{RA}")
    a.i(f"v_lshlrev_b32 v{SO}, 10, v{SO}")
    a.i(f"v_lshl_add_u32 v{SO}, v{t}, 4, v{SO}")
    a.i(f"s_lshl_b32 s10, s{S_G}, 16")
    a.i(f"s_lshl_b32 s11, s{S_MU}, 7")
    a.i("s_add_u32 s10, s10, s11")
    srd(a, SOUT, "out")

VV1, VV0, VG, T0, T1 = 1, 3, 4, 6, 7
Q, S, Pq, F, O = 8, 64, 96, 104, 128
KVS = [40, 52, 104, 116]
AST = 94
SKO, SKL, SIT, SSP, SKC = 62, 63, 64, 65, 66
VW1K_A = 12

def wq_round(a, r):
    a.i(f"s_add_u32 s10, s9, {r << 17}")
    a.i("s_and_b32 s10, s10, 0x7ffff")
    a.i("s_add_u32 s11, s10, 16384")
    for e in range(2):
        a.i(f"s_add_u32 m0, s8, {r*16384 + e*2048}")
        wstep(a, VW1K_A, SWQ, 10+e, tag=("wq", r))

def kernel():
    a = Asm()
    if STAMP: a.i("s_memrealtime s[100:101]")
    a.i("s_cmp_ge_u32 s2, 256")
    a.i("s_cbranch_scc1 L_end")
    a.i("s_load_dwordx16 s[16:31], s[0:1], 0")
    a.i("s_load_dwordx8 s[32:39], s[0:1], 64")
    a.i("s_load_dwordx4 s[40:43], s[0:1], 96")
    a.i("s_getpc_b64 s[44:45]")
    a.label("L_pc")
    a.i("s_mov_b32 s46, L_code_end-L_pc")
    a.i("s_mov_b32 s47, 0x20000")
    a.i("s_lshr_b32 s7, s2, 3")
    a.i("s_lshl_b32 s6, s7, 11")
    a.i("v_lshlrev_b32 v1, 2, v0")
    a.i("buffer_load_dword v255, v1, s[44:47], s6 offen ; touch")
    a.i("v_lshrrev_b32 v1, 6, v0")
    a.i("v_and_b32 v0, 63, v0")
    a.i(f"v_readfirstlane_b32 s{S_W}, v1")
    if PRM["gpx"] == 4:
        a.i("s_and_b32 s6, s2, 7")
        a.i(f"s_and_b32 s{S_MU}, s7, 7")
        a.i(f"s_lshr_b32 s{S_J}, s7, 3")
        a.i("s_lshl_b32 s6, s6, 2")
        a.i(f"s_add_u32 s{S_G}, s6, s{S_J}")
        a.i(f"s_lshl_b32 s{S_J}, s{S_J}, 1")
    else:
        a.i("s_and_b32 s6, s2, 1")
        a.i("s_lshl_b32 s6, s6, 2")
        a.i(f"s_and_b32 s{S_MU}, s7, 3")
        a.i(f"s_add_u32 s{S_MU}, s{S_MU}, s6")
        a.i(f"s_lshr_b32 s{S_J}, s7, 2")
        a.i("s_and_b32 s6, s2, 6")
        a.i("s_lshl_b32 s6, s6, 2")
        a.i(f"s_add_u32 s{S_G}, s6, s{S_J}")
    a.i(f"v_lshlrev_b32 v{VLIN}, 4, v0")
    a.i(f"s_cmp_ge_u32 s{S_W}, 4")
    a.i("s_cbranch_scc1 L_G")
    vm0 = list(a.vm)
    stamp_init(a, "A")
    wchunk_addr(a, VW1K_A, 14, 1024)
    a.i(f"s_lshl_b32 s9, s{S_W}, 15")
    a.i(f"s_lshl_b32 s10, s{S_MU}, 7")
    a.i("s_add_u32 s9, s9, s10")
    a.i(f"s_lshl_b32 s10, s{S_J}, 16")
    a.i("s_add_u32 s9, s9, s10")
    a.i(f"s_lshl_b32 s8, s{S_W}, 12")
    a.i(f"s_add_u32 s8, s8, {L_WQ}")
    a.i("s_waitcnt lgkmcnt(0)")
    srd(a, SWQ, "wq")
    wq_round(a, 0)
    vmA = list(a.vm)
    a.i("s_branch L_A")
    a.label("L_G")
    stamp_init(a, "G")
    if STAMP: a.i("s_waitcnt lgkmcnt(0)"); a.i("s_mov_b32 s26, -1")
    a.vm = list(vm0)
    VGE, VXE, VXO = 8, 9, 10
    a.i("v_bfe_u32 v14, v0, 4, 2")
    a.i("v_and_b32 v15, 7, v0")
    a.i("v_xor_b32 v14, v14, v15")
    a.i(f"v_lshlrev_b32 v{VGE}, 4, v14")
    a.i("v_lshrrev_b32 v14, 3, v0")
    a.i(f"s_sub_u32 s6, s{S_W}, 4")
    a.i(f"s_add_u32 s12, s{S_MU}, s6")
    a.i("s_and_b32 s12, s12, 3")
    a.i(f"s_lshl_b32 s7, s{S_G}, 2")
    a.i("s_add_u32 s7, s7, s12")
    a.i("s_lshl_b32 s7, s7, 4")
    a.i("v_add_u32 v14, s7, v14")
    a.i(f"v_lshl_add_u32 v{VXE}, v14, 10, v{VGE}")
    a.i(f"v_xor_b32 v{VXO}, 64, v{VXE}")
    a.i(f"v_add_u32 v{VXO}, {8192-1024}, v{VXO}")
    a.i("s_lshl_b32 s10, s12, 11")
    a.i(f"s_lshl_b32 s11, s{S_J}, 7")
    a.i(f"s_lshl_b32 s9, s{S_J}, 11")
    a.i("s_setprio 2")
    a.i("s_waitcnt lgkmcnt(0)")
    a.i("s_cmp_lg_u32 s6, 0")
    srd(a, SX, "x")
    a.i("s_cbranch_scc1 L_G123")
    vmG = list(a.vm)
    g0_front(a, VXE, VXO)
    a_waves(a, vmA)
    g_waves(a, VGE, VXE, VXO, vmG)
    a.label("L_end")
    a.i("s_endpgm")
    a_slow(a)
    a.label("L_code_end")
    return a.finish()

GW, GSP = 6, 99
def g0_front(a, VXE, VXO):
    a.i("s_setprio 3")
    a.i(f"s_cmp_ge_u32 s{S_MU}, 4")
    a.i(f"s_cselect_b32 s{SWKV}, s{P['wv']}, s{P['wk']}")
    a.i(f"s_cselect_b32 s{SWKV+1}, s{P['wv']+1}, s{P['wk']+1}")
    a.i(f"s_mov_b32 s{SWKV+2}, 16384")
    a.i(f"s_mov_b32 m0, {L_WKV}")
    a.i(f"s_mov_b32 s{SWKV+3}, 0x20000")
    def wpair(q):
        if q:
            a.i(f"s_mov_b32 m0, {L_WKV + q*2048}")
            a.i("s_add_u32 s9, s9, 2048")
            a.i("s_and_b32 s9, s9, 0x3fff")
        for i in range(2):
            a.i(f"buffer_load_dwordx4 v{VLIN}, {R(SWKV)}, s9 offen offset:{i*1024} lds", tag=("wk", 2*q+i))
    wpair(0)
    xpairs(a, VXE, VXO, 10, 11, lambda sl: ("x", sl))
    wpair(1)
    srd(a, SGT, "gate")
    a.i(f"s_lshl_b32 s8, s{S_J}, 7")
    a.i(f"v_add_u32 v14, s8, v{VLIN}")
    a.i(f"s_mov_b32 m0, {L_GW}")
    a.i("v_and_b32 v14, 0x3ff, v14")
    a.i(f"buffer_load_dwordx4 v14, {R(SGT)}, 0 offen lds")
    for q in range(2, 8): wpair(q)
    srd(a, SWS, "ws")
    a.i(f"s_mov_b32 s8, {WS_NONCE}")
    a.i(f"buffer_load_dword v40, off, {R(SWS)}, s8 sc1", tag="tag")
    a.i("s_barrier")
    stamp(a, 0, 250, first=True)
    XA, TA = 20, 22
    a.i("v_bfe_u32 v14, v0, 1, 3")
    a.i("v_lshrrev_b32 v15, 4, v0")
    a.i("v_xor_b32 v14, v14, v15")
    a.i("v_and_b32 v24, 15, v0")
    a.i("s_lshl_b32 s7, s12, 4")
    a.i("v_add_u32 v25, s7, v24")
    a.i("v_lshlrev_b32 v25, 7, v25")
    a.i(f"v_lshl_add_u32 v{XA}, v14, 4, v25")
    a.i(f"v_xor_b32 v{XA+1}, 64, v{XA}")
    a.i("v_bfe_u32 v14, v0, 2, 2")
    a.i("v_lshl_add_u32 v14, v15, 3, v14")
    a.i(f"v_lshlrev_b32 v{TA}, 5, v14")
    a.i("v_and_b32 v14, 3, v0")
    a.i(f"v_lshl_add_u32 v{TA}, v14, 3, v{TA}")
    a.i(f"v_add_u32 v{TA}, {L_WKV}, v{TA}")
    a.i(f"s_cmp_ge_u32 s{S_MU}, 4")
    a.i("s_cselect_b32 s8, 8, 9")
    a.i("s_cselect_b32 s9, 9, 8")
    a.i("s_cselect_b32 s10, 1024, 0")
    a.i("s_and_b32 s11, s12, 1")
    a.i("s_lshl_b32 s11, s11, s9")
    a.i("s_add_u32 s10, s10, s11")
    a.i(f"s_lshl_b32 s11, s{S_G}, 1")
    a.i("s_lshr_b32 s9, s12, 1")
    a.i("s_add_u32 s11, s11, s9")
    a.i(f"s_mul_i32 s11, s11, {TS}")
    a.i("s_add_u32 s11, s11, s10")
    a.i("v_and_b32 v15, 1, v15")
    a.i("v_lshlrev_b32 v15, s8, v15")
    a.i("v_lshl_add_u32 v23, v24, 4, v15")
    a.i(f"s_mov_b32 s{GSP}, {SPIN}")
    for r in range(34, 36): a.i(f"v_mov_b32 v{r}, 0")
    a.i(f"v_mov_b32 v14, {L_CNT}")
    a.i("v_mov_b32 v15, 1")
    a.i(f"s_cmp_ge_u32 s{S_MU}, 4")
    a.i("s_cbranch_scc1 L_G0_V")
    vm1 = list(a.vm); lg1 = list(a.lg)
    for orient in range(2):
        if orient:
            a.label("L_G0_V"); a.vm = list(vm1); a.lg = list(lg1)
        NB_ = 4
        def rd(sx):
            b = 64 + 8*(sx % NB_)
            a.wait(vm=[("wk", sx), ("x", sx >> 1)])
            if sx == 4: cnt_add(a, 14, 15, 0)
            a.i(f"ds_read_b64_tr_b16 {v(b,2)}, v{TA} offset:{sx*1024}")
            a.i(f"ds_read_b64_tr_b16 {v(b+2,2)}, v{TA} offset:{sx*1024+128}")
            a.i(f"ds_read_b128 {v(b+4,4)}, v{XA + (sx&1)} offset:{(sx>>1)*8192}", tag=("c", sx))
        for sx in range(NB_): rd(sx)
        for sx in range(16):
            a.wait(lg=("c", sx))
            b = 64 + 8*(sx % NB_)
            mfma16(a, 28, *((b, b+4) if orient == 0 else (b+4, b)), "0" if sx == 0 else None)
            if sx + NB_ < 16: rd(sx + NB_)
        if orient == 0: a.i("s_branch L_G0_pub")
    a.label("L_G0_pub")
    cnt_add(a, 14, 15, 12)
    stamp(a, 15, 250)
    a.i("v_cmp_gt_u32 vcc, 32, v0")
    a.i("v_mov_b32 v36, 0x3f803f80")
    a.i("s_sub_u32 s9, 2048, s10")
    a.i("v_mov_b32 v37, s9")
    a.i("v_cndmask_b32 v23, v37, v23, vcc")
    a.i("v_cvt_pk_bf16_f32 v32, v28, v29")
    a.i("v_cvt_pk_bf16_f32 v33, v30, v31")
    a.i(f"s_lshr_b32 s8, s{S_MU}, 2")
    a.i("s_lshl_b32 s8, s8, 1")
    a.i("v_permlane32_swap_b32 v32, v34")
    a.i("v_permlane32_swap_b32 v33, v35")
    a.i("s_and_b32 s7, s12, 1")
    a.i("s_add_u32 s8, s8, s7")
    for r in range(32, 36): a.i(f"v_cndmask_b32 v{r}, v36, v{r}, vcc")
    a.i("s_lshl_b32 s8, s8, 2")
    a.i(f"buffer_store_dwordx4 v[32:35], v23, {R(SWS)}, s11 offen sc1")
    a.i("s_add_u32 s8, s8, s9")
    a.i("s_add_u32 s67, s8, s11")
    g_setup(a)
    a.i("s_waitcnt vmcnt(0)"); a.vm = []
    a.i("v_add_u32 v40, 0x9e3779b9, v40")
    a.i("v_max_u32 v40, 1, v40")
    a.i("s_mov_b64 exec, 1")
    a.i(f"buffer_store_dword v40, off, {R(SWS)}, s67 offset:128 sc1")
    a.i(f"ds_write_b32 v{GVC}, v40 offset:{C_T}")
    a.i("s_mov_b64 exec, -1")
    a.i("s_setprio 2")
    stamp(a, 8, 14)
    if PRM["w1pos"] != 3: g_w1first(a, "L_G0_now1")
    a.i("s_branch L_G_ffn1")

def kvload(a, st, so=SKO, off=0):
    b = KVS[st]
    return [
        lambda: a.i(f"buffer_load_dwordx4 {v(b,4)}, v{VLIN}, {R(SWS)}, s{so} offen offset:{off} sc1", tag=("kv", st)),
        lambda: a.i(f"buffer_load_dwordx4 {v(b+4,4)}, v{VV0}, {R(SWS)}, s{so} offen offset:{off+1024} sc1", tag=("kv", st)),
        lambda: a.i(f"buffer_load_dwordx4 {v(b+8,4)}, v{VV1}, {R(SWS)}, s{so} offen offset:{off+1024} sc1", tag=("kv", st))]
def kvfirst(a):
    run(a, kvload(a, 0, SKC)); run(a, kvload(a, 1, SKC, TS)); run(a, kvload(a, 2, SKO))

def attn_slot(a, i, prv, cur, nxt, extra, last=False):
    Sc = S + 16*(i & 1); Sn = S + 16*((i+1) & 1)
    e = lambda r: a.i(f"v_exp_f32 v{Sc+r}, v{Sc+r}")
    c = lambda j: a.i(f"v_cvt_pk_bf16_f32 v{Pq+j}, v{Sc+2*j}, v{Sc+2*j+1}")
    ex = lambda k: run(a, extra.get(k, []))
    e(0); e(1)
    mfma(a, O + 16*((i - 1) % 8), (cur if i > 0 else prv) + 8, Pq + 4)
    ex(0)
    for r in range(2, 7): e(r)
    ex("pre1")
    if not (last and i == 7): mfma(a, Sn, cur if i < 7 else nxt, Q + 4*((i + 1) % 8), "0")
    ex(1)
    e(7)
    for j in range(4): c(j)
    e(8); e(9)
    mfma(a, O + 16*i, cur + 4, Pq)
    ex(2)
    for r in range(10, 16): e(r)
    for j in range(4, 8): c(j)

def a_waves(a, vmA):
    VXR, VTR, VC = 88, 92, 93
    a.label("L_A")
    a.vm = list(vmA); a.lg = []
    if PRM["apf"]:
        srd(a, SW1, "w1")
        wchunk_addr(a, 16, 14, 3584)
        a.i(f"s_lshr_b32 s12, s{S_MU}, 1")
        a.i("s_mul_i32 s12, s12, 7")
        a.i(f"s_and_b32 s13, s{S_MU}, 1")
        a.i("s_lshl_b32 s13, s13, 2")
        a.i("s_add_u32 s12, s12, s13")
        a.i("s_lshl_b32 s12, s12, 7")
        a.i(f"s_lshl_b32 s13, s{S_J}, 2")
        a.i(f"s_add_u32 s13, s13, s{S_W}")
        a.i(f"s_mul_i32 s13, s13, {16*3584}")
        a.i("s_add_u32 s12, s12, s13")
    a.i("s_barrier")
    if PRM["apf"]: wstep(a, 16, SW1, 12, 104, "apf")
    srd(a, SWS, "ws")
    xfrag_addr(a, VXR, 14, 15)
    tr_addr(a, VTR, 14, 15, 8)
    a.i(f"s_and_b32 s6, s{S_W}, 1")
    a.i(f"s_lshr_b32 s7, s{S_W}, 1")
    a.i("s_lshl_b32 s12, s6, 6")
    a.i(f"v_xor_b32 v{VTR}, s12, v{VTR}")
    a.i(f"v_add_u32 v{VTR}, {L_WQ}, v{VTR}")
    a.i("s_lshl_b32 s12, s7, 12")
    for q in range(4): a.i(f"v_add_u32 v{VXR+q}, s12, v{VXR+q}")
    a.i(f"v_and_b32 v{T0}, 15, v0")
    a.i(f"v_lshrrev_b32 v{T1}, 5, v0")
    a.i(f"v_lshlrev_b32 v{T1}, 8, v{T1}")
    a.i(f"v_lshl_add_u32 v{VV0}, v{T0}, 4, v{T1}")
    a.i(f"v_add_u32 v{VV1}, 512, v{VV0}")
    a.i(f"v_and_b32 v{T0}, 27, v0")
    a.i(f"v_cmp_eq_u32 vcc, 16, v{T0}")
    a.i(f"v_mov_b32 v{T1}, {BIG:#x}")
    a.i("v_mov_b32 v14, 1024")
    a.i(f"v_cndmask_b32 v{T1}, v{T1}, v14, vcc")
    a.i(f"v_and_b32 v{T0}, 16, v0")
    a.i(f"v_cmp_eq_u32 vcc, 0, v{T0}")
    a.i(f"s_mul_i32 s{SKC}, s{S_W}, {16*TS}")
    a.i(f"s_add_u32 s{SKO}, s{SKC}, {2*TS}")
    a.i(f"v_cndmask_b32 v{VV0}, v{T1}, v{VV0}, vcc")
    a.i(f"v_cndmask_b32 v{VV1}, v{T1}, v{VV1}, vcc")
    a.i(f"s_add_u32 s{SKL}, s{SKC}, {15*TS}")
    a.i(f"s_mov_b32 s{SSP}, {SPIN}")
    a.i(f"v_mov_b32 v{VC}, {L_CNT}")
    for r in range(4, 8): a.i(f"v_mov_b32 v{Pq+r}, 0")
    for r in range(8, 12): a.i(f"v_mov_b32 v{KVS[3]+r}, 0")
    for r in range(127): a.i(f"v_mov_b32 v{O+r}, 0")
    GWA = 95
    a.i("v_bfe_u32 v14, v0, 4, 2")
    a.i("v_and_b32 v15, 7, v0")
    a.i("v_xor_b32 v14, v14, v15")
    a.i("s_lshl_b32 s12, s6, 2")
    a.i("v_xor_b32 v14, s12, v14")
    a.i("v_lshlrev_b32 v14, 4, v14")
    a.i(f"v_add_u32 v99, {L_GW}, v14")
    a.i(f"v_lshrrev_b32 v{VG}, 2, v0")
    a.i(f"v_mul_u32_u24 v{VG}, {TS}, v{VG}")
    a.i(f"v_and_b32 v{VG+1}, 3, v0")
    a.i(f"v_lshl_add_u32 v{VG}, v{VG+1}, 2, v{VG}")
    a.i(f"v_add_u32 v{VG}, {2048 + 128}, v{VG}")
    a.i(f"v_mov_b32 v{T1}, 1")
    a.wait(vm=("wq", 0))
    cnt_add(a, VC, T1, 0)
    a.i(f"v_mov_b32 v{O+127}, 0")
    a.i("s_setprio 1")
    cnt_wait(a, VC, T0, 0, CT[0], "L_k0", 8)
    stamp(a, 1, AST)
    FRS = [8, 16, 24, 32]; NB_ = 4
    def rd(sx):
        b = FRS[sx % NB_]
        a.i(f"ds_read_b64_tr_b16 {v(b,2)}, v{VTR} offset:{sx*2048}")
        a.i(f"ds_read_b64_tr_b16 {v(b+2,2)}, v{VTR} offset:{sx*2048+512}")
        a.i(f"ds_read_b128 {v(b+4,4)}, v{VXR + (sx&3)} offset:{(sx>>2)*8192}", tag=("c", sx))
    for sx in range(NB_-1): rd(sx)
    for sx in range(32):
        nx = sx + NB_ - 1
        if nx < 32 and nx % 8 == 4 and nx < 24: a.i(f"ds_read_b32 v{T0}, v{VC} offset:{4*(nx//8 + 1)}")
        if nx < 32 and nx % 8 == 0:
            a.i(f"v_readfirstlane_b32 s8, v{T0}")
            a.i(f"s_cmp_ge_u32 s8, {CT[nx//8]}")
            a.i(f"s_cbranch_scc0 L_k{nx//8}")
            a.label(f"L_k{nx//8}_ok")
        if nx < 32: rd(nx)
        if sx == PRM["tagat"]: a.i(f"buffer_load_dword v{VG+1}, v{VG}, {R(SWS)}, s{SKC} offen sc1", tag="tag")
        a.wait(lg=("c", sx))
        b = FRS[sx % NB_]
        mfma(a, S, b, b+4, "0" if sx == 0 else None)
    stamp(a, 2, AST)
    a.i("s_lshl_b32 s8, s6, 12")
    a.i("s_lshl_b32 s9, s7, 10")
    a.i("s_add_u32 s8, s8, s9")
    a.i(f"s_add_u32 s8, s8, {L_QF}")
    a.i(f"v_add_u32 v{T0}, s8, v{VLIN}")
    a.i(f"s_mov_b32 s10, {f2u(QSCALE):#x}")
    for k in range(4):
        a.i(f"s_add_u32 s8, s{S_W}, {k+1}")
        a.i("s_and_b32 s8, s8, 3")
        a.i("s_lshl_b32 s8, s8, 11")
        a.i(f"s_add_u32 s8, s8, {L_QF}")
        a.i(f"v_add_u32 v{VXR+k}, s8, v{VLIN}")
    a.i(f"v_mov_b32 v{T1}, 1")
    for r in range(16): a.i(f"v_mul_f32 v{S+r}, s10, v{S+r}")
    for j in range(8): a.i(f"v_cvt_pk_bf16_f32 v{80+j}, v{S+2*j}, v{S+2*j+1}")
    for e in range(2): a.i(f"ds_write_b128 v{T0}, {v(80+4*e,4)} offset:{2048*e}")
    cnt_add(a, VC, T1, C_Q)
    XG, AC, GA = 64, 96, 98
    GFA = [8 + 4*k for k in range(8)]
    def gfr():
        for kb in range(8): a.i(f"ds_read_b128 {v(GFA[kb],4)}, v99 offset:{128*kb}")
    cnt_wait(a, VC, T0, C_T, 1, "L_tagw", S_TAG, gfr)
    def tagcheck():
        a.wait(vm="tag")
        a.i(f"v_cmp_ne_u32 vcc, s{S_TAG}, v{VG+1}")
        a.i("s_cbranch_vccnz L_tagr")
        a.label("L_tag_ok")
        stamp(a, 3, AST)
        a.vm = []
        kvfirst(a)
        if PRM["w1pos"] == 3: cnt_add(a, VC, T1, C_K)
    def tagpoll(): a.i(f"buffer_load_dword v{VG+1}, v{VG}, {R(SWS)}, s{SKC} offen sc1", tag="tag")
    if PRM["tagat"] < 32: tagcheck()
    if PRM["tagat"] == 32: tagpoll()
    a.i(f"s_lshl_b32 s8, s{S_W}, 10")
    a.i(f"v_add_u32 v{GA}, s8, v{VLIN}")
    for i in range(2): a.i(f"v_mov_b32 v{AC+i}, 0")
    def grd(kb):
        for i in range(2):
            a.i(f"ds_read_b128 {v(XG + 8*(kb % 3) + 4*i,4)}, v{GA} offset:{kb*8192 + i*4096}", tag=("g", kb))
    grd(0); grd(1)
    for kb in range(8):
        if kb < 6: grd(kb+2)
        a.wait(lg=("g", kb))
        for r in range(4):
            for i in range(2):
                a.i(f"v_dot2_f32_bf16 v{AC+i}, v{XG + 8*(kb % 3) + 4*i + r}, v{GFA[kb]+r}, v{AC+i}")
    a.i(f"v_lshrrev_b32 v{GA}, 3, v0")
    a.i(f"s_lshl_b32 s9, s{S_W}, 5")
    a.i(f"s_add_u32 s9, s9, {L_G}")
    for mod in ("quad_perm:[1,0,3,2]", "quad_perm:[2,3,0,1]", "row_half_mirror"):
        for i in range(2):
            a.i(f"v_add_f32_dpp v{AC+i}, v{AC+i}, v{AC+i} {mod} row_mask:0xf bank_mask:0xf")
    a.i(f"s_mov_b32 s10, {f2u(-math.log2(math.e)):#x}")
    for i in range(2): a.i(f"v_mul_f32 v{AC+i}, s10, v{AC+i}")
    for i in range(2): a.i(f"v_exp_f32 v{AC+i}, v{AC+i}")
    a.i(f"v_lshl_add_u32 v{GA}, v{GA}, 2, s9")
    for i in range(2): a.i(f"v_add_f32 v{AC+i}, 1.0, v{AC+i}")
    for i in range(2): a.i(f"v_rcp_f32 v{AC+i}, v{AC+i}")
    a.i("s_nop 0")
    for i in range(2): a.i(f"ds_write_b32 v{GA}, v{AC+i} offset:{128*i}")
    if PRM["tagat"] == 33: tagpoll()
    if PRM["tagat"] >= 32: tagcheck()
    def qreads():
        for i in range(8): a.i(f"ds_read_b128 {v(Q+4*i,4)}, v{VXR + (i>>1)} offset:{1024*(i&1)}")
    cnt_wait(a, VC, VTR, C_Q, 4, "L_qwait", 8, qreads)
    a.i(f"v_mov_b32 v{VG}, v{VC}")
    a.wait(vm=("kv", 0))
    stamp(a, 4, AST)
    mfma(a, S, KVS[0], Q, "0")
    a.i(f"s_mov_b32 s{SIT}, 4")
    a.i("s_nop 9")
    a.i("s_branch L_attn_in")
    def tile(t, last=False):
        prv, cur, nxt = (t-1) % 4, t, (t+1) % 4
        ld = kvload(a, prv)
        XA = KVS[2]
        for i in range(8):
            extra = {}
            if not last:
                if i == 0: extra = {0: [f"s_add_u32 s{SKO}, s{SKO}, {TS}"], 1: [f"s_min_u32 s{SKO}, s{SKO}, s{SKL}"], 2: [ld[0]]}
                if i == 1: extra = {0: [ld[1]], 1: [ld[2]]}
                if i == 7:
                    extra = {0: [lambda: a.wait(vm=("kv", nxt))]}
                    if t == 2:
                        extra[1] = [f"s_sub_u32 s{SIT}, s{SIT}, 1"]; extra[2] = [f"s_cmp_lg_u32 s{SIT}, 0"]
                if t == 2 and i == 5: extra = {0: [f"ds_read_b32 v{VG+1}, v{VG} offset:{C_F}"]}
                if t == 2 and i == 6: extra = {0: ["s_waitcnt lgkmcnt(0)"]}
            elif i >= 2:
                j = i - 2; k = j >> 1; o = k*XK + (j & 1)*2048
                extra = {0: [f"ds_write_b128 v{XA+k}, {v(O+16*j,4)} offset:{o}"],
                         1: [f"ds_write_b128 v{XA+k}, {v(O+16*j+4,4)} offset:{o+1024}"]}
                if j & 1: extra[2] = [f"ds_write2st64_b32 v{XA+3+k}, v{O+16*j-8}, v{O+16*j+8} offset0:{k*XK//256} offset1:{k*XK//256+1}"]
            attn_slot(a, i, KVS[prv], KVS[cur], KVS[nxt], extra, last)
    a.raw(".p2align 6")
    a.label("L_attn_loop")
    a.vm = [("kv", 0)]*3 + [("kv", 1)]*3; a.lg = []
    tile(3)
    a.label("L_attn_in")
    for t in range(3): tile(t)
    a.i("s_cbranch_scc1 L_attn_loop")
    a.lg = []
    a.i(f"v_readfirstlane_b32 s8, v{VG+1}")
    XA = KVS[2]
    a.i(f"v_lshlrev_b32 v{T1}, 2, v0")
    for k in range(3):
        a.i(f"s_add_u32 s9, s{S_W}, {k+1}")
        a.i("s_and_b32 s9, s9, 3")
        a.i(f"s_mul_i32 s9, s9, {XO}")
        a.i(f"v_add_u32 v{XA+k}, s9, v{VLIN}")
        a.i("s_add_u32 s9, s9, 4096")
        a.i(f"v_add_u32 v{XA+3+k}, s9, v{T1}")
    a.i("s_cmp_ge_u32 s8, 4")
    a.i("s_cbranch_scc0 L_xwait")
    a.label("L_xok")
    tile(3, last=True)
    a.i(f"s_mul_i32 s9, s{S_W}, {XO}")
    a.i(f"v_add_u32 v{XA}, s9, v{VLIN}")
    mfma(a, O + 16*7, KVS[3] + 8, Pq + 4)
    a.i("s_add_u32 s9, s9, 4096")
    a.i(f"v_add_u32 v{XA+1}, s9, v{T1}")
    a.i(f"v_and_b32 v{T1}, 31, v0")
    a.i(f"v_lshlrev_b32 v{T1}, 2, v{T1}")
    a.i(f"v_add_u32 v{T1}, {L_G}, v{T1}")
    a.i("s_waitcnt lgkmcnt(0)"); a.lg = []
    stamp(a, 5, AST)
    a.i("s_barrier")
    a.i("s_setprio 3")
    LL = O + 16*5 + 10
    for rh in range(2):
        for k in range(3):
            o = k*XK + rh*2048; d = O + 16*(rh*3 + k)
            a.i(f"ds_read_b128 {v(d,4)}, v{XA} offset:{o}")
            a.i(f"ds_read_b128 {v(d+4,4)}, v{XA} offset:{o+1024}", tag=("x", rh, k))
        if rh == 0:
            for k in range(3): a.i(f"ds_read2st64_b32 {v(LL+2*k,2)}, v{XA+1} offset0:{k*XK//256} offset1:{k*XK//256+1}")
            a.i(f"ds_read2_b32 {v(VG,2)}, v{T1} offset0:0 offset1:32", tag="l")
    a.i(f"s_lshl_b32 s8, s{S_G}, 5")
    a.i(f"s_lshl_b32 s9, s{S_MU}, 2")
    a.i("s_add_u32 s8, s8, s9")
    a.i(f"s_add_u32 s8, s8, s{S_W}")
    a.i("s_lshl_b32 s8, s8, 11")
    a.i(f"s_add_u32 s8, s8, {WS_O}")
    a.i(f"s_mov_b32 s10, {f2u(2.0**-30):#x}")
    a.i(f"s_mov_b32 s11, {f2u(2.0**100):#x}")
    a.i("s_mov_b32 s12, 0x7f800000")
    for rh in range(2):
        f = O + 16*(6 + rh); d = O + 48*rh
        a.wait(lg=("x", rh, 1))
        for r in range(0, 8, 2): a.i(f"v_pk_add_f32 {v(d+r,2)}, {v(d+r,2)}, {v(d+16+r,2)}")
        a.wait(lg=("x", rh, 2))
        for r in range(0, 8, 2): a.i(f"v_pk_add_f32 {v(f+r,2)}, {v(f+r,2)}, {v(d+32+r,2)}")
        if rh == 0:
            a.wait(lg="l")
            a.i(f"v_pk_add_f32 {v(LL,2)}, {v(LL,2)}, {v(LL+2,2)}")
            a.i(f"v_pk_add_f32 {v(LL,2)}, {v(LL,2)}, {v(LL+4,2)}")
        a.i(f"v_add_f32 v{f+8}, v{f+8}, v{LL+rh}")
        for r in range(0, 8, 2): a.i(f"v_pk_add_f32 {v(f+r,2)}, {v(f+r,2)}, {v(d+r,2)}")
        a.i(f"v_cmp_le_f32 s[54:55], s10, v{f+8}")
        a.i(f"v_cmp_ge_f32 s[56:57], s11, v{f+8}")
        a.i(f"v_add_f32 v{T0}, abs(v{f}), abs(v{f+1})")
        for r in range(2, 8): a.i(f"v_add_f32 v{T0}, v{T0}, abs(v{f+r})")
        a.i("s_and_b64 s[54:55], s[54:55], s[56:57]")
        a.i(f"v_cmp_gt_f32 vcc, s12, v{T0}")
        a.i(f"v_rcp_f32 v{T0}, v{f+8}")
        a.i("s_and_b64 s[54:55], s[54:55], vcc")
        a.i("s_cmp_eq_u64 s[54:55], -1")
        a.i(f"s_cbranch_scc0 L_slow{rh}")
        a.label(f"L_ok{rh}")
        a.i(f"v_mul_f32 v{T0}, v{T0}, v{VG+rh}")
        for r in range(0, 8, 2): a.i(f"v_pk_mul_f32 {v(f+r,2)}, {v(f+r,2)}, {v(T0,2)} op_sel_hi:[1,0]")
        for j in range(4): a.i(f"v_cvt_pk_bf16_f32 v{S+4*rh+j}, v{f+2*j}, v{f+2*j+1}")
        a.i(f"v_min_u32 v{S+4*rh}, -2, v{S+4*rh}")
        a.i(f"buffer_store_dwordx4 {v(S+4*rh,4)}, v{VLIN}, {R(SWS)}, s8 offen offset:{1024*rh} sc1")
    if PRM["b3b"]: a.i("s_barrier")
    stamp(a, 6, AST)
    a.i("s_setprio 0")
    final_addr(a, 8)
    a.i("s_waitcnt vmcnt(0)"); a.vm = []
    a.i("s_barrier")
    final_stage(a, 8)
    stamp(a, 7, AST)
    stamp_dump(a, "A")
    a.i("s_endpgm")
    a.label("L_tagr")
    if PRM["tsleep"]: a.i(f"s_sleep {PRM['tsleep']}")
    a.i(f"buffer_load_dword v{T0}, v{VG}, {R(SWS)}, s{SKC} offen sc1")
    a.i("s_waitcnt vmcnt(0)"); a.vm = []
    a.i(f"v_cmp_ne_u32 vcc, s{S_TAG}, v{T0}")
    a.i("s_cbranch_vccz L_tag_ok")
    spin_tail(a, SSP, "L_tagr", "L_tag_ok")
    cnt_wait(a, VG, VG+1, C_F, 4, "L_xwait", 8)
    a.i("s_branch L_xok")
    for q in range(1, 4):
        cnt_wait(a, VC, T0, 4*q, CT[q], f"L_k{q}", 8)
        a.i(f"s_branch L_k{q}_ok")

def a_slow(a):
    KV = KVS[0]
    for rh in range(2):
        f = O + 16*(6 + rh); q = Q + 4*(6 + rh)
        SS, CC, OO, PP = S + 16, KVS[2], O, Pq
        a.label(f"L_slow{rh}")
        a.i("s_waitcnt vmcnt(0)" + (" lgkmcnt(0)" if rh == 0 else ""))
        a.i(f"s_mov_b32 s{SKO}, {WS_KV}")
        a.i(f"v_mov_b32 v{T1}, 0xff800000")
        a.label(f"L_slow{rh}_a")
        a.i(f"buffer_load_dwordx4 {v(KV,4)}, v{VLIN}, {R(SWS)}, s{SKO} offen sc1")
        a.i("s_waitcnt vmcnt(0)")
        mfma(a, SS, KV, q, "0")
        a.i("s_nop 15")
        for r in range(0, 16, 2): a.i(f"v_max3_f32 v{T1}, v{T1}, v{SS+r}, v{SS+r+1}")
        a.i(f"s_add_u32 s{SKO}, s{SKO}, {TS}")
        a.i(f"s_cmp_lt_u32 s{SKO}, {WS_KV + 64*TS}")
        a.i(f"s_cbranch_scc1 L_slow{rh}_a")
        a.i(f"v_mov_b32 v{T0}, v{T1}")
        a.i("s_nop 1")
        a.i(f"v_permlane32_swap_b32 v{T0}, v{T1}")
        a.i(f"v_max_f32 v{T1}, v{T0}, v{T1}")
        for r in range(16):
            a.i(f"v_sub_f32 v{CC+r}, 0, v{T1}")
            a.i(f"v_mov_b32 v{OO+r}, 0")
        a.i(f"s_mov_b32 s{SKO}, {WS_KV}")
        a.label(f"L_slow{rh}_b")
        run(a, kvload(a, 0))
        a.i("s_waitcnt vmcnt(0)")
        mfma(a, SS, KV, q, v(CC, 16))
        a.i("s_nop 15")
        for r in range(16): a.i(f"v_exp_f32 v{SS+r}, v{SS+r}")
        a.i("s_nop 0")
        for j in range(8): a.i(f"v_cvt_pk_bf16_f32 v{PP+j}, v{SS+2*j}, v{SS+2*j+1}")
        a.i("s_nop 1")
        mfma(a, OO, KV + 4, PP)
        mfma(a, OO, KV + 8, PP + 4)
        a.i("s_nop 15")
        a.i(f"s_add_u32 s{SKO}, s{SKO}, {TS}")
        a.i(f"s_cmp_lt_u32 s{SKO}, {WS_KV + 64*TS}")
        a.i(f"s_cbranch_scc1 L_slow{rh}_b")
        for r in range(9): a.i(f"v_mov_b32 v{f+r}, v{OO+r}")
        a.i(f"v_rcp_f32 v{T0}, v{f+8}")
        a.i("s_nop 1")
        a.i(f"s_branch L_ok{rh}")
    a.vm = []; a.lg = []

VW35, VW1K, VSW, GVC, VGG = 4, 6, 3, 12, 12
VTR_G, VTRP, VST = 224, 226, 228
VXR_G, BA1, ONE = 16, 20, 28
ACC, WF, XF, PRE, PD = 64, 32, 48, 128, 12
def g_setup(a):
    srd(a, SW1, "w1"); srd(a, SB1, "b1")
    wchunk_addr(a, VW35, 14, 3584)
    wchunk_addr(a, VW1K, 14, 1024)
    a.i(f"s_lshr_b32 s12, s{S_MU}, 1")
    a.i("s_mul_i32 s12, s12, 7")
    a.i(f"s_and_b32 s9, s{S_MU}, 1")
    a.i("s_lshl_b32 s9, s9, 2")
    a.i(f"s_add_u32 s13, s9, s{GW}")
    a.i("s_add_u32 s12, s12, s13")
    a.i("s_lshl_b32 s12, s12, 7")
    a.i(f"s_add_u32 s77, s12, {32*16*3584}")
    a.i(f"s_mul_i32 s76, s{S_J}, {4*16*3584}")
    a.i("s_add_u32 s76, s76, s12")
    a.i("v_lshlrev_b32 v14, 1, v0")
    a.i("v_cmp_gt_u32 vcc, 32, v0")
    a.i(f"v_mov_b32 v15, {BIG:#x}")
    a.i(f"v_mov_b32 v{GVC}, {L_CNT}")
    a.i("v_cndmask_b32 v11, v15, v14, vcc")
    a.i("v_mov_b32 v15, 0x3f80")
    a.i(f"v_cndmask_b32 v{ONE}, 0, v15, vcc")
    for b in (BA1, BA1+4, ONE):
        for r in range(1, 4): a.i(f"v_mov_b32 v{b+r}, 0")
    xfrag_addr(a, VXR_G, 14, 15)
    tr_addr(a, VTR_G, 14, 15, 8)
    tr_addr(a, VTRP, 14, 15, 4)
    a.i(f"s_lshl_b32 s8, s{GW}, 11")
    a.i(f"s_add_u32 s8, s8, {L_STG}")
    a.i(f"v_add_u32 v{VSW}, s8, v{VLIN}")
    a.i(f"v_add_u32 v{VST}, s8, v{VTR_G}")
    a.i(f"s_mul_i32 s14, s{GW}, {RING_W}")
    a.i(f"s_add_u32 s14, s14, {L_RING}")
    a.i(f"v_add_u32 v{VTR_G}, s14, v{VTR_G}")
    a.i(f"v_add_u32 v{VTRP}, s14, v{VTRP}")
    for r in (VTR_G, VTRP, VST): a.i(f"v_xor_b32 v{r+1}, 64, v{r}")
    a.i("v_mov_b32 v8, 1")
def w1load(a, sx):
    pre = sx < PRM["NPRE"]
    if not pre: a.i(f"s_add_u32 m0, s14, {(sx % RD)*2048}")
    a.i(f"s_add_u32 s78, s76, {16*3584}")
    wstep(a, VW35, SW1, 76, PRE+8*(sx % PD) if pre else None, ("w", sx))
    a.i("s_cmp_eq_u32 s78, s77")
    a.i("s_cselect_b32 s76, s12, s78")
def g_w1first(a, name):
    assert (PRM["D1"] <= PRM["NPRE"] < 32 and PRM["D1"] < PD) or (PRM["NPRE"] == 0 and PRM["w1pos"] == 3)
    a.i("s_cmp_eq_u32 s13, 7")
    a.i(f"s_cbranch_scc1 {name}")
    n = len(a.vm)
    for p in range(2): a.i(f"buffer_load_ushort v{BA1+4*p}, v11, {R(SB1)}, s12 offen offset:{64*p}", tag="b")
    for sx in range(PRM["D1"]): w1load(a, sx)
    a.label(name)

def g_waves(a, VGE, VXE, VXO, vmG):
    VTR, VXR, VC = VTR_G, VXR_G, GVC
    NPRE, D1, D2W, D2H, DO, ND = (PRM[k] for k in ("NPRE", "D1", "D2W", "D2H", "DO", "ND"))
    a.label("L_G123")
    a.vm = list(vmG); a.lg = []
    for r in range(32, 36): a.i(f"v_mov_b32 v{r}, 0")
    a.i(f"v_mov_b32 v14, {L_CNT}")
    a.i("ds_write_b128 v14, v[32:35]")
    a.i("ds_write_b128 v14, v[32:35] offset:16")
    g_setup(a)
    srd(a, SWS, "ws"); srd(a, SWQ, "wq")
    a.i(f"s_mov_b32 s{GSP}, {SPIN}")
    for k in range(3):
        a.i(f"s_add_u32 s8, s{GW}, {3*k - 1}")
        a.i("s_min_u32 s8, s8, 7")
        a.i(f"s_lshl_b32 s{60+k}, s8, 11") if False else None
        a.i(f"s_lshl_b32 s{52+k}, s8, 11")
        a.i(f"s_add_u32 s{52+k}, s{52+k}, {L_WQ}")
        a.i("s_lshl_b32 s8, s8, 14")
        a.i(f"s_lshl_b32 s9, s{S_J}, 16")
        a.i("s_add_u32 s8, s8, s9")
        a.i(f"s_lshl_b32 s9, s{S_MU}, 7")
        a.i(f"s_add_u32 s{64+k}, s8, s9")
    a.i("s_waitcnt lgkmcnt(0)"); a.lg = []
    a.i("s_barrier")
    if PRM["w1pos"] == 0:
        n0 = len(a.vm); g_w1first(a, "L_G_now1"); a.vm = a.vm[:n0]
    for q in range(4):
        for sl in (2*q, 2*q+1):
            a.i(f"s_add_u32 m0, s10, {L_X + sl*8192}")
            if sl:
                a.i("s_add_u32 s11, s11, 128")
                a.i("s_and_b32 s11, s11, 0x380")
            a.i(f"buffer_load_dwordx4 v{VXE}, {R(SX)}, s11 offen lds")
            a.i(f"buffer_load_dwordx4 v{VXO}, {R(SX)}, s11 offen offset:1024 lds", tag=("k", q))
        for k in range(3 if q else 0):
            a.i(f"s_add_u32 s8, s{64+k}, {q << 17}")
            a.i(f"s_add_u32 m0, s{52+k}, {q*16384}")
            a.i("s_and_b32 s8, s8, 0x7ffff")
            wstep(a, VW1K, SWQ, 8, tag=("k", q))
        if q:
            a.wait(vm=("k", q-1))
            cnt_add(a, VC, 8, 4*(q-1))
    if PRM["w1pos"] == 2:
        if PRM["w1wait"]: cnt_wait(a, VC, 14, C_T, 1, "L_G_tagw", 8)
        a.i("s_cmp_eq_u32 s13, 7")
        a.i("s_cbranch_scc0 L_G_w1")
        a.i("s_waitcnt vmcnt(0)")
        a.label("L_G_w1")
        g_w1first(a, "L_G_now1")
    a.wait(vm=("k", 3))
    cnt_add(a, VC, 8, 12)
    stamp(a, 0, 14, first=True)
    a.label("L_G_ffn1")
    a.vm = ["b"]*2 + [("w", sx) for sx in range(D1) for _ in range(2)]
    a.label("L_G_xw")
    a.i(f"ds_read_b128 v[32:35], v{VC}")
    a.i("s_waitcnt lgkmcnt(0)"); a.lg = []
    a.i("v_add_u32 v32, -5, v32")
    a.i("v_add_u32 v35, -1, v35")
    a.i("v_min3_i32 v33, v33, v34, v35")
    a.i("v_min_i32 v32, v32, v33")
    a.i("v_readfirstlane_b32 s8, v32")
    a.i("s_cmp_ge_i32 s8, 3")
    a.i("s_cbranch_scc0 L_G_xw")
    stamp(a, 14, 14)
    a.i("s_cmp_eq_u32 s13, 7")
    a.i("s_cbranch_scc1 L_G_idle")
    if PRM["w1pos"] == 3:
        a.label("L_G_kw")
        a.i("s_sleep 2")
        cnt_wait(a, VC, 14, C_K, 4, "L_G_kw1", 8)
        a.ins[-1] = Ins("    s_cbranch_scc0 L_G_kw")
        a.vm = []
        g_w1first(a, "L_G3_now1")
    a.wait(vm="b")
    for p in range(2):
        for rh in range(2): mfma(a, ACC + 32*p + 16*rh, BA1 + 4*p, ONE, "0")
    def rd1(sx):
        a.wait(vm=("w", sx))
        b = sx & 1
        if sx < NPRE:
            for p in range(2): a.i(f"ds_write_b128 v{VSW}, {v(PRE+8*(sx % PD)+4*p,4)} offset:{p*1024}")
        for p in range(2):
            o = 0 if sx < NPRE else (sx % RD)*2048
            ar = (VST if sx < NPRE else VTR) + p
            a.i(f"ds_read_b64_tr_b16 {v(WF+8*b+4*p,2)}, v{ar} offset:{o}")
            a.i(f"ds_read_b64_tr_b16 {v(WF+8*b+4*p+2,2)}, v{ar} offset:{o+512}")
        for rh in range(2):
            a.i(f"ds_read_b128 {v(XF+8*b+4*rh,4)}, v{VXR+(sx&3)} offset:{(sx>>2)*8192 + rh*4096}", tag=("r", sx))
    def ringgate():
        a.i("s_setprio 2")
        cnt_wait(a, VC, 14, C_Q, 4, a.newlabel("G_ring"), 8)
        a.i("s_setprio 0")
    a.i(f"s_setprio {PRM['gp0']}")
    rd1(0)
    for sx in range(32):
        if sx in (1, 4, 8, 16): stamp(a, {1: 16, 4: 17, 8: 18, 16: 19}[sx], 14)
        if sx + D1 < NPRE: w1load(a, sx + D1)
        if sx < 31: rd1(sx+1)
        a.wait(lg=("r", sx))
        b = sx & 1
        for p in range(2):
            for rh in range(2):
                mfma(a, ACC + 32*p + 16*rh, WF+8*b+4*p, XF+8*b+4*rh)
        if sx + D1 == NPRE and PRM['w1pos'] != 3: ringgate()
        if NPRE <= sx + D1 < 32: w1load(a, sx + D1)
    a.i("s_setprio 2")
    cnt_add(a, VC, 8, C_F)
    if NPRE >= 32: ringgate(); a.i("s_setprio 2")
    a.label("L_G_ffn1_end")
    cnt_wait(a, VC, 8, C_T, 1, "L_G_tag", S_TAG)
    stamp(a, 9, 250)
    srd(a, SW2, "w2"); srd(a, SWO, "wo"); srd(a, SB2, "b2")
    BA2 = BA1
    a.i(f"s_lshl_b32 s8, s{S_MU}, 7")
    a.i(f"s_cmp_eq_u32 s{GW}, 0")
    a.i(f"s_cselect_b32 s10, s8, {BIG:#x}")
    for p in range(2): a.i(f"buffer_load_ushort v{BA2+4*p}, v11, {R(SB2)}, s10 offen offset:{64*p}", tag="b")
    a.i(f"s_lshl_b32 s10, s{S_G}, 5")
    a.i(f"s_lshl_b32 s9, s{S_MU}, 2")
    a.i("s_add_u32 s10, s10, s9")
    a.i(f"s_add_u32 s10, s10, s{GW}")
    a.i("s_lshl_b32 s10, s10, 11")
    a.i(f"s_add_u32 s10, s10, {WS_O}")
    for r in range(4): a.i(f"v_mov_b32 v{XF+r}, -1")
    for rh in range(2): a.i(f"buffer_store_dwordx4 {v(XF,4)}, v{VLIN}, {R(SWS)}, s10 offen offset:{1024*rh} sc1")
    a.i(f"s_mul_i32 s66, s{GW}, {28*16384}")
    a.i("s_add_u32 s66, s66, s8")
    a.i(f"s_lshl_b32 s58, s{GW}, 17")
    a.i("s_add_u32 s58, s58, s8")
    a.i(f"s_and_b32 s55, s{S_J}, 3" if PRM["gpx"] == 8 else f"s_lshr_b32 s55, s{S_J}, 1")
    a.i("s_lshl_b32 s67, s55, 15")
    a.i(f"s_mul_i32 s60, s{S_J}, 7")
    if PRM["gpx"] == 4: a.i(f"s_mul_i32 s61, s{S_MU}, 7")
    else:
        a.i(f"s_and_b32 s61, s{S_MU}, 3")
        a.i("s_mul_i32 s61, s61, 14")
    a.i("s_add_u32 s60, s60, s61")
    a.i("s_lshr_b32 s60, s60, 1")
    a.i("s_sub_u32 s61, s60, 28")
    a.i("s_cselect_b32 s60, s60, s61")
    a.i("s_mov_b32 s61, s66")
    a.i(f"s_add_u32 s62, s66, {28*16384}")
    a.i("s_lshl_b32 s63, s60, 14")
    a.i("s_add_u32 s66, s66, s63")
    HR, HD = 192, 8
    def dma2(sx):
        a.i(f"s_add_u32 m0, s14, {(sx % RD)*2048}")
        if sx < 28:
            a.i("s_add_u32 s63, s66, 16384")
            wstep(a, VW1K, SW2, 66, tag=("w", sx))
            a.i("s_cmp_eq_u32 s63, s62")
            a.i("s_cselect_b32 s66, s61, s63")
        else:
            a.i("s_add_u32 s63, s58, s67")
            wstep(a, VW1K, SWO, 63, tag=("w", sx))
            a.i("s_add_u32 s67, s67, 16384")
            a.i("s_and_b32 s67, s67, 0x1ffff")
    def hload(sx):
        for rh in range(2):
            a.i(f"buffer_load_dwordx4 {v(HR + 8*(sx % HD) + 4*rh,4)}, v{VLIN}, {R(SWS)}, s9 offen offset:{1024*rh} sc1", tag=("h", sx))
        a.i("s_add_u32 s9, s9, 2048")
        a.i("s_cmp_eq_u32 s9, s65")
        a.i("s_cselect_b32 s9, s64, s9")
    VTRP2 = XF + 6
    for p in range(2): a.i(f"v_mov_b32 v{VTRP2+p}, v{VTRP+p}")
    a.i(f"s_mul_i32 s8, s{S_G}, 112")
    a.i("s_lshl_b32 s10, s8, 11")
    a.i("s_lshl_b32 s9, s12, 6")
    a.i("s_add_u32 s10, s10, s9")
    a.i(f"s_add_u32 s12, s10, {WS_H}")
    a.i("s_cmp_eq_u32 s13, 7")
    a.i("s_cselect_b32 s56, 1, 0")
    a.i("s_add_u32 s13, s12, 4096")
    a.i(f"s_mul_i32 s9, s{GW}, 28")
    a.i("s_add_u32 s9, s9, s8")
    a.i("s_lshl_b32 s9, s9, 11")
    a.i(f"s_add_u32 s64, s9, {WS_H}")
    a.i(f"s_add_u32 s65, s64, {28*2048}")
    a.i("s_lshl_b32 s9, s60, 11")
    a.i("s_add_u32 s9, s9, s64")
    a.i(f"s_lshl_b32 s11, s{S_G}, 9")
    a.i(f"s_add_u32 s11, s11, {WS_HF}")
    a.i(f"s_lshr_b32 s10, s{S_MU}, 1")
    a.i("s_lshl_b32 s10, s10, 7")
    a.i("s_add_u32 s10, s10, s11")
    a.i(f"s_and_b32 s8, s{S_MU}, 1")
    a.i("s_lshl_b32 s8, s8, 2")
    a.i(f"s_add_u32 s8, s8, s{GW}")
    a.i("s_lshl_b32 s8, s8, 2")
    a.i("s_add_u32 s57, s10, s8")
    a.i(f"s_lshl_b32 s8, s{GW}, 7")
    a.i("s_add_u32 s11, s11, s8")
    a.i("v_and_b32 v14, 7, v0")
    a.i("v_lshlrev_b32 v14, 2, v14")
    a.i("s_cmp_eq_u32 s56, 1")
    a.i("s_cbranch_scc1 L_G_noh")
    for p in range(2):
        for rh in range(2):
            t = ACC + 32*p + 16*rh
            o = 192 + 8*(2*p+rh)
            for r in range(16): a.i(f"v_max_f32 v{t+r}, 0, v{t+r}")
            for r in range(0, 16, 2): a.i(f"v_pk_mul_f32 {v(t+r,2)}, {v(t+r,2)}, {v(t+r,2)}")
            for j in range(8): a.i(f"v_cvt_pk_bf16_f32 v{o+j}, v{t+2*j}, v{t+2*j+1}")
            if PRM["hpace"] and 2*p + rh >= PRM["hpace"]: a.i(f"s_waitcnt vmcnt({2*PRM['hpace'] - 2})")
            for u in range(2):
                a.i(f"buffer_store_dwordx4 {v(o+4*u,4)}, v{VLIN}, {R(SWS)}, s{12+p} offen offset:{u*2048 + rh*1024} sc1", tag="hst")
    a.label("L_G_noh")
    a.vm = []
    for k in range(PRM["DOV"]): dma2(28 + k)
    a.i(f"s_waitcnt vmcnt({2*PRM['DOV']})")
    a.i("s_mov_b64 exec, 1")
    a.i(f"buffer_store_dword v8, off, {R(SWS)}, s57 sc1")
    a.i("s_mov_b64 exec, -1")
    for k in range(PRM["DOV"], DO): dma2(28 + k)
    for p in range(2):
        for rh in range(2): mfma(a, ACC + 32*p + 16*rh, BA2 + 4*p, ONE, "0")
    WOF, OF = 128, 192
    def rd2(sx, dst):
        a.wait(vm=[("w", sx)])
        for p in range(2):
            o = (sx % RD)*2048
            a.i(f"ds_read_b64_tr_b16 {v(dst+4*p,2)}, v{VTRP2+p} offset:{o}")
            a.i(f"ds_read_b64_tr_b16 {v(dst+4*p+2,2)}, v{VTRP2+p} offset:{o+1024}", tag=("r", sx))
    for k in range(8):
        rd2(28 + k, WOF + 8*k)
        if k + DO < 8: dma2(28 + k + DO)
        if k >= 2: a.wait(lg=("r", 28 + k - 2))
    a.wait(lg="all")
    for sx in range(D2W): dma2(sx)
    a.label("L_hpoll")
    a.i(f"buffer_load_dword v15, v14, {R(SWS)}, s11 offen sc1")
    a.i("s_waitcnt vmcnt(0)"); a.vm = []
    a.i(f"v_cmp_ne_u32 vcc, s{S_TAG}, v15")
    a.i("s_cbranch_vccz L_hok")
    spin_tail(a, GSP, "L_hpoll", "L_hok", sleep=PRM["hsleep"])
    a.label("L_hok")
    stamp(a, 10, 250)
    for sx in range(D2H): hload(sx)
    a.i(f"s_lshl_b32 s12, s{S_G}, 2")
    a.i(f"s_add_u32 s12, s12, s{GW}")
    a.i("s_lshl_b32 s12, s12, 14")
    a.i(f"s_add_u32 s12, s12, {WS_O}")
    OSO = [12, 56, 57, 13]
    a.i("s_mov_b32 s8, s12")
    for k in range(4):
        a.i(f"s_add_u32 s9, s55, {k}") if False else None
        a.i(f"s_add_u32 s11, s55, {k}")
        a.i("s_and_b32 s11, s11, 3")
        a.i("s_lshl_b32 s11, s11, 12")
        a.i(f"s_add_u32 s{OSO[k]}, s8, s11")
    final_addr(a, 8)
    a.i("v_and_b32 v14, 31, v0")
    a.i("v_lshlrev_b32 v3, 2, v14")
    a.i(f"v_add_u32 v3, {L_G}, v3")
    a.i(f"v_mul_u32_u24 v14, {PITCH}, v14")
    a.i("v_lshrrev_b32 v15, 5, v0")
    a.i("v_lshl_add_u32 v14, v15, 4, v14")
    a.i("v_add_u32 v14, s14, v14")
    a.i("s_setprio 0")
    NM = 28 - ND
    def step2(sx):
        if sx + 1 < 28 and sx + 1 != NM: rd2(sx+1, WF + 8*((sx+1) & 1))
        a.wait(vm=("h", sx), lg=("r", sx))
        b = sx & 1
        for p in range(2):
            for rh in range(2):
                mfma(a, ACC + 32*p + 16*rh, WF+8*b+4*p, HR + 8*(sx % HD) + 4*rh)
    if NM: rd2(0, WF)
    for sx in range(28):
        if sx < NM: step2(sx)
        else: a.wait(vm=[("w", sx), ("h", sx)])
        if sx + D2H < 28: hload(sx + D2H)
        if sx + D2W < 28: dma2(sx + D2W)
    stamp(a, 11, 48)
    a.i("s_barrier")
    if PRM["b3b"]: a.i("s_barrier")
    a.i(f"ds_read2_b32 {v(VGG,2)}, v3 offset0:0 offset1:32", tag="g")
    if ND: rd2(NM, WF + 8*(NM & 1))
    for sx in range(NM, 28): step2(sx)
    def oload(rh):
        for k in range(8):
            a.i(f"buffer_load_dwordx4 {v(OF + 32*rh + 4*k,4)}, v{VLIN}, {R(SWS)}, s{OSO[k>>1]} offen offset:{(k&1)*2048 + rh*1024} sc1", tag=("o", rh))
    def ocheck(rh):
        b = OF + 32*rh
        a.i(f"v_max3_u32 v20, v{b}, v{b+4}, v{b+8}")
        a.i(f"v_max3_u32 v21, v{b+12}, v{b+16}, v{b+20}")
        a.i(f"v_max3_u32 v20, v20, v{b+24}, v{b+28}")
        a.i("v_max_u32 v20, v20, v21")
        a.i("v_cmp_eq_u32 vcc, -1, v20")
    if PRM["osleep"]: a.i(f"s_sleep {PRM['osleep']}")
    a.i("s_setprio 2")
    a.wait(lg="all")
    oload(0); oload(1)
    for rh in range(2): a.i(f"v_sub_f32 v{16+2*rh}, 1.0, v{VGG+rh}")
    for rh in range(2):
        for p in range(2):
            t = ACC + 32*p + 16*rh
            for r in range(0, 16, 2): a.i(f"v_pk_mul_f32 {v(t+r,2)}, {v(t+r,2)}, {v(16+2*rh,2)} op_sel_hi:[1,0]")
    def pwrite(rh, p, q):
        a.i(f"ds_write_b128 v14, {v(ACC + 32*p + 16*rh + 4*q,4)} offset:{rh*32*PITCH + (32*p + 8*q)*4}")
    for rh in range(2):
        a.wait(vm=("o", rh))
        ocheck(rh)
        a.i(f"s_cbranch_vccnz L_or{rh}")
        a.label(f"L_ook{rh}")
        if rh == 0: stamp(a, 12, 22)
        for k in range(8):
            for p in range(2):
                mfma(a, ACC + 32*p + 16*rh, WOF + 8*k + 4*p, OF + 32*rh + 4*k)
                if rh == 1 and k >= 4: pwrite(0, p, k - 4)
    a.i("s_nop 8")
    for p in range(2):
        for q in range(4): pwrite(1, p, q)
    a.i("s_waitcnt lgkmcnt(0)"); a.lg = []
    stamp(a, 13, 22)
    a.i("s_barrier")
    final_stage(a, 8)
    a.i(f"s_lshl_b32 s8, s{S_G}, 6")
    a.i(f"s_lshl_b32 s9, s{S_MU}, 3")
    a.i("s_add_u32 s8, s8, s9")
    a.i(f"s_add_u32 s8, s8, s{S_W}")
    a.i("s_cmp_lg_u32 s8, 5")
    a.i("s_cbranch_scc1 L_notag")
    a.i(f"v_mov_b32 v4, s{S_TAG}")
    a.i(f"s_mov_b32 s8, {WS_NONCE}")
    a.i("s_mov_b64 exec, 1")
    a.i(f"buffer_store_dword v4, off, {R(SWS)}, s8 sc1")
    a.label("L_notag")
    stamp(a, 7, 250)
    stamp_dump(a, "G")
    a.i("s_endpgm")
    for rh in range(2):
        a.label(f"L_or{rh}")
        a.i("s_waitcnt vmcnt(0)")
        a.label(f"L_or{rh}_a")
        oload(rh)
        a.i("s_waitcnt vmcnt(0)"); a.vm = []
        ocheck(rh)
        a.i(f"s_cbranch_vccz L_ook{rh}")
        spin_tail(a, GSP, f"L_or{rh}_a", f"L_ook{rh}")
    a.label("L_G_idle")
    a.i("s_waitcnt vmcnt(0)")
    cnt_add(a, VC, 8, C_F)
    a.label("L_G_idle_a")
    a.i("s_sleep 8")
    a.i(f"ds_read_b32 v14, v{VC} offset:{C_F}")
    a.i("s_waitcnt lgkmcnt(0)")
    a.i("v_readfirstlane_b32 s8, v14")
    a.i("s_cmp_ge_u32 s8, 4")
    a.i("s_cbranch_scc0 L_G_idle_a")
    a.i("s_branch L_G_ffn1_end")

HEAD = open("cdna_kernels/" + NAME + ".s.ref").read().split("; Override launch")[0]
def kd(name, vg=256):
    return f""".section .rodata,"a"
.p2align 6
.amdhsa_kernel {name}
  .amdhsa_next_free_vgpr {vg}
  .amdhsa_next_free_sgpr 102
  .amdhsa_accum_offset {vg}
  .amdhsa_group_segment_fixed_size 0
  .amdhsa_kernarg_size 112
  .amdhsa_user_sgpr_count 2
  .amdhsa_user_sgpr_kernarg_segment_ptr 1
  .amdhsa_system_sgpr_workgroup_id_x 1
.end_amdhsa_kernel
"""
def build(kernels):
    s_ = HEAD
    if len(kernels) == 1:
        n, blk, lds, body = kernels[0]
        s_ += f"; @launch grid=(256,1,1) block=({blk},1,1) lds={lds}\n"
    else:
        for n, blk, lds, body in kernels:
            s_ += f"; @launch kernel={n} grid=(256,1,1) block=({blk},1,1) lds={lds}\n"
    s_ += '.amdgcn_target "amdgcn-amd-amdhsa--gfx950"\n'
    for n, blk, lds, body in kernels:
        s_ += f".text\n.globl {n}\n.p2align 8\n.type {n},@function\n{n}:\n{body}" + kd(n)
    return s_

if __name__ == "__main__":
    out = sys.argv[1]
    OPT = set(sys.argv[2:])
    STAMP = "stamp" in OPT
    ks = [(NAME + "_kernel", 512, LDS_BYTES, None)]
    for o in OPT:
        if "=" in o and o.split("=")[0] in PRM: PRM[o.split("=")[0]] = int(o.split("=")[1])
        if o.startswith("only="):
            STAMP = True; ONLY = int(o[5:])
            ks.append(("wait_kernel", 256, 1024, waitk(ONLY)))
    ks[0] = ks[0][:3] + (kernel(),)
    open(out, "w").write(build(ks))
```

```python
import sys, math, struct
from asmgen import *

NAME = "gated_mix__grouped_kv_mqa__dense_activation_squared_relu__prompt"
TS = 2304
WS_KV = 0
WS_NONCE = 0x2c000
WS_HF = 0x28000
WS_O  = 0x40000
WS_H  = 0x240000
WS_END = WS_H + 32*112*2048
L_X, L_WQ, L_RING, RING_W, RD = 0, 65536, 65536, 17408, 8
L_WKV = 135168; L_STG = L_WKV; L_QF = L_WKV + 8192
L_G = 151552; L_GW = L_G + 1024; L_CNT = L_G + 256
C_Q, C_F, C_T, C_K = 16, 20, 24, 28
CT = [8, 3, 3, 4]
LDS_BYTES = 163840
XO, XK = 13824, 4608
QSCALE = 0.25 * math.log2(math.e)
def f2u(x): return struct.unpack("<I", struct.pack("<f", x))[0]
S_W, S_G, S_MU, S_J, S_M4, S_TAG = 3, 4, 5, 15, 58, 59
P = dict(x=16, wq=18, wk=20, wv=22, wo=24, bx=26, w1=28, b1=30, w2=32, b2=34, gate=36, out=38, dbg=40, ws=42)
SZ = dict(x=2048*1024, wq=512*1024, wo=512*1024, w1=512*3584, b1=3584, w2=1792*1024, b2=1024, gate=1024, out=2048*1024, dbg=256, ws=WS_END)
BIG = 0x40000000
SPIN = 8000
STAMP = False; ONLY = None; OPT = set()
PRM = dict(w1pos=3, apf=0, w1wait=1, tagat=8, kvat=28, ckpos=0, wqlate=0, wqt=1, w1t=0, NPRE=0, gp0=0, b3b=1, D1=4, D2W=3, D2H=2, DO=3, DOV=0, hpace=3, ost=0, ND=8, hsleep=4, oat=26, isleep=4, gpx=8, tsleep=0)
WS_STAMP = 0xC00000
SX, SWQ, SWKV, SW1, SB1, SGT, SWS, SDBG, SW2, SWO, SOUT = 44, 48, 52, 56, 60, 64, 68, 72, 76, 80, 84
SB2 = 48
VLIN = 2
PITCH = 272

def srd(a, d, name):
    a.i(f"s_mov_b32 s{d}, s{P[name]}")
    a.i(f"s_mov_b32 s{d+1}, s{P[name]+1}")
    a.i(f"s_mov_b32 s{d+2}, {SZ[name]:#x}")
    a.i(f"s_mov_b32 s{d+3}, 0x20000")
def R(d): return f"s[{d}:{d+3}]"

ST_A = {0: 100, 1: 88, 2: 90, 3: 92, 4: 94, 5: 96, 6: 98, 7: 44}
CY_A = {4: 46, 5: 72}
ST_G = {0: 100, 15: 88, 8: 90, 14: 92, 16: 94, 17: 96, 18: 98, 19: 26, 9: 18, 10: 20, 11: 22, 12: 72, 13: 74, 7: 44}
NST = 20
def stamping(idx): return STAMP and (ONLY is None or idx == ONLY)
def stamp_init(a, role):
    if not STAMP: return
    for i, r in (ST_A if role == "A" else ST_G).items():
        if r >= 88 and i: a.i(f"s_mov_b32 s{r}, -1")
def stamp(a, idx, role, first=False):
    if not stamping(idx) or first: return
    role = "A" if role == AST else "G"
    r = (ST_A if role == "A" else ST_G)[idx]
    a.i(f"s_memrealtime s[{r}:{r+1}]")
    if role == "A" and idx in CY_A: a.i(f"s_memtime s[{CY_A[idx]}:{CY_A[idx]+1}]")
def stamp_dump(a, role):
    if not STAMP: return
    T = ST_A if role == "A" else ST_G
    a.i("s_waitcnt vmcnt(0) lgkmcnt(0)")
    a.i(f"s_mov_b32 s{SWS+2}, 0x1000000")
    a.i("s_lshl_b32 s8, s2, 3")
    a.i(f"s_add_u32 s8, s8, s{S_W}")
    a.i("s_lshl_b32 s8, s8, 3")
    a.i(f"s_add_u32 s8, s8, {WS_STAMP + 0x10000}")
    a.i("s_mov_b64 exec, 1")
    for idx in range(NST):
        if stamping(idx):
            a.i(f"v_mov_b32 v{2*idx}, {'s%d' % T[idx] if idx in T else -1}")
            a.i(f"v_mov_b32 v{2*idx+1}, {'s%d' % CY_A[idx] if role == 'A' and idx in CY_A else 0}")
            a.i(f"s_add_u32 s9, s8, {idx*16384}")
            a.i(f"buffer_store_dwordx2 v[{2*idx}:{2*idx+1}], off, {R(SWS)}, s9")
def waitk(idx, ticks=6000):
    a = Asm()
    a.i("s_cmp_ge_u32 s2, 1"); a.i("s_cbranch_scc1 L_w_end")
    a.i("s_load_dwordx2 s[42:43], s[0:1], 104")
    a.i("v_lshlrev_b32 v1, 6, v0")
    a.i("v_mov_b32 v2, 0")
    a.i("ds_write_b32 v2, v2")
    a.i("s_waitcnt lgkmcnt(0)")
    a.i("s_barrier")
    a.i("s_mov_b32 s92, s42"); a.i("s_mov_b32 s93, s43"); a.i("s_mov_b32 s94, 0x1000000"); a.i("s_mov_b32 s95, 0x20000")
    a.i(f"s_mov_b32 s10, {WS_STAMP + 0x10000 + idx*16384}")
    for k in range(4): a.i(f"buffer_load_dwordx4 v[{8+4*k}:{11+4*k}], v1, s[92:95], s10 offen offset:{16*k}")
    a.i("s_waitcnt vmcnt(0)")
    for k in range(8):
        a.i(f"v_add_u32 v3, 1, v{8+2*k}")
        a.i("ds_max_u32 v2, v3")
        a.i("s_waitcnt lgkmcnt(0)")
    a.i("s_barrier")
    a.i("ds_read_b32 v3, v2")
    a.i("s_waitcnt lgkmcnt(0)")
    a.i("v_readfirstlane_b32 s11, v3")
    a.i("s_mov_b32 s12, 20000")
    a.label("L_w_loop")
    a.i("s_memrealtime s[8:9]")
    a.i("s_waitcnt lgkmcnt(0)")
    a.i("s_sub_u32 s8, s8, s11")
    a.i(f"s_cmp_ge_u32 s8, {ticks}")
    a.i("s_cbranch_scc1 L_w_end")
    a.i("s_sub_u32 s12, s12, 1")
    a.i("s_cmp_lg_u32 s12, 0")
    a.i("s_cbranch_scc1 L_w_loop")
    a.label("L_w_end"); a.i("s_endpgm")
    return a.finish()

def mfma(a, d, A, B, C=None):
    c = v(d, 16) if C is None else C
    a.i(f"v_mfma_f32_32x32x16_bf16 {v(d,16)}, {v(A,4)}, {v(B,4)}, {c}")
def mfma16(a, d, A, B, C=None):
    c = v(d, 4) if C is None else C
    a.i(f"v_mfma_f32_16x16x32_bf16 {v(d,4)}, {v(A,4)}, {v(B,4)}, {c}")

def tr_addr(a, dst, t0, t1, rowmul_h):
    a.i(f"v_lshrrev_b32 v{t0}, 5, v0")
    a.i(f"v_mul_u32_u24 v{t0}, {rowmul_h}, v{t0}")
    a.i(f"v_bfe_u32 v{t1}, v0, 2, 2")
    a.i(f"v_add_u32 v{t0}, v{t0}, v{t1}")
    a.i(f"v_lshlrev_b32 v{dst}, 7, v{t0}")
    a.i(f"v_and_b32 v{t1}, 3, v0")
    a.i(f"v_lshl_add_u32 v{dst}, v{t1}, 3, v{dst}")
    a.i(f"v_bfe_u32 v{t1}, v0, 4, 1")
    a.i(f"v_lshl_add_u32 v{dst}, v{t1}, 5, v{dst}")
    a.i(f"v_bfe_u32 v{t1}, v0, 3, 1")
    a.i(f"v_lshl_add_u32 v{dst}, v{t1}, 6, v{dst}")

def xfrag_addr(a, dst, t0, t1):
    a.i(f"v_bfe_u32 v{t0}, v0, 1, 3")
    a.i(f"v_lshrrev_b32 v{t1}, 5, v0")
    a.i(f"v_xor_b32 v{t0}, v{t0}, v{t1}")
    a.i(f"v_and_b32 v{t1}, 31, v0")
    a.i(f"v_lshlrev_b32 v{t1}, 7, v{t1}")
    for q in range(4):
        a.i(f"v_xor_b32 v{dst+q}, {2*q}, v{t0}")
        a.i(f"v_lshl_add_u32 v{dst+q}, v{dst+q}, 4, v{t1}")

def wchunk_addr(a, dst, t0, pitch):
    a.i(f"v_lshrrev_b32 v{t0}, 3, v0")
    a.i(f"v_mul_u32_u24 v{dst}, {pitch}, v{t0}")
    a.i(f"v_bfe_u32 v{t0}, v0, 4, 1")
    a.i(f"v_lshlrev_b32 v{t0}, 2, v{t0}")
    a.i(f"v_xor_b32 v{t0}, v{t0}, v0")
    a.i(f"v_and_b32 v{t0}, 7, v{t0}")
    a.i(f"v_lshl_add_u32 v{dst}, v{t0}, 4, v{dst}")
    a.i(f"v_add_u32 v{dst+1}, {8*pitch - 1024}, v{dst}")
def wstep(a, va, srd_, so, dst=None, tag=None):
    if dst is None:
        a.i(f"buffer_load_dwordx4 v{va}, {R(srd_)}, s{so} offen lds", tag=tag)
        a.i(f"buffer_load_dwordx4 v{va+1}, {R(srd_)}, s{so} offen offset:1024 lds", tag=tag)
    else:
        a.i(f"buffer_load_dwordx4 {v(dst,4)}, v{va}, {R(srd_)}, s{so} offen", tag=tag)
        a.i(f"buffer_load_dwordx4 {v(dst+4,4)}, v{va+1}, {R(srd_)}, s{so} offen offset:1024", tag=tag)

def run(a, items):
    for t in items: t() if callable(t) else a.i(t)

def spin_tail(a, cnt, again, done, sleep=0):
    a.i(f"s_sub_u32 s{cnt}, s{cnt}, 1")
    a.i(f"s_cmp_eq_u32 s{cnt}, 0")
    a.i(f"s_cbranch_scc1 {done}")
    if sleep: a.i(f"s_sleep {sleep}")
    a.i(f"s_branch {again}")

def cnt_add(a, vc, vone, off):
    a.i("s_mov_b64 exec, 1")
    a.i(f"ds_add_u32 v{vc}, v{vone} offset:{off}")
    a.i("s_mov_b64 exec, -1")
def cnt_wait(a, vc, vt, off, n, name, st, extra=None):
    a.label(name)
    a.i(f"ds_read_b32 v{vt}, v{vc} offset:{off}")
    if extra: extra()
    a.i("s_waitcnt lgkmcnt(0)"); a.lg = []
    a.i(f"v_readfirstlane_b32 s{st}, v{vt}")
    a.i(f"s_cmp_ge_u32 s{st}, {n}")
    a.i(f"s_cbranch_scc0 {name}")

def xpairs(a, VE, VO, sbase, st, tagf):
    for sl in range(8):
        a.i(f"s_add_u32 m0, s{sbase}, {L_X + sl*8192}")
        if sl:
            a.i(f"s_add_u32 s{st}, s{st}, 128")
            a.i(f"s_and_b32 s{st}, s{st}, 0x380")
        a.i(f"buffer_load_dwordx4 v{VE}, {R(SX)}, s{st} offen lds")
        a.i(f"buffer_load_dwordx4 v{VO}, {R(SX)}, s{st} offen offset:1024 lds", tag=tagf(sl))

def final_stage(a, T):
    RA, RB, SO = T, T+1, T+2
    B = T + 4
    for w in range(4):
        for hf in range(2):
            a.i(f"ds_read_b128 {v(B + w*8 + 4*hf,4)}, v{RA if w < 2 else RB} offset:{(w&1)*RING_W + 16*hf}", tag=("p", w))
    a.wait(lg=("p", 1))
    for r in range(0, 8, 2): a.i(f"v_pk_add_f32 {v(B+r,2)}, {v(B+r,2)}, {v(B+8+r,2)}")
    a.wait(lg=("p", 3))
    for r in range(0, 8, 2): a.i(f"v_pk_add_f32 {v(B+16+r,2)}, {v(B+16+r,2)}, {v(B+24+r,2)}")
    for r in range(0, 8, 2): a.i(f"v_pk_add_f32 {v(B+r,2)}, {v(B+r,2)}, {v(B+16+r,2)}")
    for j in range(4): a.i(f"v_cvt_pk_bf16_f32 v{B+8+j}, v{B+2*j}, v{B+2*j+1}")
    a.i(f"buffer_store_dwordx4 {v(B+8,4)}, v{SO}, {R(SOUT)}, s10 offen" + ["", " sc1", " nt", " sc0 sc1", " sc0 sc1 nt"][PRM["ost"]])
def final_addr(a, T):
    RA, RB, SO, t = T, T+1, T+2, T+3
    a.i(f"v_lshrrev_b32 v{SO}, 3, v0")
    a.i(f"s_lshl_b32 s10, s{S_W}, 3")
    a.i(f"v_add_u32 v{SO}, s10, v{SO}")
    a.i(f"v_and_b32 v{t}, 7, v0")
    a.i(f"v_mul_u32_u24 v{RA}, {PITCH}, v{SO}")
    a.i(f"v_lshl_add_u32 v{RA}, v{t}, 5, v{RA}")
    a.i(f"v_add_u32 v{RA}, {L_RING}, v{RA}")
    a.i(f"v_add_u32 v{RB}, {2*RING_W}, v{RA}")
    a.i(f"v_lshlrev_b32 v{SO}, 10, v{SO}")
    a.i(f"v_lshl_add_u32 v{SO}, v{t}, 4, v{SO}")
    a.i(f"s_lshl_b32 s10, s{S_G}, 16")
    a.i(f"s_lshl_b32 s11, s{S_MU}, 7")
    a.i("s_add_u32 s10, s10, s11")
    srd(a, SOUT, "out")

VV1, VV0, VG, T0, T1 = 1, 3, 4, 6, 7
Q, S, Pq, F, O = 8, 64, 96, 104, 128
KVS = [40, 52, 104, 116]
AST = 94
SKO, SKL, SIT, SSP, SKC = 62, 63, 64, 65, 66
VW1K_A = 12

def wq_round(a, r):
    a.i(f"s_add_u32 s10, s9, {r << 17}")
    a.i("s_and_b32 s10, s10, 0x7ffff")
    a.i("s_add_u32 s11, s10, 16384")
    for e in range(2):
        a.i(f"s_add_u32 m0, s8, {r*16384 + e*2048}")
        wstep(a, VW1K_A, SWQ, 10+e, tag=("wq", r))

def kernel():
    a = Asm()
    if STAMP: a.i("s_memrealtime s[100:101]")
    a.i("s_cmp_ge_u32 s2, 256")
    a.i("s_cbranch_scc1 L_end")
    a.i("s_load_dwordx16 s[16:31], s[0:1], 0")
    a.i("s_load_dwordx8 s[32:39], s[0:1], 64")
    a.i("s_load_dwordx4 s[40:43], s[0:1], 96")
    a.i("s_getpc_b64 s[44:45]")
    a.label("L_pc")
    a.i("s_mov_b32 s46, L_code_end-L_pc")
    a.i("s_mov_b32 s47, 0x20000")
    a.i("s_lshr_b32 s7, s2, 3")
    a.i("s_lshl_b32 s6, s7, 11")
    a.i("v_lshlrev_b32 v1, 2, v0")
    a.i("buffer_load_dword v255, v1, s[44:47], s6 offen ; touch")
    a.i("v_lshrrev_b32 v1, 6, v0")
    a.i("v_and_b32 v0, 63, v0")
    a.i(f"v_readfirstlane_b32 s{S_W}, v1")
    if PRM["gpx"] == 4:
        a.i("s_and_b32 s6, s2, 7")
        a.i(f"s_and_b32 s{S_MU}, s7, 7")
        a.i(f"s_lshr_b32 s{S_J}, s7, 3")
        a.i("s_lshl_b32 s6, s6, 2")
        a.i(f"s_add_u32 s{S_G}, s6, s{S_J}")
        a.i(f"s_lshl_b32 s{S_J}, s{S_J}, 1")
    else:
        a.i("s_and_b32 s6, s2, 1")
        a.i("s_lshl_b32 s6, s6, 2")
        a.i(f"s_and_b32 s{S_MU}, s7, 3")
        a.i(f"s_add_u32 s{S_MU}, s{S_MU}, s6")
        a.i(f"s_lshr_b32 s{S_J}, s7, 2")
        a.i("s_and_b32 s6, s2, 6")
        a.i("s_lshl_b32 s6, s6, 2")
        a.i(f"s_add_u32 s{S_G}, s6, s{S_J}")
    a.i(f"v_lshlrev_b32 v{VLIN}, 4, v0")
    a.i(f"s_cmp_ge_u32 s{S_W}, 4")
    a.i("s_cbranch_scc1 L_G")
    vm0 = list(a.vm)
    stamp_init(a, "A")
    wchunk_addr(a, VW1K_A, 14, 1024)
    a.i(f"s_lshl_b32 s9, s{S_W}, 15")
    a.i(f"s_lshl_b32 s10, s{S_MU}, 7")
    a.i("s_add_u32 s9, s9, s10")
    a.i(f"s_lshl_b32 s10, s{S_J}, 16")
    a.i("s_add_u32 s9, s9, s10")
    a.i(f"s_lshl_b32 s8, s{S_W}, 12")
    a.i(f"s_add_u32 s8, s8, {L_WQ}")
    a.i("s_waitcnt lgkmcnt(0)")
    srd(a, SWQ, "wq")
    if PRM["wqt"]:
        a.i("s_lshl_b32 s10, s2, 2")
        a.i(f"s_add_u32 s10, s10, s{S_W}")
        a.i("s_lshl_b32 s10, s10, 9")
        a.i("s_mov_b32 exec_hi, 0")
        a.i(f"buffer_load_dwordx4 v[104:107], v{VLIN}, {R(SWQ)}, s10 offen")
        a.i("s_mov_b32 exec_hi, -1")
    if PRM["w1t"]:
        srd(a, SW1, "w1")
        a.i("s_lshl_b32 s10, s2, 2")
        a.i(f"s_add_u32 s10, s10, s{S_W}")
        a.i("s_mul_i32 s10, s10, 1792")
        a.i("v_lshlrev_b32 v14, 6, v0")
        a.i("s_mov_b64 exec, 0xfffffff")
        a.i(f"buffer_load_dword v108, v14, {R(SW1)}, s10 offen")
        a.i("s_mov_b64 exec, -1")
    if not PRM["wqlate"]: wq_round(a, 0)
    vmA = list(a.vm)
    a.i("s_branch L_A")
    a.label("L_G")
    stamp_init(a, "G")
    if STAMP: a.i("s_waitcnt lgkmcnt(0)"); a.i("s_mov_b32 s26, -1")
    a.vm = list(vm0)
    VGE, VXE, VXO = 8, 9, 10
    a.i("v_bfe_u32 v14, v0, 4, 2")
    a.i("v_and_b32 v15, 7, v0")
    a.i("v_xor_b32 v14, v14, v15")
    a.i(f"v_lshlrev_b32 v{VGE}, 4, v14")
    a.i("v_lshrrev_b32 v14, 3, v0")
    a.i(f"s_sub_u32 s6, s{S_W}, 4")
    a.i(f"s_add_u32 s12, s{S_MU}, s6")
    a.i("s_and_b32 s12, s12, 3")
    a.i(f"s_lshl_b32 s7, s{S_G}, 2")
    a.i("s_add_u32 s7, s7, s12")
    a.i("s_lshl_b32 s7, s7, 4")
    a.i("v_add_u32 v14, s7, v14")
    a.i(f"v_lshl_add_u32 v{VXE}, v14, 10, v{VGE}")
    a.i(f"v_xor_b32 v{VXO}, 64, v{VXE}")
    a.i(f"v_add_u32 v{VXO}, {8192-1024}, v{VXO}")
    a.i("s_lshl_b32 s10, s12, 11")
    a.i(f"s_lshl_b32 s11, s{S_J}, 7")
    a.i(f"s_lshl_b32 s9, s{S_J}, 11")
    a.i("s_setprio 2")
    a.i("s_cmp_lg_u32 s6, 0")
    a.i("s_cbranch_scc1 L_G123")
    vmG = list(a.vm)
    g0_front(a, VXE, VXO)
    a_waves(a, vmA)
    g_waves(a, VGE, VXE, VXO, vmG)
    a.label("L_end")
    a.i("s_endpgm")
    a_slow(a)
    a.label("L_code_end")
    return a.finish()

GW, GSP = 6, 99
def kv_addr(a):
    a.i(f"s_and_b32 s7, s{S_MU}, 3")
    a.i(f"s_cmp_ge_u32 s{S_MU}, 4")
    a.i("s_cselect_b32 s8, 8, 9")
    a.i("s_cselect_b32 s13, 9, 8")
    a.i("s_cselect_b32 s60, 1024, 0")
    a.i("s_and_b32 s61, s7, 1")
    a.i("s_lshl_b32 s61, s61, s13")
    a.i("s_add_u32 s60, s60, s61")
    a.i(f"s_lshl_b32 s61, s{S_G}, 1")
    a.i("s_lshr_b32 s13, s7, 1")
    a.i("s_add_u32 s61, s61, s13")
    a.i(f"s_mul_i32 s61, s61, {TS}")
    a.i("s_add_u32 s60, s60, s61")
    a.i("v_bfe_u32 v15, v0, 4, 1")
    a.i("v_lshlrev_b32 v15, s8, v15")
    a.i("v_and_b32 v24, 15, v0")
    a.i("v_lshl_add_u32 v23, v24, 4, v15")
def g0_front(a, VXE, VXO):
    a.i("s_setprio 3")
    kv_addr(a)
    a.i("v_cmp_gt_u32 vcc, 32, v0")
    a.i("v_mov_b32 v36, 0x3f803f80")
    a.i("s_sub_u32 s13, s61, s60")
    a.i("s_add_u32 s13, s13, 2048")
    a.i("v_mov_b32 v37, s13")
    a.i("v_cndmask_b32 v38, v37, v23, vcc")
    for r in range(32, 36): a.i(f"v_cndmask_b32 v{r}, v36, -1, vcc")
    a.i(f"s_lshr_b32 s8, s{S_MU}, 2")
    a.i("s_lshl_b32 s8, s8, 1")
    a.i("s_and_b32 s7, s7, 1")
    a.i("s_add_u32 s8, s8, s7")
    a.i("s_lshl_b32 s8, s8, 2")
    a.i("s_add_u32 s61, s61, s8")
    a.i(f"s_mov_b32 s8, {WS_NONCE}")
    a.i("s_waitcnt lgkmcnt(0)")
    srd(a, SWS, "ws")
    a.i(f"buffer_load_dword v40, off, {R(SWS)}, s8 sc1")
    a.i(f"buffer_store_dwordx4 v[32:35], v38, {R(SWS)}, s60 offen sc1", tag="mark")
    srd(a, SX, "x")
    a.i(f"s_cmp_ge_u32 s{S_MU}, 4")
    a.i(f"s_cselect_b32 s{SWKV}, s{P['wv']}, s{P['wk']}")
    a.i(f"s_cselect_b32 s{SWKV+1}, s{P['wv']+1}, s{P['wk']+1}")
    a.i(f"s_mov_b32 s{SWKV+2}, 16384")
    a.i(f"s_mov_b32 m0, {L_WKV}")
    a.i(f"s_mov_b32 s{SWKV+3}, 0x20000")
    def wpair(q):
        if q:
            a.i(f"s_mov_b32 m0, {L_WKV + q*2048}")
            a.i("s_add_u32 s9, s9, 2048")
            a.i("s_and_b32 s9, s9, 0x3fff")
        for i in range(2):
            a.i(f"buffer_load_dwordx4 v{VLIN}, {R(SWKV)}, s9 offen offset:{i*1024} lds", tag=("wk", 2*q+i))
    wpair(0)
    xpairs(a, VXE, VXO, 10, 11, lambda sl: ("x", sl))
    for r in range(36, 40): a.i(f"v_mov_b32 v{r}, 0")
    a.i(f"v_mov_b32 v14, {L_CNT}")
    a.i("ds_write_b128 v14, v[36:39]")
    a.i("ds_write_b128 v14, v[36:39] offset:16")
    a.wait(vm="mark")
    a.i("v_add_u32 v40, 0x9e3779b9, v40")
    a.i("s_mov_b64 exec, 1")
    a.i(f"buffer_store_dword v40, off, {R(SWS)}, s61 offset:{2048+128} sc1")
    a.i(f"ds_write_b32 v14, v40 offset:{C_T}")
    a.i("s_mov_b64 exec, -1")
    wpair(1)
    srd(a, SGT, "gate")
    a.i(f"s_lshl_b32 s8, s{S_J}, 7")
    a.i(f"v_add_u32 v14, s8, v{VLIN}")
    a.i(f"s_mov_b32 m0, {L_GW}")
    a.i("v_and_b32 v14, 0x3ff, v14")
    a.i(f"buffer_load_dwordx4 v14, {R(SGT)}, 0 offen lds")
    for q in range(2, 8): wpair(q)
    if "fst" in OPT: stamp(a, 16, 14)
    a.i("s_waitcnt lgkmcnt(0)"); a.lg = []
    a.i("s_barrier")
    XA, TA = 20, 22
    a.i("v_bfe_u32 v14, v0, 1, 3")
    a.i("v_lshrrev_b32 v15, 4, v0")
    a.i("v_xor_b32 v14, v14, v15")
    a.i("v_and_b32 v24, 15, v0")
    a.i("s_lshl_b32 s7, s12, 4")
    a.i("v_add_u32 v25, s7, v24")
    a.i("v_lshlrev_b32 v25, 7, v25")
    a.i(f"v_lshl_add_u32 v{XA}, v14, 4, v25")
    a.i(f"v_xor_b32 v{XA+1}, 64, v{XA}")
    a.i("v_bfe_u32 v14, v0, 2, 2")
    a.i("v_lshl_add_u32 v14, v15, 3, v14")
    a.i(f"v_lshlrev_b32 v{TA}, 5, v14")
    a.i("v_and_b32 v14, 3, v0")
    a.i(f"v_lshl_add_u32 v{TA}, v14, 3, v{TA}")
    a.i(f"v_add_u32 v{TA}, {L_WKV}, v{TA}")
    a.i(f"s_mov_b32 s{GSP}, {SPIN}")
    for r in range(34, 36): a.i(f"v_mov_b32 v{r}, 0")
    a.i(f"v_mov_b32 v14, {L_CNT}")
    a.i("v_mov_b32 v15, 1")
    a.i(f"s_cmp_ge_u32 s{S_MU}, 4")
    a.i("s_cbranch_scc1 L_G0_V")
    vm1 = list(a.vm); lg1 = list(a.lg)
    for orient in range(2):
        if orient:
            a.label("L_G0_V"); a.vm = list(vm1); a.lg = list(lg1)
        NB_ = 4
        def rd(sx):
            b = 64 + 8*(sx % NB_)
            a.wait(vm=[("wk", sx), ("x", sx >> 1)])
            if "fst" in OPT and sx in (0, 4): stamp(a, 17 + sx//4, 14)
            if sx == 4: cnt_add(a, 14, 15, 0)
            a.i(f"ds_read_b64_tr_b16 {v(b,2)}, v{TA} offset:{sx*1024}")
            a.i(f"ds_read_b64_tr_b16 {v(b+2,2)}, v{TA} offset:{sx*1024+128}")
            a.i(f"ds_read_b128 {v(b+4,4)}, v{XA + (sx&1)} offset:{(sx>>1)*8192}", tag=("c", sx))
        for sx in range(NB_): rd(sx)
        for sx in range(16):
            a.wait(lg=("c", sx))
            b = 64 + 8*(sx % NB_)
            mfma16(a, 28, *((b, b+4) if orient == 0 else (b+4, b)), "0" if sx == 0 else None)
            if sx + NB_ < 16: rd(sx + NB_)
        if orient == 0: a.i("s_branch L_G0_pub")
    a.label("L_G0_pub")
    cnt_add(a, 14, 15, 12)
    stamp(a, 15, 250)
    a.i("s_nop 1")
    a.i("v_cvt_pk_bf16_f32 v32, v28, v29")
    a.i("v_cvt_pk_bf16_f32 v33, v30, v31")
    a.i("v_min_u32 v32, -2, v32")
    a.i("s_nop 0")
    a.i("v_permlane32_swap_b32 v33, v35")
    a.i("v_permlane32_swap_b32 v32, v34")
    a.i("s_mov_b32 exec_hi, 0")
    a.i(f"buffer_store_dwordx4 v[32:35], v23, {R(SWS)}, s60 offen sc1")
    a.i("s_mov_b32 exec_hi, -1")
    stamp(a, 8, 14)
    g_setup(a)
    a.i("s_setprio 2")
    if PRM["w1pos"] != 3: g_w1first(a, "L_G0_now1")
    a.i("s_branch L_G_ffn1")

def kvload(a, st, so=SKO, off=0):
    b = KVS[st]
    return [
        lambda: a.i(f"buffer_load_dwordx4 {v(b,4)}, v{VLIN}, {R(SWS)}, s{so} offen offset:{off} sc1", tag=("kv", st)),
        lambda: a.i(f"buffer_load_dwordx4 {v(b+4,4)}, v{VV0}, {R(SWS)}, s{so} offen offset:{off+1024} sc1", tag=("kv", st)),
        lambda: a.i(f"buffer_load_dwordx4 {v(b+8,4)}, v{VV1}, {R(SWS)}, s{so} offen offset:{off+1024} sc1", tag=("kv", st))]
def kvfirstcheck(a):
    b0, b1, b2 = KVS[:3]
    a.i(f"v_max3_u32 v{T0}, v{b0}, v{b0+4}, v{b0+8}")
    a.i(f"v_max3_u32 v{T1}, v{b1}, v{b1+4}, v{b1+8}")
    a.i(f"v_max3_u32 v{T0}, v{T0}, v{b2}, v{b2+4}")
    a.i(f"v_max3_u32 v{T0}, v{T0}, v{T1}, v{b2+8}")
    a.i(f"v_max_u32 v{T0}, v{T0}, v{KVS[3]+1}")
    a.i(f"v_cmp_eq_u32 vcc, -1, v{T0}")
def kvfirst(a):
    run(a, kvload(a, 0, SKC)); run(a, kvload(a, 1, SKC, TS)); run(a, kvload(a, 2, SKO))
    a.i(f"buffer_load_dword v{KVS[3]+1}, v{KVS[3]}, {R(SWS)}, s{SKC} offen sc1")

def attn_slot(a, i, prv, cur, nxt, extra, last=False):
    Sc = S + 16*(i & 1); Sn = S + 16*((i+1) & 1)
    e = lambda r: a.i(f"v_exp_f32 v{Sc+r}, v{Sc+r}")
    c = lambda j: a.i(f"v_cvt_pk_bf16_f32 v{Pq+j}, v{Sc+2*j}, v{Sc+2*j+1}")
    ex = lambda k: run(a, extra.get(k, []))
    e(0); e(1)
    mfma(a, O + 16*((i - 1) % 8), (cur if i > 0 else prv) + 8, Pq + 4)
    ex(0)
    for r in range(2, 7): e(r)
    ex("pre1")
    if not (last and i == 7): mfma(a, Sn, cur if i < 7 else nxt, Q + 4*((i + 1) % 8), "0")
    ex(1)
    e(7)
    for j in range(4): c(j)
    e(8); e(9)
    mfma(a, O + 16*i, cur + 4, Pq)
    ex(2)
    for r in range(10, 16): e(r)
    for j in range(4, 8): c(j)

def a_waves(a, vmA):
    VXR, VTR, VC = 88, 92, 93
    a.label("L_A")
    a.vm = list(vmA); a.lg = []
    if PRM["apf"]:
        srd(a, SW1, "w1")
        wchunk_addr(a, 16, 14, 3584)
        a.i(f"s_lshr_b32 s12, s{S_MU}, 1")
        a.i("s_mul_i32 s12, s12, 7")
        a.i(f"s_and_b32 s13, s{S_MU}, 1")
        a.i("s_lshl_b32 s13, s13, 2")
        a.i("s_add_u32 s12, s12, s13")
        a.i("s_lshl_b32 s12, s12, 7")
        a.i(f"s_lshl_b32 s13, s{S_J}, 2")
        a.i(f"s_add_u32 s13, s13, s{S_W}")
        a.i(f"s_mul_i32 s13, s13, {16*3584}")
        a.i("s_add_u32 s12, s12, s13")
    assert not PRM["apf"]
    srd(a, SWS, "ws")
    xfrag_addr(a, VXR, 14, 15)
    tr_addr(a, VTR, 14, 15, 8)
    a.i(f"s_and_b32 s6, s{S_W}, 1")
    a.i(f"s_lshr_b32 s7, s{S_W}, 1")
    a.i("s_lshl_b32 s12, s6, 6")
    a.i(f"v_xor_b32 v{VTR}, s12, v{VTR}")
    a.i(f"v_add_u32 v{VTR}, {L_WQ}, v{VTR}")
    a.i("s_lshl_b32 s12, s7, 12")
    for q in range(4): a.i(f"v_add_u32 v{VXR+q}, s12, v{VXR+q}")
    a.i(f"v_and_b32 v{T0}, 15, v0")
    a.i(f"v_lshrrev_b32 v{T1}, 5, v0")
    a.i(f"v_lshlrev_b32 v{T1}, 8, v{T1}")
    a.i(f"v_lshl_add_u32 v{VV0}, v{T0}, 4, v{T1}")
    a.i(f"v_add_u32 v{VV1}, 512, v{VV0}")
    a.i(f"v_and_b32 v{T0}, 27, v0")
    a.i(f"v_cmp_eq_u32 vcc, 16, v{T0}")
    a.i(f"v_mov_b32 v{T1}, {BIG:#x}")
    a.i("v_mov_b32 v14, 1024")
    a.i(f"v_cndmask_b32 v{T1}, v{T1}, v14, vcc")
    a.i(f"v_and_b32 v{T0}, 16, v0")
    a.i(f"v_cmp_eq_u32 vcc, 0, v{T0}")
    a.i(f"s_mul_i32 s{SKC}, s{S_W}, {16*TS}")
    a.i(f"s_add_u32 s{SKO}, s{SKC}, {2*TS}")
    a.i(f"v_cndmask_b32 v{VV0}, v{T1}, v{VV0}, vcc")
    a.i(f"v_cndmask_b32 v{VV1}, v{T1}, v{VV1}, vcc")
    a.i(f"s_add_u32 s{SKL}, s{SKC}, {15*TS}")
    a.i(f"s_mov_b32 s{SSP}, {SPIN}")
    a.i(f"v_mov_b32 v{VC}, {L_CNT}")
    for r in range(4, 8): a.i(f"v_mov_b32 v{Pq+r}, 0")
    for r in range(8, 12): a.i(f"v_mov_b32 v{KVS[3]+r}, 0")
    for r in range(127): a.i(f"v_mov_b32 v{O+r}, 0")
    a.i(f"v_lshrrev_b32 v{VG}, 2, v0")
    a.i(f"v_mul_u32_u24 v{VG}, {TS}, v{VG}")
    a.i(f"v_and_b32 v{VG+1}, 3, v0")
    a.i(f"v_bfe_u32 v14, v0, 1, 1")
    a.i(f"v_lshl_add_u32 v{KVS[3]}, v14, 10, v{VG}")
    a.i(f"v_add_u32 v14, 8, v14")
    a.i(f"v_and_b32 v15, 1, v0")
    a.i(f"v_lshlrev_b32 v15, v14, v15")
    a.i(f"v_add_u32 v{KVS[3]}, v{KVS[3]}, v15")
    a.i(f"v_lshl_add_u32 v{VG}, v{VG+1}, 2, v{VG}")
    a.i(f"v_add_u32 v{VG}, {2048 + 128}, v{VG}")
    a.i("s_barrier")
    if PRM["wqlate"]: wq_round(a, 0)
    a.i(f"ds_read_b32 v{T0}, v{VC} offset:{C_T}")
    a.i(f"v_mov_b32 v{T1}, 1")
    a.i("s_waitcnt lgkmcnt(0)"); a.lg = []
    a.i(f"v_readfirstlane_b32 s{S_TAG}, v{T0}")
    a.wait(vm=("wq", 0))
    cnt_add(a, VC, T1, 0)
    a.i(f"v_mov_b32 v{O+127}, 0")
    a.i("s_setprio 1")
    cnt_wait(a, VC, T0, 0, CT[0], "L_k0", 8)
    stamp(a, 1, AST)
    def tagcheck():
        a.wait(vm="tag")
        a.i(f"v_cmp_ne_u32 vcc, s{S_TAG}, v{VG+1}")
        a.i("s_cbranch_vccnz L_tagr")
        a.label("L_tag_ok")
        stamp(a, 3, AST)
        a.vm = []
        kvfirst(a)
        if PRM["w1pos"] == 3 and PRM["ckpos"]: cnt_add(a, VC, T1, C_K)
    FRS = [8, 16, 24, 32]; NB_ = 4
    def rd(sx):
        b = FRS[sx % NB_]
        a.i(f"ds_read_b64_tr_b16 {v(b,2)}, v{VTR} offset:{sx*2048}")
        a.i(f"ds_read_b64_tr_b16 {v(b+2,2)}, v{VTR} offset:{sx*2048+512}")
        a.i(f"ds_read_b128 {v(b+4,4)}, v{VXR + (sx&3)} offset:{(sx>>2)*8192}", tag=("c", sx))
    for sx in range(NB_-1): rd(sx)
    for sx in range(32):
        nx = sx + NB_ - 1
        if nx < 32 and nx % 8 == 4 and nx < 24: a.i(f"ds_read_b32 v{T0}, v{VC} offset:{4*(nx//8 + 1)}")
        if nx < 32 and nx % 8 == 0:
            a.i(f"v_readfirstlane_b32 s8, v{T0}")
            a.i(f"s_cmp_ge_u32 s8, {CT[nx//8]}")
            a.i(f"s_cbranch_scc0 L_k{nx//8}")
            a.label(f"L_k{nx//8}_ok")
        if nx < 32: rd(nx)
        if sx == PRM["tagat"]: a.i(f"buffer_load_dword v{VG+1}, v{VG}, {R(SWS)}, s{SKC} offen sc1", tag="tag")
        if sx == PRM["kvat"]: tagcheck()
        a.wait(lg=("c", sx))
        b = FRS[sx % NB_]
        mfma(a, S, b, b+4, "0" if sx == 0 else None)
    stamp(a, 2, AST)
    a.i("s_lshl_b32 s8, s6, 12")
    a.i("s_lshl_b32 s9, s7, 10")
    a.i("s_add_u32 s8, s8, s9")
    a.i(f"s_add_u32 s8, s8, {L_QF}")
    a.i(f"v_add_u32 v{T0}, s8, v{VLIN}")
    a.i(f"s_mov_b32 s10, {f2u(QSCALE):#x}")
    for k in range(4):
        a.i(f"s_add_u32 s8, s{S_W}, {k+1}")
        a.i("s_and_b32 s8, s8, 3")
        a.i("s_lshl_b32 s8, s8, 11")
        a.i(f"s_add_u32 s8, s8, {L_QF}")
        a.i(f"v_add_u32 v{VXR+k}, s8, v{VLIN}")
    a.i(f"v_mov_b32 v{T1}, 1")
    for r in range(16): a.i(f"v_mul_f32 v{S+r}, s10, v{S+r}")
    for j in range(8): a.i(f"v_cvt_pk_bf16_f32 v{80+j}, v{S+2*j}, v{S+2*j+1}")
    for e in range(2): a.i(f"ds_write_b128 v{T0}, {v(80+4*e,4)} offset:{2048*e}")
    cnt_add(a, VC, T1, C_Q)
    if PRM["kvat"] >= 32: tagcheck()
    def qreads():
        for i in range(8): a.i(f"ds_read_b128 {v(Q+4*i,4)}, v{VXR + (i>>1)} offset:{1024*(i&1)}")
    cnt_wait(a, VC, VTR, C_Q, 4, "L_qwait", 8, qreads)
    a.i(f"v_mov_b32 v{VG}, v{VC}")
    a.i(f"v_mov_b32 v{VG+1}, 1")
    a.wait(vm="all")
    kvfirstcheck(a)
    a.i("s_cbranch_vccnz L_kvr_first")
    a.label("L_kv_first_ok")
    if PRM["w1pos"] == 3 and not PRM["ckpos"]: cnt_add(a, VG, VG+1, C_K)
    stamp(a, 4, AST)
    mfma(a, S, KVS[0], Q, "0")
    a.i(f"s_mov_b32 s{SIT}, 4")
    a.i("s_nop 9")
    a.i("s_branch L_attn_in")
    def tile(t, last=False):
        prv, cur, nxt = (t-1) % 4, t, (t+1) % 4
        ld = kvload(a, prv)
        XA = KVS[2]
        for i in range(8):
            extra = {}
            if not last:
                if i == 0: extra = {0: [f"s_add_u32 s{SKO}, s{SKO}, {TS}"], 1: [f"s_min_u32 s{SKO}, s{SKO}, s{SKL}"], 2: [ld[0]]}
                if i == 1: extra = {0: [ld[1]], 1: [ld[2]]}
                if i == 7:
                    extra = {0: [lambda: a.wait(vm=("kv", nxt))]}
                    if t == 2:
                        extra[1] = [f"s_sub_u32 s{SIT}, s{SIT}, 1"]; extra[2] = [f"s_cmp_lg_u32 s{SIT}, 0"]
                if t == 2 and i == 5: extra = {0: [f"ds_read_b32 v{VG+1}, v{VG} offset:{C_F}"]}
                if t == 2 and i == 6: extra = {0: ["s_waitcnt lgkmcnt(0)"]}
            elif i >= 2:
                j = i - 2; k = j >> 1; o = k*XK + (j & 1)*2048
                extra = {0: [f"ds_write_b128 v{XA+k}, {v(O+16*j,4)} offset:{o}"],
                         1: [f"ds_write_b128 v{XA+k}, {v(O+16*j+4,4)} offset:{o+1024}"]}
                if j & 1: extra[2] = [f"ds_write2st64_b32 v{XA+3+k}, v{O+16*j-8}, v{O+16*j+8} offset0:{k*XK//256} offset1:{k*XK//256+1}"]
            attn_slot(a, i, KVS[prv], KVS[cur], KVS[nxt], extra, last)
    a.raw(".p2align 6")
    a.label("L_attn_loop")
    a.vm = [("kv", 0)]*3 + [("kv", 1)]*3; a.lg = []
    tile(3)
    a.label("L_attn_in")
    for t in range(3): tile(t)
    a.i("s_cbranch_scc1 L_attn_loop")
    a.lg = []
    a.i(f"v_readfirstlane_b32 s8, v{VG+1}")
    XA = KVS[2]
    a.i(f"v_lshlrev_b32 v{T1}, 2, v0")
    for k in range(3):
        a.i(f"s_add_u32 s9, s{S_W}, {k+1}")
        a.i("s_and_b32 s9, s9, 3")
        a.i(f"s_mul_i32 s9, s9, {XO}")
        a.i(f"v_add_u32 v{XA+k}, s9, v{VLIN}")
        a.i("s_add_u32 s9, s9, 4096")
        a.i(f"v_add_u32 v{XA+3+k}, s9, v{T1}")
    a.i("s_cmp_ge_u32 s8, 4")
    a.i("s_cbranch_scc0 L_xwait")
    a.label("L_xok")
    tile(3, last=True)
    a.i(f"s_mul_i32 s9, s{S_W}, {XO}")
    a.i(f"v_add_u32 v{XA}, s9, v{VLIN}")
    mfma(a, O + 16*7, KVS[3] + 8, Pq + 4)
    a.i("s_add_u32 s9, s9, 4096")
    a.i(f"v_add_u32 v{XA+1}, s9, v{T1}")
    a.i(f"v_and_b32 v{T1}, 31, v0")
    a.i(f"v_lshlrev_b32 v{T1}, 2, v{T1}")
    a.i(f"v_add_u32 v{T1}, {L_G}, v{T1}")
    a.i("s_waitcnt lgkmcnt(0)"); a.lg = []
    stamp(a, 5, AST)
    a.i("s_barrier")
    a.i("s_setprio 3")
    LL = O + 16*5 + 10
    for rh in range(2):
        for k in range(3):
            o = k*XK + rh*2048; d = O + 16*(rh*3 + k)
            a.i(f"ds_read_b128 {v(d,4)}, v{XA} offset:{o}")
            a.i(f"ds_read_b128 {v(d+4,4)}, v{XA} offset:{o+1024}", tag=("x", rh, k))
        if rh == 0:
            for k in range(3): a.i(f"ds_read2st64_b32 {v(LL+2*k,2)}, v{XA+1} offset0:{k*XK//256} offset1:{k*XK//256+1}")
            a.i(f"ds_read2_b32 {v(VG,2)}, v{T1} offset0:0 offset1:32", tag="l")
    a.i(f"s_lshl_b32 s8, s{S_G}, 5")
    a.i(f"s_lshl_b32 s9, s{S_MU}, 2")
    a.i("s_add_u32 s8, s8, s9")
    a.i(f"s_add_u32 s8, s8, s{S_W}")
    a.i("s_lshl_b32 s8, s8, 11")
    a.i(f"s_add_u32 s8, s8, {WS_O}")
    a.i(f"s_mov_b32 s10, {f2u(2.0**-30):#x}")
    a.i(f"s_mov_b32 s11, {f2u(2.0**100):#x}")
    a.i("s_mov_b32 s12, 0x7f800000")
    for rh in range(2):
        f = O + 16*(6 + rh); d = O + 48*rh
        a.wait(lg=("x", rh, 1))
        for r in range(0, 8, 2): a.i(f"v_pk_add_f32 {v(d+r,2)}, {v(d+r,2)}, {v(d+16+r,2)}")
        a.wait(lg=("x", rh, 2))
        for r in range(0, 8, 2): a.i(f"v_pk_add_f32 {v(f+r,2)}, {v(f+r,2)}, {v(d+32+r,2)}")
        if rh == 0:
            a.wait(lg="l")
            a.i(f"v_pk_add_f32 {v(LL,2)}, {v(LL,2)}, {v(LL+2,2)}")
            a.i(f"v_pk_add_f32 {v(LL,2)}, {v(LL,2)}, {v(LL+4,2)}")
        a.i(f"v_add_f32 v{f+8}, v{f+8}, v{LL+rh}")
        for r in range(0, 8, 2): a.i(f"v_pk_add_f32 {v(f+r,2)}, {v(f+r,2)}, {v(d+r,2)}")
        a.i(f"v_cmp_le_f32 s[54:55], s10, v{f+8}")
        a.i(f"v_cmp_ge_f32 s[56:57], s11, v{f+8}")
        a.i(f"v_add_f32 v{T0}, abs(v{f}), abs(v{f+1})")
        for r in range(2, 8): a.i(f"v_add_f32 v{T0}, v{T0}, abs(v{f+r})")
        a.i("s_and_b64 s[54:55], s[54:55], s[56:57]")
        a.i(f"v_cmp_gt_f32 vcc, s12, v{T0}")
        a.i(f"v_rcp_f32 v{T0}, v{f+8}")
        a.i("s_and_b64 s[54:55], s[54:55], vcc")
        a.i("s_cmp_eq_u64 s[54:55], -1")
        a.i(f"s_cbranch_scc0 L_slow{rh}")
        a.label(f"L_ok{rh}")
        a.i(f"v_mul_f32 v{T0}, v{T0}, v{VG+rh}")
        for r in range(0, 8, 2): a.i(f"v_pk_mul_f32 {v(f+r,2)}, {v(f+r,2)}, {v(T0,2)} op_sel_hi:[1,0]")
        for j in range(4): a.i(f"v_cvt_pk_bf16_f32 v{S+4*rh+j}, v{f+2*j}, v{f+2*j+1}")
        a.i(f"v_min_u32 v{S+4*rh}, -2, v{S+4*rh}")
        a.i(f"buffer_store_dwordx4 {v(S+4*rh,4)}, v{VLIN}, {R(SWS)}, s8 offen offset:{1024*rh} sc1")
    if PRM["b3b"]: a.i("s_barrier")
    stamp(a, 6, AST)
    a.i("s_setprio 0")
    final_addr(a, 8)
    a.i("s_waitcnt vmcnt(0)"); a.vm = []
    a.i("s_barrier")
    final_stage(a, 8)
    stamp(a, 7, AST)
    stamp_dump(a, "A")
    a.i("s_endpgm")
    a.label("L_kvr_first")
    if PRM["tsleep"]: a.i(f"s_sleep {PRM['tsleep']}")
    kvfirst(a)
    a.i("s_waitcnt vmcnt(0)"); a.vm = []
    kvfirstcheck(a)
    a.i("s_cbranch_vccz L_kv_first_ok")
    spin_tail(a, SSP, "L_kvr_first", "L_kv_first_ok")
    a.label("L_tagr")
    a.i("s_sleep 4")
    a.i(f"buffer_load_dword v{VG+1}, v{VG}, {R(SWS)}, s{SKC} offen sc1")
    a.i("s_waitcnt vmcnt(0)"); a.vm = []
    a.i(f"v_cmp_ne_u32 vcc, s{S_TAG}, v{VG+1}")
    a.i("s_cbranch_vccz L_tag_ok")
    spin_tail(a, SSP, "L_tagr", "L_tag_ok")
    cnt_wait(a, VG, VG+1, C_F, 4, "L_xwait", 8)
    a.i("s_branch L_xok")
    for q in range(1, 4):
        cnt_wait(a, VC, T0, 4*q, CT[q], f"L_k{q}", 8)
        a.i(f"s_branch L_k{q}_ok")

def a_slow(a):
    KV = KVS[0]
    for rh in range(2):
        f = O + 16*(6 + rh); q = Q + 4*(6 + rh)
        SS, CC, OO, PP = S + 16, KVS[2], O, Pq
        a.label(f"L_slow{rh}")
        a.i("s_waitcnt vmcnt(0)" + (" lgkmcnt(0)" if rh == 0 else ""))
        a.i(f"s_mov_b32 s{SKO}, {WS_KV}")
        a.i(f"v_mov_b32 v{T1}, 0xff800000")
        a.label(f"L_slow{rh}_a")
        run(a, kvload(a, 0))
        a.i("s_waitcnt vmcnt(0)")
        a.i(f"v_max3_u32 v{T0}, v{KV}, v{KV+4}, v{KV+8}")
        a.i(f"v_cmp_eq_u32 vcc, -1, v{T0}")
        a.i(f"s_cbranch_vccz L_slow{rh}_c")
        spin_tail(a, SSP, f"L_slow{rh}_a", f"L_slow{rh}_c")
        a.label(f"L_slow{rh}_c")
        mfma(a, SS, KV, q, "0")
        a.i("s_nop 15")
        for r in range(0, 16, 2): a.i(f"v_max3_f32 v{T1}, v{T1}, v{SS+r}, v{SS+r+1}")
        a.i(f"s_add_u32 s{SKO}, s{SKO}, {TS}")
        a.i(f"s_cmp_lt_u32 s{SKO}, {WS_KV + 64*TS}")
        a.i(f"s_cbranch_scc1 L_slow{rh}_a")
        a.i(f"v_mov_b32 v{T0}, v{T1}")
        a.i("s_nop 1")
        a.i(f"v_permlane32_swap_b32 v{T0}, v{T1}")
        a.i(f"v_max_f32 v{T1}, v{T0}, v{T1}")
        for r in range(16):
            a.i(f"v_sub_f32 v{CC+r}, 0, v{T1}")
            a.i(f"v_mov_b32 v{OO+r}, 0")
        a.i(f"s_mov_b32 s{SKO}, {WS_KV}")
        a.label(f"L_slow{rh}_b")
        run(a, kvload(a, 0))
        a.i("s_waitcnt vmcnt(0)")
        mfma(a, SS, KV, q, v(CC, 16))
        a.i("s_nop 15")
        for r in range(16): a.i(f"v_exp_f32 v{SS+r}, v{SS+r}")
        a.i("s_nop 0")
        for j in range(8): a.i(f"v_cvt_pk_bf16_f32 v{PP+j}, v{SS+2*j}, v{SS+2*j+1}")
        a.i("s_nop 1")
        mfma(a, OO, KV + 4, PP)
        mfma(a, OO, KV + 8, PP + 4)
        a.i("s_nop 15")
        a.i(f"s_add_u32 s{SKO}, s{SKO}, {TS}")
        a.i(f"s_cmp_lt_u32 s{SKO}, {WS_KV + 64*TS}")
        a.i(f"s_cbranch_scc1 L_slow{rh}_b")
        for r in range(9): a.i(f"v_mov_b32 v{f+r}, v{OO+r}")
        a.i(f"v_rcp_f32 v{T0}, v{f+8}")
        a.i("s_nop 1")
        a.i(f"s_branch L_ok{rh}")
    a.vm = []; a.lg = []

VW35, VW1K, VSW, GVC, VGG = 4, 6, 3, 12, 12
VTR_G, VTRP, VST = 224, 226, 228
VXR_G, BA1, ONE = 16, 20, 28
ACC, WF, XF, PRE, PD = 64, 32, 48, 128, 12
def g_setup(a):
    srd(a, SW1, "w1"); srd(a, SB1, "b1")
    wchunk_addr(a, VW35, 14, 3584)
    wchunk_addr(a, VW1K, 14, 1024)
    a.i(f"s_lshr_b32 s12, s{S_MU}, 1")
    a.i("s_mul_i32 s12, s12, 7")
    a.i(f"s_and_b32 s9, s{S_MU}, 1")
    a.i("s_lshl_b32 s9, s9, 2")
    a.i(f"s_add_u32 s13, s9, s{GW}")
    a.i("s_add_u32 s12, s12, s13")
    a.i("s_lshl_b32 s12, s12, 7")
    a.i(f"s_add_u32 s77, s12, {32*16*3584}")
    a.i(f"s_mul_i32 s76, s{S_J}, {4*16*3584}")
    a.i("s_add_u32 s76, s76, s12")
    a.i("v_lshlrev_b32 v14, 1, v0")
    a.i("v_cmp_gt_u32 vcc, 32, v0")
    a.i(f"v_mov_b32 v15, {BIG:#x}")
    a.i(f"v_mov_b32 v{GVC}, {L_CNT}")
    a.i("v_cndmask_b32 v11, v15, v14, vcc")
    a.i("v_mov_b32 v15, 0x3f80")
    a.i(f"v_cndmask_b32 v{ONE}, 0, v15, vcc")
    for b in (BA1, BA1+4, ONE):
        for r in range(1, 4): a.i(f"v_mov_b32 v{b+r}, 0")
    xfrag_addr(a, VXR_G, 14, 15)
    tr_addr(a, VTR_G, 14, 15, 8)
    tr_addr(a, VTRP, 14, 15, 4)
    a.i(f"s_lshl_b32 s8, s{GW}, 11")
    a.i(f"s_add_u32 s8, s8, {L_STG}")
    a.i(f"v_add_u32 v{VSW}, s8, v{VLIN}")
    a.i(f"v_add_u32 v{VST}, s8, v{VTR_G}")
    a.i(f"s_mul_i32 s14, s{GW}, {RING_W}")
    a.i(f"s_add_u32 s14, s14, {L_RING}")
    a.i(f"v_add_u32 v{VTR_G}, s14, v{VTR_G}")
    a.i(f"v_add_u32 v{VTRP}, s14, v{VTRP}")
    for r in (VTR_G, VTRP, VST): a.i(f"v_xor_b32 v{r+1}, 64, v{r}")
    a.i("v_mov_b32 v8, 1")
def w1load(a, sx):
    pre = sx < PRM["NPRE"]
    if not pre: a.i(f"s_add_u32 m0, s14, {(sx % RD)*2048}")
    a.i(f"s_add_u32 s78, s76, {16*3584}")
    wstep(a, VW35, SW1, 76, PRE+8*(sx % PD) if pre else None, ("w", sx))
    a.i("s_cmp_eq_u32 s78, s77")
    a.i("s_cselect_b32 s76, s12, s78")
def g_w1first(a, name):
    assert (PRM["D1"] <= PRM["NPRE"] < 32 and PRM["D1"] < PD) or (PRM["NPRE"] == 0 and PRM["w1pos"] == 3)
    a.i("s_cmp_eq_u32 s13, 7")
    a.i(f"s_cbranch_scc1 {name}")
    n = len(a.vm)
    for p in range(2): a.i(f"buffer_load_ushort v{BA1+4*p}, v11, {R(SB1)}, s12 offen offset:{64*p}", tag="b")
    for sx in range(PRM["D1"]): w1load(a, sx)
    a.label(name)

def g_waves(a, VGE, VXE, VXO, vmG):
    VTR, VXR, VC = VTR_G, VXR_G, GVC
    NPRE, D1, D2W, D2H, DO, ND = (PRM[k] for k in ("NPRE", "D1", "D2W", "D2H", "DO", "ND"))
    a.label("L_G123")
    a.vm = list(vmG); a.lg = []
    a.i("s_waitcnt lgkmcnt(0)")
    srd(a, SX, "x")
    srd(a, SWS, "ws")
    g_setup(a)
    srd(a, SWQ, "wq")
    a.i(f"s_mov_b32 s{GSP}, {SPIN}")
    for k in range(3):
        a.i(f"s_add_u32 s8, s{GW}, {3*k - 1}")
        a.i("s_min_u32 s8, s8, 7")
        a.i(f"s_lshl_b32 s{60+k}, s8, 11") if False else None
        a.i(f"s_lshl_b32 s{52+k}, s8, 11")
        a.i(f"s_add_u32 s{52+k}, s{52+k}, {L_WQ}")
        a.i("s_lshl_b32 s8, s8, 14")
        a.i(f"s_lshl_b32 s9, s{S_J}, 16")
        a.i("s_add_u32 s8, s8, s9")
        a.i(f"s_lshl_b32 s9, s{S_MU}, 7")
        a.i(f"s_add_u32 s{64+k}, s8, s9")
    a.i("s_waitcnt lgkmcnt(0)"); a.lg = []
    a.i("s_barrier")
    if PRM["w1pos"] == 0:
        n0 = len(a.vm); g_w1first(a, "L_G_now1"); a.vm = a.vm[:n0]
    for q in range(4):
        for sl in (2*q, 2*q+1):
            a.i(f"s_add_u32 m0, s10, {L_X + sl*8192}")
            if sl:
                a.i("s_add_u32 s11, s11, 128")
                a.i("s_and_b32 s11, s11, 0x380")
            a.i(f"buffer_load_dwordx4 v{VXE}, {R(SX)}, s11 offen lds")
            a.i(f"buffer_load_dwordx4 v{VXO}, {R(SX)}, s11 offen offset:1024 lds", tag=("k", q))
        for k in range(3 if q else 0):
            a.i(f"s_add_u32 s8, s{64+k}, {q << 17}")
            a.i(f"s_add_u32 m0, s{52+k}, {q*16384}")
            a.i("s_and_b32 s8, s8, 0x7ffff")
            wstep(a, VW1K, SWQ, 8, tag=("k", q))
        if q:
            a.wait(vm=("k", q-1))
            cnt_add(a, VC, 8, 4*(q-1))
    if PRM["w1pos"] == 2:
        a.i("s_cmp_eq_u32 s13, 7")
        a.i("s_cbranch_scc0 L_G_w1")
        a.i("s_waitcnt vmcnt(0)")
        a.label("L_G_w1")
        g_w1first(a, "L_G_now1")
    a.wait(vm=("k", 3))
    cnt_add(a, VC, 8, 12)
    stamp(a, 0, 14, first=True)
    a.label("L_G_ffn1")
    a.vm = ["b"]*2 + [("w", sx) for sx in range(D1) for _ in range(2)]
    a.label("L_G_xw")
    a.i(f"ds_read_b128 v[32:35], v{VC}")
    a.i("s_waitcnt lgkmcnt(0)"); a.lg = []
    a.i("v_add_u32 v32, -5, v32")
    a.i("v_add_u32 v35, -1, v35")
    a.i("v_min3_i32 v33, v33, v34, v35")
    a.i("v_min_i32 v32, v32, v33")
    a.i("v_readfirstlane_b32 s8, v32")
    a.i("s_cmp_ge_i32 s8, 3")
    a.i("s_cbranch_scc0 L_G_xw")
    stamp(a, 14, 14)
    a.i("v_bfe_u32 v14, v0, 4, 2")
    a.i("v_and_b32 v15, 7, v0")
    a.i("v_xor_b32 v14, v14, v15")
    a.i(f"s_and_b32 s8, s{GW}, 1")
    a.i("s_lshl_b32 s8, s8, 2")
    a.i("v_xor_b32 v14, s8, v14")
    a.i("v_lshlrev_b32 v14, 4, v14")
    a.i(f"v_add_u32 v99, {L_GW}, v14")
    a.i("s_setprio 0")
    XG, AC, GA = 32, 96, 98
    GFA = [64 + 4*k for k in range(8)]
    def gfr():
        for kb in range(8): a.i(f"ds_read_b128 {v(GFA[kb],4)}, v99 offset:{128*kb}")
    gfr()
    a.wait(lg="all")
    a.i(f"s_lshl_b32 s8, s{GW}, 10")
    a.i(f"v_add_u32 v{GA}, s8, v{VLIN}")
    for i in range(2): a.i(f"v_mov_b32 v{AC+i}, 0")
    def grd(kb):
        for i in range(2):
            a.i(f"ds_read_b128 {v(XG + 8*(kb % 3) + 4*i,4)}, v{GA} offset:{kb*8192 + i*4096}", tag=("g", kb))
    grd(0); grd(1)
    for kb in range(8):
        if kb < 6: grd(kb+2)
        a.wait(lg=("g", kb))
        for r in range(4):
            for i in range(2):
                a.i(f"v_dot2_f32_bf16 v{AC+i}, v{XG + 8*(kb % 3) + 4*i + r}, v{GFA[kb]+r}, v{AC+i}")
    a.i(f"v_lshrrev_b32 v{GA}, 3, v0")
    a.i(f"s_lshl_b32 s9, s{GW}, 5")
    a.i(f"s_add_u32 s9, s9, {L_G}")
    for mod in ("quad_perm:[1,0,3,2]", "quad_perm:[2,3,0,1]", "row_half_mirror"):
        for i in range(2):
            a.i(f"v_add_f32_dpp v{AC+i}, v{AC+i}, v{AC+i} {mod} row_mask:0xf bank_mask:0xf")
    a.i(f"s_mov_b32 s10, {f2u(-math.log2(math.e)):#x}")
    for i in range(2): a.i(f"v_mul_f32 v{AC+i}, s10, v{AC+i}")
    for i in range(2): a.i(f"v_exp_f32 v{AC+i}, v{AC+i}")
    a.i(f"v_lshl_add_u32 v{GA}, v{GA}, 2, s9")
    for i in range(2): a.i(f"v_add_f32 v{AC+i}, 1.0, v{AC+i}")
    for i in range(2): a.i(f"v_rcp_f32 v{AC+i}, v{AC+i}")
    a.i("s_nop 0")
    for i in range(2): a.i(f"ds_write_b32 v{GA}, v{AC+i} offset:{128*i}")
    a.i("s_waitcnt lgkmcnt(0)"); a.lg = []
    a.i("s_setprio 2")
    a.i("s_cmp_eq_u32 s13, 7")
    a.i("s_cbranch_scc1 L_G_idle")
    if PRM["w1pos"] == 3:
        a.label("L_G_kw")
        a.i("s_sleep 2")
        cnt_wait(a, VC, 14, C_K, 4, "L_G_kw1", 8)
        a.ins[-1] = Ins("    s_cbranch_scc0 L_G_kw")
        a.vm = []
        g_w1first(a, "L_G3_now1")
    a.wait(vm="b")
    for p in range(2):
        for rh in range(2): mfma(a, ACC + 32*p + 16*rh, BA1 + 4*p, ONE, "0")
    def rd1(sx):
        a.wait(vm=("w", sx))
        b = sx & 1
        if sx < NPRE:
            for p in range(2): a.i(f"ds_write_b128 v{VSW}, {v(PRE+8*(sx % PD)+4*p,4)} offset:{p*1024}")
        for p in range(2):
            o = 0 if sx < NPRE else (sx % RD)*2048
            ar = (VST if sx < NPRE else VTR) + p
            a.i(f"ds_read_b64_tr_b16 {v(WF+8*b+4*p,2)}, v{ar} offset:{o}")
            a.i(f"ds_read_b64_tr_b16 {v(WF+8*b+4*p+2,2)}, v{ar} offset:{o+512}")
        for rh in range(2):
            a.i(f"ds_read_b128 {v(XF+8*b+4*rh,4)}, v{VXR+(sx&3)} offset:{(sx>>2)*8192 + rh*4096}", tag=("r", sx))
    def ringgate():
        a.i("s_setprio 2")
        cnt_wait(a, VC, 14, C_Q, 4, a.newlabel("G_ring"), 8)
        a.i("s_setprio 0")
    a.i(f"s_setprio {PRM['gp0']}")
    rd1(0)
    for sx in range(32):
        if sx in (1, 4, 8, 16) and ("fst" not in OPT or sx == 16): stamp(a, {1: 16, 4: 17, 8: 18, 16: 19}[sx], 14)
        if sx + D1 < NPRE: w1load(a, sx + D1)
        if sx < 31: rd1(sx+1)
        a.wait(lg=("r", sx))
        b = sx & 1
        for p in range(2):
            for rh in range(2):
                mfma(a, ACC + 32*p + 16*rh, WF+8*b+4*p, XF+8*b+4*rh)
        if sx + D1 == NPRE and PRM['w1pos'] != 3: ringgate()
        if NPRE <= sx + D1 < 32: w1load(a, sx + D1)
    a.i("s_setprio 2")
    cnt_add(a, VC, 8, C_F)
    if NPRE >= 32: ringgate(); a.i("s_setprio 2")
    a.label("L_G_ffn1_end")
    a.i(f"ds_read_b32 v8, v{VC} offset:{C_T}")
    a.i("s_waitcnt lgkmcnt(0)"); a.lg = []
    a.i(f"v_readfirstlane_b32 s{S_TAG}, v8")
    stamp(a, 9, 250)
    srd(a, SW2, "w2"); srd(a, SWO, "wo"); srd(a, SB2, "b2")
    BA2 = BA1
    a.i(f"s_lshl_b32 s8, s{S_MU}, 7")
    a.i(f"s_cmp_eq_u32 s{GW}, 0")
    a.i(f"s_cselect_b32 s10, s8, {BIG:#x}")
    for p in range(2): a.i(f"buffer_load_ushort v{BA2+4*p}, v11, {R(SB2)}, s10 offen offset:{64*p}", tag="b")
    a.i(f"s_lshl_b32 s10, s{S_G}, 5")
    a.i(f"s_lshl_b32 s9, s{S_MU}, 2")
    a.i("s_add_u32 s10, s10, s9")
    a.i(f"s_add_u32 s10, s10, s{GW}")
    a.i("s_lshl_b32 s10, s10, 11")
    a.i(f"s_add_u32 s10, s10, {WS_O}")
    for r in range(4): a.i(f"v_mov_b32 v{XF+r}, -1")
    for rh in range(2): a.i(f"buffer_store_dwordx4 {v(XF,4)}, v{VLIN}, {R(SWS)}, s10 offen offset:{1024*rh} sc1")
    a.i(f"s_mul_i32 s66, s{GW}, {28*16384}")
    a.i("s_add_u32 s66, s66, s8")
    a.i(f"s_lshl_b32 s58, s{GW}, 17")
    a.i("s_add_u32 s58, s58, s8")
    a.i(f"s_and_b32 s55, s{S_J}, 3" if PRM["gpx"] == 8 else f"s_lshr_b32 s55, s{S_J}, 1")
    a.i("s_lshl_b32 s67, s55, 15")
    a.i(f"s_mul_i32 s60, s{S_J}, 7")
    if PRM["gpx"] == 4: a.i(f"s_mul_i32 s61, s{S_MU}, 7")
    else:
        a.i(f"s_and_b32 s61, s{S_MU}, 3")
        a.i("s_mul_i32 s61, s61, 14")
    a.i("s_add_u32 s60, s60, s61")
    a.i("s_lshr_b32 s60, s60, 1")
    a.i("s_sub_u32 s61, s60, 28")
    a.i("s_cselect_b32 s60, s60, s61")
    a.i("s_mov_b32 s61, s66")
    a.i(f"s_add_u32 s62, s66, {28*16384}")
    a.i("s_lshl_b32 s63, s60, 14")
    a.i("s_add_u32 s66, s66, s63")
    HR, HD = 192, 8
    def dma2(sx):
        a.i(f"s_add_u32 m0, s14, {(sx % RD)*2048}")
        if sx < 28:
            a.i("s_add_u32 s63, s66, 16384")
            wstep(a, VW1K, SW2, 66, tag=("w", sx))
            a.i("s_cmp_eq_u32 s63, s62")
            a.i("s_cselect_b32 s66, s61, s63")
        else:
            a.i("s_add_u32 s63, s58, s67")
            wstep(a, VW1K, SWO, 63, tag=("w", sx))
            a.i("s_add_u32 s67, s67, 16384")
            a.i("s_and_b32 s67, s67, 0x1ffff")
    def hload(sx):
        for rh in range(2):
            a.i(f"buffer_load_dwordx4 {v(HR + 8*(sx % HD) + 4*rh,4)}, v{VLIN}, {R(SWS)}, s9 offen offset:{1024*rh} sc1", tag=("h", sx))
        a.i("s_add_u32 s9, s9, 2048")
        a.i("s_cmp_eq_u32 s9, s65")
        a.i("s_cselect_b32 s9, s64, s9")
    VTRP2 = XF + 6
    for p in range(2): a.i(f"v_mov_b32 v{VTRP2+p}, v{VTRP+p}")
    a.i(f"s_mul_i32 s8, s{S_G}, 112")
    a.i("s_lshl_b32 s10, s8, 11")
    a.i("s_lshl_b32 s9, s12, 6")
    a.i("s_add_u32 s10, s10, s9")
    a.i(f"s_add_u32 s12, s10, {WS_H}")
    a.i("s_cmp_eq_u32 s13, 7")
    a.i("s_cselect_b32 s56, 1, 0")
    a.i("s_add_u32 s13, s12, 4096")
    a.i(f"s_mul_i32 s9, s{GW}, 28")
    a.i("s_add_u32 s9, s9, s8")
    a.i("s_lshl_b32 s9, s9, 11")
    a.i(f"s_add_u32 s64, s9, {WS_H}")
    a.i(f"s_add_u32 s65, s64, {28*2048}")
    a.i("s_lshl_b32 s9, s60, 11")
    a.i("s_add_u32 s9, s9, s64")
    a.i(f"s_lshl_b32 s11, s{S_G}, 9")
    a.i(f"s_add_u32 s11, s11, {WS_HF}")
    a.i(f"s_lshr_b32 s10, s{S_MU}, 1")
    a.i("s_lshl_b32 s10, s10, 7")
    a.i("s_add_u32 s10, s10, s11")
    a.i(f"s_and_b32 s8, s{S_MU}, 1")
    a.i("s_lshl_b32 s8, s8, 2")
    a.i(f"s_add_u32 s8, s8, s{GW}")
    a.i("s_lshl_b32 s8, s8, 2")
    a.i("s_add_u32 s57, s10, s8")
    a.i(f"s_lshl_b32 s8, s{GW}, 7")
    a.i("s_add_u32 s11, s11, s8")
    a.i("v_and_b32 v14, 7, v0")
    a.i("v_lshlrev_b32 v14, 2, v14")
    a.i("s_cmp_eq_u32 s56, 1")
    a.i("s_cbranch_scc1 L_G_noh")
    for p in range(2):
        for rh in range(2):
            t = ACC + 32*p + 16*rh
            o = 192 + 8*(2*p+rh)
            for r in range(16): a.i(f"v_max_f32 v{t+r}, 0, v{t+r}")
            for r in range(0, 16, 2): a.i(f"v_pk_mul_f32 {v(t+r,2)}, {v(t+r,2)}, {v(t+r,2)}")
            for j in range(8): a.i(f"v_cvt_pk_bf16_f32 v{o+j}, v{t+2*j}, v{t+2*j+1}")
            if PRM["hpace"] and 2*p + rh >= PRM["hpace"]: a.i(f"s_waitcnt vmcnt({2*PRM['hpace'] - 2})")
            for u in range(2):
                a.i(f"buffer_store_dwordx4 {v(o+4*u,4)}, v{VLIN}, {R(SWS)}, s{12+p} offen offset:{u*2048 + rh*1024} sc1", tag="hst")
    a.label("L_G_noh")
    a.vm = []
    for k in range(PRM["DOV"]): dma2(28 + k)
    a.i(f"s_waitcnt vmcnt({2*PRM['DOV']})")
    a.i("s_mov_b64 exec, 1")
    a.i(f"buffer_store_dword v8, off, {R(SWS)}, s57 sc1")
    a.i("s_mov_b64 exec, -1")
    for k in range(PRM["DOV"], DO): dma2(28 + k)
    for p in range(2):
        for rh in range(2): mfma(a, ACC + 32*p + 16*rh, BA2 + 4*p, ONE, "0")
    WOF, OF = 128, 192
    def rd2(sx, dst):
        a.wait(vm=[("w", sx)])
        for p in range(2):
            o = (sx % RD)*2048
            a.i(f"ds_read_b64_tr_b16 {v(dst+4*p,2)}, v{VTRP2+p} offset:{o}")
            a.i(f"ds_read_b64_tr_b16 {v(dst+4*p+2,2)}, v{VTRP2+p} offset:{o+1024}", tag=("r", sx))
    for k in range(8):
        rd2(28 + k, WOF + 8*k)
        if k + DO < 8: dma2(28 + k + DO)
        if k >= 2: a.wait(lg=("r", 28 + k - 2))
    a.wait(lg="all")
    for sx in range(D2W): dma2(sx)
    a.label("L_hpoll")
    a.i(f"buffer_load_dword v15, v14, {R(SWS)}, s11 offen sc1")
    a.i("s_waitcnt vmcnt(0)"); a.vm = []
    a.i(f"v_cmp_ne_u32 vcc, s{S_TAG}, v15")
    a.i("s_cbranch_vccz L_hok")
    spin_tail(a, GSP, "L_hpoll", "L_hok", sleep=PRM["hsleep"])
    a.label("L_hok")
    stamp(a, 10, 250)
    for sx in range(D2H): hload(sx)
    a.i(f"s_lshl_b32 s12, s{S_G}, 2")
    a.i(f"s_add_u32 s12, s12, s{GW}")
    a.i("s_lshl_b32 s12, s12, 14")
    a.i(f"s_add_u32 s12, s12, {WS_O}")
    OSO = [12, 56, 57, 13]
    a.i("s_mov_b32 s8, s12")
    for k in range(4):
        a.i(f"s_add_u32 s9, s55, {k}") if False else None
        a.i(f"s_add_u32 s11, s55, {k}")
        a.i("s_and_b32 s11, s11, 3")
        a.i("s_lshl_b32 s11, s11, 12")
        a.i(f"s_add_u32 s{OSO[k]}, s8, s11")
    final_addr(a, 8)
    a.i("v_and_b32 v14, 31, v0")
    a.i("v_lshlrev_b32 v3, 2, v14")
    a.i(f"v_add_u32 v3, {L_G}, v3")
    a.i(f"v_mul_u32_u24 v14, {PITCH}, v14")
    a.i("v_lshrrev_b32 v15, 5, v0")
    a.i("v_lshl_add_u32 v14, v15, 4, v14")
    a.i("v_add_u32 v14, s14, v14")
    a.i("s_setprio 0")
    NM = 28 - ND
    def step2(sx):
        if sx + 1 < 28 and sx + 1 != NM: rd2(sx+1, WF + 8*((sx+1) & 1))
        a.wait(vm=("h", sx), lg=("r", sx))
        b = sx & 1
        for p in range(2):
            for rh in range(2):
                mfma(a, ACC + 32*p + 16*rh, WF+8*b+4*p, HR + 8*(sx % HD) + 4*rh)
    if NM: rd2(0, WF)
    for sx in range(28):
        if sx < NM: step2(sx)
        else: a.wait(vm=[("w", sx), ("h", sx)])
        if sx + D2H < 28: hload(sx + D2H)
        if sx + D2W < 28: dma2(sx + D2W)
    stamp(a, 11, 48)
    a.i("s_barrier")
    if PRM["b3b"]: a.i("s_barrier")
    a.i(f"ds_read2_b32 {v(VGG,2)}, v3 offset0:0 offset1:32", tag="g")
    if ND: rd2(NM, WF + 8*(NM & 1))
    OFR = [224, 192]
    def oload(rh):
        for k in range(8):
            a.i(f"buffer_load_dwordx4 {v(OFR[rh] + 4*k,4)}, v{VLIN}, {R(SWS)}, s{OSO[k>>1]} offen offset:{(k&1)*2048 + rh*1024} sc1", tag=("o", rh))
    def ocheck(rh):
        b = OFR[rh]
        a.i(f"v_max3_u32 v20, v{b}, v{b+4}, v{b+8}")
        a.i(f"v_max3_u32 v21, v{b+12}, v{b+16}, v{b+20}")
        a.i(f"v_max3_u32 v20, v20, v{b+24}, v{b+28}")
        a.i("v_max_u32 v20, v20, v21")
        a.i("v_cmp_eq_u32 vcc, -1, v20")
    assert PRM["oat"] >= 23
    if NM > PRM["oat"]: oload(0)
    for sx in range(NM, 28):
        step2(sx)
        if sx == PRM["oat"]: oload(0)
    a.i("s_setprio 2")
    a.wait(lg="all")
    oload(1)
    for rh in range(2): a.i(f"v_sub_f32 v{16+2*rh}, 1.0, v{VGG+rh}")
    for rh in range(2):
        for p in range(2):
            t = ACC + 32*p + 16*rh
            for r in range(0, 16, 2): a.i(f"v_pk_mul_f32 {v(t+r,2)}, {v(t+r,2)}, {v(16+2*rh,2)} op_sel_hi:[1,0]")
    def pwrite(rh, p, q):
        a.i(f"ds_write_b128 v14, {v(ACC + 32*p + 16*rh + 4*q,4)} offset:{rh*32*PITCH + (32*p + 8*q)*4}")
    for rh in range(2):
        a.wait(vm=("o", rh))
        ocheck(rh)
        a.i(f"s_cbranch_vccnz L_or{rh}")
        a.label(f"L_ook{rh}")
        if rh == 0: stamp(a, 12, 22)
        for p in range(2):
            for k in range(8):
                mfma(a, ACC + 32*p + 16*rh, WOF + 8*k + 4*p, OFR[rh] + 4*k)
                if k >= 4 and (rh or p): pwrite(*((rh, 0) if p else (0, 1)), k - 4)
    a.i("s_nop 11")
    for q in range(4): pwrite(1, 1, q)
    a.i("s_waitcnt lgkmcnt(0)"); a.lg = []
    stamp(a, 13, 22)
    a.i("s_barrier")
    final_stage(a, 8)
    a.i(f"s_lshl_b32 s8, s{S_G}, 6")
    a.i(f"s_lshl_b32 s9, s{S_MU}, 3")
    a.i("s_add_u32 s8, s8, s9")
    a.i(f"s_add_u32 s8, s8, s{S_W}")
    a.i("s_cmp_lg_u32 s8, 5")
    a.i("s_cbranch_scc1 L_notag")
    a.i(f"v_mov_b32 v4, s{S_TAG}")
    a.i(f"s_mov_b32 s8, {WS_NONCE}")
    a.i("s_mov_b64 exec, 1")
    a.i(f"buffer_store_dword v4, off, {R(SWS)}, s8 sc1")
    a.label("L_notag")
    stamp(a, 7, 250)
    stamp_dump(a, "G")
    a.i("s_endpgm")
    for rh in range(2):
        a.label(f"L_or{rh}")
        a.i("s_waitcnt vmcnt(0)")
        a.label(f"L_or{rh}_a")
        oload(rh)
        if rh == 0: oload(1)
        a.i("s_waitcnt vmcnt(0)"); a.vm = []
        ocheck(rh)
        a.i(f"s_cbranch_vccz L_ook{rh}")
        spin_tail(a, GSP, f"L_or{rh}_a", f"L_ook{rh}")
    a.label("L_G_idle")
    a.i("s_waitcnt vmcnt(0)")
    cnt_add(a, VC, 8, C_F)
    a.label("L_G_idle_a")
    a.i("s_sleep 8")
    a.i(f"ds_read_b32 v14, v{VC} offset:{C_F}")
    a.i("s_waitcnt lgkmcnt(0)")
    a.i("v_readfirstlane_b32 s8, v14")
    a.i("s_cmp_ge_u32 s8, 4")
    a.i("s_cbranch_scc0 L_G_idle_a")
    a.i("s_branch L_G_ffn1_end")

HEAD = open("cdna_kernels/" + NAME + ".s.ref").read().split("; Override launch")[0]
def kd(name, vg=256):
    return f""".section .rodata,"a"
.p2align 6
.amdhsa_kernel {name}
  .amdhsa_next_free_vgpr {vg}
  .amdhsa_next_free_sgpr 102
  .amdhsa_accum_offset {vg}
  .amdhsa_group_segment_fixed_size 0
  .amdhsa_kernarg_size 112
  .amdhsa_user_sgpr_count 2
  .amdhsa_user_sgpr_kernarg_segment_ptr 1
  .amdhsa_system_sgpr_workgroup_id_x 1
.end_amdhsa_kernel
"""
def build(kernels):
    s_ = HEAD
    if len(kernels) == 1:
        n, blk, lds, body = kernels[0]
        s_ += f"; @launch grid=(256,1,1) block=({blk},1,1) lds={lds}\n"
    else:
        for n, blk, lds, body in kernels:
            s_ += f"; @launch kernel={n} grid=(256,1,1) block=({blk},1,1) lds={lds}\n"
    s_ += '.amdgcn_target "amdgcn-amd-amdhsa--gfx950"\n'
    for n, blk, lds, body in kernels:
        s_ += f".text\n.globl {n}\n.p2align 8\n.type {n},@function\n{n}:\n{body}" + kd(n)
    return s_

if __name__ == "__main__":
    out = sys.argv[1]
    OPT = set(sys.argv[2:])
    STAMP = "stamp" in OPT
    ks = [(NAME + "_kernel", 512, LDS_BYTES, None)]
    for o in OPT:
        if "=" in o and o.split("=")[0] in PRM: PRM[o.split("=")[0]] = int(o.split("=")[1])
        if o.startswith("only="):
            STAMP = True; ONLY = int(o[5:])
            ks.append(("wait_kernel", 256, 1024, waitk(ONLY)))
    ks[0] = ks[0][:3] + (kernel(),)
    open(out, "w").write(build(ks))
```

```python
import sys, math, struct
from asmgen import *

NAME = "gated_mix__grouped_kv_mqa__dense_activation_squared_relu__prompt"
TS = 2304
WS_KV = 0
WS_NONCE = 0x2c000
WS_HF = 0x28000
WS_O  = 0x40000
WS_H  = 0x240000
WS_END = WS_H + 32*112*2048
L_X, L_WQ, L_RING, RING_W, RD = 0, 65536, 65536, 17408, 8
L_WKV = 135168; L_STG = L_WKV; L_QF = L_WKV + 8192
L_G = 151552; L_GW = L_G + 1024; L_CNT = L_G + 256
C_Q, C_F, C_T, C_K = 16, 20, 24, 28
CT = [8, 3, 3, 4]
LDS_BYTES = 163840
XO, XK = 13824, 4608
QSCALE = 0.25 * math.log2(math.e)
def f2u(x): return struct.unpack("<I", struct.pack("<f", x))[0]
S_W, S_G, S_MU, S_J, S_M4, S_TAG = 3, 4, 5, 15, 58, 59
P = dict(x=16, wq=18, wk=20, wv=22, wo=24, bx=26, w1=28, b1=30, w2=32, b2=34, gate=36, out=38, dbg=40, ws=42)
SZ = dict(x=2048*1024, wq=512*1024, wo=512*1024, w1=512*3584, b1=3584, w2=1792*1024, b2=1024, gate=1024, out=2048*1024, dbg=256, ws=WS_END)
BIG = 0x40000000
SPIN = 8000
STAMP = False; ONLY = None; OPT = set()
PRM = dict(w1pos=3, apf=0, w1wait=1, tagat=8, kvat=32, ckpos=1, wqlate=0, wqt=1, aprio=0, g0d=0, qnb=4, qprio=1, xsleep=2, nsw=6, chk3=1, w1t=0, NPRE=0, gp0=0, b3b=1, D1=4, D2W=3, D2H=2, DO=3, DOV=0, hpace=3, ost=0, ND=8, hsleep=4, oat=26, isleep=4, gpx=8, tsleep=0)
WS_STAMP = 0xC00000
SX, SWQ, SWKV, SW1, SB1, SGT, SWS, SDBG, SW2, SWO, SOUT = 44, 48, 52, 56, 60, 64, 68, 72, 76, 80, 84
SB2 = 48
VLIN = 2
PITCH = 272

def srd(a, d, name):
    a.i(f"s_mov_b32 s{d}, s{P[name]}")
    a.i(f"s_mov_b32 s{d+1}, s{P[name]+1}")
    a.i(f"s_mov_b32 s{d+2}, {SZ[name]:#x}")
    a.i(f"s_mov_b32 s{d+3}, 0x20000")
def R(d): return f"s[{d}:{d+3}]"

ST_A = {0: 100, 1: 88, 2: 90, 3: 92, 4: 94, 5: 96, 6: 98, 7: 44}
CY_A = {4: 46, 5: 72}
ST_G = {0: 100, 15: 88, 8: 90, 14: 92, 16: 94, 17: 96, 18: 98, 19: 26, 9: 18, 10: 20, 11: 22, 12: 72, 13: 74, 7: 44}
NST = 20
def stamping(idx): return STAMP and (ONLY is None or idx == ONLY)
def stamp_init(a, role):
    if not STAMP: return
    for i, r in (ST_A if role == "A" else ST_G).items():
        if r >= 88 and i: a.i(f"s_mov_b32 s{r}, -1")
def stamp(a, idx, role, first=False):
    if not stamping(idx) or first: return
    role = "A" if role == AST else "G"
    r = (ST_A if role == "A" else ST_G)[idx]
    a.i(f"s_memrealtime s[{r}:{r+1}]")
    if role == "A" and idx in CY_A: a.i(f"s_memtime s[{CY_A[idx]}:{CY_A[idx]+1}]")
def stamp_dump(a, role):
    if not STAMP: return
    T = ST_A if role == "A" else ST_G
    a.i("s_waitcnt vmcnt(0) lgkmcnt(0)")
    a.i(f"s_mov_b32 s{SWS+2}, 0x1000000")
    a.i("s_lshl_b32 s8, s2, 3")
    a.i(f"s_add_u32 s8, s8, s{S_W}")
    a.i("s_lshl_b32 s8, s8, 3")
    a.i(f"s_add_u32 s8, s8, {WS_STAMP + 0x10000}")
    a.i("s_mov_b64 exec, 1")
    for idx in range(NST):
        if stamping(idx):
            a.i(f"v_mov_b32 v{2*idx}, {'s%d' % T[idx] if idx in T else -1}")
            a.i(f"v_mov_b32 v{2*idx+1}, {'s%d' % CY_A[idx] if role == 'A' and idx in CY_A else ('s65' if role == 'A' else 's99') if idx == 7 else 0}")
            a.i(f"s_add_u32 s9, s8, {idx*16384}")
            a.i(f"buffer_store_dwordx2 v[{2*idx}:{2*idx+1}], off, {R(SWS)}, s9")
def waitk(idx, ticks=6000):
    a = Asm()
    a.i("s_cmp_ge_u32 s2, 1"); a.i("s_cbranch_scc1 L_w_end")
    a.i("s_load_dwordx2 s[42:43], s[0:1], 104")
    a.i("v_lshlrev_b32 v1, 6, v0")
    a.i("v_mov_b32 v2, 0")
    a.i("ds_write_b32 v2, v2")
    a.i("s_waitcnt lgkmcnt(0)")
    a.i("s_barrier")
    a.i("s_mov_b32 s92, s42"); a.i("s_mov_b32 s93, s43"); a.i("s_mov_b32 s94, 0x1000000"); a.i("s_mov_b32 s95, 0x20000")
    a.i(f"s_mov_b32 s10, {WS_STAMP + 0x10000 + idx*16384}")
    for k in range(4): a.i(f"buffer_load_dwordx4 v[{8+4*k}:{11+4*k}], v1, s[92:95], s10 offen offset:{16*k}")
    a.i("s_waitcnt vmcnt(0)")
    for k in range(8):
        a.i(f"v_add_u32 v3, 1, v{8+2*k}")
        a.i("ds_max_u32 v2, v3")
        a.i("s_waitcnt lgkmcnt(0)")
    a.i("s_barrier")
    a.i("ds_read_b32 v3, v2")
    a.i("s_waitcnt lgkmcnt(0)")
    a.i("v_readfirstlane_b32 s11, v3")
    a.i("s_mov_b32 s12, 20000")
    a.label("L_w_loop")
    a.i("s_memrealtime s[8:9]")
    a.i("s_waitcnt lgkmcnt(0)")
    a.i("s_sub_u32 s8, s8, s11")
    a.i(f"s_cmp_ge_u32 s8, {ticks}")
    a.i("s_cbranch_scc1 L_w_end")
    a.i("s_sub_u32 s12, s12, 1")
    a.i("s_cmp_lg_u32 s12, 0")
    a.i("s_cbranch_scc1 L_w_loop")
    a.label("L_w_end"); a.i("s_endpgm")
    return a.finish()

def mfma(a, d, A, B, C=None):
    c = v(d, 16) if C is None else C
    a.i(f"v_mfma_f32_32x32x16_bf16 {v(d,16)}, {v(A,4)}, {v(B,4)}, {c}")
def mfma16(a, d, A, B, C=None):
    c = v(d, 4) if C is None else C
    a.i(f"v_mfma_f32_16x16x32_bf16 {v(d,4)}, {v(A,4)}, {v(B,4)}, {c}")

def tr_addr(a, dst, t0, t1, rowmul_h):
    a.i(f"v_lshrrev_b32 v{t0}, 5, v0")
    a.i(f"v_mul_u32_u24 v{t0}, {rowmul_h}, v{t0}")
    a.i(f"v_bfe_u32 v{t1}, v0, 2, 2")
    a.i(f"v_add_u32 v{t0}, v{t0}, v{t1}")
    a.i(f"v_lshlrev_b32 v{dst}, 7, v{t0}")
    a.i(f"v_and_b32 v{t1}, 3, v0")
    a.i(f"v_lshl_add_u32 v{dst}, v{t1}, 3, v{dst}")
    a.i(f"v_bfe_u32 v{t1}, v0, 4, 1")
    a.i(f"v_lshl_add_u32 v{dst}, v{t1}, 5, v{dst}")
    a.i(f"v_bfe_u32 v{t1}, v0, 3, 1")
    a.i(f"v_lshl_add_u32 v{dst}, v{t1}, 6, v{dst}")

def xfrag_addr(a, dst, t0, t1):
    a.i(f"v_bfe_u32 v{t0}, v0, 1, 3")
    a.i(f"v_lshrrev_b32 v{t1}, 5, v0")
    a.i(f"v_xor_b32 v{t0}, v{t0}, v{t1}")
    a.i(f"v_and_b32 v{t1}, 31, v0")
    a.i(f"v_lshlrev_b32 v{t1}, 7, v{t1}")
    for q in range(4):
        a.i(f"v_xor_b32 v{dst+q}, {2*q}, v{t0}")
        a.i(f"v_lshl_add_u32 v{dst+q}, v{dst+q}, 4, v{t1}")

def wchunk_addr(a, dst, t0, pitch):
    a.i(f"v_lshrrev_b32 v{t0}, 3, v0")
    a.i(f"v_mul_u32_u24 v{dst}, {pitch}, v{t0}")
    a.i(f"v_bfe_u32 v{t0}, v0, 4, 1")
    a.i(f"v_lshlrev_b32 v{t0}, 2, v{t0}")
    a.i(f"v_xor_b32 v{t0}, v{t0}, v0")
    a.i(f"v_and_b32 v{t0}, 7, v{t0}")
    a.i(f"v_lshl_add_u32 v{dst}, v{t0}, 4, v{dst}")
    a.i(f"v_add_u32 v{dst+1}, {8*pitch - 1024}, v{dst}")
def wstep(a, va, srd_, so, dst=None, tag=None):
    if dst is None:
        a.i(f"buffer_load_dwordx4 v{va}, {R(srd_)}, s{so} offen lds", tag=tag)
        a.i(f"buffer_load_dwordx4 v{va+1}, {R(srd_)}, s{so} offen offset:1024 lds", tag=tag)
    else:
        a.i(f"buffer_load_dwordx4 {v(dst,4)}, v{va}, {R(srd_)}, s{so} offen", tag=tag)
        a.i(f"buffer_load_dwordx4 {v(dst+4,4)}, v{va+1}, {R(srd_)}, s{so} offen offset:1024", tag=tag)

def run(a, items):
    for t in items: t() if callable(t) else a.i(t)

def spin_tail(a, cnt, again, done, sleep=0):
    a.i(f"s_sub_u32 s{cnt}, s{cnt}, 1")
    a.i(f"s_cmp_eq_u32 s{cnt}, 0")
    a.i(f"s_cbranch_scc1 {done}")
    if sleep: a.i(f"s_sleep {sleep}")
    a.i(f"s_branch {again}")

def cnt_add(a, vc, vone, off):
    a.i("s_mov_b64 exec, 1")
    a.i(f"ds_add_u32 v{vc}, v{vone} offset:{off}")
    a.i("s_mov_b64 exec, -1")
def cnt_wait(a, vc, vt, off, n, name, st, extra=None):
    a.label(name)
    a.i(f"ds_read_b32 v{vt}, v{vc} offset:{off}")
    if extra: extra()
    a.i("s_waitcnt lgkmcnt(0)"); a.lg = []
    a.i(f"v_readfirstlane_b32 s{st}, v{vt}")
    a.i(f"s_cmp_ge_u32 s{st}, {n}")
    a.i(f"s_cbranch_scc0 {name}")

def xpairs(a, VE, VO, sbase, st, tagf):
    for sl in range(8):
        a.i(f"s_add_u32 m0, s{sbase}, {L_X + sl*8192}")
        if sl:
            a.i(f"s_add_u32 s{st}, s{st}, 128")
            a.i(f"s_and_b32 s{st}, s{st}, 0x380")
        a.i(f"buffer_load_dwordx4 v{VE}, {R(SX)}, s{st} offen lds")
        a.i(f"buffer_load_dwordx4 v{VO}, {R(SX)}, s{st} offen offset:1024 lds", tag=tagf(sl))

def final_stage(a, T):
    RA, RB, SO = T, T+1, T+2
    B = T + 4
    for w in range(4):
        for hf in range(2):
            a.i(f"ds_read_b128 {v(B + w*8 + 4*hf,4)}, v{RA if w < 2 else RB} offset:{(w&1)*RING_W + 16*hf}", tag=("p", w))
    a.wait(lg=("p", 1))
    for r in range(0, 8, 2): a.i(f"v_pk_add_f32 {v(B+r,2)}, {v(B+r,2)}, {v(B+8+r,2)}")
    a.wait(lg=("p", 3))
    for r in range(0, 8, 2): a.i(f"v_pk_add_f32 {v(B+16+r,2)}, {v(B+16+r,2)}, {v(B+24+r,2)}")
    for r in range(0, 8, 2): a.i(f"v_pk_add_f32 {v(B+r,2)}, {v(B+r,2)}, {v(B+16+r,2)}")
    for j in range(4): a.i(f"v_cvt_pk_bf16_f32 v{B+8+j}, v{B+2*j}, v{B+2*j+1}")
    a.i(f"buffer_store_dwordx4 {v(B+8,4)}, v{SO}, {R(SOUT)}, s10 offen" + ["", " sc1", " nt", " sc0 sc1", " sc0 sc1 nt"][PRM["ost"]])
def final_addr(a, T):
    RA, RB, SO, t = T, T+1, T+2, T+3
    a.i(f"v_lshrrev_b32 v{SO}, 3, v0")
    a.i(f"s_lshl_b32 s10, s{S_W}, 3")
    a.i(f"v_add_u32 v{SO}, s10, v{SO}")
    a.i(f"v_and_b32 v{t}, 7, v0")
    a.i(f"v_mul_u32_u24 v{RA}, {PITCH}, v{SO}")
    a.i(f"v_lshl_add_u32 v{RA}, v{t}, 5, v{RA}")
    a.i(f"v_add_u32 v{RA}, {L_RING}, v{RA}")
    a.i(f"v_add_u32 v{RB}, {2*RING_W}, v{RA}")
    a.i(f"v_lshlrev_b32 v{SO}, 10, v{SO}")
    a.i(f"v_lshl_add_u32 v{SO}, v{t}, 4, v{SO}")
    a.i(f"s_lshl_b32 s10, s{S_G}, 16")
    a.i(f"s_lshl_b32 s11, s{S_MU}, 7")
    a.i("s_add_u32 s10, s10, s11")
    srd(a, SOUT, "out")

VV1, VV0, VG, T0, T1 = 1, 3, 4, 6, 7
Q, S, Pq, F, O = 8, 64, 96, 104, 128
KVS = [40, 52, 104, 116]
AST = 94
SKO, SKL, SIT, SSP, SKC, SKV = 62, 63, 64, 65, 66, 76
VW1K_A = 12

def wq_round(a, r):
    a.i(f"s_add_u32 s10, s9, {r << 17}")
    a.i("s_and_b32 s10, s10, 0x7ffff")
    a.i("s_add_u32 s11, s10, 16384")
    for e in range(2):
        a.i(f"s_add_u32 m0, s8, {r*16384 + e*2048}")
        wstep(a, VW1K_A, SWQ, 10+e, tag=("wq", r))

def kernel():
    a = Asm()
    if STAMP: a.i("s_memrealtime s[100:101]")
    a.i("s_cmp_ge_u32 s2, 256")
    a.i("s_cbranch_scc1 L_end")
    a.i("s_load_dwordx16 s[16:31], s[0:1], 0")
    a.i("s_load_dwordx8 s[32:39], s[0:1], 64")
    a.i("s_load_dwordx4 s[40:43], s[0:1], 96")
    a.i("s_getpc_b64 s[44:45]")
    a.label("L_pc")
    a.i("s_mov_b32 s46, L_code_end-L_pc")
    a.i("s_mov_b32 s47, 0x20000")
    a.i("s_lshr_b32 s7, s2, 3")
    a.i("s_lshl_b32 s6, s7, 11")
    a.i("v_lshlrev_b32 v1, 2, v0")
    a.i("buffer_load_dword v255, v1, s[44:47], s6 offen ; touch")
    a.i("v_lshrrev_b32 v1, 6, v0")
    a.i("v_and_b32 v0, 63, v0")
    a.i(f"v_readfirstlane_b32 s{S_W}, v1")
    if PRM["gpx"] == 4:
        a.i("s_and_b32 s6, s2, 7")
        a.i(f"s_and_b32 s{S_MU}, s7, 7")
        a.i(f"s_lshr_b32 s{S_J}, s7, 3")
        a.i("s_lshl_b32 s6, s6, 2")
        a.i(f"s_add_u32 s{S_G}, s6, s{S_J}")
        a.i(f"s_lshl_b32 s{S_J}, s{S_J}, 1")
    else:
        a.i("s_and_b32 s6, s2, 1")
        a.i("s_lshl_b32 s6, s6, 2")
        a.i(f"s_and_b32 s{S_MU}, s7, 3")
        a.i(f"s_add_u32 s{S_MU}, s{S_MU}, s6")
        a.i(f"s_lshr_b32 s{S_J}, s7, 2")
        a.i("s_and_b32 s6, s2, 6")
        a.i("s_lshl_b32 s6, s6, 2")
        a.i(f"s_add_u32 s{S_G}, s6, s{S_J}")
    a.i(f"v_lshlrev_b32 v{VLIN}, 4, v0")
    a.i(f"s_cmp_ge_u32 s{S_W}, 4")
    a.i("s_cbranch_scc1 L_G")
    vm0 = list(a.vm)
    stamp_init(a, "A")
    if PRM["aprio"]: a.i("s_setprio 3")
    wchunk_addr(a, VW1K_A, 14, 1024)
    a.i(f"s_lshl_b32 s9, s{S_W}, 15")
    a.i(f"s_lshl_b32 s10, s{S_MU}, 7")
    a.i("s_add_u32 s9, s9, s10")
    a.i(f"s_lshl_b32 s10, s{S_J}, 16")
    a.i("s_add_u32 s9, s9, s10")
    a.i(f"s_lshl_b32 s8, s{S_W}, 12")
    a.i(f"s_add_u32 s8, s8, {L_WQ}")
    a.i("s_waitcnt lgkmcnt(0)")
    srd(a, SWQ, "wq")
    if PRM["wqt"]:
        a.i("s_lshl_b32 s10, s2, 2")
        a.i(f"s_add_u32 s10, s10, s{S_W}")
        a.i("s_lshl_b32 s10, s10, 9")
        a.i("s_mov_b32 exec_hi, 0")
        a.i(f"buffer_load_dwordx4 v[104:107], v{VLIN}, {R(SWQ)}, s10 offen")
        a.i("s_mov_b32 exec_hi, -1")
    if PRM["w1t"]:
        srd(a, SW1, "w1")
        a.i("s_lshl_b32 s10, s2, 2")
        a.i(f"s_add_u32 s10, s10, s{S_W}")
        a.i("s_mul_i32 s10, s10, 1792")
        a.i("v_lshlrev_b32 v14, 6, v0")
        a.i("s_mov_b64 exec, 0xfffffff")
        a.i(f"buffer_load_dword v108, v14, {R(SW1)}, s10 offen")
        a.i("s_mov_b64 exec, -1")
    if not PRM["wqlate"]: wq_round(a, 0)
    vmA = list(a.vm)
    if PRM["aprio"]: a.i("s_setprio 0")
    a.i("s_branch L_A")
    a.label("L_G")
    stamp_init(a, "G")
    if STAMP: a.i("s_waitcnt lgkmcnt(0)"); a.i("s_mov_b32 s26, -1")
    a.vm = list(vm0)
    VGE, VXE, VXO = 8, 9, 10
    a.i("v_bfe_u32 v14, v0, 4, 2")
    a.i("v_and_b32 v15, 7, v0")
    a.i("v_xor_b32 v14, v14, v15")
    a.i(f"v_lshlrev_b32 v{VGE}, 4, v14")
    a.i("v_lshrrev_b32 v14, 3, v0")
    a.i(f"s_sub_u32 s6, s{S_W}, 4")
    a.i(f"s_add_u32 s12, s{S_MU}, s6")
    a.i("s_and_b32 s12, s12, 3")
    a.i(f"s_lshl_b32 s7, s{S_G}, 2")
    a.i("s_add_u32 s7, s7, s12")
    a.i("s_lshl_b32 s7, s7, 4")
    a.i("v_add_u32 v14, s7, v14")
    a.i(f"v_lshl_add_u32 v{VXE}, v14, 10, v{VGE}")
    a.i(f"v_xor_b32 v{VXO}, 64, v{VXE}")
    a.i(f"v_add_u32 v{VXO}, {8192-1024}, v{VXO}")
    a.i("s_lshl_b32 s10, s12, 11")
    a.i(f"s_lshl_b32 s11, s{S_J}, 7")
    a.i(f"s_lshl_b32 s9, s{S_J}, 11")
    a.i("s_setprio 2")
    a.i("s_cmp_lg_u32 s6, 0")
    a.i("s_cbranch_scc1 L_G123")
    vmG = list(a.vm)
    g0_front(a, VXE, VXO)
    a_waves(a, vmA)
    g_waves(a, VGE, VXE, VXO, vmG)
    a.label("L_end")
    a.i("s_endpgm")
    a_slow(a)
    a.label("L_code_end")
    return a.finish()

GW, GSP = 6, 99
def kv_addr(a):
    a.i(f"s_and_b32 s7, s{S_MU}, 3")
    a.i(f"s_cmp_ge_u32 s{S_MU}, 4")
    a.i("s_cselect_b32 s8, 8, 9")
    a.i("s_cselect_b32 s13, 9, 8")
    a.i("s_cselect_b32 s60, 1024, 0")
    a.i("s_and_b32 s61, s7, 1")
    a.i("s_lshl_b32 s61, s61, s13")
    a.i("s_add_u32 s60, s60, s61")
    a.i(f"s_lshl_b32 s61, s{S_G}, 1")
    a.i("s_lshr_b32 s13, s7, 1")
    a.i("s_add_u32 s61, s61, s13")
    a.i(f"s_mul_i32 s61, s61, {TS}")
    a.i("s_add_u32 s60, s60, s61")
    a.i("v_bfe_u32 v15, v0, 4, 1")
    a.i("v_lshlrev_b32 v15, s8, v15")
    a.i("v_and_b32 v24, 15, v0")
    a.i("v_lshl_add_u32 v23, v24, 4, v15")
def g0_front(a, VXE, VXO):
    if not PRM["aprio"]: a.i("s_setprio 3")
    kv_addr(a)
    a.i("v_cmp_gt_u32 vcc, 32, v0")
    a.i("v_mov_b32 v36, 0x3f803f80")
    a.i("s_sub_u32 s13, s61, s60")
    a.i("s_add_u32 s13, s13, 2048")
    a.i("v_mov_b32 v37, s13")
    a.i("v_cndmask_b32 v38, v37, v23, vcc")
    for r in range(32, 36): a.i(f"v_cndmask_b32 v{r}, v36, -1, vcc")
    a.i(f"s_lshr_b32 s8, s{S_MU}, 2")
    a.i("s_lshl_b32 s8, s8, 1")
    a.i("s_and_b32 s7, s7, 1")
    a.i("s_add_u32 s8, s8, s7")
    a.i("s_lshl_b32 s8, s8, 2")
    a.i("s_add_u32 s61, s61, s8")
    a.i(f"s_mov_b32 s8, {WS_NONCE}")
    a.i("s_waitcnt lgkmcnt(0)")
    srd(a, SWS, "ws")
    a.i(f"buffer_load_dword v40, off, {R(SWS)}, s8 sc1")
    a.i(f"buffer_store_dwordx4 v[32:35], v38, {R(SWS)}, s60 offen sc1", tag="mark")
    srd(a, SX, "x")
    a.i(f"s_cmp_ge_u32 s{S_MU}, 4")
    a.i(f"s_cselect_b32 s{SWKV}, s{P['wv']}, s{P['wk']}")
    a.i(f"s_cselect_b32 s{SWKV+1}, s{P['wv']+1}, s{P['wk']+1}")
    a.i(f"s_mov_b32 s{SWKV+2}, 16384")
    a.i(f"s_mov_b32 m0, {L_WKV}")
    a.i(f"s_mov_b32 s{SWKV+3}, 0x20000")
    def wpair(q):
        if q:
            a.i(f"s_mov_b32 m0, {L_WKV + q*2048}")
            a.i("s_add_u32 s9, s9, 2048")
            a.i("s_and_b32 s9, s9, 0x3fff")
        for i in range(2):
            a.i(f"buffer_load_dwordx4 v{VLIN}, {R(SWKV)}, s9 offen offset:{i*1024} lds", tag=("wk", 2*q+i))
    if PRM["g0d"]: a.i(f"s_sleep {PRM['g0d']}")
    wpair(0)
    xpairs(a, VXE, VXO, 10, 11, lambda sl: ("x", sl))
    for r in range(36, 40): a.i(f"v_mov_b32 v{r}, 0")
    a.i(f"v_mov_b32 v14, {L_CNT}")
    a.i("ds_write_b128 v14, v[36:39]")
    a.i("ds_write_b128 v14, v[36:39] offset:16")
    if PRM["aprio"]: a.i("s_setprio 3")
    a.wait(vm="mark")
    a.i("v_add_u32 v40, 0x9e3779b9, v40")
    a.i("s_mov_b64 exec, 1")
    a.i(f"buffer_store_dword v40, off, {R(SWS)}, s61 offset:{2048+128} sc1")
    a.i(f"ds_write_b32 v14, v40 offset:{C_T}")
    a.i("s_mov_b64 exec, -1")
    wpair(1)
    srd(a, SGT, "gate")
    a.i(f"s_lshl_b32 s8, s{S_J}, 7")
    a.i(f"v_add_u32 v14, s8, v{VLIN}")
    a.i(f"s_mov_b32 m0, {L_GW}")
    a.i("v_and_b32 v14, 0x3ff, v14")
    a.i(f"buffer_load_dwordx4 v14, {R(SGT)}, 0 offen lds")
    for q in range(2, 8): wpair(q)
    if "fst" in OPT: stamp(a, 16, 14)
    a.i("s_waitcnt lgkmcnt(0)"); a.lg = []
    a.i("s_barrier")
    XA, TA = 20, 22
    a.i("v_bfe_u32 v14, v0, 1, 3")
    a.i("v_lshrrev_b32 v15, 4, v0")
    a.i("v_xor_b32 v14, v14, v15")
    a.i("v_and_b32 v24, 15, v0")
    a.i("s_lshl_b32 s7, s12, 4")
    a.i("v_add_u32 v25, s7, v24")
    a.i("v_lshlrev_b32 v25, 7, v25")
    a.i(f"v_lshl_add_u32 v{XA}, v14, 4, v25")
    a.i(f"v_xor_b32 v{XA+1}, 64, v{XA}")
    a.i("v_bfe_u32 v14, v0, 2, 2")
    a.i("v_lshl_add_u32 v14, v15, 3, v14")
    a.i(f"v_lshlrev_b32 v{TA}, 5, v14")
    a.i("v_and_b32 v14, 3, v0")
    a.i(f"v_lshl_add_u32 v{TA}, v14, 3, v{TA}")
    a.i(f"v_add_u32 v{TA}, {L_WKV}, v{TA}")
    a.i(f"s_mov_b32 s{GSP}, {SPIN}")
    for r in range(34, 36): a.i(f"v_mov_b32 v{r}, 0")
    a.i(f"v_mov_b32 v14, {L_CNT}")
    a.i("v_mov_b32 v15, 1")
    a.i(f"s_cmp_ge_u32 s{S_MU}, 4")
    a.i("s_cbranch_scc1 L_G0_V")
    vm1 = list(a.vm); lg1 = list(a.lg)
    for orient in range(2):
        if orient:
            a.label("L_G0_V"); a.vm = list(vm1); a.lg = list(lg1)
        NB_ = 4
        def rd(sx):
            b = 64 + 8*(sx % NB_)
            a.wait(vm=[("wk", sx), ("x", sx >> 1)])
            if "fst" in OPT and sx in (0, 4): stamp(a, 17 + sx//4, 14)
            if sx == 4: cnt_add(a, 14, 15, 0)
            a.i(f"ds_read_b64_tr_b16 {v(b,2)}, v{TA} offset:{sx*1024}")
            a.i(f"ds_read_b64_tr_b16 {v(b+2,2)}, v{TA} offset:{sx*1024+128}")
            a.i(f"ds_read_b128 {v(b+4,4)}, v{XA + (sx&1)} offset:{(sx>>1)*8192}", tag=("c", sx))
        for sx in range(NB_): rd(sx)
        for sx in range(16):
            a.wait(lg=("c", sx))
            b = 64 + 8*(sx % NB_)
            mfma16(a, 28, *((b, b+4) if orient == 0 else (b+4, b)), "0" if sx == 0 else None)
            if sx + NB_ < 16: rd(sx + NB_)
        if orient == 0: a.i("s_branch L_G0_pub")
    a.label("L_G0_pub")
    cnt_add(a, 14, 15, 12)
    stamp(a, 15, 250)
    a.i("s_nop 1")
    a.i("v_cvt_pk_bf16_f32 v32, v28, v29")
    a.i("v_cvt_pk_bf16_f32 v33, v30, v31")
    a.i("v_min_u32 v32, -2, v32")
    a.i("s_nop 0")
    a.i("v_permlane32_swap_b32 v33, v35")
    a.i("v_permlane32_swap_b32 v32, v34")
    a.i("s_mov_b32 exec_hi, 0")
    a.i(f"buffer_store_dwordx4 v[32:35], v23, {R(SWS)}, s60 offen sc1")
    a.i("s_mov_b32 exec_hi, -1")
    stamp(a, 8, 14)
    g_setup(a)
    a.i("s_setprio 2")
    if PRM["w1pos"] != 3: g_w1first(a, "L_G0_now1")
    a.i("s_branch L_G_ffn1")

def kvload(a, st, so=SKO, off=0, SWS=SKV):
    b = KVS[st]
    return [
        lambda: a.i(f"buffer_load_dwordx4 {v(b,4)}, v{VLIN}, {R(SWS)}, s{so} offen offset:{off} sc1", tag=("kv", st)),
        lambda: a.i(f"buffer_load_dwordx4 {v(b+4,4)}, v{VV0}, {R(SWS)}, s{so} offen offset:{off+1024} sc1", tag=("kv", st)),
        lambda: a.i(f"buffer_load_dwordx4 {v(b+8,4)}, v{VV1}, {R(SWS)}, s{so} offen offset:{off+1024} sc1", tag=("kv", st))]
def kvfirstcheck(a):
    b0 = KVS[0]
    a.i(f"v_max3_u32 v{T0}, v{b0}, v{b0+4}, v{b0+8}")
    if PRM["chk3"]:
        b1, b2 = KVS[1:3]
        a.i(f"v_max3_u32 v{T1}, v{b1}, v{b1+4}, v{b1+8}")
        a.i(f"v_max3_u32 v{T0}, v{T0}, v{b2}, v{b2+4}")
        a.i(f"v_max3_u32 v{T0}, v{T0}, v{T1}, v{b2+8}")
    a.i(f"v_max_u32 v{T0}, v{T0}, v{KVS[3]+1}")
    a.i(f"v_cmp_eq_u32 vcc, -1, v{T0}")
def kvfirst(a):
    run(a, kvload(a, 0, SKC))
    a.i(f"buffer_load_dword v{KVS[3]+1}, v{KVS[3]}, {R(SWS)}, s{SKC} offen sc1", tag="sweep")
    run(a, kvload(a, 1, SKC, TS)); run(a, kvload(a, 2, SKO))

def attn_slot(a, i, prv, cur, nxt, extra, last=False):
    Sc = S + 16*(i & 1); Sn = S + 16*((i+1) & 1)
    e = lambda r: a.i(f"v_exp_f32 v{Sc+r}, v{Sc+r}")
    c = lambda j: a.i(f"v_cvt_pk_bf16_f32 v{Pq+j}, v{Sc+2*j}, v{Sc+2*j+1}")
    ex = lambda k: run(a, extra.get(k, []))
    e(0); e(1)
    mfma(a, O + 16*((i - 1) % 8), (cur if i > 0 else prv) + 8, Pq + 4)
    ex(0)
    for r in range(2, 7): e(r)
    ex("pre1")
    if not (last and i == 7): mfma(a, Sn, cur if i < 7 else nxt, Q + 4*((i + 1) % 8), "0")
    ex(1)
    e(7)
    for j in range(4): c(j)
    e(8); e(9)
    mfma(a, O + 16*i, cur + 4, Pq)
    ex(2)
    for r in range(10, 16): e(r)
    for j in range(4, 8): c(j)

def a_waves(a, vmA):
    VXR, VTR, VC = 88, 92, 93
    a.label("L_A")
    a.vm = list(vmA); a.lg = []
    if PRM["apf"]:
        srd(a, SW1, "w1")
        wchunk_addr(a, 16, 14, 3584)
        a.i(f"s_lshr_b32 s12, s{S_MU}, 1")
        a.i("s_mul_i32 s12, s12, 7")
        a.i(f"s_and_b32 s13, s{S_MU}, 1")
        a.i("s_lshl_b32 s13, s13, 2")
        a.i("s_add_u32 s12, s12, s13")
        a.i("s_lshl_b32 s12, s12, 7")
        a.i(f"s_lshl_b32 s13, s{S_J}, 2")
        a.i(f"s_add_u32 s13, s13, s{S_W}")
        a.i(f"s_mul_i32 s13, s13, {16*3584}")
        a.i("s_add_u32 s12, s12, s13")
    assert not PRM["apf"]
    srd(a, SWS, "ws")
    xfrag_addr(a, VXR, 14, 15)
    tr_addr(a, VTR, 14, 15, 8)
    a.i(f"s_and_b32 s6, s{S_W}, 1")
    a.i(f"s_lshr_b32 s7, s{S_W}, 1")
    a.i("s_lshl_b32 s12, s6, 6")
    a.i(f"v_xor_b32 v{VTR}, s12, v{VTR}")
    a.i(f"v_add_u32 v{VTR}, {L_WQ}, v{VTR}")
    a.i("s_lshl_b32 s12, s7, 12")
    for q in range(4): a.i(f"v_add_u32 v{VXR+q}, s12, v{VXR+q}")
    a.i(f"v_and_b32 v{T0}, 15, v0")
    a.i(f"v_lshrrev_b32 v{T1}, 5, v0")
    a.i(f"v_lshlrev_b32 v{T1}, 8, v{T1}")
    a.i(f"v_lshl_add_u32 v{VV0}, v{T0}, 4, v{T1}")
    a.i(f"v_add_u32 v{VV1}, 512, v{VV0}")
    a.i(f"v_and_b32 v{T0}, 27, v0")
    a.i(f"v_cmp_eq_u32 vcc, 16, v{T0}")
    a.i(f"v_mov_b32 v{T1}, {BIG:#x}")
    a.i("v_mov_b32 v14, 1024")
    a.i(f"v_cndmask_b32 v{T1}, v{T1}, v14, vcc")
    a.i(f"v_and_b32 v{T0}, 16, v0")
    a.i(f"v_cmp_eq_u32 vcc, 0, v{T0}")
    a.i(f"s_mul_i32 s{SKC}, s{S_W}, {16*TS}")
    a.i(f"s_add_u32 s{SKO}, s{SKC}, {2*TS}")
    a.i(f"v_cndmask_b32 v{VV0}, v{T1}, v{VV0}, vcc")
    a.i(f"v_cndmask_b32 v{VV1}, v{T1}, v{VV1}, vcc")
    srd(a, SKV, "ws")
    a.i(f"s_add_u32 s{SKV+2}, s{SKC}, {16*TS}")
    a.i(f"s_mov_b32 s{SSP}, {SPIN}")
    a.i(f"v_mov_b32 v{VC}, {L_CNT}")
    for r in range(4, 8): a.i(f"v_mov_b32 v{Pq+r}, 0")
    for r in range(8, 12): a.i(f"v_mov_b32 v{KVS[3]+r}, 0")
    for r in range(127): a.i(f"v_mov_b32 v{O+r}, 0")
    a.i(f"v_lshrrev_b32 v{VG}, 2, v0")
    a.i(f"v_mul_u32_u24 v{VG}, {TS}, v{VG}")
    a.i(f"v_and_b32 v{VG+1}, 3, v0")
    a.i(f"v_bfe_u32 v14, v0, 1, 1")
    a.i(f"v_lshl_add_u32 v{KVS[3]}, v14, 10, v{VG}")
    a.i(f"v_add_u32 v14, 8, v14")
    a.i(f"v_and_b32 v15, 1, v0")
    a.i(f"v_lshlrev_b32 v15, v14, v15")
    a.i(f"v_add_u32 v{KVS[3]}, v{KVS[3]}, v15")
    a.i(f"v_subrev_u32 v14, 4, v0")
    a.i(f"v_cmp_gt_u32 vcc, {4*PRM['nsw']}, v14")
    a.i(f"v_mov_b32 v15, {BIG:#x}")
    a.i("s_nop 0")
    a.i(f"v_cndmask_b32 v{KVS[3]}, v15, v{KVS[3]}, vcc")
    a.i(f"v_lshl_add_u32 v{VG}, v{VG+1}, 2, v{VG}")
    a.i(f"v_add_u32 v{VG}, {2048 + 128}, v{VG}")
    a.i("s_barrier")
    if PRM["wqlate"]: wq_round(a, 0)
    a.i(f"ds_read_b32 v{T0}, v{VC} offset:{C_T}")
    a.i(f"v_mov_b32 v{T1}, 1")
    a.i("s_waitcnt lgkmcnt(0)"); a.lg = []
    a.i(f"v_readfirstlane_b32 s{S_TAG}, v{T0}")
    a.wait(vm=("wq", 0))
    cnt_add(a, VC, T1, 0)
    a.i(f"v_mov_b32 v{O+127}, 0")
    a.i(f"s_setprio {PRM['qprio']}")
    cnt_wait(a, VC, T0, 0, CT[0], "L_k0", 8)
    stamp(a, 1, AST)
    def tagcheck():
        a.wait(vm="tag")
        a.i(f"v_cmp_ne_u32 vcc, s{S_TAG}, v{VG+1}")
        a.i("s_cbranch_vccnz L_tagr")
        a.label("L_tag_ok")
        stamp(a, 3, AST)
        a.vm = []
        kvfirst(a)
        if PRM["w1pos"] == 3 and PRM["ckpos"]: cnt_add(a, VC, T1, C_K)
    FRS = [8, 16, 24, 32, 40]; NB_ = PRM["qnb"]
    assert NB_ == 4 or PRM["kvat"] >= 32
    def rd(sx):
        b = FRS[sx % NB_]
        a.i(f"ds_read_b64_tr_b16 {v(b,2)}, v{VTR} offset:{sx*2048}")
        a.i(f"ds_read_b64_tr_b16 {v(b+2,2)}, v{VTR} offset:{sx*2048+512}")
        a.i(f"ds_read_b128 {v(b+4,4)}, v{VXR + (sx&3)} offset:{(sx>>2)*8192}", tag=("c", sx))
    for sx in range(NB_-1): rd(sx)
    for sx in range(32):
        nx = sx + NB_ - 1
        if nx < 32 and nx % 8 == 8 - NB_ and nx < 24: a.i(f"ds_read_b32 v{T0}, v{VC} offset:{4*(nx//8 + 1)}")
        if nx < 32 and nx % 8 == 0:
            a.i(f"v_readfirstlane_b32 s8, v{T0}")
            a.i(f"s_cmp_ge_u32 s8, {CT[nx//8]}")
            a.i(f"s_cbranch_scc0 L_k{nx//8}")
            a.label(f"L_k{nx//8}_ok")
        if nx < 32: rd(nx)
        if sx == PRM["tagat"]: a.i(f"buffer_load_dword v{VG+1}, v{VG}, {R(SWS)}, s{SKC} offen sc1", tag="tag")
        if sx == PRM["kvat"]: tagcheck()
        a.wait(lg=("c", sx))
        b = FRS[sx % NB_]
        mfma(a, S, b, b+4, "0" if sx == 0 else None)
    stamp(a, 2, AST)
    a.i("s_lshl_b32 s8, s6, 12")
    a.i("s_lshl_b32 s9, s7, 10")
    a.i("s_add_u32 s8, s8, s9")
    a.i(f"s_add_u32 s8, s8, {L_QF}")
    a.i(f"v_add_u32 v{T0}, s8, v{VLIN}")
    a.i(f"s_mov_b32 s10, {f2u(QSCALE):#x}")
    for k in range(4):
        a.i(f"s_add_u32 s8, s{S_W}, {k+1}")
        a.i("s_and_b32 s8, s8, 3")
        a.i("s_lshl_b32 s8, s8, 11")
        a.i(f"s_add_u32 s8, s8, {L_QF}")
        a.i(f"v_add_u32 v{VXR+k}, s8, v{VLIN}")
    a.i(f"v_mov_b32 v{T1}, 1")
    for r in range(16): a.i(f"v_mul_f32 v{S+r}, s10, v{S+r}")
    for j in range(8): a.i(f"v_cvt_pk_bf16_f32 v{80+j}, v{S+2*j}, v{S+2*j+1}")
    for e in range(2): a.i(f"ds_write_b128 v{T0}, {v(80+4*e,4)} offset:{2048*e}")
    cnt_add(a, VC, T1, C_Q)
    if PRM["kvat"] >= 32: tagcheck()
    def qreads():
        for i in range(8): a.i(f"ds_read_b128 {v(Q+4*i,4)}, v{VXR + (i>>1)} offset:{1024*(i&1)}")
    cnt_wait(a, VC, VTR, C_Q, 4, "L_qwait", 8, qreads)
    a.i(f"v_mov_b32 v{VG}, v{VC}")
    a.i(f"v_mov_b32 v{VG+1}, 1")
    a.wait(vm="all" if PRM["chk3"] else "sweep")
    kvfirstcheck(a)
    a.i("s_cbranch_vccnz L_kvr_first")
    a.label("L_kv_first_ok")
    if PRM["w1pos"] == 3 and not PRM["ckpos"]: cnt_add(a, VG, VG+1, C_K)
    stamp(a, 4, AST)
    mfma(a, S, KVS[0], Q, "0")
    a.i("s_setprio 1")
    a.i(f"s_mov_b32 s{SIT}, 4")
    a.i("s_nop 8")
    a.i("s_branch L_attn_in")
    def tile(t, last=False):
        prv, cur, nxt = (t-1) % 4, t, (t+1) % 4
        ld = kvload(a, prv)
        XA = KVS[2]
        for i in range(8):
            extra = {}
            if not last:
                if i == 0: extra = {0: [f"s_add_u32 s{SKO}, s{SKO}, {TS}"], 1: [ld[0]], 2: [ld[1]]}
                if i == 1: extra = {0: [ld[2]]}
                if i == 7:
                    extra = {0: [lambda: a.wait(vm=("kv", nxt))]}
                    if t == 2:
                        extra[1] = [f"s_sub_u32 s{SIT}, s{SIT}, 1"]; extra[2] = [f"s_cmp_lg_u32 s{SIT}, 0"]
                if t == 2 and i == 5: extra = {0: [f"ds_read_b32 v{VG+1}, v{VG} offset:{C_F}"]}
                if t == 2 and i == 6: extra = {0: ["s_waitcnt lgkmcnt(0)"]}
            elif i >= 2:
                j = i - 2; k = j >> 1; o = k*XK + (j & 1)*2048
                extra = {0: [f"ds_write_b128 v{XA+k}, {v(O+16*j,4)} offset:{o}"],
                         1: [f"ds_write_b128 v{XA+k}, {v(O+16*j+4,4)} offset:{o+1024}"]}
                if j & 1: extra[2] = [f"ds_write2st64_b32 v{XA+3+k}, v{O+16*j-8}, v{O+16*j+8} offset0:{k*XK//256} offset1:{k*XK//256+1}"]
            attn_slot(a, i, KVS[prv], KVS[cur], KVS[nxt], extra, last)
    a.raw(".p2align 6")
    a.label("L_attn_loop")
    a.vm = [("kv", 0)]*3 + [("kv", 1)]*3; a.lg = []
    tile(3)
    a.label("L_attn_in")
    for t in range(3): tile(t)
    a.i("s_cbranch_scc1 L_attn_loop")
    a.lg = []
    a.i(f"v_readfirstlane_b32 s8, v{VG+1}")
    XA = KVS[2]
    a.i(f"v_lshlrev_b32 v{T1}, 2, v0")
    for k in range(3):
        a.i(f"s_add_u32 s9, s{S_W}, {k+1}")
        a.i("s_and_b32 s9, s9, 3")
        a.i(f"s_mul_i32 s9, s9, {XO}")
        a.i(f"v_add_u32 v{XA+k}, s9, v{VLIN}")
        a.i("s_add_u32 s9, s9, 4096")
        a.i(f"v_add_u32 v{XA+3+k}, s9, v{T1}")
    a.i("s_cmp_ge_u32 s8, 4")
    a.i("s_cbranch_scc0 L_xwait")
    a.label("L_xok")
    tile(3, last=True)
    a.i(f"s_mul_i32 s9, s{S_W}, {XO}")
    a.i(f"v_add_u32 v{XA}, s9, v{VLIN}")
    mfma(a, O + 16*7, KVS[3] + 8, Pq + 4)
    a.i("s_add_u32 s9, s9, 4096")
    a.i(f"v_add_u32 v{XA+1}, s9, v{T1}")
    a.i(f"v_and_b32 v{T1}, 31, v0")
    a.i(f"v_lshlrev_b32 v{T1}, 2, v{T1}")
    a.i(f"v_add_u32 v{T1}, {L_G}, v{T1}")
    a.i("s_waitcnt lgkmcnt(0)"); a.lg = []
    stamp(a, 5, AST)
    a.i("s_barrier")
    a.i("s_setprio 3")
    LL = O + 16*5 + 10
    for rh in range(2):
        for k in range(3):
            o = k*XK + rh*2048; d = O + 16*(rh*3 + k)
            a.i(f"ds_read_b128 {v(d,4)}, v{XA} offset:{o}")
            a.i(f"ds_read_b128 {v(d+4,4)}, v{XA} offset:{o+1024}", tag=("x", rh, k))
        if rh == 0:
            for k in range(3): a.i(f"ds_read2st64_b32 {v(LL+2*k,2)}, v{XA+1} offset0:{k*XK//256} offset1:{k*XK//256+1}")
            a.i(f"ds_read2_b32 {v(VG,2)}, v{T1} offset0:0 offset1:32", tag="l")
    a.i(f"s_lshl_b32 s8, s{S_G}, 5")
    a.i(f"s_lshl_b32 s9, s{S_MU}, 2")
    a.i("s_add_u32 s8, s8, s9")
    a.i(f"s_add_u32 s8, s8, s{S_W}")
    a.i("s_lshl_b32 s8, s8, 11")
    a.i(f"s_add_u32 s8, s8, {WS_O}")
    a.i(f"s_mov_b32 s10, {f2u(2.0**-30):#x}")
    a.i(f"s_mov_b32 s11, {f2u(2.0**100):#x}")
    a.i("s_mov_b32 s12, 0x7f800000")
    for rh in range(2):
        f = O + 16*(6 + rh); d = O + 48*rh
        a.wait(lg=("x", rh, 1))
        for r in range(0, 8, 2): a.i(f"v_pk_add_f32 {v(d+r,2)}, {v(d+r,2)}, {v(d+16+r,2)}")
        a.wait(lg=("x", rh, 2))
        for r in range(0, 8, 2): a.i(f"v_pk_add_f32 {v(f+r,2)}, {v(f+r,2)}, {v(d+32+r,2)}")
        if rh == 0:
            a.wait(lg="l")
            a.i(f"v_pk_add_f32 {v(LL,2)}, {v(LL,2)}, {v(LL+2,2)}")
            a.i(f"v_pk_add_f32 {v(LL,2)}, {v(LL,2)}, {v(LL+4,2)}")
        a.i(f"v_add_f32 v{f+8}, v{f+8}, v{LL+rh}")
        for r in range(0, 8, 2): a.i(f"v_pk_add_f32 {v(f+r,2)}, {v(f+r,2)}, {v(d+r,2)}")
        a.i(f"v_cmp_le_f32 s[54:55], s10, v{f+8}")
        a.i(f"v_cmp_ge_f32 s[56:57], s11, v{f+8}")
        a.i(f"v_add_f32 v{T0}, abs(v{f}), abs(v{f+1})")
        for r in range(2, 8): a.i(f"v_add_f32 v{T0}, v{T0}, abs(v{f+r})")
        a.i("s_and_b64 s[54:55], s[54:55], s[56:57]")
        a.i(f"v_cmp_gt_f32 vcc, s12, v{T0}")
        a.i(f"v_rcp_f32 v{T0}, v{f+8}")
        a.i("s_and_b64 s[54:55], s[54:55], vcc")
        a.i("s_cmp_eq_u64 s[54:55], -1")
        a.i(f"s_cbranch_scc0 L_slow{rh}")
        a.label(f"L_ok{rh}")
        a.i(f"v_mul_f32 v{T0}, v{T0}, v{VG+rh}")
        for r in range(0, 8, 2): a.i(f"v_pk_mul_f32 {v(f+r,2)}, {v(f+r,2)}, {v(T0,2)} op_sel_hi:[1,0]")
        for j in range(4): a.i(f"v_cvt_pk_bf16_f32 v{S+4*rh+j}, v{f+2*j}, v{f+2*j+1}")
        a.i(f"v_min_u32 v{S+4*rh}, -2, v{S+4*rh}")
        a.i(f"buffer_store_dwordx4 {v(S+4*rh,4)}, v{VLIN}, {R(SWS)}, s8 offen offset:{1024*rh} sc1")
    if PRM["b3b"]: a.i("s_barrier")
    stamp(a, 6, AST)
    a.i("s_setprio 0")
    final_addr(a, 8)
    a.i("s_waitcnt vmcnt(0)"); a.vm = []
    a.i("s_barrier")
    final_stage(a, 8)
    stamp(a, 7, AST)
    stamp_dump(a, "A")
    a.i("s_endpgm")
    a.label("L_kvr_first")
    a.i(f"s_sub_u32 s{SSP}, s{SSP}, 1")
    a.i(f"s_cbranch_scc1 L_kv_first_ok")
    a.i("s_waitcnt vmcnt(0)"); a.vm = []
    kvfirst(a)
    a.wait(vm="all" if PRM["chk3"] else "sweep")
    kvfirstcheck(a)
    a.i("s_cbranch_vccz L_kv_first_ok")
    a.i("s_branch L_kvr_first")
    a.label("L_tagr")
    a.i("s_sleep 4")
    a.i(f"buffer_load_dword v{VG+1}, v{VG}, {R(SWS)}, s{SKC} offen sc1")
    a.i("s_waitcnt vmcnt(0)"); a.vm = []
    a.i(f"v_cmp_ne_u32 vcc, s{S_TAG}, v{VG+1}")
    a.i("s_cbranch_vccz L_tag_ok")
    spin_tail(a, SSP, "L_tagr", "L_tag_ok")
    cnt_wait(a, VG, VG+1, C_F, 4, "L_xwait", 8)
    a.i("s_branch L_xok")
    for q in range(1, 4):
        cnt_wait(a, VC, T0, 4*q, CT[q], f"L_k{q}", 8)
        a.i(f"s_branch L_k{q}_ok")

def a_slow(a):
    KV = KVS[0]
    for rh in range(2):
        f = O + 16*(6 + rh); q = Q + 4*(6 + rh)
        SS, CC, OO, PP = S + 16, KVS[2], O, Pq
        a.label(f"L_slow{rh}")
        if STAMP: a.i(f"s_sub_u32 s{SSP}, s{SSP}, 1000")
        a.i("s_waitcnt vmcnt(0)" + (" lgkmcnt(0)" if rh == 0 else ""))
        a.i(f"s_mov_b32 s{SKO}, {WS_KV}")
        a.i(f"v_mov_b32 v{T1}, 0xff800000")
        a.label(f"L_slow{rh}_a")
        run(a, kvload(a, 0, SWS=SWS))
        a.i("s_waitcnt vmcnt(0)")
        a.i(f"v_max3_u32 v{T0}, v{KV}, v{KV+4}, v{KV+8}")
        a.i(f"v_cmp_eq_u32 vcc, -1, v{T0}")
        a.i(f"s_cbranch_vccz L_slow{rh}_c")
        spin_tail(a, SSP, f"L_slow{rh}_a", f"L_slow{rh}_c")
        a.label(f"L_slow{rh}_c")
        mfma(a, SS, KV, q, "0")
        a.i("s_nop 15")
        for r in range(0, 16, 2): a.i(f"v_max3_f32 v{T1}, v{T1}, v{SS+r}, v{SS+r+1}")
        a.i(f"s_add_u32 s{SKO}, s{SKO}, {TS}")
        a.i(f"s_cmp_lt_u32 s{SKO}, {WS_KV + 64*TS}")
        a.i(f"s_cbranch_scc1 L_slow{rh}_a")
        a.i(f"v_mov_b32 v{T0}, v{T1}")
        a.i("s_nop 1")
        a.i(f"v_permlane32_swap_b32 v{T0}, v{T1}")
        a.i(f"v_max_f32 v{T1}, v{T0}, v{T1}")
        for r in range(16):
            a.i(f"v_sub_f32 v{CC+r}, 0, v{T1}")
            a.i(f"v_mov_b32 v{OO+r}, 0")
        a.i(f"s_mov_b32 s{SKO}, {WS_KV}")
        a.label(f"L_slow{rh}_b")
        run(a, kvload(a, 0, SWS=SWS))
        a.i("s_waitcnt vmcnt(0)")
        mfma(a, SS, KV, q, v(CC, 16))
        a.i("s_nop 15")
        for r in range(16): a.i(f"v_exp_f32 v{SS+r}, v{SS+r}")
        a.i("s_nop 0")
        for j in range(8): a.i(f"v_cvt_pk_bf16_f32 v{PP+j}, v{SS+2*j}, v{SS+2*j+1}")
        a.i("s_nop 1")
        mfma(a, OO, KV + 4, PP)
        mfma(a, OO, KV + 8, PP + 4)
        a.i("s_nop 15")
        a.i(f"s_add_u32 s{SKO}, s{SKO}, {TS}")
        a.i(f"s_cmp_lt_u32 s{SKO}, {WS_KV + 64*TS}")
        a.i(f"s_cbranch_scc1 L_slow{rh}_b")
        for r in range(9): a.i(f"v_mov_b32 v{f+r}, v{OO+r}")
        a.i(f"v_rcp_f32 v{T0}, v{f+8}")
        a.i("s_nop 1")
        a.i(f"s_branch L_ok{rh}")
    a.vm = []; a.lg = []

VW35, VW1K, VSW, GVC, VGG = 4, 6, 3, 12, 12
VTR_G, VTRP, VST = 224, 226, 228
VXR_G, BA1, ONE = 16, 20, 28
ACC, WF, XF, PRE, PD = 64, 32, 48, 128, 12
def g_setup(a):
    srd(a, SW1, "w1"); srd(a, SB1, "b1")
    wchunk_addr(a, VW35, 14, 3584)
    wchunk_addr(a, VW1K, 14, 1024)
    a.i(f"s_lshr_b32 s12, s{S_MU}, 1")
    a.i("s_mul_i32 s12, s12, 7")
    a.i(f"s_and_b32 s9, s{S_MU}, 1")
    a.i("s_lshl_b32 s9, s9, 2")
    a.i(f"s_add_u32 s13, s9, s{GW}")
    a.i("s_add_u32 s12, s12, s13")
    a.i("s_lshl_b32 s12, s12, 7")
    a.i(f"s_add_u32 s77, s12, {32*16*3584}")
    a.i(f"s_mul_i32 s76, s{S_J}, {4*16*3584}")
    a.i("s_add_u32 s76, s76, s12")
    a.i("v_lshlrev_b32 v14, 1, v0")
    a.i("v_cmp_gt_u32 vcc, 32, v0")
    a.i(f"v_mov_b32 v15, {BIG:#x}")
    a.i(f"v_mov_b32 v{GVC}, {L_CNT}")
    a.i("v_cndmask_b32 v11, v15, v14, vcc")
    a.i("v_mov_b32 v15, 0x3f80")
    a.i(f"v_cndmask_b32 v{ONE}, 0, v15, vcc")
    for b in (BA1, BA1+4, ONE):
        for r in range(1, 4): a.i(f"v_mov_b32 v{b+r}, 0")
    xfrag_addr(a, VXR_G, 14, 15)
    tr_addr(a, VTR_G, 14, 15, 8)
    tr_addr(a, VTRP, 14, 15, 4)
    a.i(f"s_lshl_b32 s8, s{GW}, 11")
    a.i(f"s_add_u32 s8, s8, {L_STG}")
    a.i(f"v_add_u32 v{VSW}, s8, v{VLIN}")
    a.i(f"v_add_u32 v{VST}, s8, v{VTR_G}")
    a.i(f"s_mul_i32 s14, s{GW}, {RING_W}")
    a.i(f"s_add_u32 s14, s14, {L_RING}")
    a.i(f"v_add_u32 v{VTR_G}, s14, v{VTR_G}")
    a.i(f"v_add_u32 v{VTRP}, s14, v{VTRP}")
    for r in (VTR_G, VTRP, VST): a.i(f"v_xor_b32 v{r+1}, 64, v{r}")
    a.i("v_mov_b32 v8, 1")
def w1load(a, sx):
    pre = sx < PRM["NPRE"]
    if not pre: a.i(f"s_add_u32 m0, s14, {(sx % RD)*2048}")
    a.i(f"s_add_u32 s78, s76, {16*3584}")
    wstep(a, VW35, SW1, 76, PRE+8*(sx % PD) if pre else None, ("w", sx))
    a.i("s_cmp_eq_u32 s78, s77")
    a.i("s_cselect_b32 s76, s12, s78")
def g_w1first(a, name):
    assert (PRM["D1"] <= PRM["NPRE"] < 32 and PRM["D1"] < PD) or (PRM["NPRE"] == 0 and PRM["w1pos"] == 3)
    a.i("s_cmp_eq_u32 s13, 7")
    a.i(f"s_cbranch_scc1 {name}")
    n = len(a.vm)
    for p in range(2): a.i(f"buffer_load_ushort v{BA1+4*p}, v11, {R(SB1)}, s12 offen offset:{64*p}", tag="b")
    for sx in range(PRM["D1"]): w1load(a, sx)
    a.label(name)

def g_waves(a, VGE, VXE, VXO, vmG):
    VTR, VXR, VC = VTR_G, VXR_G, GVC
    NPRE, D1, D2W, D2H, DO, ND = (PRM[k] for k in ("NPRE", "D1", "D2W", "D2H", "DO", "ND"))
    a.label("L_G123")
    a.vm = list(vmG); a.lg = []
    a.i("s_waitcnt lgkmcnt(0)")
    srd(a, SX, "x")
    srd(a, SWS, "ws")
    g_setup(a)
    srd(a, SWQ, "wq")
    a.i(f"s_mov_b32 s{GSP}, {SPIN}")
    for k in range(3):
        a.i(f"s_add_u32 s8, s{GW}, {3*k - 1}")
        a.i("s_min_u32 s8, s8, 7")
        a.i(f"s_lshl_b32 s{60+k}, s8, 11") if False else None
        a.i(f"s_lshl_b32 s{52+k}, s8, 11")
        a.i(f"s_add_u32 s{52+k}, s{52+k}, {L_WQ}")
        a.i("s_lshl_b32 s8, s8, 14")
        a.i(f"s_lshl_b32 s9, s{S_J}, 16")
        a.i("s_add_u32 s8, s8, s9")
        a.i(f"s_lshl_b32 s9, s{S_MU}, 7")
        a.i(f"s_add_u32 s{64+k}, s8, s9")
    a.i("s_waitcnt lgkmcnt(0)"); a.lg = []
    a.i("s_barrier")
    if PRM["w1pos"] == 0:
        n0 = len(a.vm); g_w1first(a, "L_G_now1"); a.vm = a.vm[:n0]
    for q in range(4):
        for sl in (2*q, 2*q+1):
            a.i(f"s_add_u32 m0, s10, {L_X + sl*8192}")
            if sl:
                a.i("s_add_u32 s11, s11, 128")
                a.i("s_and_b32 s11, s11, 0x380")
            a.i(f"buffer_load_dwordx4 v{VXE}, {R(SX)}, s11 offen lds")
            a.i(f"buffer_load_dwordx4 v{VXO}, {R(SX)}, s11 offen offset:1024 lds", tag=("k", q))
        for k in range(3 if q else 0):
            a.i(f"s_add_u32 s8, s{64+k}, {q << 17}")
            a.i(f"s_add_u32 m0, s{52+k}, {q*16384}")
            a.i("s_and_b32 s8, s8, 0x7ffff")
            wstep(a, VW1K, SWQ, 8, tag=("k", q))
        if q:
            a.wait(vm=("k", q-1))
            cnt_add(a, VC, 8, 4*(q-1))
    if PRM["w1pos"] == 2:
        a.i("s_cmp_eq_u32 s13, 7")
        a.i("s_cbranch_scc0 L_G_w1")
        a.i("s_waitcnt vmcnt(0)")
        a.label("L_G_w1")
        g_w1first(a, "L_G_now1")
    a.wait(vm=("k", 3))
    cnt_add(a, VC, 8, 12)
    stamp(a, 0, 14, first=True)
    a.label("L_G_ffn1")
    a.vm = ["b"]*2 + [("w", sx) for sx in range(D1) for _ in range(2)]
    a.label("L_G_xw")
    if PRM["xsleep"]: a.i(f"s_sleep {PRM['xsleep']}")
    a.i(f"ds_read_b128 v[32:35], v{VC}")
    a.i("s_waitcnt lgkmcnt(0)"); a.lg = []
    a.i("v_add_u32 v32, -5, v32")
    a.i("v_add_u32 v35, -1, v35")
    a.i("v_min3_i32 v33, v33, v34, v35")
    a.i("v_min_i32 v32, v32, v33")
    a.i("v_readfirstlane_b32 s8, v32")
    a.i("s_cmp_ge_i32 s8, 3")
    a.i("s_cbranch_scc0 L_G_xw")
    stamp(a, 14, 14)
    a.i("v_bfe_u32 v14, v0, 4, 2")
    a.i("v_and_b32 v15, 7, v0")
    a.i("v_xor_b32 v14, v14, v15")
    a.i(f"s_and_b32 s8, s{GW}, 1")
    a.i("s_lshl_b32 s8, s8, 2")
    a.i("v_xor_b32 v14, s8, v14")
    a.i("v_lshlrev_b32 v14, 4, v14")
    a.i(f"v_add_u32 v99, {L_GW}, v14")
    a.i("s_setprio 0")
    XG, AC, GA = 32, 96, 98
    GFA = [64 + 4*k for k in range(8)]
    def gfr():
        for kb in range(8): a.i(f"ds_read_b128 {v(GFA[kb],4)}, v99 offset:{128*kb}")
    gfr()
    a.wait(lg="all")
    a.i(f"s_lshl_b32 s8, s{GW}, 10")
    a.i(f"v_add_u32 v{GA}, s8, v{VLIN}")
    for i in range(2): a.i(f"v_mov_b32 v{AC+i}, 0")
    def grd(kb):
        for i in range(2):
            a.i(f"ds_read_b128 {v(XG + 8*(kb % 3) + 4*i,4)}, v{GA} offset:{kb*8192 + i*4096}", tag=("g", kb))
    grd(0); grd(1)
    for kb in range(8):
        if kb < 6: grd(kb+2)
        a.wait(lg=("g", kb))
        for r in range(4):
            for i in range(2):
                a.i(f"v_dot2_f32_bf16 v{AC+i}, v{XG + 8*(kb % 3) + 4*i + r}, v{GFA[kb]+r}, v{AC+i}")
    a.i(f"v_lshrrev_b32 v{GA}, 3, v0")
    a.i(f"s_lshl_b32 s9, s{GW}, 5")
    a.i(f"s_add_u32 s9, s9, {L_G}")
    for mod in ("quad_perm:[1,0,3,2]", "quad_perm:[2,3,0,1]", "row_half_mirror"):
        for i in range(2):
            a.i(f"v_add_f32_dpp v{AC+i}, v{AC+i}, v{AC+i} {mod} row_mask:0xf bank_mask:0xf")
    a.i(f"s_mov_b32 s10, {f2u(-math.log2(math.e)):#x}")
    for i in range(2): a.i(f"v_mul_f32 v{AC+i}, s10, v{AC+i}")
    for i in range(2): a.i(f"v_exp_f32 v{AC+i}, v{AC+i}")
    a.i(f"v_lshl_add_u32 v{GA}, v{GA}, 2, s9")
    for i in range(2): a.i(f"v_add_f32 v{AC+i}, 1.0, v{AC+i}")
    for i in range(2): a.i(f"v_rcp_f32 v{AC+i}, v{AC+i}")
    a.i("s_nop 0")
    for i in range(2): a.i(f"ds_write_b32 v{GA}, v{AC+i} offset:{128*i}")
    a.i("s_waitcnt lgkmcnt(0)"); a.lg = []
    a.i("s_setprio 2")
    a.i("s_cmp_eq_u32 s13, 7")
    a.i("s_cbranch_scc1 L_G_idle")
    if PRM["w1pos"] == 3:
        a.label("L_G_kw")
        a.i("s_sleep 2")
        cnt_wait(a, VC, 14, C_K, 4, "L_G_kw1", 8)
        a.ins[-1] = Ins("    s_cbranch_scc0 L_G_kw")
        a.vm = []
        g_w1first(a, "L_G3_now1")
    a.wait(vm="b")
    for p in range(2):
        for rh in range(2): mfma(a, ACC + 32*p + 16*rh, BA1 + 4*p, ONE, "0")
    def rd1(sx):
        a.wait(vm=("w", sx))
        b = sx & 1
        if sx < NPRE:
            for p in range(2): a.i(f"ds_write_b128 v{VSW}, {v(PRE+8*(sx % PD)+4*p,4)} offset:{p*1024}")
        for p in range(2):
            o = 0 if sx < NPRE else (sx % RD)*2048
            ar = (VST if sx < NPRE else VTR) + p
            a.i(f"ds_read_b64_tr_b16 {v(WF+8*b+4*p,2)}, v{ar} offset:{o}")
            a.i(f"ds_read_b64_tr_b16 {v(WF+8*b+4*p+2,2)}, v{ar} offset:{o+512}")
        for rh in range(2):
            a.i(f"ds_read_b128 {v(XF+8*b+4*rh,4)}, v{VXR+(sx&3)} offset:{(sx>>2)*8192 + rh*4096}", tag=("r", sx))
    def ringgate():
        a.i("s_setprio 2")
        cnt_wait(a, VC, 14, C_Q, 4, a.newlabel("G_ring"), 8)
        a.i("s_setprio 0")
    a.i(f"s_setprio {PRM['gp0']}")
    rd1(0)
    for sx in range(32):
        if sx in (1, 4, 8, 16) and ("fst" not in OPT or sx == 16): stamp(a, {1: 16, 4: 17, 8: 18, 16: 19}[sx], 14)
        if sx + D1 < NPRE: w1load(a, sx + D1)
        if sx < 31: rd1(sx+1)
        a.wait(lg=("r", sx))
        b = sx & 1
        for p in range(2):
            for rh in range(2):
                mfma(a, ACC + 32*p + 16*rh, WF+8*b+4*p, XF+8*b+4*rh)
        if sx + D1 == NPRE and PRM['w1pos'] != 3: ringgate()
        if NPRE <= sx + D1 < 32: w1load(a, sx + D1)
    a.i("s_setprio 2")
    cnt_add(a, VC, 8, C_F)
    if NPRE >= 32: ringgate(); a.i("s_setprio 2")
    a.label("L_G_ffn1_end")
    a.i(f"ds_read_b32 v8, v{VC} offset:{C_T}")
    a.i("s_waitcnt lgkmcnt(0)"); a.lg = []
    a.i(f"v_readfirstlane_b32 s{S_TAG}, v8")
    stamp(a, 9, 250)
    srd(a, SW2, "w2"); srd(a, SWO, "wo"); srd(a, SB2, "b2")
    BA2 = BA1
    a.i(f"s_lshl_b32 s8, s{S_MU}, 7")
    a.i(f"s_cmp_eq_u32 s{GW}, 0")
    a.i(f"s_cselect_b32 s10, s8, {BIG:#x}")
    for p in range(2): a.i(f"buffer_load_ushort v{BA2+4*p}, v11, {R(SB2)}, s10 offen offset:{64*p}", tag="b")
    a.i(f"s_lshl_b32 s10, s{S_G}, 5")
    a.i(f"s_lshl_b32 s9, s{S_MU}, 2")
    a.i("s_add_u32 s10, s10, s9")
    a.i(f"s_add_u32 s10, s10, s{GW}")
    a.i("s_lshl_b32 s10, s10, 11")
    a.i(f"s_add_u32 s10, s10, {WS_O}")
    for r in range(4): a.i(f"v_mov_b32 v{XF+r}, -1")
    for rh in range(2): a.i(f"buffer_store_dwordx4 {v(XF,4)}, v{VLIN}, {R(SWS)}, s10 offen offset:{1024*rh} sc1")
    a.i(f"s_mul_i32 s66, s{GW}, {28*16384}")
    a.i("s_add_u32 s66, s66, s8")
    a.i(f"s_lshl_b32 s58, s{GW}, 17")
    a.i("s_add_u32 s58, s58, s8")
    a.i(f"s_and_b32 s55, s{S_J}, 3" if PRM["gpx"] == 8 else f"s_lshr_b32 s55, s{S_J}, 1")
    a.i("s_lshl_b32 s67, s55, 15")
    a.i(f"s_mul_i32 s60, s{S_J}, 7")
    if PRM["gpx"] == 4: a.i(f"s_mul_i32 s61, s{S_MU}, 7")
    else:
        a.i(f"s_and_b32 s61, s{S_MU}, 3")
        a.i("s_mul_i32 s61, s61, 14")
    a.i("s_add_u32 s60, s60, s61")
    a.i("s_lshr_b32 s60, s60, 1")
    a.i("s_sub_u32 s61, s60, 28")
    a.i("s_cselect_b32 s60, s60, s61")
    a.i("s_mov_b32 s61, s66")
    a.i(f"s_add_u32 s62, s66, {28*16384}")
    a.i("s_lshl_b32 s63, s60, 14")
    a.i("s_add_u32 s66, s66, s63")
    HR, HD = 192, 8
    def dma2(sx):
        a.i(f"s_add_u32 m0, s14, {(sx % RD)*2048}")
        if sx < 28:
            a.i("s_add_u32 s63, s66, 16384")
            wstep(a, VW1K, SW2, 66, tag=("w", sx))
            a.i("s_cmp_eq_u32 s63, s62")
            a.i("s_cselect_b32 s66, s61, s63")
        else:
            a.i("s_add_u32 s63, s58, s67")
            wstep(a, VW1K, SWO, 63, tag=("w", sx))
            a.i("s_add_u32 s67, s67, 16384")
            a.i("s_and_b32 s67, s67, 0x1ffff")
    def hload(sx):
        for rh in range(2):
            a.i(f"buffer_load_dwordx4 {v(HR + 8*(sx % HD) + 4*rh,4)}, v{VLIN}, {R(SWS)}, s9 offen offset:{1024*rh} sc1", tag=("h", sx))
        a.i("s_add_u32 s9, s9, 2048")
        a.i("s_cmp_eq_u32 s9, s65")
        a.i("s_cselect_b32 s9, s64, s9")
    VTRP2 = XF + 6
    for p in range(2): a.i(f"v_mov_b32 v{VTRP2+p}, v{VTRP+p}")
    a.i(f"s_mul_i32 s8, s{S_G}, 112")
    a.i("s_lshl_b32 s10, s8, 11")
    a.i("s_lshl_b32 s9, s12, 6")
    a.i("s_add_u32 s10, s10, s9")
    a.i(f"s_add_u32 s12, s10, {WS_H}")
    a.i("s_cmp_eq_u32 s13, 7")
    a.i("s_cselect_b32 s56, 1, 0")
    a.i("s_add_u32 s13, s12, 4096")
    a.i(f"s_mul_i32 s9, s{GW}, 28")
    a.i("s_add_u32 s9, s9, s8")
    a.i("s_lshl_b32 s9, s9, 11")
    a.i(f"s_add_u32 s64, s9, {WS_H}")
    a.i(f"s_add_u32 s65, s64, {28*2048}")
    a.i("s_lshl_b32 s9, s60, 11")
    a.i("s_add_u32 s9, s9, s64")
    a.i(f"s_lshl_b32 s11, s{S_G}, 9")
    a.i(f"s_add_u32 s11, s11, {WS_HF}")
    a.i(f"s_lshr_b32 s10, s{S_MU}, 1")
    a.i("s_lshl_b32 s10, s10, 7")
    a.i("s_add_u32 s10, s10, s11")
    a.i(f"s_and_b32 s8, s{S_MU}, 1")
    a.i("s_lshl_b32 s8, s8, 2")
    a.i(f"s_add_u32 s8, s8, s{GW}")
    a.i("s_lshl_b32 s8, s8, 2")
    a.i("s_add_u32 s57, s10, s8")
    a.i(f"s_lshl_b32 s8, s{GW}, 7")
    a.i("s_add_u32 s11, s11, s8")
    a.i("v_and_b32 v14, 7, v0")
    a.i("v_lshlrev_b32 v14, 2, v14")
    a.i("s_cmp_eq_u32 s56, 1")
    a.i("s_cbranch_scc1 L_G_noh")
    for p in range(2):
        for rh in range(2):
            t = ACC + 32*p + 16*rh
            o = 192 + 8*(2*p+rh)
            for r in range(16): a.i(f"v_max_f32 v{t+r}, 0, v{t+r}")
            for r in range(0, 16, 2): a.i(f"v_pk_mul_f32 {v(t+r,2)}, {v(t+r,2)}, {v(t+r,2)}")
            for j in range(8): a.i(f"v_cvt_pk_bf16_f32 v{o+j}, v{t+2*j}, v{t+2*j+1}")
            if PRM["hpace"] and 2*p + rh >= PRM["hpace"]: a.i(f"s_waitcnt vmcnt({2*PRM['hpace'] - 2})")
            for u in range(2):
                a.i(f"buffer_store_dwordx4 {v(o+4*u,4)}, v{VLIN}, {R(SWS)}, s{12+p} offen offset:{u*2048 + rh*1024} sc1", tag="hst")
    a.label("L_G_noh")
    a.vm = []
    for k in range(PRM["DOV"]): dma2(28 + k)
    a.i(f"s_waitcnt vmcnt({2*PRM['DOV']})")
    a.i("s_mov_b64 exec, 1")
    a.i(f"buffer_store_dword v8, off, {R(SWS)}, s57 sc1")
    a.i("s_mov_b64 exec, -1")
    for k in range(PRM["DOV"], DO): dma2(28 + k)
    for p in range(2):
        for rh in range(2): mfma(a, ACC + 32*p + 16*rh, BA2 + 4*p, ONE, "0")
    WOF, OF = 128, 192
    def rd2(sx, dst):
        a.wait(vm=[("w", sx)])
        for p in range(2):
            o = (sx % RD)*2048
            a.i(f"ds_read_b64_tr_b16 {v(dst+4*p,2)}, v{VTRP2+p} offset:{o}")
            a.i(f"ds_read_b64_tr_b16 {v(dst+4*p+2,2)}, v{VTRP2+p} offset:{o+1024}", tag=("r", sx))
    for k in range(8):
        rd2(28 + k, WOF + 8*k)
        if k + DO < 8: dma2(28 + k + DO)
        if k >= 2: a.wait(lg=("r", 28 + k - 2))
    a.wait(lg="all")
    for sx in range(D2W): dma2(sx)
    a.label("L_hpoll")
    a.i(f"buffer_load_dword v15, v14, {R(SWS)}, s11 offen sc1")
    a.i("s_waitcnt vmcnt(0)"); a.vm = []
    a.i(f"v_cmp_ne_u32 vcc, s{S_TAG}, v15")
    a.i("s_cbranch_vccz L_hok")
    spin_tail(a, GSP, "L_hpoll", "L_hok", sleep=PRM["hsleep"])
    a.label("L_hok")
    stamp(a, 10, 250)
    for sx in range(D2H): hload(sx)
    a.i(f"s_lshl_b32 s12, s{S_G}, 2")
    a.i(f"s_add_u32 s12, s12, s{GW}")
    a.i("s_lshl_b32 s12, s12, 14")
    a.i(f"s_add_u32 s12, s12, {WS_O}")
    OSO = [12, 56, 57, 13]
    a.i("s_mov_b32 s8, s12")
    for k in range(4):
        a.i(f"s_add_u32 s9, s55, {k}") if False else None
        a.i(f"s_add_u32 s11, s55, {k}")
        a.i("s_and_b32 s11, s11, 3")
        a.i("s_lshl_b32 s11, s11, 12")
        a.i(f"s_add_u32 s{OSO[k]}, s8, s11")
    final_addr(a, 8)
    a.i("v_and_b32 v14, 31, v0")
    a.i("v_lshlrev_b32 v3, 2, v14")
    a.i(f"v_add_u32 v3, {L_G}, v3")
    a.i(f"v_mul_u32_u24 v14, {PITCH}, v14")
    a.i("v_lshrrev_b32 v15, 5, v0")
    a.i("v_lshl_add_u32 v14, v15, 4, v14")
    a.i("v_add_u32 v14, s14, v14")
    a.i("s_setprio 0")
    NM = 28 - ND
    def step2(sx):
        if sx + 1 < 28 and sx + 1 != NM: rd2(sx+1, WF + 8*((sx+1) & 1))
        a.wait(vm=("h", sx), lg=("r", sx))
        b = sx & 1
        for p in range(2):
            for rh in range(2):
                mfma(a, ACC + 32*p + 16*rh, WF+8*b+4*p, HR + 8*(sx % HD) + 4*rh)
    if NM: rd2(0, WF)
    for sx in range(28):
        if sx < NM: step2(sx)
        else: a.wait(vm=[("w", sx), ("h", sx)])
        if sx + D2H < 28: hload(sx + D2H)
        if sx + D2W < 28: dma2(sx + D2W)
    stamp(a, 11, 48)
    a.i("s_barrier")
    if PRM["b3b"]: a.i("s_barrier")
    a.i(f"ds_read2_b32 {v(VGG,2)}, v3 offset0:0 offset1:32", tag="g")
    if ND: rd2(NM, WF + 8*(NM & 1))
    OFR = [224, 192]
    def oload(rh):
        for k in range(8):
            a.i(f"buffer_load_dwordx4 {v(OFR[rh] + 4*k,4)}, v{VLIN}, {R(SWS)}, s{OSO[k>>1]} offen offset:{(k&1)*2048 + rh*1024} sc1", tag=("o", rh))
    def ocheck(rh):
        b = OFR[rh]
        a.i(f"v_max3_u32 v20, v{b}, v{b+4}, v{b+8}")
        a.i(f"v_max3_u32 v21, v{b+12}, v{b+16}, v{b+20}")
        a.i(f"v_max3_u32 v20, v20, v{b+24}, v{b+28}")
        a.i("v_max_u32 v20, v20, v21")
        a.i("v_cmp_eq_u32 vcc, -1, v20")
    assert PRM["oat"] >= 23
    if NM > PRM["oat"]: oload(0)
    for sx in range(NM, 28):
        step2(sx)
        if sx == PRM["oat"]: oload(0)
    a.i("s_setprio 2")
    a.wait(lg="all")
    oload(1)
    for rh in range(2): a.i(f"v_sub_f32 v{16+2*rh}, 1.0, v{VGG+rh}")
    for rh in range(2):
        for p in range(2):
            t = ACC + 32*p + 16*rh
            for r in range(0, 16, 2): a.i(f"v_pk_mul_f32 {v(t+r,2)}, {v(t+r,2)}, {v(16+2*rh,2)} op_sel_hi:[1,0]")
    def pwrite(rh, p, q):
        a.i(f"ds_write_b128 v14, {v(ACC + 32*p + 16*rh + 4*q,4)} offset:{rh*32*PITCH + (32*p + 8*q)*4}")
    for rh in range(2):
        a.wait(vm=("o", rh))
        ocheck(rh)
        a.i(f"s_cbranch_vccnz L_or{rh}")
        a.label(f"L_ook{rh}")
        if rh == 0: stamp(a, 12, 22)
        for p in range(2):
            for k in range(8):
                mfma(a, ACC + 32*p + 16*rh, WOF + 8*k + 4*p, OFR[rh] + 4*k)
                if k >= 4 and (rh or p): pwrite(*((rh, 0) if p else (0, 1)), k - 4)
    a.i("s_nop 11")
    for q in range(4): pwrite(1, 1, q)
    a.i("s_waitcnt lgkmcnt(0)"); a.lg = []
    stamp(a, 13, 22)
    a.i("s_barrier")
    final_stage(a, 8)
    a.i(f"s_lshl_b32 s8, s{S_G}, 6")
    a.i(f"s_lshl_b32 s9, s{S_MU}, 3")
    a.i("s_add_u32 s8, s8, s9")
    a.i(f"s_add_u32 s8, s8, s{S_W}")
    a.i("s_cmp_lg_u32 s8, 5")
    a.i("s_cbranch_scc1 L_notag")
    a.i(f"v_mov_b32 v4, s{S_TAG}")
    a.i(f"s_mov_b32 s8, {WS_NONCE}")
    a.i("s_mov_b64 exec, 1")
    a.i(f"buffer_store_dword v4, off, {R(SWS)}, s8 sc1")
    a.label("L_notag")
    stamp(a, 7, 250)
    stamp_dump(a, "G")
    a.i("s_endpgm")
    for rh in range(2):
        a.label(f"L_or{rh}")
        a.i("s_waitcnt vmcnt(0)")
        a.label(f"L_or{rh}_a")
        oload(rh)
        if rh == 0: oload(1)
        a.i("s_waitcnt vmcnt(0)"); a.vm = []
        ocheck(rh)
        a.i(f"s_cbranch_vccz L_ook{rh}")
        spin_tail(a, GSP, f"L_or{rh}_a", f"L_ook{rh}")
    a.label("L_G_idle")
    a.i("s_waitcnt vmcnt(0)")
    cnt_add(a, VC, 8, C_F)
    a.label("L_G_idle_a")
    a.i("s_sleep 8")
    a.i(f"ds_read_b32 v14, v{VC} offset:{C_F}")
    a.i("s_waitcnt lgkmcnt(0)")
    a.i("v_readfirstlane_b32 s8, v14")
    a.i("s_cmp_ge_u32 s8, 4")
    a.i("s_cbranch_scc0 L_G_idle_a")
    a.i("s_branch L_G_ffn1_end")

HEAD = open("cdna_kernels/" + NAME + ".s.ref").read().split("; Override launch")[0]
def kd(name, vg=256):
    return f""".section .rodata,"a"
.p2align 6
.amdhsa_kernel {name}
  .amdhsa_next_free_vgpr {vg}
  .amdhsa_next_free_sgpr 102
  .amdhsa_accum_offset {vg}
  .amdhsa_group_segment_fixed_size 0
  .amdhsa_kernarg_size 112
  .amdhsa_user_sgpr_count 2
  .amdhsa_user_sgpr_kernarg_segment_ptr 1
  .amdhsa_system_sgpr_workgroup_id_x 1
.end_amdhsa_kernel
"""
def build(kernels):
    s_ = HEAD
    if len(kernels) == 1:
        n, blk, lds, body = kernels[0]
        s_ += f"; @launch grid=(256,1,1) block=({blk},1,1) lds={lds}\n"
    else:
        for n, blk, lds, body in kernels:
            s_ += f"; @launch kernel={n} grid=(256,1,1) block=({blk},1,1) lds={lds}\n"
    s_ += '.amdgcn_target "amdgcn-amd-amdhsa--gfx950"\n'
    for n, blk, lds, body in kernels:
        s_ += f".text\n.globl {n}\n.p2align 8\n.type {n},@function\n{n}:\n{body}" + kd(n)
    return s_

if __name__ == "__main__":
    out = sys.argv[1]
    OPT = set(sys.argv[2:])
    STAMP = "stamp" in OPT
    ks = [(NAME + "_kernel", 512, LDS_BYTES, None)]
    for o in OPT:
        if "=" in o and o.split("=")[0] in PRM: PRM[o.split("=")[0]] = int(o.split("=")[1])
        if o.startswith("only="):
            STAMP = True; ONLY = int(o[5:])
            ks.append(("wait_kernel", 256, 1024, waitk(ONLY)))
    ks[0] = ks[0][:3] + (kernel(),)
    open(out, "w").write(build(ks))
```

```python
import sys, math, struct
from asmgen import *

NAME = "gated_mix__grouped_kv_mqa__dense_activation_squared_relu__prompt"
TS = 2304
WS_KV = 0
WS_NONCE = 0x2c000
WS_HF = 0x28000
WS_O  = 0x40000
WS_H  = 0x240000
WS_END = WS_H + 32*112*2048
L_X, L_WQ, L_RING, RING_W, RD = 0, 65536, 65536, 17408, 8
L_WKV = 135168; L_STG = L_WKV; L_QF = L_WKV + 8192
L_G = 151552; L_GW = L_G + 1024; L_CNT = L_G + 256
C_Q, C_F, C_T, C_K = 16, 20, 24, 28
CT = [8, 3, 3, 4]
LDS_BYTES = 163840
XO, XK = 13824, 4608
QSCALE = 0.25 * math.log2(math.e)
def f2u(x): return struct.unpack("<I", struct.pack("<f", x))[0]
S_W, S_G, S_MU, S_J, S_KV, S_TAG = 3, 4, 5, 15, 27, 59
P = dict(x=16, wq=18, wk=20, wv=22, wo=24, bx=26, w1=28, b1=30, w2=32, b2=34, gate=36, out=38, dbg=40, ws=42)
SZ = dict(x=2048*1024, wq=512*1024, wo=512*1024, w1=512*3584, b1=3584, w2=1792*1024, b2=1024, gate=1024, out=2048*1024, dbg=256, ws=WS_END)
BIG = 0x40000000
SPIN = 8000
STAMP = False; ONLY = None; OPT = set()
PRM = dict(w1pos=3, apf=0, w1wait=1, tagat=8, kvat=33, ckpos=0, wqlate=0, wqt=0, aprio=0, g0d=0, qnb=4, qprio=1, xsleep=2, nsw=6, chk3=1, par=3, st1=0, gatep=0, ntx=1, ntq=0, ntw=0, ntk=0, ntc=0, ctpos=0, w1t=0, NPRE=0, gp0=0, b3b=1, D1=4, D2W=3, D2H=2, DO=3, DOV=0, hpace=3, ost=0, ND=8, hsleep=4, oat=26, isleep=4, gpx=8, tsleep=0)
WS_STAMP = 0xC00000
SX, SWQ, SWKV, SW1, SB1, SGT, SWS, SDBG, SW2, SWO, SOUT = 44, 48, 52, 56, 60, 64, 68, 72, 76, 80, 84
SB2 = 48
VLIN = 2
PITCH = 272

def srd(a, d, name):
    a.i(f"s_mov_b32 s{d}, s{P[name]}")
    a.i(f"s_mov_b32 s{d+1}, s{P[name]+1}")
    a.i(f"s_mov_b32 s{d+2}, {SZ[name]:#x}")
    a.i(f"s_mov_b32 s{d+3}, 0x20000")
def R(d): return f"s[{d}:{d+3}]"

ST_A = {0: 100, 1: 88, 2: 90, 3: 92, 4: 94, 5: 96, 6: 98, 7: 44}
CY_A = {4: 46, 5: 72}
ST_G = {0: 100, 15: 88, 8: 90, 14: 92, 16: 94, 17: 96, 18: 98, 19: 26, 9: 18, 10: 20, 11: 22, 12: 72, 13: 74, 7: 44}
NST = 20
def stamping(idx): return STAMP and (ONLY is None or idx == ONLY)
def stamp_init(a, role):
    if not STAMP: return
    for i, r in (ST_A if role == "A" else ST_G).items():
        if r >= 88 and i: a.i(f"s_mov_b32 s{r}, -1")
def stamp(a, idx, role, first=False):
    if not stamping(idx) or first: return
    role = "A" if role == AST else "G"
    r = (ST_A if role == "A" else ST_G)[idx]
    a.i(f"s_memrealtime s[{r}:{r+1}]")
    if role == "A" and idx in CY_A: a.i(f"s_memtime s[{CY_A[idx]}:{CY_A[idx]+1}]")
def stamp_dump(a, role):
    if not STAMP: return
    T = ST_A if role == "A" else ST_G
    a.i("s_waitcnt vmcnt(0) lgkmcnt(0)")
    a.i(f"s_mov_b32 s{SWS+2}, 0x1000000")
    a.i("s_lshl_b32 s8, s2, 3")
    a.i(f"s_add_u32 s8, s8, s{S_W}")
    a.i("s_lshl_b32 s8, s8, 3")
    a.i(f"s_add_u32 s8, s8, {WS_STAMP + 0x10000}")
    a.i("s_mov_b64 exec, 1")
    for idx in range(NST):
        if stamping(idx):
            a.i(f"v_mov_b32 v{2*idx}, {'s%d' % T[idx] if idx in T else -1}")
            a.i(f"v_mov_b32 v{2*idx+1}, {'s%d' % CY_A[idx] if role == 'A' and idx in CY_A else ('s65' if role == 'A' else 's99') if idx == 7 else 0}")
            a.i(f"s_add_u32 s9, s8, {idx*16384}")
            a.i(f"buffer_store_dwordx2 v[{2*idx}:{2*idx+1}], off, {R(SWS)}, s9")
def waitk(idx, ticks=6000):
    a = Asm()
    a.i("s_cmp_ge_u32 s2, 1"); a.i("s_cbranch_scc1 L_w_end")
    a.i("s_load_dwordx2 s[42:43], s[0:1], 104")
    a.i("v_lshlrev_b32 v1, 6, v0")
    a.i("v_mov_b32 v2, 0")
    a.i("ds_write_b32 v2, v2")
    a.i("s_waitcnt lgkmcnt(0)")
    a.i("s_barrier")
    a.i("s_mov_b32 s92, s42"); a.i("s_mov_b32 s93, s43"); a.i("s_mov_b32 s94, 0x1000000"); a.i("s_mov_b32 s95, 0x20000")
    a.i(f"s_mov_b32 s10, {WS_STAMP + 0x10000 + idx*16384}")
    for k in range(4): a.i(f"buffer_load_dwordx4 v[{8+4*k}:{11+4*k}], v1, s[92:95], s10 offen offset:{16*k}")
    a.i("s_waitcnt vmcnt(0)")
    for k in range(8):
        a.i(f"v_add_u32 v3, 1, v{8+2*k}")
        a.i("ds_max_u32 v2, v3")
        a.i("s_waitcnt lgkmcnt(0)")
    a.i("s_barrier")
    a.i("ds_read_b32 v3, v2")
    a.i("s_waitcnt lgkmcnt(0)")
    a.i("v_readfirstlane_b32 s11, v3")
    a.i("s_mov_b32 s12, 20000")
    a.label("L_w_loop")
    a.i("s_memrealtime s[8:9]")
    a.i("s_waitcnt lgkmcnt(0)")
    a.i("s_sub_u32 s8, s8, s11")
    a.i(f"s_cmp_ge_u32 s8, {ticks}")
    a.i("s_cbranch_scc1 L_w_end")
    a.i("s_sub_u32 s12, s12, 1")
    a.i("s_cmp_lg_u32 s12, 0")
    a.i("s_cbranch_scc1 L_w_loop")
    a.label("L_w_end"); a.i("s_endpgm")
    return a.finish()

def mfma(a, d, A, B, C=None):
    c = v(d, 16) if C is None else C
    a.i(f"v_mfma_f32_32x32x16_bf16 {v(d,16)}, {v(A,4)}, {v(B,4)}, {c}")
def mfma16(a, d, A, B, C=None):
    c = v(d, 4) if C is None else C
    a.i(f"v_mfma_f32_16x16x32_bf16 {v(d,4)}, {v(A,4)}, {v(B,4)}, {c}")

def tr_addr(a, dst, t0, t1, rowmul_h):
    a.i(f"v_lshrrev_b32 v{t0}, 5, v0")
    a.i(f"v_mul_u32_u24 v{t0}, {rowmul_h}, v{t0}")
    a.i(f"v_bfe_u32 v{t1}, v0, 2, 2")
    a.i(f"v_add_u32 v{t0}, v{t0}, v{t1}")
    a.i(f"v_lshlrev_b32 v{dst}, 7, v{t0}")
    a.i(f"v_and_b32 v{t1}, 3, v0")
    a.i(f"v_lshl_add_u32 v{dst}, v{t1}, 3, v{dst}")
    a.i(f"v_bfe_u32 v{t1}, v0, 4, 1")
    a.i(f"v_lshl_add_u32 v{dst}, v{t1}, 5, v{dst}")
    a.i(f"v_bfe_u32 v{t1}, v0, 3, 1")
    a.i(f"v_lshl_add_u32 v{dst}, v{t1}, 6, v{dst}")

def xfrag_addr(a, dst, t0, t1):
    a.i(f"v_bfe_u32 v{t0}, v0, 1, 3")
    a.i(f"v_lshrrev_b32 v{t1}, 5, v0")
    a.i(f"v_xor_b32 v{t0}, v{t0}, v{t1}")
    a.i(f"v_and_b32 v{t1}, 31, v0")
    a.i(f"v_lshlrev_b32 v{t1}, 7, v{t1}")
    for q in range(4):
        a.i(f"v_xor_b32 v{dst+q}, {2*q}, v{t0}")
        a.i(f"v_lshl_add_u32 v{dst+q}, v{dst+q}, 4, v{t1}")

def wchunk_addr(a, dst, t0, pitch):
    a.i(f"v_lshrrev_b32 v{t0}, 3, v0")
    a.i(f"v_mul_u32_u24 v{dst}, {pitch}, v{t0}")
    a.i(f"v_bfe_u32 v{t0}, v0, 4, 1")
    a.i(f"v_lshlrev_b32 v{t0}, 2, v{t0}")
    a.i(f"v_xor_b32 v{t0}, v{t0}, v0")
    a.i(f"v_and_b32 v{t0}, 7, v{t0}")
    a.i(f"v_lshl_add_u32 v{dst}, v{t0}, 4, v{dst}")
    a.i(f"v_add_u32 v{dst+1}, {8*pitch - 1024}, v{dst}")
FL = ["", " nt", " sc1", " sc1 nt"]
def wstep(a, va, srd_, so, dst=None, tag=None):
    fl = FL[PRM["ntq"] & 3 if tag == ("wq", 0) else PRM["ntq"] >> 2 if srd_ == SWQ and tag[0] == "k" else PRM["ntw"]]
    if dst is None:
        a.i(f"buffer_load_dwordx4 v{va}, {R(srd_)}, s{so} offen{fl} lds", tag=tag)
        a.i(f"buffer_load_dwordx4 v{va+1}, {R(srd_)}, s{so} offen offset:1024{fl} lds", tag=tag)
    else:
        a.i(f"buffer_load_dwordx4 {v(dst,4)}, v{va}, {R(srd_)}, s{so} offen", tag=tag)
        a.i(f"buffer_load_dwordx4 {v(dst+4,4)}, v{va+1}, {R(srd_)}, s{so} offen offset:1024", tag=tag)

def run(a, items):
    for t in items: t() if callable(t) else a.i(t)

def spin_tail(a, cnt, again, done, sleep=0):
    a.i(f"s_sub_u32 s{cnt}, s{cnt}, 1")
    a.i(f"s_cmp_eq_u32 s{cnt}, 0")
    a.i(f"s_cbranch_scc1 {done}")
    if sleep: a.i(f"s_sleep {sleep}")
    a.i(f"s_branch {again}")

def cnt_add(a, vc, vone, off):
    a.i("s_mov_b64 exec, 1")
    a.i(f"ds_add_u32 v{vc}, v{vone} offset:{off}")
    a.i("s_mov_b64 exec, -1")
def cnt_wait(a, vc, vt, off, n, name, st, extra=None):
    a.label(name)
    a.i(f"ds_read_b32 v{vt}, v{vc} offset:{off}")
    if extra: extra()
    a.i("s_waitcnt lgkmcnt(0)"); a.lg = []
    a.i(f"v_readfirstlane_b32 s{st}, v{vt}")
    a.i(f"s_cmp_ge_u32 s{st}, {n}")
    a.i(f"s_cbranch_scc0 {name}")

def xpairs(a, VE, VO, sbase, st, tagf):
    for sl in range(8):
        a.i(f"s_add_u32 m0, s{sbase}, {L_X + sl*8192}")
        if sl:
            a.i(f"s_add_u32 s{st}, s{st}, 128")
            a.i(f"s_and_b32 s{st}, s{st}, 0x380")
        a.i(f"buffer_load_dwordx4 v{VE}, {R(SX)}, s{st} offen{FL[PRM['ntx']]} lds")
        a.i(f"buffer_load_dwordx4 v{VO}, {R(SX)}, s{st} offen offset:1024{FL[PRM['ntx']]} lds", tag=tagf(sl))

def final_stage(a, T):
    RA, RB, SO = T, T+1, T+2
    B = T + 4
    for w in range(4):
        for hf in range(2):
            a.i(f"ds_read_b128 {v(B + w*8 + 4*hf,4)}, v{RA if w < 2 else RB} offset:{(w&1)*RING_W + 16*hf}", tag=("p", w))
    a.wait(lg=("p", 1))
    for r in range(0, 8, 2): a.i(f"v_pk_add_f32 {v(B+r,2)}, {v(B+r,2)}, {v(B+8+r,2)}")
    a.wait(lg=("p", 3))
    for r in range(0, 8, 2): a.i(f"v_pk_add_f32 {v(B+16+r,2)}, {v(B+16+r,2)}, {v(B+24+r,2)}")
    for r in range(0, 8, 2): a.i(f"v_pk_add_f32 {v(B+r,2)}, {v(B+r,2)}, {v(B+16+r,2)}")
    for j in range(4): a.i(f"v_cvt_pk_bf16_f32 v{B+8+j}, v{B+2*j}, v{B+2*j+1}")
    a.i(f"buffer_store_dwordx4 {v(B+8,4)}, v{SO}, {R(SOUT)}, s10 offen" + ["", " sc1", " nt", " sc0 sc1", " sc0 sc1 nt"][PRM["ost"]])
def final_addr(a, T):
    RA, RB, SO, t = T, T+1, T+2, T+3
    a.i(f"v_lshrrev_b32 v{SO}, 3, v0")
    a.i(f"s_lshl_b32 s10, s{S_W}, 3")
    a.i(f"v_add_u32 v{SO}, s10, v{SO}")
    a.i(f"v_and_b32 v{t}, 7, v0")
    a.i(f"v_mul_u32_u24 v{RA}, {PITCH}, v{SO}")
    a.i(f"v_lshl_add_u32 v{RA}, v{t}, 5, v{RA}")
    a.i(f"v_add_u32 v{RA}, {L_RING}, v{RA}")
    a.i(f"v_add_u32 v{RB}, {2*RING_W}, v{RA}")
    a.i(f"v_lshlrev_b32 v{SO}, 10, v{SO}")
    a.i(f"v_lshl_add_u32 v{SO}, v{t}, 4, v{SO}")
    a.i(f"s_lshl_b32 s10, s{S_G}, 16")
    a.i(f"s_lshl_b32 s11, s{S_MU}, 7")
    a.i("s_add_u32 s10, s10, s11")
    srd(a, SOUT, "out")

VV1, VV0, VG, T0, T1 = 1, 3, 4, 6, 7
Q, S, Pq, F, O = 8, 64, 96, 104, 128
KVS = [40, 52, 104, 116]
AST = 94
SKO, SKL, SIT, SSP, SKC, SKV = 62, 63, 64, 65, 66, 76
VW1K_A = 12

def wq_round(a, r):
    a.i(f"s_add_u32 s10, s9, {r << 17}")
    a.i("s_and_b32 s10, s10, 0x7ffff")
    a.i("s_add_u32 s11, s10, 16384")
    for e in range(2):
        a.i(f"s_add_u32 m0, s8, {r*16384 + e*2048}")
        wstep(a, VW1K_A, SWQ, 10+e, tag=("wq", r))

def kernel():
    a = Asm()
    if STAMP: a.i("s_memrealtime s[100:101]")
    a.i("s_cmp_ge_u32 s2, 256")
    a.i("s_cbranch_scc1 L_end")
    a.i("s_load_dwordx16 s[16:31], s[0:1], 0")
    a.i("s_load_dwordx8 s[32:39], s[0:1], 64")
    a.i("s_load_dwordx4 s[40:43], s[0:1], 96")
    a.i("s_getpc_b64 s[44:45]")
    a.label("L_pc")
    a.i("s_mov_b32 s46, L_code_end-L_pc")
    a.i("s_mov_b32 s47, 0x20000")
    a.i("s_lshr_b32 s7, s2, 3")
    a.i("s_lshl_b32 s6, s7, 11")
    a.i("v_lshlrev_b32 v1, 2, v0")
    if PRM["ctpos"] == 0: a.i(f"buffer_load_dword v255, v1, s[44:47], s6 offen{FL[PRM['ntc']]} ; touch")
    if PRM["ctpos"] == 1: a.i("v_lshlrev_b32 v3, 1, v1"); a.i("s_mov_b32 s14, s6")
    a.i("v_lshrrev_b32 v1, 6, v0")
    a.i("v_and_b32 v0, 63, v0")
    a.i(f"v_readfirstlane_b32 s{S_W}, v1")
    if PRM["gpx"] == 4:
        a.i("s_and_b32 s6, s2, 7")
        a.i(f"s_and_b32 s{S_MU}, s7, 7")
        a.i(f"s_lshr_b32 s{S_J}, s7, 3")
        a.i("s_lshl_b32 s6, s6, 2")
        a.i(f"s_add_u32 s{S_G}, s6, s{S_J}")
        a.i(f"s_lshl_b32 s{S_J}, s{S_J}, 1")
    else:
        a.i("s_and_b32 s6, s2, 1")
        a.i("s_lshl_b32 s6, s6, 2")
        a.i(f"s_and_b32 s{S_MU}, s7, 3")
        a.i(f"s_add_u32 s{S_MU}, s{S_MU}, s6")
        if PRM["par"] in (1, 2):
            a.i(f"s_mov_b32 s8, s{S_MU}")
            a.i("s_and_b32 s6, s7, 3")
            a.i("s_lshl_b32 s6, s6, 1")
            a.i(f"s_and_b32 s{S_MU}, s2, 1")
            if PRM["par"] == 2: a.i(f"s_xor_b32 s{S_MU}, s{S_MU}, 1")
            a.i(f"s_add_u32 s{S_MU}, s{S_MU}, s6")
        a.i(f"s_lshr_b32 s{S_J}, s7, 2")
        a.i("s_and_b32 s6, s2, 6")
        a.i("s_lshl_b32 s6, s6, 2")
        a.i(f"s_add_u32 s{S_G}, s6, s{S_J}")
    a.i(f"v_lshlrev_b32 v{VLIN}, 4, v0")
    a.i(f"s_cmp_ge_u32 s{S_W}, 4")
    a.i("s_cbranch_scc1 L_G")
    vm0 = list(a.vm)
    stamp_init(a, "A")
    if PRM["aprio"]: a.i("s_setprio 3")
    wchunk_addr(a, VW1K_A, 14, 1024)
    a.i(f"s_lshl_b32 s9, s{S_W}, 15")
    a.i(f"s_lshl_b32 s10, s{S_MU}, 7")
    a.i("s_add_u32 s9, s9, s10")
    a.i(f"s_lshl_b32 s10, s{S_J}, 16")
    a.i("s_add_u32 s9, s9, s10")
    a.i(f"s_lshl_b32 s8, s{S_W}, 12")
    a.i(f"s_add_u32 s8, s8, {L_WQ}")
    a.i("s_waitcnt lgkmcnt(0)")
    srd(a, SWQ, "wq")
    if PRM["wqt"]:
        a.i("s_lshl_b32 s10, s2, 2")
        a.i(f"s_add_u32 s10, s10, s{S_W}")
        a.i("s_lshl_b32 s10, s10, 9")
        a.i("s_mov_b32 exec_hi, 0")
        a.i(f"buffer_load_dwordx4 v[104:107], v{VLIN}, {R(SWQ)}, s10 offen")
        a.i("s_mov_b32 exec_hi, -1")
    if PRM["w1t"]:
        srd(a, SW1, "w1")
        a.i("s_lshl_b32 s10, s2, 2")
        a.i(f"s_add_u32 s10, s10, s{S_W}")
        a.i("s_mul_i32 s10, s10, 1792")
        a.i("v_lshlrev_b32 v14, 6, v0")
        a.i("s_mov_b64 exec, 0xfffffff")
        a.i(f"buffer_load_dword v108, v14, {R(SW1)}, s10 offen")
        a.i("s_mov_b64 exec, -1")
    if not PRM["wqlate"]: wq_round(a, 0)
    if PRM["ctpos"] == 1: a.i("buffer_load_dwordx2 v[104:105], v3, s[44:47], s14 offen ; touch")
    vmA = list(a.vm)
    if PRM["aprio"]: a.i("s_setprio 0")
    a.i("s_branch L_A")
    a.label("L_G")
    a.i(f"s_mov_b32 s62, s{8 if PRM['par'] in (1, 2) and PRM['gpx'] == 8 else S_MU}")
    stamp_init(a, "G")
    if STAMP: a.i("s_waitcnt lgkmcnt(0)"); a.i("s_mov_b32 s26, -1")
    a.vm = list(vm0)
    VGE, VXE, VXO = 8, 9, 10
    a.i("v_bfe_u32 v14, v0, 4, 2")
    a.i("v_and_b32 v15, 7, v0")
    a.i("v_xor_b32 v14, v14, v15")
    a.i(f"v_lshlrev_b32 v{VGE}, 4, v14")
    a.i("v_lshrrev_b32 v14, 3, v0")
    a.i(f"s_sub_u32 s6, s{S_W}, 4")
    a.i(f"s_add_u32 s12, s62, s6")
    a.i("s_and_b32 s12, s12, 3")
    a.i(f"s_lshl_b32 s7, s{S_G}, 2")
    a.i("s_add_u32 s7, s7, s12")
    a.i("s_lshl_b32 s7, s7, 4")
    a.i("v_add_u32 v14, s7, v14")
    a.i(f"v_lshl_add_u32 v{VXE}, v14, 10, v{VGE}")
    a.i(f"v_xor_b32 v{VXO}, 64, v{VXE}")
    a.i(f"v_add_u32 v{VXO}, {8192-1024}, v{VXO}")
    a.i("s_lshl_b32 s10, s12, 11")
    a.i(f"s_lshl_b32 s11, s{S_J}, 7")
    a.i(f"s_lshl_b32 s9, s{S_J}, 11")
    a.i("s_setprio 2")
    a.i("s_cmp_lg_u32 s6, 0")
    a.i("s_cbranch_scc1 L_G123")
    vmG = list(a.vm)
    g0_front(a, VXE, VXO)
    a_waves(a, vmA)
    g_waves(a, VGE, VXE, VXO, vmG)
    a.label("L_end")
    a.i("s_endpgm")
    a_slow(a)
    a.label("L_code_end")
    return a.finish()

GW, GSP = 6, 99
def pair_of(a, d): a.i(f"s_and_b32 s{d}, s{S_MU}, 3" if PRM["par"] == 3 else f"s_lshr_b32 s{d}, s{S_MU}, 1")
def role_of(a, d): a.i(f"s_lshr_b32 s{d}, s{S_MU}, 2" if PRM["par"] == 3 else f"s_and_b32 s{d}, s{S_MU}, 1")
def kv_addr(a):
    a.i(f"s_and_b32 s7, s62, 3")
    a.i(f"s_cmp_ge_u32 s62, 4")
    a.i("s_cselect_b32 s8, 8, 9")
    a.i("s_cselect_b32 s13, 9, 8")
    a.i("s_cselect_b32 s60, 1024, 0")
    a.i("s_and_b32 s61, s7, 1")
    a.i("s_lshl_b32 s61, s61, s13")
    a.i("s_add_u32 s60, s60, s61")
    a.i(f"s_lshl_b32 s61, s{S_G}, 1")
    a.i("s_lshr_b32 s13, s7, 1")
    a.i("s_add_u32 s61, s61, s13")
    a.i(f"s_mul_i32 s61, s61, {TS}")
    a.i("s_add_u32 s60, s60, s61")
    a.i("v_bfe_u32 v15, v0, 4, 1")
    a.i("v_lshlrev_b32 v15, s8, v15")
    a.i("v_and_b32 v24, 15, v0")
    a.i("v_lshl_add_u32 v23, v24, 4, v15")
def g0_front(a, VXE, VXO):
    if not PRM["aprio"]: a.i("s_setprio 3")
    kv_addr(a)
    a.i("v_cmp_gt_u32 vcc, 32, v0")
    a.i("v_mov_b32 v36, 0x3f803f80")
    a.i("s_sub_u32 s13, s61, s60")
    a.i("s_add_u32 s13, s13, 2048")
    a.i("v_mov_b32 v37, s13")
    a.i("v_cndmask_b32 v38, v37, v23, vcc")
    for r in range(32, 36): a.i(f"v_cndmask_b32 v{r}, v36, -1, vcc")
    a.i(f"s_lshr_b32 s8, s62, 2")
    a.i("s_lshl_b32 s8, s8, 1")
    a.i("s_and_b32 s7, s7, 1")
    a.i("s_add_u32 s8, s8, s7")
    a.i("s_lshl_b32 s8, s8, 2")
    a.i("s_add_u32 s61, s61, s8")
    a.i(f"s_mov_b32 s8, {WS_NONCE}")
    a.i("s_waitcnt lgkmcnt(0)")
    srd(a, SWS, "ws")
    a.i(f"buffer_load_dword v40, off, {R(SWS)}, s8 sc1")
    a.i(f"buffer_store_dwordx4 v[32:35], v38, {R(SWS)}, s60 offen sc1", tag="mark")
    srd(a, SX, "x")
    a.i(f"s_cmp_ge_u32 s62, 4")
    a.i(f"s_cselect_b32 s{SWKV}, s{P['wv']}, s{P['wk']}")
    a.i(f"s_cselect_b32 s{SWKV+1}, s{P['wv']+1}, s{P['wk']+1}")
    a.i(f"s_mov_b32 s{SWKV+2}, 16384")
    a.i(f"s_mov_b32 m0, {L_WKV}")
    a.i(f"s_mov_b32 s{SWKV+3}, 0x20000")
    def wpair(q):
        if q:
            a.i(f"s_mov_b32 m0, {L_WKV + q*2048}")
            a.i("s_add_u32 s9, s9, 2048")
            a.i("s_and_b32 s9, s9, 0x3fff")
        for i in range(2):
            a.i(f"buffer_load_dwordx4 v{VLIN}, {R(SWKV)}, s9 offen offset:{i*1024}{FL[PRM['ntk'] if q < 2 else 0]} lds", tag=("wk", 2*q+i))
    if PRM["g0d"]: a.i(f"s_sleep {PRM['g0d']}")
    wpair(0)
    xpairs(a, VXE, VXO, 10, 11, lambda sl: ("x", sl))
    for r in range(36, 40): a.i(f"v_mov_b32 v{r}, 0")
    a.i(f"v_mov_b32 v14, {L_CNT}")
    a.i("ds_write_b128 v14, v[36:39]")
    a.i("ds_write_b128 v14, v[36:39] offset:16")
    if PRM["aprio"]: a.i("s_setprio 3")
    a.wait(vm="mark")
    a.i("v_add_u32 v40, 0x9e3779b9, v40")
    a.i("s_mov_b64 exec, 1")
    a.i(f"buffer_store_dword v40, off, {R(SWS)}, s61 offset:{2048+128} sc1")
    a.i(f"ds_write_b32 v14, v40 offset:{C_T}")
    a.i("s_mov_b64 exec, -1")
    wpair(1)
    srd(a, SGT, "gate")
    a.i(f"s_lshl_b32 s8, s{S_J}, 7")
    a.i(f"v_add_u32 v14, s8, v{VLIN}")
    a.i(f"s_mov_b32 m0, {L_GW}")
    a.i("v_and_b32 v14, 0x3ff, v14")
    a.i(f"buffer_load_dwordx4 v14, {R(SGT)}, 0 offen lds")
    for q in range(2, 8): wpair(q)
    if "fst" in OPT: stamp(a, 16, 14)
    a.i("s_waitcnt lgkmcnt(0)"); a.lg = []
    a.i("s_barrier")
    XA, TA = 20, 22
    a.i("v_bfe_u32 v14, v0, 1, 3")
    a.i("v_lshrrev_b32 v15, 4, v0")
    a.i("v_xor_b32 v14, v14, v15")
    a.i("v_and_b32 v24, 15, v0")
    a.i("s_lshl_b32 s7, s12, 4")
    a.i("v_add_u32 v25, s7, v24")
    a.i("v_lshlrev_b32 v25, 7, v25")
    a.i(f"v_lshl_add_u32 v{XA}, v14, 4, v25")
    a.i(f"v_xor_b32 v{XA+1}, 64, v{XA}")
    a.i("v_bfe_u32 v14, v0, 2, 2")
    a.i("v_lshl_add_u32 v14, v15, 3, v14")
    a.i(f"v_lshlrev_b32 v{TA}, 5, v14")
    a.i("v_and_b32 v14, 3, v0")
    a.i(f"v_lshl_add_u32 v{TA}, v14, 3, v{TA}")
    a.i(f"v_add_u32 v{TA}, {L_WKV}, v{TA}")
    a.i(f"s_mov_b32 s{GSP}, {SPIN}")
    for r in range(34, 36): a.i(f"v_mov_b32 v{r}, 0")
    a.i(f"v_mov_b32 v14, {L_CNT}")
    a.i("v_mov_b32 v15, 1")
    a.i(f"s_cmp_ge_u32 s62, 4")
    a.i("s_cbranch_scc1 L_G0_V")
    vm1 = list(a.vm); lg1 = list(a.lg)
    for orient in range(2):
        if orient:
            a.label("L_G0_V"); a.vm = list(vm1); a.lg = list(lg1)
        NB_ = 4
        def rd(sx):
            b = 64 + 8*(sx % NB_)
            a.wait(vm=[("wk", sx), ("x", sx >> 1)])
            if "fst" in OPT and sx in (0, 4): stamp(a, 17 + sx//4, 14)
            if sx == 4: cnt_add(a, 14, 15, 0)
            a.i(f"ds_read_b64_tr_b16 {v(b,2)}, v{TA} offset:{sx*1024}")
            a.i(f"ds_read_b64_tr_b16 {v(b+2,2)}, v{TA} offset:{sx*1024+128}")
            a.i(f"ds_read_b128 {v(b+4,4)}, v{XA + (sx&1)} offset:{(sx>>1)*8192}", tag=("c", sx))
        for sx in range(NB_): rd(sx)
        for sx in range(16):
            a.wait(lg=("c", sx))
            b = 64 + 8*(sx % NB_)
            mfma16(a, 28, *((b, b+4) if orient == 0 else (b+4, b)), "0" if sx == 0 else None)
            if sx + NB_ < 16: rd(sx + NB_)
        if orient == 0: a.i("s_branch L_G0_pub")
    a.label("L_G0_pub")
    cnt_add(a, 14, 15, 12)
    stamp(a, 15, 250)
    a.i("s_nop 1")
    a.i("v_cvt_pk_bf16_f32 v32, v28, v29")
    a.i("v_cvt_pk_bf16_f32 v33, v30, v31")
    a.i("v_min_u32 v32, -2, v32")
    a.i("s_nop 0")
    a.i("v_permlane32_swap_b32 v33, v35")
    a.i("v_permlane32_swap_b32 v32, v34")
    a.i("s_mov_b32 exec_hi, 0")
    a.i(f"buffer_store_dwordx4 v[32:35], v23, {R(SWS)}, s60 offen sc1")
    a.i("s_mov_b32 exec_hi, -1")
    stamp(a, 8, 14)
    g_setup(a)
    a.i("s_setprio 2")
    if PRM["w1pos"] != 3: g_w1first(a, "L_G0_now1")
    a.i("s_branch L_G_ffn1")

def kvload(a, st, so=SKO, off=0, SWS=SKV):
    b = KVS[st]
    return [
        lambda: a.i(f"buffer_load_dwordx4 {v(b,4)}, v{VLIN}, {R(SWS)}, s{so} offen offset:{off} sc1", tag=("kv", st)),
        lambda: a.i(f"buffer_load_dwordx4 {v(b+4,4)}, v{VV0}, {R(SWS)}, s{so} offen offset:{off+1024} sc1", tag=("kv", st)),
        lambda: a.i(f"buffer_load_dwordx4 {v(b+8,4)}, v{VV1}, {R(SWS)}, s{so} offen offset:{off+1024} sc1", tag=("kv", st))]
def kvfirstcheck(a):
    b0 = KVS[0]
    a.i(f"v_max3_u32 v{T0}, v{b0}, v{b0+4}, v{b0+8}")
    if PRM["chk3"]:
        b1, b2 = KVS[1:3]
        a.i(f"v_max3_u32 v{T1}, v{b1}, v{b1+4}, v{b1+8}")
        a.i(f"v_max3_u32 v{T0}, v{T0}, v{b2}, v{b2+4}")
        a.i(f"v_max3_u32 v{T0}, v{T0}, v{T1}, v{b2+8}")
    a.i(f"v_max_u32 v{T0}, v{T0}, v{KVS[3]+1}")
    a.i(f"v_cmp_eq_u32 vcc, -1, v{T0}")
def kvfirst(a):
    run(a, kvload(a, 0, SKC))
    a.i(f"buffer_load_dword v{KVS[3]+1}, v{KVS[3]}, {R(SWS)}, s{SKC} offen sc1", tag="sweep")
    run(a, kvload(a, 1, SKC, TS)); run(a, kvload(a, 2, SKO))

def attn_slot(a, i, prv, cur, nxt, extra, last=False):
    Sc = S + 16*(i & 1); Sn = S + 16*((i+1) & 1)
    e = lambda r: a.i(f"v_exp_f32 v{Sc+r}, v{Sc+r}")
    c = lambda j: a.i(f"v_cvt_pk_bf16_f32 v{Pq+j}, v{Sc+2*j}, v{Sc+2*j+1}")
    ex = lambda k: run(a, extra.get(k, []))
    e(0); e(1)
    mfma(a, O + 16*((i - 1) % 8), (cur if i > 0 else prv) + 8, Pq + 4)
    ex(0)
    for r in range(2, 7): e(r)
    ex("pre1")
    if not (last and i == 7): mfma(a, Sn, cur if i < 7 else nxt, Q + 4*((i + 1) % 8), "0")
    ex(1)
    e(7)
    for j in range(4): c(j)
    e(8); e(9)
    mfma(a, O + 16*i, cur + 4, Pq)
    ex(2)
    for r in range(10, 16): e(r)
    for j in range(4, 8): c(j)

def a_waves(a, vmA):
    VXR, VTR, VC = 88, 92, 93
    a.label("L_A")
    a.vm = list(vmA); a.lg = []
    if PRM["apf"]:
        srd(a, SW1, "w1")
        wchunk_addr(a, 16, 14, 3584)
        a.i(f"s_lshr_b32 s12, s{S_MU}, 1")
        a.i("s_mul_i32 s12, s12, 7")
        a.i(f"s_and_b32 s13, s{S_MU}, 1")
        a.i("s_lshl_b32 s13, s13, 2")
        a.i("s_add_u32 s12, s12, s13")
        a.i("s_lshl_b32 s12, s12, 7")
        a.i(f"s_lshl_b32 s13, s{S_J}, 2")
        a.i(f"s_add_u32 s13, s13, s{S_W}")
        a.i(f"s_mul_i32 s13, s13, {16*3584}")
        a.i("s_add_u32 s12, s12, s13")
    assert not PRM["apf"]
    srd(a, SWS, "ws")
    xfrag_addr(a, VXR, 14, 15)
    tr_addr(a, VTR, 14, 15, 8)
    a.i(f"s_and_b32 s6, s{S_W}, 1")
    a.i(f"s_lshr_b32 s7, s{S_W}, 1")
    a.i("s_lshl_b32 s12, s6, 6")
    a.i(f"v_xor_b32 v{VTR}, s12, v{VTR}")
    a.i(f"v_add_u32 v{VTR}, {L_WQ}, v{VTR}")
    a.i("s_lshl_b32 s12, s7, 12")
    for q in range(4): a.i(f"v_add_u32 v{VXR+q}, s12, v{VXR+q}")
    a.i(f"v_and_b32 v{T0}, 15, v0")
    a.i(f"v_lshrrev_b32 v{T1}, 5, v0")
    a.i(f"v_lshlrev_b32 v{T1}, 8, v{T1}")
    a.i(f"v_lshl_add_u32 v{VV0}, v{T0}, 4, v{T1}")
    a.i(f"v_add_u32 v{VV1}, 512, v{VV0}")
    a.i(f"v_and_b32 v{T0}, 27, v0")
    a.i(f"v_cmp_eq_u32 vcc, 16, v{T0}")
    a.i(f"v_mov_b32 v{T1}, {BIG:#x}")
    a.i("v_mov_b32 v14, 1024")
    a.i(f"v_cndmask_b32 v{T1}, v{T1}, v14, vcc")
    a.i(f"v_and_b32 v{T0}, 16, v0")
    a.i(f"v_cmp_eq_u32 vcc, 0, v{T0}")
    a.i(f"s_mul_i32 s{SKC}, s{S_W}, {16*TS}")
    a.i(f"s_add_u32 s{SKO}, s{SKC}, {2*TS}")
    a.i(f"v_cndmask_b32 v{VV0}, v{T1}, v{VV0}, vcc")
    a.i(f"v_cndmask_b32 v{VV1}, v{T1}, v{VV1}, vcc")
    srd(a, SKV, "ws")
    a.i(f"s_add_u32 s{SKV+2}, s{SKC}, {16*TS}")
    a.i(f"s_mov_b32 s{SSP}, {SPIN}")
    a.i(f"v_mov_b32 v{VC}, {L_CNT}")
    for r in range(4, 8): a.i(f"v_mov_b32 v{Pq+r}, 0")
    for r in range(8, 12): a.i(f"v_mov_b32 v{KVS[3]+r}, 0")
    for r in range(127): a.i(f"v_mov_b32 v{O+r}, 0")
    a.i(f"v_lshrrev_b32 v{VG}, 2, v0")
    a.i(f"v_mul_u32_u24 v{VG}, {TS}, v{VG}")
    a.i(f"v_and_b32 v{VG+1}, 3, v0")
    a.i(f"v_bfe_u32 v14, v0, 1, 1")
    a.i(f"v_lshl_add_u32 v{KVS[3]}, v14, 10, v{VG}")
    a.i(f"v_add_u32 v14, 8, v14")
    a.i(f"v_and_b32 v15, 1, v0")
    a.i(f"v_lshlrev_b32 v15, v14, v15")
    a.i(f"v_add_u32 v{KVS[3]}, v{KVS[3]}, v15")
    a.i(f"v_subrev_u32 v14, 4, v0")
    a.i(f"v_cmp_gt_u32 vcc, {4*PRM['nsw']}, v14")
    a.i(f"v_mov_b32 v15, {BIG:#x}")
    a.i("s_nop 0")
    a.i(f"v_cndmask_b32 v{KVS[3]}, v15, v{KVS[3]}, vcc")
    a.i(f"v_lshl_add_u32 v{VG}, v{VG+1}, 2, v{VG}")
    a.i(f"v_add_u32 v{VG}, {2048 + 128}, v{VG}")
    QWA, QRA = 95, 96
    a.i("s_lshl_b32 s8, s6, 12")
    a.i("s_lshl_b32 s9, s7, 10")
    a.i("s_add_u32 s8, s8, s9")
    a.i(f"s_add_u32 s8, s8, {L_QF}")
    a.i(f"v_add_u32 v{QWA}, s8, v{VLIN}")
    a.i(f"s_mov_b32 s52, {f2u(QSCALE):#x}")
    for k in range(4):
        a.i(f"s_add_u32 s8, s{S_W}, {k+1}")
        a.i("s_and_b32 s8, s8, 3")
        a.i("s_lshl_b32 s8, s8, 11")
        a.i(f"s_add_u32 s8, s8, {L_QF}")
        a.i(f"v_add_u32 v{QRA+k}, s8, v{VLIN}")
    a.i(f"s_lshl_b32 s53, s{S_G}, 5")
    a.i(f"s_lshl_b32 s9, s{S_MU}, 2")
    a.i("s_add_u32 s53, s53, s9")
    a.i(f"s_add_u32 s53, s53, s{S_W}")
    a.i("s_lshl_b32 s53, s53, 11")
    a.i(f"s_add_u32 s53, s53, {WS_O}")
    a.i(f"s_mov_b32 s80, {f2u(2.0**-30):#x}")
    a.i(f"s_mov_b32 s81, {f2u(2.0**100):#x}")
    a.i("s_barrier")
    if PRM["wqlate"]: wq_round(a, 0)
    a.i(f"ds_read_b32 v{T0}, v{VC} offset:{C_T}")
    a.i(f"v_mov_b32 v{T1}, 1")
    a.i("s_waitcnt lgkmcnt(0)"); a.lg = []
    a.i(f"v_readfirstlane_b32 s{S_TAG}, v{T0}")
    a.wait(vm=("wq", 0))
    cnt_add(a, VC, T1, 0)
    a.i(f"v_mov_b32 v{O+127}, 0")
    a.i(f"s_setprio {PRM['qprio']}")
    cnt_wait(a, VC, T0, 0, CT[0], "L_k0", 8)
    stamp(a, 1, AST)
    def tagcheck():
        a.wait(vm="tag")
        a.i(f"v_cmp_ne_u32 vcc, s{S_TAG}, v{VG+1}")
        a.i("s_cbranch_vccnz L_tagr")
        a.label("L_tag_ok")
        stamp(a, 3, AST)
        a.vm = []
        kvfirst(a)
        if PRM["w1pos"] == 3 and PRM["ckpos"]: cnt_add(a, VC, T1, C_K)
    FRS = [8, 16, 24, 32, 40]; NB_ = PRM["qnb"]
    assert NB_ == 4 or PRM["kvat"] >= 32
    def rd(sx):
        b = FRS[sx % NB_]
        a.i(f"ds_read_b64_tr_b16 {v(b,2)}, v{VTR} offset:{sx*2048}")
        a.i(f"ds_read_b64_tr_b16 {v(b+2,2)}, v{VTR} offset:{sx*2048+512}")
        a.i(f"ds_read_b128 {v(b+4,4)}, v{VXR + (sx&3)} offset:{(sx>>2)*8192}", tag=("c", sx))
    for sx in range(NB_-1): rd(sx)
    for sx in range(32):
        nx = sx + NB_ - 1
        if nx < 32 and nx % 8 == 8 - NB_ and nx < 24: a.i(f"ds_read_b32 v{T0}, v{VC} offset:{4*(nx//8 + 1)}")
        if nx < 32 and nx % 8 == 0:
            a.i(f"v_readfirstlane_b32 s8, v{T0}")
            a.i(f"s_cmp_ge_u32 s8, {CT[nx//8]}")
            a.i(f"s_cbranch_scc0 L_k{nx//8}")
            a.label(f"L_k{nx//8}_ok")
        if nx < 32: rd(nx)
        if sx == PRM["tagat"]: a.i(f"buffer_load_dword v{VG+1}, v{VG}, {R(SWS)}, s{SKC} offen sc1", tag="tag")
        if sx == PRM["kvat"]: tagcheck()
        a.wait(lg=("c", sx))
        b = FRS[sx % NB_]
        mfma(a, S, b, b+4, "0" if sx == 0 else None)
    stamp(a, 2, AST)
    if PRM["kvat"] == 32: tagcheck()
    for r in range(16): a.i(f"v_mul_f32 v{S+r}, s52, v{S+r}")
    for j in range(8): a.i(f"v_cvt_pk_bf16_f32 v{80+j}, v{S+2*j}, v{S+2*j+1}")
    for e in range(2): a.i(f"ds_write_b128 v{QWA}, {v(80+4*e,4)} offset:{2048*e}")
    cnt_add(a, VC, T1, C_Q)
    if PRM["kvat"] == 33: tagcheck()
    def qreads():
        for i in range(8): a.i(f"ds_read_b128 {v(Q+4*i,4)}, v{QRA + (i>>1)} offset:{1024*(i&1)}")
    cnt_wait(a, VC, VTR, C_Q, 4, "L_qwait", 8, qreads)
    if PRM["kvat"] == 34: tagcheck()
    a.i(f"v_mov_b32 v{VG}, v{VC}")
    a.i(f"v_mov_b32 v{VG+1}, 1")
    a.wait(vm="all" if PRM["chk3"] else "sweep")
    kvfirstcheck(a)
    a.i("s_cbranch_vccnz L_kvr_first")
    a.label("L_kv_first_ok")
    if PRM["w1pos"] == 3 and not PRM["ckpos"]: cnt_add(a, VG, VG+1, C_K)
    stamp(a, 4, AST)
    mfma(a, S, KVS[0], Q, "0")
    a.i("s_setprio 1")
    a.i(f"s_mov_b32 s{SIT}, 4")
    a.i("s_nop 8")
    a.i("s_branch L_attn_in")
    def tile(t, last=False):
        prv, cur, nxt = (t-1) % 4, t, (t+1) % 4
        ld = kvload(a, prv)
        XA = KVS[2]
        for i in range(8):
            extra = {}
            if not last:
                if i == 0: extra = {0: [f"s_add_u32 s{SKO}, s{SKO}, {TS}"], 1: [ld[0]], 2: [ld[1]]}
                if i == 1: extra = {0: [ld[2]]}
                if i == 7:
                    extra = {0: [lambda: a.wait(vm=("kv", nxt))]}
                    if t == 2:
                        extra[1] = [f"s_sub_u32 s{SIT}, s{SIT}, 1"]; extra[2] = [f"s_cmp_lg_u32 s{SIT}, 0"]
                if t == 2 and i == 5: extra = {0: [f"ds_read_b32 v{VG+1}, v{VG} offset:{C_F}"]}
                if t == 2 and i == 6: extra = {0: ["s_waitcnt lgkmcnt(0)"]}
            elif i >= 2:
                j = i - 2; k = j >> 1; o = k*XK + (j & 1)*2048
                extra = {0: [f"ds_write_b128 v{XA+k}, {v(O+16*j,4)} offset:{o}"],
                         1: [f"ds_write_b128 v{XA+k}, {v(O+16*j+4,4)} offset:{o+1024}"]}
                if j & 1: extra[2] = [f"ds_write2st64_b32 v{XA+3+k}, v{O+16*j-8}, v{O+16*j+8} offset0:{k*XK//256} offset1:{k*XK//256+1}"]
            attn_slot(a, i, KVS[prv], KVS[cur], KVS[nxt], extra, last)
    a.raw(".p2align 6")
    a.label("L_attn_loop")
    a.vm = [("kv", 0)]*3 + [("kv", 1)]*3; a.lg = []
    tile(3)
    a.label("L_attn_in")
    for t in range(3): tile(t)
    a.i("s_cbranch_scc1 L_attn_loop")
    a.lg = []
    a.i(f"v_readfirstlane_b32 s8, v{VG+1}")
    XA = KVS[2]
    a.i(f"v_lshlrev_b32 v{T1}, 2, v0")
    for k in range(3):
        a.i(f"s_add_u32 s9, s{S_W}, {k+1}")
        a.i("s_and_b32 s9, s9, 3")
        a.i(f"s_mul_i32 s9, s9, {XO}")
        a.i(f"v_add_u32 v{XA+k}, s9, v{VLIN}")
        a.i("s_add_u32 s9, s9, 4096")
        a.i(f"v_add_u32 v{XA+3+k}, s9, v{T1}")
    a.i("s_cmp_ge_u32 s8, 4")
    a.i("s_cbranch_scc0 L_xwait")
    a.label("L_xok")
    tile(3, last=True)
    a.i(f"s_mul_i32 s9, s{S_W}, {XO}")
    a.i(f"v_add_u32 v{XA}, s9, v{VLIN}")
    mfma(a, O + 16*7, KVS[3] + 8, Pq + 4)
    a.i("s_add_u32 s9, s9, 4096")
    a.i(f"v_add_u32 v{XA+1}, s9, v{T1}")
    a.i(f"v_and_b32 v{T1}, 31, v0")
    a.i(f"v_lshlrev_b32 v{T1}, 2, v{T1}")
    a.i(f"v_add_u32 v{T1}, {L_G}, v{T1}")
    a.i("s_waitcnt lgkmcnt(0)"); a.lg = []
    stamp(a, 5, AST)
    a.i("s_barrier")
    a.i("s_setprio 3")
    LL = O + 16*5 + 10
    for rh in range(2):
        for k in range(3):
            o = k*XK + rh*2048; d = O + 16*(rh*3 + k)
            a.i(f"ds_read_b128 {v(d,4)}, v{XA} offset:{o}")
            a.i(f"ds_read_b128 {v(d+4,4)}, v{XA} offset:{o+1024}", tag=("x", rh, k))
        if rh == 0:
            for k in range(3): a.i(f"ds_read2st64_b32 {v(LL+2*k,2)}, v{XA+1} offset0:{k*XK//256} offset1:{k*XK//256+1}")
            a.i(f"ds_read2_b32 {v(VG,2)}, v{T1} offset0:0 offset1:32", tag="l")
    for rh in range(2):
        f = O + 16*(6 + rh); d = O + 48*rh
        a.wait(lg=("x", rh, 1))
        for r in range(0, 8, 2): a.i(f"v_pk_add_f32 {v(d+r,2)}, {v(d+r,2)}, {v(d+16+r,2)}")
        a.wait(lg=("x", rh, 2))
        for r in range(0, 8, 2): a.i(f"v_pk_add_f32 {v(f+r,2)}, {v(f+r,2)}, {v(d+32+r,2)}")
        if rh == 0:
            a.wait(lg="l")
            a.i(f"v_pk_add_f32 {v(LL,2)}, {v(LL,2)}, {v(LL+2,2)}")
            a.i(f"v_pk_add_f32 {v(LL,2)}, {v(LL,2)}, {v(LL+4,2)}")
        a.i(f"v_add_f32 v{f+8}, v{f+8}, v{LL+rh}")
        for r in range(0, 8, 2): a.i(f"v_pk_add_f32 {v(f+r,2)}, {v(f+r,2)}, {v(d+r,2)}")
        a.i(f"v_pk_mul_f32 {v(T0,2)}, {v(f,2)}, 0 op_sel_hi:[1,0]")
        a.i(f"v_cmp_le_f32 s[54:55], s80, v{f+8}")
        a.i(f"v_cmp_ge_f32 s[56:57], s81, v{f+8}")
        for r in range(2, 8, 2): a.i(f"v_pk_fma_f32 {v(T0,2)}, {v(f+r,2)}, 0, {v(T0,2)} op_sel_hi:[1,0,1]")
        a.i("s_and_b64 s[54:55], s[54:55], s[56:57]")
        a.i(f"v_cmp_o_f32 vcc, v{T0}, v{T1}")
        a.i(f"v_rcp_f32 v{T0}, v{f+8}")
        a.i("s_and_b64 s[54:55], s[54:55], vcc")
        a.i("s_cmp_eq_u64 s[54:55], -1")
        a.i(f"s_cbranch_scc0 L_slow{rh}")
        a.label(f"L_ok{rh}")
        a.i(f"v_mul_f32 v{T0}, v{T0}, v{VG+rh}")
        for r in range(0, 8, 2): a.i(f"v_pk_mul_f32 {v(f+r,2)}, {v(f+r,2)}, {v(T0,2)} op_sel_hi:[1,0]")
        for j in range(4): a.i(f"v_cvt_pk_bf16_f32 v{S+4*rh+j}, v{f+2*j}, v{f+2*j+1}")
        a.i(f"v_min_u32 v{S+4*rh}, -2, v{S+4*rh}")
        a.i(f"buffer_store_dwordx4 {v(S+4*rh,4)}, v{VLIN}, {R(SWS)}, s53 offen offset:{1024*rh} sc1")
    if PRM["b3b"]: a.i("s_barrier")
    stamp(a, 6, AST)
    a.i("s_setprio 0")
    final_addr(a, 8)
    a.i("s_waitcnt vmcnt(0)"); a.vm = []
    a.i("s_barrier")
    final_stage(a, 8)
    stamp(a, 7, AST)
    stamp_dump(a, "A")
    a.i("s_endpgm")
    a.label("L_kvr_first")
    a.i(f"s_sub_u32 s{SSP}, s{SSP}, 1")
    a.i(f"s_cbranch_scc1 L_kv_first_ok")
    a.i("s_waitcnt vmcnt(0)"); a.vm = []
    kvfirst(a)
    a.wait(vm="all" if PRM["chk3"] else "sweep")
    kvfirstcheck(a)
    a.i("s_cbranch_vccz L_kv_first_ok")
    a.i("s_branch L_kvr_first")
    a.label("L_tagr")
    a.i("s_sleep 4")
    a.i(f"buffer_load_dword v{VG+1}, v{VG}, {R(SWS)}, s{SKC} offen sc1")
    a.i("s_waitcnt vmcnt(0)"); a.vm = []
    a.i(f"v_cmp_ne_u32 vcc, s{S_TAG}, v{VG+1}")
    a.i("s_cbranch_vccz L_tag_ok")
    spin_tail(a, SSP, "L_tagr", "L_tag_ok")
    cnt_wait(a, VG, VG+1, C_F, 4, "L_xwait", 8)
    a.i("s_branch L_xok")
    for q in range(1, 4):
        cnt_wait(a, VC, T0, 4*q, CT[q], f"L_k{q}", 8)
        a.i(f"s_branch L_k{q}_ok")

def a_slow(a):
    KV = KVS[0]
    for rh in range(2):
        f = O + 16*(6 + rh); q = Q + 4*(6 + rh)
        SS, CC, OO, PP = S + 16, KVS[2], O, Pq
        a.label(f"L_slow{rh}")
        if STAMP: a.i(f"s_sub_u32 s{SSP}, s{SSP}, 1000")
        a.i("s_waitcnt vmcnt(0)" + (" lgkmcnt(0)" if rh == 0 else ""))
        a.i(f"s_mov_b32 s{SKO}, {WS_KV}")
        a.i(f"v_mov_b32 v{T1}, 0xff800000")
        a.label(f"L_slow{rh}_a")
        run(a, kvload(a, 0, SWS=SWS))
        a.i("s_waitcnt vmcnt(0)")
        a.i(f"v_max3_u32 v{T0}, v{KV}, v{KV+4}, v{KV+8}")
        a.i(f"v_cmp_eq_u32 vcc, -1, v{T0}")
        a.i(f"s_cbranch_vccz L_slow{rh}_c")
        spin_tail(a, SSP, f"L_slow{rh}_a", f"L_slow{rh}_c")
        a.label(f"L_slow{rh}_c")
        mfma(a, SS, KV, q, "0")
        a.i("s_nop 15")
        for r in range(0, 16, 2): a.i(f"v_max3_f32 v{T1}, v{T1}, v{SS+r}, v{SS+r+1}")
        a.i(f"s_add_u32 s{SKO}, s{SKO}, {TS}")
        a.i(f"s_cmp_lt_u32 s{SKO}, {WS_KV + 64*TS}")
        a.i(f"s_cbranch_scc1 L_slow{rh}_a")
        a.i(f"v_mov_b32 v{T0}, v{T1}")
        a.i("s_nop 1")
        a.i(f"v_permlane32_swap_b32 v{T0}, v{T1}")
        a.i(f"v_max_f32 v{T1}, v{T0}, v{T1}")
        for r in range(16):
            a.i(f"v_sub_f32 v{CC+r}, 0, v{T1}")
            a.i(f"v_mov_b32 v{OO+r}, 0")
        a.i(f"s_mov_b32 s{SKO}, {WS_KV}")
        a.label(f"L_slow{rh}_b")
        run(a, kvload(a, 0, SWS=SWS))
        a.i("s_waitcnt vmcnt(0)")
        mfma(a, SS, KV, q, v(CC, 16))
        a.i("s_nop 15")
        for r in range(16): a.i(f"v_exp_f32 v{SS+r}, v{SS+r}")
        a.i("s_nop 0")
        for j in range(8): a.i(f"v_cvt_pk_bf16_f32 v{PP+j}, v{SS+2*j}, v{SS+2*j+1}")
        a.i("s_nop 1")
        mfma(a, OO, KV + 4, PP)
        mfma(a, OO, KV + 8, PP + 4)
        a.i("s_nop 15")
        a.i(f"s_add_u32 s{SKO}, s{SKO}, {TS}")
        a.i(f"s_cmp_lt_u32 s{SKO}, {WS_KV + 64*TS}")
        a.i(f"s_cbranch_scc1 L_slow{rh}_b")
        for r in range(9): a.i(f"v_mov_b32 v{f+r}, v{OO+r}")
        a.i(f"v_rcp_f32 v{T0}, v{f+8}")
        a.i("s_nop 1")
        a.i(f"s_branch L_ok{rh}")
    a.vm = []; a.lg = []

VW35, VW1K, VSW, GVC, VGG = 4, 6, 3, 12, 12
VTR_G, VTRP, VST = 224, 226, 228
VXR_G, BA1, ONE = 16, 20, 28
ACC, WF, XF, PRE, PD = 64, 32, 48, 128, 12
def g_setup(a):
    srd(a, SW1, "w1"); srd(a, SB1, "b1")
    wchunk_addr(a, VW35, 14, 3584)
    wchunk_addr(a, VW1K, 14, 1024)
    pair_of(a, 12)
    a.i("s_mul_i32 s12, s12, 7")
    role_of(a, 9)
    a.i("s_lshl_b32 s9, s9, 2")
    a.i(f"s_add_u32 s13, s9, s{GW}")
    a.i("s_add_u32 s12, s12, s13")
    a.i("s_lshl_b32 s12, s12, 7")
    a.i(f"s_add_u32 s77, s12, {32*16*3584}")
    a.i(f"s_mul_i32 s76, s{S_J}, {4*16*3584}")
    a.i("s_add_u32 s76, s76, s12")
    a.i("v_lshlrev_b32 v14, 1, v0")
    a.i("v_cmp_gt_u32 vcc, 32, v0")
    a.i(f"v_mov_b32 v15, {BIG:#x}")
    a.i(f"v_mov_b32 v{GVC}, {L_CNT}")
    a.i("v_cndmask_b32 v11, v15, v14, vcc")
    a.i("v_mov_b32 v15, 0x3f80")
    a.i(f"v_cndmask_b32 v{ONE}, 0, v15, vcc")
    for b in (BA1, BA1+4, ONE):
        for r in range(1, 4): a.i(f"v_mov_b32 v{b+r}, 0")
    xfrag_addr(a, VXR_G, 14, 15)
    tr_addr(a, VTR_G, 14, 15, 8)
    tr_addr(a, VTRP, 14, 15, 4)
    a.i(f"s_lshl_b32 s8, s{GW}, 11")
    a.i(f"s_add_u32 s8, s8, {L_STG}")
    a.i(f"v_add_u32 v{VSW}, s8, v{VLIN}")
    a.i(f"v_add_u32 v{VST}, s8, v{VTR_G}")
    a.i(f"s_mul_i32 s14, s{GW}, {RING_W}")
    a.i(f"s_add_u32 s14, s14, {L_RING}")
    a.i(f"v_add_u32 v{VTR_G}, s14, v{VTR_G}")
    a.i(f"v_add_u32 v{VTRP}, s14, v{VTRP}")
    for r in (VTR_G, VTRP, VST): a.i(f"v_xor_b32 v{r+1}, 64, v{r}")
    a.i("v_mov_b32 v8, 1")
def w1load(a, sx):
    pre = sx < PRM["NPRE"]
    if not pre: a.i(f"s_add_u32 m0, s14, {(sx % RD)*2048}")
    a.i(f"s_add_u32 s78, s76, {16*3584}")
    wstep(a, VW35, SW1, 76, PRE+8*(sx % PD) if pre else None, ("w", sx))
    a.i("s_cmp_eq_u32 s78, s77")
    a.i("s_cselect_b32 s76, s12, s78")
def g_w1first(a, name):
    assert (PRM["D1"] <= PRM["NPRE"] < 32 and PRM["D1"] < PD) or (PRM["NPRE"] == 0 and PRM["w1pos"] == 3)
    a.i("s_cmp_eq_u32 s13, 7")
    a.i(f"s_cbranch_scc1 {name}")
    n = len(a.vm)
    for p in range(2): a.i(f"buffer_load_ushort v{BA1+4*p}, v11, {R(SB1)}, s12 offen offset:{64*p}", tag="b")
    for sx in range(PRM["D1"]): w1load(a, sx)
    a.label(name)

def g_waves(a, VGE, VXE, VXO, vmG):
    VTR, VXR, VC = VTR_G, VXR_G, GVC
    NPRE, D1, D2W, D2H, DO, ND = (PRM[k] for k in ("NPRE", "D1", "D2W", "D2H", "DO", "ND"))
    a.label("L_G123")
    a.vm = list(vmG); a.lg = []
    a.i("s_waitcnt lgkmcnt(0)")
    srd(a, SX, "x")
    srd(a, SWS, "ws")
    g_setup(a)
    srd(a, SWQ, "wq")
    a.i(f"s_mov_b32 s{GSP}, {SPIN}")
    for k in range(3):
        a.i(f"s_add_u32 s8, s{GW}, {3*k - 1}")
        a.i("s_min_u32 s8, s8, 7")
        a.i(f"s_lshl_b32 s{60+k}, s8, 11") if False else None
        a.i(f"s_lshl_b32 s{52+k}, s8, 11")
        a.i(f"s_add_u32 s{52+k}, s{52+k}, {L_WQ}")
        a.i("s_lshl_b32 s8, s8, 14")
        a.i(f"s_lshl_b32 s9, s{S_J}, 16")
        a.i("s_add_u32 s8, s8, s9")
        a.i(f"s_lshl_b32 s9, s{S_MU}, 7")
        a.i(f"s_add_u32 s{64+k}, s8, s9")
    a.i("s_waitcnt lgkmcnt(0)"); a.lg = []
    a.i("s_barrier")
    if PRM["w1pos"] == 0:
        n0 = len(a.vm); g_w1first(a, "L_G_now1"); a.vm = a.vm[:n0]
    for q in range(4):
        for sl in (2*q, 2*q+1):
            a.i(f"s_add_u32 m0, s10, {L_X + sl*8192}")
            if sl:
                a.i("s_add_u32 s11, s11, 128")
                a.i("s_and_b32 s11, s11, 0x380")
            a.i(f"buffer_load_dwordx4 v{VXE}, {R(SX)}, s11 offen lds")
            a.i(f"buffer_load_dwordx4 v{VXO}, {R(SX)}, s11 offen offset:1024 lds", tag=("k", q))
        for k in range(3 if q else 0):
            a.i(f"s_add_u32 s8, s{64+k}, {q << 17}")
            a.i(f"s_add_u32 m0, s{52+k}, {q*16384}")
            a.i("s_and_b32 s8, s8, 0x7ffff")
            wstep(a, VW1K, SWQ, 8, tag=("k", q))
        if PRM["st1"] and q in (PRM["st1"] - 1, PRM["st1"]):
            first = q == PRM["st1"] - 1
            if first:
                a.i("s_mul_i32 s8, s2, 7168")
                a.i(f"s_mul_i32 s9, s{GW}, {19*128}")
                a.i("s_add_u32 s8, s8, s9")
                a.i(f"s_sub_u32 s8, s8, {19*128}")
                a.i(f"s_add_u32 s72, s{P['w1']}, s8")
                a.i(f"s_addc_u32 s73, s{P['w1']+1}, 0")
            for i in (range(10) if first else range(10, 19)):
                if i == 18:
                    a.i(f"s_cmp_eq_u32 s{GW}, 3")
                    a.i("s_cbranch_scc1 L_st1")
                a.i(f"s_load_dword s74, s[72:73], {128*i}")
            if not first: a.label("L_st1")
        if q:
            a.wait(vm=("k", q-1))
            cnt_add(a, VC, 8, 4*(q-1))
    if PRM["w1pos"] == 2:
        a.i("s_cmp_eq_u32 s13, 7")
        a.i("s_cbranch_scc0 L_G_w1")
        a.i("s_waitcnt vmcnt(0)")
        a.label("L_G_w1")
        g_w1first(a, "L_G_now1")
    a.wait(vm=("k", 3))
    cnt_add(a, VC, 8, 12)
    stamp(a, 0, 14, first=True)
    a.label("L_G_ffn1")
    a.vm = ["b"]*2 + [("w", sx) for sx in range(D1) for _ in range(2)]
    a.label("L_G_xw")
    if PRM["xsleep"]: a.i(f"s_sleep {PRM['xsleep']}")
    a.i(f"ds_read_b128 v[32:35], v{VC}")
    a.i("s_waitcnt lgkmcnt(0)"); a.lg = []
    a.i("v_add_u32 v32, -5, v32")
    a.i("v_add_u32 v35, -1, v35")
    a.i("v_min3_i32 v33, v33, v34, v35")
    a.i("v_min_i32 v32, v32, v33")
    a.i("v_readfirstlane_b32 s8, v32")
    a.i("s_cmp_ge_i32 s8, 3")
    a.i("s_cbranch_scc0 L_G_xw")
    stamp(a, 14, 14)
    a.i("v_bfe_u32 v14, v0, 4, 2")
    a.i("v_and_b32 v15, 7, v0")
    a.i("v_xor_b32 v14, v14, v15")
    a.i(f"s_and_b32 s8, s{GW}, 1")
    a.i("s_lshl_b32 s8, s8, 2")
    a.i("v_xor_b32 v14, s8, v14")
    a.i("v_lshlrev_b32 v14, 4, v14")
    a.i(f"v_add_u32 v99, {L_GW}, v14")
    a.i(f"s_setprio {PRM['gatep']}")
    XG, AC, GA = 32, 96, 98
    GFA = [64 + 4*k for k in range(8)]
    def gfr():
        for kb in range(8): a.i(f"ds_read_b128 {v(GFA[kb],4)}, v99 offset:{128*kb}")
    gfr()
    a.wait(lg="all")
    a.i(f"s_lshl_b32 s8, s{GW}, 10")
    a.i(f"v_add_u32 v{GA}, s8, v{VLIN}")
    for i in range(2): a.i(f"v_mov_b32 v{AC+i}, 0")
    def grd(kb):
        for i in range(2):
            a.i(f"ds_read_b128 {v(XG + 8*(kb % 3) + 4*i,4)}, v{GA} offset:{kb*8192 + i*4096}", tag=("g", kb))
    grd(0); grd(1)
    for kb in range(8):
        if kb < 6: grd(kb+2)
        a.wait(lg=("g", kb))
        for r in range(4):
            for i in range(2):
                a.i(f"v_dot2_f32_bf16 v{AC+i}, v{XG + 8*(kb % 3) + 4*i + r}, v{GFA[kb]+r}, v{AC+i}")
    a.i(f"v_lshrrev_b32 v{GA}, 3, v0")
    a.i(f"s_lshl_b32 s9, s{GW}, 5")
    a.i(f"s_add_u32 s9, s9, {L_G}")
    for mod in ("quad_perm:[1,0,3,2]", "quad_perm:[2,3,0,1]", "row_half_mirror"):
        for i in range(2):
            a.i(f"v_add_f32_dpp v{AC+i}, v{AC+i}, v{AC+i} {mod} row_mask:0xf bank_mask:0xf")
    a.i(f"s_mov_b32 s10, {f2u(-math.log2(math.e)):#x}")
    for i in range(2): a.i(f"v_mul_f32 v{AC+i}, s10, v{AC+i}")
    for i in range(2): a.i(f"v_exp_f32 v{AC+i}, v{AC+i}")
    a.i(f"v_lshl_add_u32 v{GA}, v{GA}, 2, s9")
    for i in range(2): a.i(f"v_add_f32 v{AC+i}, 1.0, v{AC+i}")
    for i in range(2): a.i(f"v_rcp_f32 v{AC+i}, v{AC+i}")
    a.i("s_nop 0")
    for i in range(2): a.i(f"ds_write_b32 v{GA}, v{AC+i} offset:{128*i}")
    a.i("s_waitcnt lgkmcnt(0)"); a.lg = []
    a.i("s_setprio 2")
    a.i("s_cmp_eq_u32 s13, 7")
    a.i("s_cbranch_scc1 L_G_idle")
    if PRM["w1pos"] == 3:
        a.label("L_G_kw")
        a.i("s_sleep 2")
        cnt_wait(a, VC, 14, C_K, 4, "L_G_kw1", 8)
        a.ins[-1] = Ins("    s_cbranch_scc0 L_G_kw")
        a.vm = []
        g_w1first(a, "L_G3_now1")
    a.wait(vm="b")
    for p in range(2):
        for rh in range(2): mfma(a, ACC + 32*p + 16*rh, BA1 + 4*p, ONE, "0")
    def rd1(sx):
        a.wait(vm=("w", sx))
        b = sx & 1
        if sx < NPRE:
            for p in range(2): a.i(f"ds_write_b128 v{VSW}, {v(PRE+8*(sx % PD)+4*p,4)} offset:{p*1024}")
        for p in range(2):
            o = 0 if sx < NPRE else (sx % RD)*2048
            ar = (VST if sx < NPRE else VTR) + p
            a.i(f"ds_read_b64_tr_b16 {v(WF+8*b+4*p,2)}, v{ar} offset:{o}")
            a.i(f"ds_read_b64_tr_b16 {v(WF+8*b+4*p+2,2)}, v{ar} offset:{o+512}")
        for rh in range(2):
            a.i(f"ds_read_b128 {v(XF+8*b+4*rh,4)}, v{VXR+(sx&3)} offset:{(sx>>2)*8192 + rh*4096}", tag=("r", sx))
    def ringgate():
        a.i("s_setprio 2")
        cnt_wait(a, VC, 14, C_Q, 4, a.newlabel("G_ring"), 8)
        a.i("s_setprio 0")
    a.i(f"s_setprio {PRM['gp0']}")
    rd1(0)
    for sx in range(32):
        if sx in (1, 4, 8, 16) and ("fst" not in OPT or sx == 16): stamp(a, {1: 16, 4: 17, 8: 18, 16: 19}[sx], 14)
        if sx + D1 < NPRE: w1load(a, sx + D1)
        if sx < 31: rd1(sx+1)
        a.wait(lg=("r", sx))
        b = sx & 1
        for p in range(2):
            for rh in range(2):
                mfma(a, ACC + 32*p + 16*rh, WF+8*b+4*p, XF+8*b+4*rh)
        if sx + D1 == NPRE and PRM['w1pos'] != 3: ringgate()
        if NPRE <= sx + D1 < 32: w1load(a, sx + D1)
    a.i("s_setprio 2")
    cnt_add(a, VC, 8, C_F)
    if NPRE >= 32: ringgate(); a.i("s_setprio 2")
    a.label("L_G_ffn1_end")
    a.i(f"ds_read_b32 v8, v{VC} offset:{C_T}")
    a.i("s_waitcnt lgkmcnt(0)"); a.lg = []
    a.i(f"v_readfirstlane_b32 s{S_TAG}, v8")
    stamp(a, 9, 250)
    srd(a, SW2, "w2"); srd(a, SWO, "wo"); srd(a, SB2, "b2")
    BA2 = BA1
    a.i(f"s_lshl_b32 s8, s{S_MU}, 7")
    a.i(f"s_cmp_eq_u32 s{GW}, 0")
    a.i(f"s_cselect_b32 s10, s8, {BIG:#x}")
    for p in range(2): a.i(f"buffer_load_ushort v{BA2+4*p}, v11, {R(SB2)}, s10 offen offset:{64*p}", tag="b")
    a.i(f"s_lshl_b32 s10, s{S_G}, 5")
    a.i(f"s_lshl_b32 s9, s{S_MU}, 2")
    a.i("s_add_u32 s10, s10, s9")
    a.i(f"s_add_u32 s10, s10, s{GW}")
    a.i("s_lshl_b32 s10, s10, 11")
    a.i(f"s_add_u32 s10, s10, {WS_O}")
    for r in range(4): a.i(f"v_mov_b32 v{XF+r}, -1")
    for rh in range(2): a.i(f"buffer_store_dwordx4 {v(XF,4)}, v{VLIN}, {R(SWS)}, s10 offen offset:{1024*rh} sc1")
    a.i(f"s_mul_i32 s66, s{GW}, {28*16384}")
    a.i("s_add_u32 s66, s66, s8")
    a.i(f"s_lshl_b32 s58, s{GW}, {16 if PRM['par'] == 3 else 17}")
    a.i("s_add_u32 s58, s58, s8")
    a.i(f"s_and_b32 s55, s{S_J}, 3" if PRM["gpx"] == 8 else f"s_lshr_b32 s55, s{S_J}, 1")
    a.i("s_lshl_b32 s67, s55, 15")
    a.i(f"s_mul_i32 s60, s{S_J}, 7")
    if PRM["gpx"] == 4: a.i(f"s_mul_i32 s61, s{S_MU}, 7")
    else:
        a.i(f"s_lshr_b32 s61, s{S_MU}, 1" if PRM["par"] in (1, 2) else f"s_and_b32 s61, s{S_MU}, 3")
        a.i("s_mul_i32 s61, s61, 14")
    a.i("s_add_u32 s60, s60, s61")
    a.i("s_lshr_b32 s60, s60, 1")
    a.i("s_sub_u32 s61, s60, 28")
    a.i("s_cselect_b32 s60, s60, s61")
    a.i("s_mov_b32 s61, s66")
    a.i(f"s_add_u32 s62, s66, {28*16384}")
    a.i("s_lshl_b32 s63, s60, 14")
    a.i("s_add_u32 s66, s66, s63")
    HR, HD = 192, 8
    def dma2(sx):
        a.i(f"s_add_u32 m0, s14, {(sx % RD)*2048}")
        if sx < 28:
            a.i("s_add_u32 s63, s66, 16384")
            wstep(a, VW1K, SW2, 66, tag=("w", sx))
            a.i("s_cmp_eq_u32 s63, s62")
            a.i("s_cselect_b32 s66, s61, s63")
        else:
            a.i("s_add_u32 s63, s58, s67")
            if PRM["par"] == 3:
                a.i("s_bfe_u32 s54, s67, 0x10010")
                a.i(f"s_mul_i32 s54, s54, {262144 - 65536}")
                a.i("s_add_u32 s63, s63, s54")
            wstep(a, VW1K, SWO, 63, tag=("w", sx))
            a.i("s_add_u32 s67, s67, 16384")
            a.i("s_and_b32 s67, s67, 0x1ffff")
    def hload(sx):
        for rh in range(2):
            a.i(f"buffer_load_dwordx4 {v(HR + 8*(sx % HD) + 4*rh,4)}, v{VLIN}, {R(SWS)}, s9 offen offset:{1024*rh} sc1", tag=("h", sx))
        a.i("s_add_u32 s9, s9, 2048")
        a.i("s_cmp_eq_u32 s9, s65")
        a.i("s_cselect_b32 s9, s64, s9")
    VTRP2 = XF + 6
    for p in range(2): a.i(f"v_mov_b32 v{VTRP2+p}, v{VTRP+p}")
    a.i(f"s_mul_i32 s8, s{S_G}, 112")
    a.i("s_lshl_b32 s10, s8, 11")
    a.i("s_lshl_b32 s9, s12, 6")
    a.i("s_add_u32 s10, s10, s9")
    a.i(f"s_add_u32 s12, s10, {WS_H}")
    a.i("s_cmp_eq_u32 s13, 7")
    a.i("s_cselect_b32 s56, 1, 0")
    a.i("s_add_u32 s13, s12, 4096")
    a.i(f"s_mul_i32 s9, s{GW}, 28")
    a.i("s_add_u32 s9, s9, s8")
    a.i("s_lshl_b32 s9, s9, 11")
    a.i(f"s_add_u32 s64, s9, {WS_H}")
    a.i(f"s_add_u32 s65, s64, {28*2048}")
    a.i("s_lshl_b32 s9, s60, 11")
    a.i("s_add_u32 s9, s9, s64")
    a.i(f"s_lshl_b32 s11, s{S_G}, 9")
    a.i(f"s_add_u32 s11, s11, {WS_HF}")
    pair_of(a, 10)
    a.i("s_lshl_b32 s10, s10, 7")
    a.i("s_add_u32 s10, s10, s11")
    role_of(a, 8)
    a.i("s_lshl_b32 s8, s8, 2")
    a.i(f"s_add_u32 s8, s8, s{GW}")
    a.i("s_lshl_b32 s8, s8, 2")
    a.i("s_add_u32 s57, s10, s8")
    a.i(f"s_lshl_b32 s8, s{GW}, 7")
    a.i("s_add_u32 s11, s11, s8")
    a.i("v_and_b32 v14, 7, v0")
    a.i("v_lshlrev_b32 v14, 2, v14")
    a.i("s_cmp_eq_u32 s56, 1")
    a.i("s_cbranch_scc1 L_G_noh")
    for p in range(2):
        for rh in range(2):
            t = ACC + 32*p + 16*rh
            o = 192 + 8*(2*p+rh)
            for r in range(16): a.i(f"v_max_f32 v{t+r}, 0, v{t+r}")
            for r in range(0, 16, 2): a.i(f"v_pk_mul_f32 {v(t+r,2)}, {v(t+r,2)}, {v(t+r,2)}")
            for j in range(8): a.i(f"v_cvt_pk_bf16_f32 v{o+j}, v{t+2*j}, v{t+2*j+1}")
            if PRM["hpace"] and 2*p + rh >= PRM["hpace"]: a.i(f"s_waitcnt vmcnt({2*PRM['hpace'] - 2})")
            for u in range(2):
                a.i(f"buffer_store_dwordx4 {v(o+4*u,4)}, v{VLIN}, {R(SWS)}, s{12+p} offen offset:{u*2048 + rh*1024} sc1", tag="hst")
    a.label("L_G_noh")
    a.vm = []
    for k in range(PRM["DOV"]): dma2(28 + k)
    a.i(f"s_waitcnt vmcnt({2*PRM['DOV']})")
    a.i("s_mov_b64 exec, 1")
    a.i(f"buffer_store_dword v8, off, {R(SWS)}, s57 sc1")
    a.i("s_mov_b64 exec, -1")
    for k in range(PRM["DOV"], DO): dma2(28 + k)
    for p in range(2):
        for rh in range(2): mfma(a, ACC + 32*p + 16*rh, BA2 + 4*p, ONE, "0")
    WOF, OF = 128, 192
    def rd2(sx, dst):
        a.wait(vm=[("w", sx)])
        for p in range(2):
            o = (sx % RD)*2048
            a.i(f"ds_read_b64_tr_b16 {v(dst+4*p,2)}, v{VTRP2+p} offset:{o}")
            a.i(f"ds_read_b64_tr_b16 {v(dst+4*p+2,2)}, v{VTRP2+p} offset:{o+1024}", tag=("r", sx))
    for k in range(8):
        rd2(28 + k, WOF + 8*k)
        if k + DO < 8: dma2(28 + k + DO)
        if k >= 2: a.wait(lg=("r", 28 + k - 2))
    a.wait(lg="all")
    for sx in range(D2W): dma2(sx)
    a.label("L_hpoll")
    a.i(f"buffer_load_dword v15, v14, {R(SWS)}, s11 offen sc1")
    a.i("s_waitcnt vmcnt(0)"); a.vm = []
    a.i(f"v_cmp_ne_u32 vcc, s{S_TAG}, v15")
    a.i("s_cbranch_vccz L_hok")
    spin_tail(a, GSP, "L_hpoll", "L_hok", sleep=PRM["hsleep"])
    a.label("L_hok")
    stamp(a, 10, 250)
    for sx in range(D2H): hload(sx)
    a.i(f"s_lshl_b32 s12, s{S_G}, {3 if PRM['par'] == 3 else 2}")
    a.i(f"s_add_u32 s12, s12, s{GW}")
    a.i(f"s_lshl_b32 s12, s12, {13 if PRM['par'] == 3 else 14}")
    a.i(f"s_add_u32 s12, s12, {WS_O}")
    OSO = [12, 56, 57, 13]
    a.i("s_mov_b32 s8, s12")
    for k in range(4):
        a.i(f"s_add_u32 s9, s55, {k}") if False else None
        a.i(f"s_add_u32 s11, s55, {k}")
        a.i("s_and_b32 s11, s11, 3")
        if PRM["par"] == 3:
            a.i("s_lshr_b32 s54, s11, 1")
            a.i("s_mul_i32 s54, s54, 6")
            a.i("s_add_u32 s11, s11, s54")
        a.i("s_lshl_b32 s11, s11, 12")
        a.i(f"s_add_u32 s{OSO[k]}, s8, s11")
    final_addr(a, 8)
    a.i("v_and_b32 v14, 31, v0")
    a.i("v_lshlrev_b32 v3, 2, v14")
    a.i(f"v_add_u32 v3, {L_G}, v3")
    a.i(f"v_mul_u32_u24 v14, {PITCH}, v14")
    a.i("v_lshrrev_b32 v15, 5, v0")
    a.i("v_lshl_add_u32 v14, v15, 4, v14")
    a.i("v_add_u32 v14, s14, v14")
    a.i("s_setprio 0")
    NM = 28 - ND
    def step2(sx):
        if sx + 1 < 28 and sx + 1 != NM: rd2(sx+1, WF + 8*((sx+1) & 1))
        a.wait(vm=("h", sx), lg=("r", sx))
        b = sx & 1
        for p in range(2):
            for rh in range(2):
                mfma(a, ACC + 32*p + 16*rh, WF+8*b+4*p, HR + 8*(sx % HD) + 4*rh)
    if NM: rd2(0, WF)
    for sx in range(28):
        if sx < NM: step2(sx)
        else: a.wait(vm=[("w", sx), ("h", sx)])
        if sx + D2H < 28: hload(sx + D2H)
        if sx + D2W < 28: dma2(sx + D2W)
    stamp(a, 11, 48)
    a.i("s_barrier")
    if PRM["b3b"]: a.i("s_barrier")
    a.i(f"ds_read2_b32 {v(VGG,2)}, v3 offset0:0 offset1:32", tag="g")
    if ND: rd2(NM, WF + 8*(NM & 1))
    OFR = [224, 192]
    def oload(rh):
        for k in range(8):
            a.i(f"buffer_load_dwordx4 {v(OFR[rh] + 4*k,4)}, v{VLIN}, {R(SWS)}, s{OSO[k>>1]} offen offset:{(k&1)*2048 + rh*1024} sc1", tag=("o", rh))
    def ocheck(rh):
        b = OFR[rh]
        a.i(f"v_max3_u32 v20, v{b}, v{b+4}, v{b+8}")
        a.i(f"v_max3_u32 v21, v{b+12}, v{b+16}, v{b+20}")
        a.i(f"v_max3_u32 v20, v20, v{b+24}, v{b+28}")
        a.i("v_max_u32 v20, v20, v21")
        a.i("v_cmp_eq_u32 vcc, -1, v20")
    assert PRM["oat"] >= 23
    if NM > PRM["oat"]: oload(0)
    for sx in range(NM, 28):
        step2(sx)
        if sx == PRM["oat"]: oload(0)
    a.i("s_setprio 2")
    a.wait(lg="all")
    oload(1)
    for rh in range(2): a.i(f"v_sub_f32 v{16+2*rh}, 1.0, v{VGG+rh}")
    for rh in range(2):
        for p in range(2):
            t = ACC + 32*p + 16*rh
            for r in range(0, 16, 2): a.i(f"v_pk_mul_f32 {v(t+r,2)}, {v(t+r,2)}, {v(16+2*rh,2)} op_sel_hi:[1,0]")
    def pwrite(rh, p, q):
        a.i(f"ds_write_b128 v14, {v(ACC + 32*p + 16*rh + 4*q,4)} offset:{rh*32*PITCH + (32*p + 8*q)*4}")
    for rh in range(2):
        a.wait(vm=("o", rh))
        ocheck(rh)
        a.i(f"s_cbranch_vccnz L_or{rh}")
        a.label(f"L_ook{rh}")
        if rh == 0: stamp(a, 12, 22)
        for p in range(2):
            for k in range(8):
                mfma(a, ACC + 32*p + 16*rh, WOF + 8*k + 4*p, OFR[rh] + 4*k)
                if k >= 4 and (rh or p): pwrite(*((rh, 0) if p else (0, 1)), k - 4)
    a.i("s_nop 11")
    for q in range(4): pwrite(1, 1, q)
    a.i("s_waitcnt lgkmcnt(0)"); a.lg = []
    stamp(a, 13, 22)
    a.i("s_barrier")
    final_stage(a, 8)
    a.i(f"s_lshl_b32 s8, s{S_G}, 6")
    a.i(f"s_lshl_b32 s9, s{S_MU}, 3")
    a.i("s_add_u32 s8, s8, s9")
    a.i(f"s_add_u32 s8, s8, s{S_W}")
    a.i("s_cmp_lg_u32 s8, 5")
    a.i("s_cbranch_scc1 L_notag")
    a.i(f"v_mov_b32 v4, s{S_TAG}")
    a.i(f"s_mov_b32 s8, {WS_NONCE}")
    a.i("s_mov_b64 exec, 1")
    a.i(f"buffer_store_dword v4, off, {R(SWS)}, s8 sc1")
    a.label("L_notag")
    stamp(a, 7, 250)
    stamp_dump(a, "G")
    a.i("s_endpgm")
    for rh in range(2):
        a.label(f"L_or{rh}")
        a.i("s_waitcnt vmcnt(0)")
        a.label(f"L_or{rh}_a")
        oload(rh)
        if rh == 0: oload(1)
        a.i("s_waitcnt vmcnt(0)"); a.vm = []
        ocheck(rh)
        a.i(f"s_cbranch_vccz L_ook{rh}")
        spin_tail(a, GSP, f"L_or{rh}_a", f"L_ook{rh}")
    a.label("L_G_idle")
    a.i("s_waitcnt vmcnt(0)")
    cnt_add(a, VC, 8, C_F)
    a.label("L_G_idle_a")
    a.i("s_sleep 8")
    a.i(f"ds_read_b32 v14, v{VC} offset:{C_F}")
    a.i("s_waitcnt lgkmcnt(0)")
    a.i("v_readfirstlane_b32 s8, v14")
    a.i("s_cmp_ge_u32 s8, 4")
    a.i("s_cbranch_scc0 L_G_idle_a")
    a.i("s_branch L_G_ffn1_end")

HEAD = open("cdna_kernels/" + NAME + ".s.ref").read().split("; Override launch")[0]
def kd(name, vg=256):
    return f""".section .rodata,"a"
.p2align 6
.amdhsa_kernel {name}
  .amdhsa_next_free_vgpr {vg}
  .amdhsa_next_free_sgpr 102
  .amdhsa_accum_offset {vg}
  .amdhsa_group_segment_fixed_size 0
  .amdhsa_kernarg_size 112
  .amdhsa_user_sgpr_count 2
  .amdhsa_user_sgpr_kernarg_segment_ptr 1
  .amdhsa_system_sgpr_workgroup_id_x 1
.end_amdhsa_kernel
"""
def build(kernels):
    s_ = HEAD
    if len(kernels) == 1:
        n, blk, lds, body = kernels[0]
        s_ += f"; @launch grid=(256,1,1) block=({blk},1,1) lds={lds}\n"
    else:
        for n, blk, lds, body in kernels:
            s_ += f"; @launch kernel={n} grid=(256,1,1) block=({blk},1,1) lds={lds}\n"
    s_ += '.amdgcn_target "amdgcn-amd-amdhsa--gfx950"\n'
    for n, blk, lds, body in kernels:
        s_ += f".text\n.globl {n}\n.p2align 8\n.type {n},@function\n{n}:\n{body}" + kd(n)
    return s_

if __name__ == "__main__":
    out = sys.argv[1]
    OPT = set(sys.argv[2:])
    STAMP = "stamp" in OPT
    ks = [(NAME + "_kernel", 512, LDS_BYTES, None)]
    for o in OPT:
        if "=" in o and o.split("=")[0] in PRM: PRM[o.split("=")[0]] = int(o.split("=")[1])
        if o.startswith("only="):
            STAMP = True; ONLY = int(o[5:])
            ks.append(("wait_kernel", 256, 1024, waitk(ONLY)))
    ks[0] = ks[0][:3] + (kernel(),)
    open(out, "w").write(build(ks))
```

```python
import sys, math, struct
from asmgen import *

NAME = "gated_mix__grouped_kv_mqa__dense_activation_squared_relu__prompt"
TS = 2304
WS_KV = 0
WS_NONCE = 0x2c000
WS_HF = 0x28000
WS_O  = 0x40000
WS_H  = 0x240000
WS_END = WS_H + 32*112*2048
L_X, L_WQ, L_RING, RING_W, RD = 0, 65536, 65536, 17408, 8
L_WKV = 135168; L_STG = L_WKV; L_QF = L_WKV + 8192
L_G = 151552; L_GW = L_G + 1024; L_CNT = L_G + 256
C_Q, C_F, C_T, C_K = 16, 20, 24, 28
CT = [8, 3, 3, 4]
LDS_BYTES = 163840
XO, XK = 13824, 4608
QSCALE = 0.25 * math.log2(math.e)
def f2u(x): return struct.unpack("<I", struct.pack("<f", x))[0]
S_W, S_G, S_MU, S_J, S_KV, S_TAG = 3, 4, 5, 15, 27, 59
P = dict(x=16, wq=18, wk=20, wv=22, wo=24, bx=26, w1=28, b1=30, w2=32, b2=34, gate=36, out=38, dbg=40, ws=42)
SZ = dict(x=2048*1024, wq=512*1024, wo=512*1024, w1=512*3584, b1=3584, w2=1792*1024, b2=1024, gate=1024, out=2048*1024, dbg=256, ws=WS_END)
BIG = 0x40000000
SPIN = 8000
STAMP = False; ONLY = None; OPT = set()
PRM = dict(w1pos=3, apf=0, w1wait=1, tagat=8, kvat=33, ckpos=0, wqlate=0, wqt=0, aprio=0, g0d=0, qnb=4, qprio=1, xsleep=2, nsw=6, chk3=1, par=3, st1=0, gatep=0, ntx=1, ntq=0, ntw=0, ntk=0, ntc=0, ctpos=0, w1t=0, NPRE=0, gp0=0, b3b=1, D1=4, D2W=3, D2H=2, DO=3, DOV=0, hpace=3, ost=0, ND=8, hsleep=4, oat=26, isleep=4, gpx=8, tsleep=0)
WS_STAMP = 0xC00000
SX, SWQ, SWKV, SW1, SB1, SGT, SWS, SDBG, SW2, SWO, SOUT = 44, 48, 52, 56, 60, 64, 68, 72, 76, 80, 84
SB2 = 48
VLIN = 2
PITCH = 272

def srd(a, d, name):
    a.i(f"s_mov_b32 s{d}, s{P[name]}")
    a.i(f"s_mov_b32 s{d+1}, s{P[name]+1}")
    a.i(f"s_mov_b32 s{d+2}, {SZ[name]:#x}")
    a.i(f"s_mov_b32 s{d+3}, 0x20000")
def R(d): return f"s[{d}:{d+3}]"

ST_A = {0: 100, 1: 88, 2: 90, 3: 92, 4: 94, 5: 96, 6: 98, 7: 44}
CY_A = {4: 46, 5: 72}
ST_G = {0: 100, 15: 88, 8: 90, 14: 92, 16: 94, 17: 96, 18: 98, 19: 26, 9: 18, 10: 20, 11: 22, 12: 72, 13: 74, 7: 44}
NST = 20
def stamping(idx): return STAMP and (ONLY is None or idx == ONLY)
def stamp_init(a, role):
    if not STAMP: return
    for i, r in (ST_A if role == "A" else ST_G).items():
        if r >= 88 and i: a.i(f"s_mov_b32 s{r}, -1")
def stamp(a, idx, role, first=False):
    if not stamping(idx) or first: return
    role = "A" if role == AST else "G"
    r = (ST_A if role == "A" else ST_G)[idx]
    a.i(f"s_memrealtime s[{r}:{r+1}]")
    if role == "A" and idx in CY_A: a.i(f"s_memtime s[{CY_A[idx]}:{CY_A[idx]+1}]")
def stamp_dump(a, role):
    if not STAMP: return
    T = ST_A if role == "A" else ST_G
    a.i("s_waitcnt vmcnt(0) lgkmcnt(0)")
    a.i(f"s_mov_b32 s{SWS+2}, 0x1000000")
    a.i("s_lshl_b32 s8, s2, 3")
    a.i(f"s_add_u32 s8, s8, s{S_W}")
    a.i("s_lshl_b32 s8, s8, 3")
    a.i(f"s_add_u32 s8, s8, {WS_STAMP + 0x10000}")
    a.i("s_mov_b64 exec, 1")
    for idx in range(NST):
        if stamping(idx):
            a.i(f"v_mov_b32 v{2*idx}, {'s%d' % T[idx] if idx in T else -1}")
            a.i(f"v_mov_b32 v{2*idx+1}, {'s%d' % CY_A[idx] if role == 'A' and idx in CY_A else ('s65' if role == 'A' else 's99') if idx == 7 else 0}")
            a.i(f"s_add_u32 s9, s8, {idx*16384}")
            a.i(f"buffer_store_dwordx2 v[{2*idx}:{2*idx+1}], off, {R(SWS)}, s9")
def waitk(idx, ticks=6000):
    a = Asm()
    a.i("s_cmp_ge_u32 s2, 1"); a.i("s_cbranch_scc1 L_w_end")
    a.i("s_load_dwordx2 s[42:43], s[0:1], 104")
    a.i("v_lshlrev_b32 v1, 6, v0")
    a.i("v_mov_b32 v2, 0")
    a.i("ds_write_b32 v2, v2")
    a.i("s_waitcnt lgkmcnt(0)")
    a.i("s_barrier")
    a.i("s_mov_b32 s92, s42"); a.i("s_mov_b32 s93, s43"); a.i("s_mov_b32 s94, 0x1000000"); a.i("s_mov_b32 s95, 0x20000")
    a.i(f"s_mov_b32 s10, {WS_STAMP + 0x10000 + idx*16384}")
    for k in range(4): a.i(f"buffer_load_dwordx4 v[{8+4*k}:{11+4*k}], v1, s[92:95], s10 offen offset:{16*k}")
    a.i("s_waitcnt vmcnt(0)")
    for k in range(8):
        a.i(f"v_add_u32 v3, 1, v{8+2*k}")
        a.i("ds_max_u32 v2, v3")
        a.i("s_waitcnt lgkmcnt(0)")
    a.i("s_barrier")
    a.i("ds_read_b32 v3, v2")
    a.i("s_waitcnt lgkmcnt(0)")
    a.i("v_readfirstlane_b32 s11, v3")
    a.i("s_mov_b32 s12, 20000")
    a.label("L_w_loop")
    a.i("s_memrealtime s[8:9]")
    a.i("s_waitcnt lgkmcnt(0)")
    a.i("s_sub_u32 s8, s8, s11")
    a.i(f"s_cmp_ge_u32 s8, {ticks}")
    a.i("s_cbranch_scc1 L_w_end")
    a.i("s_sub_u32 s12, s12, 1")
    a.i("s_cmp_lg_u32 s12, 0")
    a.i("s_cbranch_scc1 L_w_loop")
    a.label("L_w_end"); a.i("s_endpgm")
    return a.finish()

def mfma(a, d, A, B, C=None):
    c = v(d, 16) if C is None else C
    a.i(f"v_mfma_f32_32x32x16_bf16 {v(d,16)}, {v(A,4)}, {v(B,4)}, {c}")
def mfma16(a, d, A, B, C=None):
    c = v(d, 4) if C is None else C
    a.i(f"v_mfma_f32_16x16x32_bf16 {v(d,4)}, {v(A,4)}, {v(B,4)}, {c}")

def tr_addr(a, dst, t0, t1, rowmul_h):
    a.i(f"v_lshrrev_b32 v{t0}, 5, v0")
    a.i(f"v_mul_u32_u24 v{t0}, {rowmul_h}, v{t0}")
    a.i(f"v_bfe_u32 v{t1}, v0, 2, 2")
    a.i(f"v_add_u32 v{t0}, v{t0}, v{t1}")
    a.i(f"v_lshlrev_b32 v{dst}, 7, v{t0}")
    a.i(f"v_and_b32 v{t1}, 3, v0")
    a.i(f"v_lshl_add_u32 v{dst}, v{t1}, 3, v{dst}")
    a.i(f"v_bfe_u32 v{t1}, v0, 4, 1")
    a.i(f"v_lshl_add_u32 v{dst}, v{t1}, 5, v{dst}")
    a.i(f"v_bfe_u32 v{t1}, v0, 3, 1")
    a.i(f"v_lshl_add_u32 v{dst}, v{t1}, 6, v{dst}")

def xfrag_addr(a, dst, t0, t1):
    a.i(f"v_bfe_u32 v{t0}, v0, 1, 3")
    a.i(f"v_lshrrev_b32 v{t1}, 5, v0")
    a.i(f"v_xor_b32 v{t0}, v{t0}, v{t1}")
    a.i(f"v_and_b32 v{t1}, 31, v0")
    a.i(f"v_lshlrev_b32 v{t1}, 7, v{t1}")
    for q in range(4):
        a.i(f"v_xor_b32 v{dst+q}, {2*q}, v{t0}")
        a.i(f"v_lshl_add_u32 v{dst+q}, v{dst+q}, 4, v{t1}")

def wchunk_addr(a, dst, t0, pitch):
    a.i(f"v_lshrrev_b32 v{t0}, 3, v0")
    a.i(f"v_mul_u32_u24 v{dst}, {pitch}, v{t0}")
    a.i(f"v_bfe_u32 v{t0}, v0, 4, 1")
    a.i(f"v_lshlrev_b32 v{t0}, 2, v{t0}")
    a.i(f"v_xor_b32 v{t0}, v{t0}, v0")
    a.i(f"v_and_b32 v{t0}, 7, v{t0}")
    a.i(f"v_lshl_add_u32 v{dst}, v{t0}, 4, v{dst}")
    a.i(f"v_add_u32 v{dst+1}, {8*pitch - 1024}, v{dst}")
FL = ["", " nt", " sc1", " sc1 nt"]
def wstep(a, va, srd_, so, dst=None, tag=None):
    fl = FL[PRM["ntq"] & 3 if tag == ("wq", 0) else PRM["ntq"] >> 2 if srd_ == SWQ and tag[0] == "k" else PRM["ntw"]]
    if dst is None:
        a.i(f"buffer_load_dwordx4 v{va}, {R(srd_)}, s{so} offen{fl} lds", tag=tag)
        a.i(f"buffer_load_dwordx4 v{va+1}, {R(srd_)}, s{so} offen offset:1024{fl} lds", tag=tag)
    else:
        a.i(f"buffer_load_dwordx4 {v(dst,4)}, v{va}, {R(srd_)}, s{so} offen", tag=tag)
        a.i(f"buffer_load_dwordx4 {v(dst+4,4)}, v{va+1}, {R(srd_)}, s{so} offen offset:1024", tag=tag)

def run(a, items):
    for t in items: t() if callable(t) else a.i(t)

def spin_tail(a, cnt, again, done, sleep=0):
    a.i(f"s_sub_u32 s{cnt}, s{cnt}, 1")
    a.i(f"s_cmp_eq_u32 s{cnt}, 0")
    a.i(f"s_cbranch_scc1 {done}")
    if sleep: a.i(f"s_sleep {sleep}")
    a.i(f"s_branch {again}")

def cnt_add(a, vc, vone, off):
    a.i("s_mov_b64 exec, 1")
    a.i(f"ds_add_u32 v{vc}, v{vone} offset:{off}")
    a.i("s_mov_b64 exec, -1")
def cnt_wait(a, vc, vt, off, n, name, st, extra=None):
    a.label(name)
    a.i(f"ds_read_b32 v{vt}, v{vc} offset:{off}")
    if extra: extra()
    a.i("s_waitcnt lgkmcnt(0)"); a.lg = []
    a.i(f"v_readfirstlane_b32 s{st}, v{vt}")
    a.i(f"s_cmp_ge_u32 s{st}, {n}")
    a.i(f"s_cbranch_scc0 {name}")

def xpairs(a, VE, VO, sbase, st, tagf):
    for sl in range(8):
        a.i(f"s_add_u32 m0, s{sbase}, {L_X + sl*8192}")
        if sl:
            a.i(f"s_add_u32 s{st}, s{st}, 128")
            a.i(f"s_and_b32 s{st}, s{st}, 0x380")
        a.i(f"buffer_load_dwordx4 v{VE}, {R(SX)}, s{st} offen{FL[PRM['ntx']]} lds")
        a.i(f"buffer_load_dwordx4 v{VO}, {R(SX)}, s{st} offen offset:1024{FL[PRM['ntx']]} lds", tag=tagf(sl))

def final_stage(a, T):
    RA, RB, SO = T, T+1, T+2
    B = T + 4
    for w in range(4):
        for hf in range(2):
            a.i(f"ds_read_b128 {v(B + w*8 + 4*hf,4)}, v{RA if w < 2 else RB} offset:{(w&1)*RING_W + 16*hf}", tag=("p", w))
    a.wait(lg=("p", 1))
    for r in range(0, 8, 2): a.i(f"v_pk_add_f32 {v(B+r,2)}, {v(B+r,2)}, {v(B+8+r,2)}")
    a.wait(lg=("p", 3))
    for r in range(0, 8, 2): a.i(f"v_pk_add_f32 {v(B+16+r,2)}, {v(B+16+r,2)}, {v(B+24+r,2)}")
    for r in range(0, 8, 2): a.i(f"v_pk_add_f32 {v(B+r,2)}, {v(B+r,2)}, {v(B+16+r,2)}")
    for j in range(4): a.i(f"v_cvt_pk_bf16_f32 v{B+8+j}, v{B+2*j}, v{B+2*j+1}")
    a.i(f"buffer_store_dwordx4 {v(B+8,4)}, v{SO}, {R(SOUT)}, s10 offen" + ["", " sc1", " nt", " sc0 sc1", " sc0 sc1 nt"][PRM["ost"]])
def final_addr(a, T):
    RA, RB, SO, t = T, T+1, T+2, T+3
    a.i(f"v_lshrrev_b32 v{SO}, 3, v0")
    a.i(f"s_lshl_b32 s10, s{S_W}, 3")
    a.i(f"v_add_u32 v{SO}, s10, v{SO}")
    a.i(f"v_and_b32 v{t}, 7, v0")
    a.i(f"v_mul_u32_u24 v{RA}, {PITCH}, v{SO}")
    a.i(f"v_lshl_add_u32 v{RA}, v{t}, 5, v{RA}")
    a.i(f"v_add_u32 v{RA}, {L_RING}, v{RA}")
    a.i(f"v_add_u32 v{RB}, {2*RING_W}, v{RA}")
    a.i(f"v_lshlrev_b32 v{SO}, 10, v{SO}")
    a.i(f"v_lshl_add_u32 v{SO}, v{t}, 4, v{SO}")
    a.i(f"s_lshl_b32 s10, s{S_G}, 16")
    a.i(f"s_lshl_b32 s11, s{S_MU}, 7")
    a.i("s_add_u32 s10, s10, s11")
    srd(a, SOUT, "out")

VV1, VV0, VG, T0, T1 = 1, 3, 4, 6, 7
Q, S, Pq, F, O = 8, 64, 96, 104, 128
KVS = [40, 52, 104, 116]
AST = 94
SKO, SKL, SIT, SSP, SKC, SKV = 62, 63, 64, 65, 66, 76
VW1K_A = 12

def wq_round(a, r):
    a.i(f"s_add_u32 s10, s9, {r << 17}")
    a.i("s_and_b32 s10, s10, 0x7ffff")
    a.i("s_add_u32 s11, s10, 16384")
    for e in range(2):
        a.i(f"s_add_u32 m0, s8, {r*16384 + e*2048}")
        wstep(a, VW1K_A, SWQ, 10+e, tag=("wq", r))

def kernel():
    a = Asm()
    if STAMP: a.i("s_memrealtime s[100:101]")
    a.i("s_cmp_ge_u32 s2, 256")
    a.i("s_cbranch_scc1 L_end")
    a.i("s_load_dwordx16 s[16:31], s[0:1], 0")
    a.i("s_load_dwordx8 s[32:39], s[0:1], 64")
    a.i("s_load_dwordx4 s[40:43], s[0:1], 96")
    a.i("s_getpc_b64 s[44:45]")
    a.label("L_pc")
    a.i("s_mov_b32 s46, L_code_end-L_pc")
    a.i("s_mov_b32 s47, 0x20000")
    a.i("s_lshr_b32 s7, s2, 3")
    a.i("s_lshl_b32 s6, s7, 11")
    a.i("v_lshlrev_b32 v1, 2, v0")
    if PRM["ctpos"] == 0: a.i(f"buffer_load_dword v255, v1, s[44:47], s6 offen{FL[PRM['ntc']]} ; touch")
    if PRM["ctpos"] == 1: a.i("v_lshlrev_b32 v3, 1, v1"); a.i("s_mov_b32 s14, s6")
    a.i("v_lshrrev_b32 v1, 6, v0")
    a.i("v_and_b32 v0, 63, v0")
    a.i(f"v_readfirstlane_b32 s{S_W}, v1")
    if PRM["gpx"] == 4:
        a.i("s_and_b32 s6, s2, 7")
        a.i(f"s_and_b32 s{S_MU}, s7, 7")
        a.i(f"s_lshr_b32 s{S_J}, s7, 3")
        a.i("s_lshl_b32 s6, s6, 2")
        a.i(f"s_add_u32 s{S_G}, s6, s{S_J}")
        a.i(f"s_lshl_b32 s{S_J}, s{S_J}, 1")
    else:
        a.i("s_and_b32 s6, s2, 1")
        a.i("s_lshl_b32 s6, s6, 2")
        a.i(f"s_and_b32 s{S_MU}, s7, 3")
        a.i(f"s_add_u32 s{S_MU}, s{S_MU}, s6")
        if PRM["par"] in (1, 2):
            a.i(f"s_mov_b32 s8, s{S_MU}")
            a.i("s_and_b32 s6, s7, 3")
            a.i("s_lshl_b32 s6, s6, 1")
            a.i(f"s_and_b32 s{S_MU}, s2, 1")
            if PRM["par"] == 2: a.i(f"s_xor_b32 s{S_MU}, s{S_MU}, 1")
            a.i(f"s_add_u32 s{S_MU}, s{S_MU}, s6")
        a.i(f"s_lshr_b32 s{S_J}, s7, 2")
        a.i("s_and_b32 s6, s2, 6")
        a.i("s_lshl_b32 s6, s6, 2")
        a.i(f"s_add_u32 s{S_G}, s6, s{S_J}")
    a.i(f"v_lshlrev_b32 v{VLIN}, 4, v0")
    a.i(f"s_cmp_ge_u32 s{S_W}, 4")
    a.i("s_cbranch_scc1 L_G")
    vm0 = list(a.vm)
    stamp_init(a, "A")
    if PRM["aprio"]: a.i("s_setprio 3")
    wchunk_addr(a, VW1K_A, 14, 1024)
    a.i(f"s_lshl_b32 s9, s{S_W}, 15")
    a.i(f"s_lshl_b32 s10, s{S_MU}, 7")
    a.i("s_add_u32 s9, s9, s10")
    a.i(f"s_lshl_b32 s10, s{S_J}, 16")
    a.i("s_add_u32 s9, s9, s10")
    a.i(f"s_lshl_b32 s8, s{S_W}, 12")
    a.i(f"s_add_u32 s8, s8, {L_WQ}")
    a.i("s_waitcnt lgkmcnt(0)")
    srd(a, SWQ, "wq")
    if PRM["wqt"]:
        a.i("s_lshl_b32 s10, s2, 2")
        a.i(f"s_add_u32 s10, s10, s{S_W}")
        a.i("s_lshl_b32 s10, s10, 9")
        a.i("s_mov_b32 exec_hi, 0")
        a.i(f"buffer_load_dwordx4 v[104:107], v{VLIN}, {R(SWQ)}, s10 offen")
        a.i("s_mov_b32 exec_hi, -1")
    if PRM["w1t"]:
        srd(a, SW1, "w1")
        a.i("s_lshl_b32 s10, s2, 2")
        a.i(f"s_add_u32 s10, s10, s{S_W}")
        a.i("s_mul_i32 s10, s10, 1792")
        a.i("v_lshlrev_b32 v14, 6, v0")
        a.i("s_mov_b64 exec, 0xfffffff")
        a.i(f"buffer_load_dword v108, v14, {R(SW1)}, s10 offen")
        a.i("s_mov_b64 exec, -1")
    if not PRM["wqlate"]: wq_round(a, 0)
    if PRM["ctpos"] == 1: a.i("buffer_load_dwordx2 v[104:105], v3, s[44:47], s14 offen ; touch")
    vmA = list(a.vm)
    if PRM["aprio"]: a.i("s_setprio 0")
    a.i("s_branch L_A")
    a.label("L_G")
    a.i(f"s_mov_b32 s62, s{8 if PRM['par'] in (1, 2) and PRM['gpx'] == 8 else S_MU}")
    stamp_init(a, "G")
    if STAMP: a.i("s_waitcnt lgkmcnt(0)"); a.i("s_mov_b32 s26, -1")
    a.vm = list(vm0)
    VGE, VXE, VXO = 8, 9, 10
    a.i("v_bfe_u32 v14, v0, 4, 2")
    a.i("v_and_b32 v15, 7, v0")
    a.i("v_xor_b32 v14, v14, v15")
    a.i(f"v_lshlrev_b32 v{VGE}, 4, v14")
    a.i("v_lshrrev_b32 v14, 3, v0")
    a.i(f"s_sub_u32 s6, s{S_W}, 4")
    a.i(f"s_add_u32 s12, s62, s6")
    a.i("s_and_b32 s12, s12, 3")
    a.i(f"s_lshl_b32 s7, s{S_G}, 2")
    a.i("s_add_u32 s7, s7, s12")
    a.i("s_lshl_b32 s7, s7, 4")
    a.i("v_add_u32 v14, s7, v14")
    a.i(f"v_lshl_add_u32 v{VXE}, v14, 10, v{VGE}")
    a.i(f"v_xor_b32 v{VXO}, 64, v{VXE}")
    a.i(f"v_add_u32 v{VXO}, {8192-1024}, v{VXO}")
    a.i("s_lshl_b32 s10, s12, 11")
    a.i(f"s_lshl_b32 s11, s{S_J}, 7")
    a.i(f"s_lshl_b32 s9, s{S_J}, 11")
    a.i("s_setprio 2")
    a.i("s_cmp_lg_u32 s6, 0")
    a.i("s_cbranch_scc1 L_G123")
    vmG = list(a.vm)
    g0_front(a, VXE, VXO)
    a_waves(a, vmA)
    g_waves(a, VGE, VXE, VXO, vmG)
    a.label("L_end")
    a.i("s_endpgm")
    a_slow(a)
    a.label("L_code_end")
    return a.finish()

GW, GSP = 6, 99
def pair_of(a, d): a.i(f"s_and_b32 s{d}, s{S_MU}, 3" if PRM["par"] == 3 else f"s_lshr_b32 s{d}, s{S_MU}, 1")
def role_of(a, d): a.i(f"s_lshr_b32 s{d}, s{S_MU}, 2" if PRM["par"] == 3 else f"s_and_b32 s{d}, s{S_MU}, 1")
def kv_addr(a):
    a.i(f"s_and_b32 s7, s62, 3")
    a.i(f"s_cmp_ge_u32 s62, 4")
    a.i("s_cselect_b32 s8, 8, 9")
    a.i("s_cselect_b32 s13, 9, 8")
    a.i("s_cselect_b32 s60, 1024, 0")
    a.i("s_and_b32 s61, s7, 1")
    a.i("s_lshl_b32 s61, s61, s13")
    a.i("s_add_u32 s60, s60, s61")
    a.i(f"s_lshl_b32 s61, s{S_G}, 1")
    a.i("s_lshr_b32 s13, s7, 1")
    a.i("s_add_u32 s61, s61, s13")
    a.i(f"s_mul_i32 s61, s61, {TS}")
    a.i("s_add_u32 s60, s60, s61")
    a.i("v_bfe_u32 v15, v0, 4, 1")
    a.i("v_lshlrev_b32 v15, s8, v15")
    a.i("v_and_b32 v24, 15, v0")
    a.i("v_lshl_add_u32 v23, v24, 4, v15")
def g0_front(a, VXE, VXO):
    if not PRM["aprio"]: a.i("s_setprio 3")
    kv_addr(a)
    a.i("v_cmp_gt_u32 vcc, 32, v0")
    a.i("v_mov_b32 v36, 0x3f803f80")
    a.i("s_sub_u32 s13, s61, s60")
    a.i("s_add_u32 s13, s13, 2048")
    a.i("v_mov_b32 v37, s13")
    a.i("v_cndmask_b32 v38, v37, v23, vcc")
    for r in range(32, 36): a.i(f"v_cndmask_b32 v{r}, v36, -1, vcc")
    a.i(f"s_lshr_b32 s8, s62, 2")
    a.i("s_lshl_b32 s8, s8, 1")
    a.i("s_and_b32 s7, s7, 1")
    a.i("s_add_u32 s8, s8, s7")
    a.i("s_lshl_b32 s8, s8, 2")
    a.i("s_add_u32 s61, s61, s8")
    a.i(f"s_mov_b32 s8, {WS_NONCE}")
    a.i("s_waitcnt lgkmcnt(0)")
    srd(a, SWS, "ws")
    a.i(f"buffer_load_dword v40, off, {R(SWS)}, s8 sc1")
    a.i(f"buffer_store_dwordx4 v[32:35], v38, {R(SWS)}, s60 offen sc1", tag="mark")
    srd(a, SX, "x")
    a.i(f"s_cmp_ge_u32 s62, 4")
    a.i(f"s_cselect_b32 s{SWKV}, s{P['wv']}, s{P['wk']}")
    a.i(f"s_cselect_b32 s{SWKV+1}, s{P['wv']+1}, s{P['wk']+1}")
    a.i(f"s_mov_b32 s{SWKV+2}, 16384")
    a.i(f"s_mov_b32 m0, {L_WKV}")
    a.i(f"s_mov_b32 s{SWKV+3}, 0x20000")
    def wpair(q):
        if q:
            a.i(f"s_mov_b32 m0, {L_WKV + q*2048}")
            a.i("s_add_u32 s9, s9, 2048")
            a.i("s_and_b32 s9, s9, 0x3fff")
        for i in range(2):
            a.i(f"buffer_load_dwordx4 v{VLIN}, {R(SWKV)}, s9 offen offset:{i*1024}{FL[PRM['ntk'] if q < 2 else 0]} lds", tag=("wk", 2*q+i))
    if PRM["g0d"]: a.i(f"s_sleep {PRM['g0d']}")
    wpair(0)
    xpairs(a, VXE, VXO, 10, 11, lambda sl: ("x", sl))
    for r in range(36, 40): a.i(f"v_mov_b32 v{r}, 0")
    a.i(f"v_mov_b32 v14, {L_CNT}")
    a.i("ds_write_b128 v14, v[36:39]")
    a.i("ds_write_b128 v14, v[36:39] offset:16")
    if PRM["aprio"]: a.i("s_setprio 3")
    a.wait(vm="mark")
    a.i("v_add_u32 v40, 0x9e3779b9, v40")
    a.i("s_mov_b64 exec, 1")
    a.i(f"buffer_store_dword v40, off, {R(SWS)}, s61 offset:{2048+128} sc1")
    a.i(f"ds_write_b32 v14, v40 offset:{C_T}")
    a.i("s_mov_b64 exec, -1")
    wpair(1)
    srd(a, SGT, "gate")
    a.i(f"s_lshl_b32 s8, s{S_J}, 7")
    a.i(f"v_add_u32 v14, s8, v{VLIN}")
    a.i(f"s_mov_b32 m0, {L_GW}")
    a.i("v_and_b32 v14, 0x3ff, v14")
    a.i(f"buffer_load_dwordx4 v14, {R(SGT)}, 0 offen lds")
    for q in range(2, 8): wpair(q)
    if "fst" in OPT: stamp(a, 16, 14)
    a.i("s_waitcnt lgkmcnt(0)"); a.lg = []
    a.i("s_barrier")
    XA, TA = 20, 22
    a.i("v_bfe_u32 v14, v0, 1, 3")
    a.i("v_lshrrev_b32 v15, 4, v0")
    a.i("v_xor_b32 v14, v14, v15")
    a.i("v_and_b32 v24, 15, v0")
    a.i("s_lshl_b32 s7, s12, 4")
    a.i("v_add_u32 v25, s7, v24")
    a.i("v_lshlrev_b32 v25, 7, v25")
    a.i(f"v_lshl_add_u32 v{XA}, v14, 4, v25")
    a.i(f"v_xor_b32 v{XA+1}, 64, v{XA}")
    a.i("v_bfe_u32 v14, v0, 2, 2")
    a.i("v_lshl_add_u32 v14, v15, 3, v14")
    a.i(f"v_lshlrev_b32 v{TA}, 5, v14")
    a.i("v_and_b32 v14, 3, v0")
    a.i(f"v_lshl_add_u32 v{TA}, v14, 3, v{TA}")
    a.i(f"v_add_u32 v{TA}, {L_WKV}, v{TA}")
    a.i(f"s_mov_b32 s{GSP}, {SPIN}")
    for r in range(34, 36): a.i(f"v_mov_b32 v{r}, 0")
    a.i(f"v_mov_b32 v14, {L_CNT}")
    a.i("v_mov_b32 v15, 1")
    a.i(f"s_cmp_ge_u32 s62, 4")
    a.i("s_cbranch_scc1 L_G0_V")
    vm1 = list(a.vm); lg1 = list(a.lg)
    for orient in range(2):
        if orient:
            a.label("L_G0_V"); a.vm = list(vm1); a.lg = list(lg1)
        NB_ = 4
        def rd(sx):
            b = 64 + 8*(sx % NB_)
            a.wait(vm=[("wk", sx), ("x", sx >> 1)])
            if "fst" in OPT and sx in (0, 4): stamp(a, 17 + sx//4, 14)
            if sx == 4: cnt_add(a, 14, 15, 0)
            a.i(f"ds_read_b64_tr_b16 {v(b,2)}, v{TA} offset:{sx*1024}")
            a.i(f"ds_read_b64_tr_b16 {v(b+2,2)}, v{TA} offset:{sx*1024+128}")
            a.i(f"ds_read_b128 {v(b+4,4)}, v{XA + (sx&1)} offset:{(sx>>1)*8192}", tag=("c", sx))
        for sx in range(NB_): rd(sx)
        for sx in range(16):
            a.wait(lg=("c", sx))
            b = 64 + 8*(sx % NB_)
            mfma16(a, 28, *((b, b+4) if orient == 0 else (b+4, b)), "0" if sx == 0 else None)
            if sx + NB_ < 16: rd(sx + NB_)
        if orient == 0: a.i("s_branch L_G0_pub")
    a.label("L_G0_pub")
    cnt_add(a, 14, 15, 12)
    stamp(a, 15, 250)
    a.i("s_nop 1")
    a.i("v_cvt_pk_bf16_f32 v32, v28, v29")
    a.i("v_cvt_pk_bf16_f32 v33, v30, v31")
    a.i("v_min_u32 v32, -2, v32")
    a.i("s_nop 0")
    a.i("v_permlane32_swap_b32 v33, v35")
    a.i("v_permlane32_swap_b32 v32, v34")
    a.i("s_mov_b32 exec_hi, 0")
    a.i(f"buffer_store_dwordx4 v[32:35], v23, {R(SWS)}, s60 offen sc1")
    a.i("s_mov_b32 exec_hi, -1")
    stamp(a, 8, 14)
    g_setup(a)
    a.i("s_setprio 2")
    if PRM["w1pos"] != 3: g_w1first(a, "L_G0_now1")
    a.i("s_branch L_G_ffn1")

def kvload(a, st, so=SKO, off=0, SWS=SKV):
    b = KVS[st]
    return [
        lambda: a.i(f"buffer_load_dwordx4 {v(b,4)}, v{VLIN}, {R(SWS)}, s{so} offen offset:{off} sc1", tag=("kv", st)),
        lambda: a.i(f"buffer_load_dwordx4 {v(b+4,4)}, v{VV0}, {R(SWS)}, s{so} offen offset:{off+1024} sc1", tag=("kv", st)),
        lambda: a.i(f"buffer_load_dwordx4 {v(b+8,4)}, v{VV1}, {R(SWS)}, s{so} offen offset:{off+1024} sc1", tag=("kv", st))]
def kvfirstcheck(a):
    b0 = KVS[0]
    a.i(f"v_max3_u32 v{T0}, v{b0}, v{b0+4}, v{b0+8}")
    if PRM["chk3"]:
        b1, b2 = KVS[1:3]
        a.i(f"v_max3_u32 v{T1}, v{b1}, v{b1+4}, v{b1+8}")
        a.i(f"v_max3_u32 v{T0}, v{T0}, v{b2}, v{b2+4}")
        a.i(f"v_max3_u32 v{T0}, v{T0}, v{T1}, v{b2+8}")
    a.i(f"v_max_u32 v{T0}, v{T0}, v{KVS[3]+1}")
    a.i(f"v_cmp_eq_u32 vcc, -1, v{T0}")
def kvfirst(a):
    run(a, kvload(a, 0, SKC))
    a.i(f"buffer_load_dword v{KVS[3]+1}, v{KVS[3]}, {R(SWS)}, s{SKC} offen sc1", tag="sweep")
    run(a, kvload(a, 1, SKC, TS)); run(a, kvload(a, 2, SKO))

def attn_slot(a, i, prv, cur, nxt, extra, last=False):
    Sc = S + 16*(i & 1); Sn = S + 16*((i+1) & 1)
    e = lambda r: a.i(f"v_exp_f32 v{Sc+r}, v{Sc+r}")
    c = lambda j: a.i(f"v_cvt_pk_bf16_f32 v{Pq+j}, v{Sc+2*j}, v{Sc+2*j+1}")
    ex = lambda k: run(a, extra.get(k, []))
    e(0); e(1)
    mfma(a, O + 16*((i - 1) % 8), (cur if i > 0 else prv) + 8, Pq + 4)
    ex(0)
    for r in range(2, 7): e(r)
    ex("pre1")
    if not (last and i == 7): mfma(a, Sn, cur if i < 7 else nxt, Q + 4*((i + 1) % 8), "0")
    ex(1)
    e(7)
    for j in range(4): c(j)
    e(8); e(9)
    mfma(a, O + 16*i, cur + 4, Pq)
    ex(2)
    for r in range(10, 16): e(r)
    for j in range(4, 8): c(j)

def a_waves(a, vmA):
    VXR, VTR, VC = 88, 92, 93
    a.label("L_A")
    a.vm = list(vmA); a.lg = []
    if PRM["apf"]:
        srd(a, SW1, "w1")
        wchunk_addr(a, 16, 14, 3584)
        a.i(f"s_lshr_b32 s12, s{S_MU}, 1")
        a.i("s_mul_i32 s12, s12, 7")
        a.i(f"s_and_b32 s13, s{S_MU}, 1")
        a.i("s_lshl_b32 s13, s13, 2")
        a.i("s_add_u32 s12, s12, s13")
        a.i("s_lshl_b32 s12, s12, 7")
        a.i(f"s_lshl_b32 s13, s{S_J}, 2")
        a.i(f"s_add_u32 s13, s13, s{S_W}")
        a.i(f"s_mul_i32 s13, s13, {16*3584}")
        a.i("s_add_u32 s12, s12, s13")
    assert not PRM["apf"]
    srd(a, SWS, "ws")
    xfrag_addr(a, VXR, 14, 15)
    tr_addr(a, VTR, 14, 15, 8)
    a.i(f"s_and_b32 s6, s{S_W}, 1")
    a.i(f"s_lshr_b32 s7, s{S_W}, 1")
    a.i("s_lshl_b32 s12, s6, 6")
    a.i(f"v_xor_b32 v{VTR}, s12, v{VTR}")
    a.i(f"v_add_u32 v{VTR}, {L_WQ}, v{VTR}")
    a.i("s_lshl_b32 s12, s7, 12")
    for q in range(4): a.i(f"v_add_u32 v{VXR+q}, s12, v{VXR+q}")
    a.i(f"v_and_b32 v{T0}, 15, v0")
    a.i(f"v_lshrrev_b32 v{T1}, 5, v0")
    a.i(f"v_lshlrev_b32 v{T1}, 8, v{T1}")
    a.i(f"v_lshl_add_u32 v{VV0}, v{T0}, 4, v{T1}")
    a.i(f"v_add_u32 v{VV1}, 512, v{VV0}")
    a.i(f"v_and_b32 v{T0}, 27, v0")
    a.i(f"v_cmp_eq_u32 vcc, 16, v{T0}")
    a.i(f"v_mov_b32 v{T1}, {BIG:#x}")
    a.i("v_mov_b32 v14, 1024")
    a.i(f"v_cndmask_b32 v{T1}, v{T1}, v14, vcc")
    a.i(f"v_and_b32 v{T0}, 16, v0")
    a.i(f"v_cmp_eq_u32 vcc, 0, v{T0}")
    a.i(f"s_mul_i32 s{SKC}, s{S_W}, {16*TS}")
    a.i(f"s_add_u32 s{SKO}, s{SKC}, {2*TS}")
    a.i(f"v_cndmask_b32 v{VV0}, v{T1}, v{VV0}, vcc")
    a.i(f"v_cndmask_b32 v{VV1}, v{T1}, v{VV1}, vcc")
    srd(a, SKV, "ws")
    a.i(f"s_add_u32 s{SKV+2}, s{SKC}, {16*TS}")
    a.i(f"s_mov_b32 s{SSP}, {SPIN}")
    a.i(f"v_mov_b32 v{VC}, {L_CNT}")
    for r in range(4, 8): a.i(f"v_mov_b32 v{Pq+r}, 0")
    for r in range(8, 12): a.i(f"v_mov_b32 v{KVS[3]+r}, 0")
    for r in range(127): a.i(f"v_mov_b32 v{O+r}, 0")
    a.i(f"v_lshrrev_b32 v{VG}, 2, v0")
    a.i(f"v_mul_u32_u24 v{VG}, {TS}, v{VG}")
    a.i(f"v_and_b32 v{VG+1}, 3, v0")
    a.i(f"v_bfe_u32 v14, v0, 1, 1")
    a.i(f"v_lshl_add_u32 v{KVS[3]}, v14, 10, v{VG}")
    a.i(f"v_add_u32 v14, 8, v14")
    a.i(f"v_and_b32 v15, 1, v0")
    a.i(f"v_lshlrev_b32 v15, v14, v15")
    a.i(f"v_add_u32 v{KVS[3]}, v{KVS[3]}, v15")
    a.i(f"v_subrev_u32 v14, 4, v0")
    a.i(f"v_cmp_gt_u32 vcc, {4*PRM['nsw']}, v14")
    a.i(f"v_mov_b32 v15, {BIG:#x}")
    a.i("s_nop 0")
    a.i(f"v_cndmask_b32 v{KVS[3]}, v15, v{KVS[3]}, vcc")
    a.i(f"v_lshl_add_u32 v{VG}, v{VG+1}, 2, v{VG}")
    a.i(f"v_add_u32 v{VG}, {2048 + 128}, v{VG}")
    QWA, QRA = 95, 96
    a.i("s_lshl_b32 s8, s6, 12")
    a.i("s_lshl_b32 s9, s7, 10")
    a.i("s_add_u32 s8, s8, s9")
    a.i(f"s_add_u32 s8, s8, {L_QF}")
    a.i(f"v_add_u32 v{QWA}, s8, v{VLIN}")
    a.i(f"s_mov_b32 s52, {f2u(QSCALE):#x}")
    for k in range(4):
        a.i(f"s_add_u32 s8, s{S_W}, {k+1}")
        a.i("s_and_b32 s8, s8, 3")
        a.i("s_lshl_b32 s8, s8, 11")
        a.i(f"s_add_u32 s8, s8, {L_QF}")
        a.i(f"v_add_u32 v{QRA+k}, s8, v{VLIN}")
    a.i(f"s_lshl_b32 s53, s{S_G}, 5")
    a.i(f"s_lshl_b32 s9, s{S_MU}, 2")
    a.i("s_add_u32 s53, s53, s9")
    a.i(f"s_add_u32 s53, s53, s{S_W}")
    a.i("s_lshl_b32 s53, s53, 11")
    a.i(f"s_add_u32 s53, s53, {WS_O}")
    a.i(f"s_mov_b32 s80, {f2u(2.0**-30):#x}")
    a.i(f"s_mov_b32 s81, {f2u(2.0**100):#x}")
    a.i("s_barrier")
    if PRM["wqlate"]: wq_round(a, 0)
    a.i(f"ds_read_b32 v{T0}, v{VC} offset:{C_T}")
    a.i(f"v_mov_b32 v{T1}, 1")
    a.i("s_waitcnt lgkmcnt(0)"); a.lg = []
    a.i(f"v_readfirstlane_b32 s{S_TAG}, v{T0}")
    a.wait(vm=("wq", 0))
    cnt_add(a, VC, T1, 0)
    a.i(f"v_mov_b32 v{O+127}, 0")
    a.i(f"s_setprio {PRM['qprio']}")
    cnt_wait(a, VC, T0, 0, CT[0], "L_k0", 8)
    stamp(a, 1, AST)
    def tagcheck():
        a.wait(vm="tag")
        a.i(f"v_cmp_ne_u32 vcc, s{S_TAG}, v{VG+1}")
        a.i("s_cbranch_vccnz L_tagr")
        a.label("L_tag_ok")
        stamp(a, 3, AST)
        a.vm = []
        kvfirst(a)
        if PRM["w1pos"] == 3 and PRM["ckpos"]: cnt_add(a, VC, T1, C_K)
    FRS = [8, 16, 24, 32, 40]; NB_ = PRM["qnb"]
    assert NB_ == 4 or PRM["kvat"] >= 32
    def rd(sx):
        b = FRS[sx % NB_]
        a.i(f"ds_read_b64_tr_b16 {v(b,2)}, v{VTR} offset:{sx*2048}")
        a.i(f"ds_read_b64_tr_b16 {v(b+2,2)}, v{VTR} offset:{sx*2048+512}")
        a.i(f"ds_read_b128 {v(b+4,4)}, v{VXR + (sx&3)} offset:{(sx>>2)*8192}", tag=("c", sx))
    for sx in range(NB_-1): rd(sx)
    for sx in range(32):
        nx = sx + NB_ - 1
        if nx < 32 and nx % 8 == 8 - NB_ and nx < 24: a.i(f"ds_read_b32 v{T0}, v{VC} offset:{4*(nx//8 + 1)}")
        if nx < 32 and nx % 8 == 0:
            a.i(f"v_readfirstlane_b32 s8, v{T0}")
            a.i(f"s_cmp_ge_u32 s8, {CT[nx//8]}")
            a.i(f"s_cbranch_scc0 L_k{nx//8}")
            a.label(f"L_k{nx//8}_ok")
        if nx < 32: rd(nx)
        if sx == PRM["tagat"]: a.i(f"buffer_load_dword v{VG+1}, v{VG}, {R(SWS)}, s{SKC} offen sc1", tag="tag")
        if sx == PRM["kvat"]: tagcheck()
        a.wait(lg=("c", sx))
        b = FRS[sx % NB_]
        mfma(a, S, b, b+4, "0" if sx == 0 else None)
    stamp(a, 2, AST)
    if PRM["kvat"] == 32: tagcheck()
    for r in range(16): a.i(f"v_mul_f32 v{S+r}, s52, v{S+r}")
    for j in range(8): a.i(f"v_cvt_pk_bf16_f32 v{80+j}, v{S+2*j}, v{S+2*j+1}")
    for e in range(2): a.i(f"ds_write_b128 v{QWA}, {v(80+4*e,4)} offset:{2048*e}")
    cnt_add(a, VC, T1, C_Q)
    if PRM["kvat"] == 33: tagcheck()
    def qreads():
        for i in range(8): a.i(f"ds_read_b128 {v(Q+4*i,4)}, v{QRA + (i>>1)} offset:{1024*(i&1)}")
    cnt_wait(a, VC, VTR, C_Q, 4, "L_qwait", 8, qreads)
    if PRM["kvat"] == 34: tagcheck()
    a.i(f"v_mov_b32 v{VG}, v{VC}")
    a.i(f"v_mov_b32 v{VG+1}, 1")
    a.wait(vm="all" if PRM["chk3"] else "sweep")
    kvfirstcheck(a)
    a.i("s_cbranch_vccnz L_kvr_first")
    a.label("L_kv_first_ok")
    if PRM["w1pos"] == 3 and not PRM["ckpos"]: cnt_add(a, VG, VG+1, C_K)
    stamp(a, 4, AST)
    mfma(a, S, KVS[0], Q, "0")
    a.i("s_setprio 1")
    a.i(f"s_mov_b32 s{SIT}, 4")
    a.i("s_nop 8")
    a.i("s_branch L_attn_in")
    def tile(t, last=False):
        prv, cur, nxt = (t-1) % 4, t, (t+1) % 4
        ld = kvload(a, prv)
        XA = KVS[2]
        for i in range(8):
            extra = {}
            if not last:
                if i == 0: extra = {0: [f"s_add_u32 s{SKO}, s{SKO}, {TS}"], 1: [ld[0]], 2: [ld[1]]}
                if i == 1: extra = {0: [ld[2]]}
                if i == 7:
                    extra = {0: [lambda: a.wait(vm=("kv", nxt))]}
                    if t == 2:
                        extra[1] = [f"s_sub_u32 s{SIT}, s{SIT}, 1"]; extra[2] = [f"s_cmp_lg_u32 s{SIT}, 0"]
                if t == 2 and i == 5: extra = {0: [f"ds_read_b32 v{VG+1}, v{VG} offset:{C_F}"]}
                if t == 2 and i == 6: extra = {0: ["s_waitcnt lgkmcnt(0)"]}
            elif i >= 2:
                j = i - 2; k = j >> 1; o = k*XK + (j & 1)*2048
                extra = {0: [f"ds_write_b128 v{XA+k}, {v(O+16*j,4)} offset:{o}"],
                         1: [f"ds_write_b128 v{XA+k}, {v(O+16*j+4,4)} offset:{o+1024}"]}
                if j & 1: extra[2] = [f"ds_write2st64_b32 v{XA+3+k}, v{O+16*j-8}, v{O+16*j+8} offset0:{k*XK//256} offset1:{k*XK//256+1}"]
            attn_slot(a, i, KVS[prv], KVS[cur], KVS[nxt], extra, last)
    a.raw(".p2align 6")
    a.label("L_attn_loop")
    a.vm = [("kv", 0)]*3 + [("kv", 1)]*3; a.lg = []
    tile(3)
    a.label("L_attn_in")
    for t in range(3): tile(t)
    a.i("s_cbranch_scc1 L_attn_loop")
    a.lg = []
    a.i(f"v_readfirstlane_b32 s8, v{VG+1}")
    XA = KVS[2]
    a.i(f"v_lshlrev_b32 v{T1}, 2, v0")
    for k in range(3):
        a.i(f"s_add_u32 s9, s{S_W}, {k+1}")
        a.i("s_and_b32 s9, s9, 3")
        a.i(f"s_mul_i32 s9, s9, {XO}")
        a.i(f"v_add_u32 v{XA+k}, s9, v{VLIN}")
        a.i("s_add_u32 s9, s9, 4096")
        a.i(f"v_add_u32 v{XA+3+k}, s9, v{T1}")
    a.i("s_cmp_ge_u32 s8, 4")
    a.i("s_cbranch_scc0 L_xwait")
    a.label("L_xok")
    tile(3, last=True)
    a.i(f"s_mul_i32 s9, s{S_W}, {XO}")
    a.i(f"v_add_u32 v{XA}, s9, v{VLIN}")
    mfma(a, O + 16*7, KVS[3] + 8, Pq + 4)
    a.i("s_add_u32 s9, s9, 4096")
    a.i(f"v_add_u32 v{XA+1}, s9, v{T1}")
    a.i(f"v_and_b32 v{T1}, 31, v0")
    a.i(f"v_lshlrev_b32 v{T1}, 2, v{T1}")
    a.i(f"v_add_u32 v{T1}, {L_G}, v{T1}")
    a.i("s_waitcnt lgkmcnt(0)"); a.lg = []
    stamp(a, 5, AST)
    a.i("s_barrier")
    a.i("s_setprio 3")
    LL = O + 16*5 + 10
    for rh in range(2):
        for k in range(3):
            o = k*XK + rh*2048; d = O + 16*(rh*3 + k)
            a.i(f"ds_read_b128 {v(d,4)}, v{XA} offset:{o}")
            a.i(f"ds_read_b128 {v(d+4,4)}, v{XA} offset:{o+1024}", tag=("x", rh, k))
        if rh == 0:
            for k in range(3): a.i(f"ds_read2st64_b32 {v(LL+2*k,2)}, v{XA+1} offset0:{k*XK//256} offset1:{k*XK//256+1}")
            a.i(f"ds_read2_b32 {v(VG,2)}, v{T1} offset0:0 offset1:32", tag="l")
    for rh in range(2):
        f = O + 16*(6 + rh); d = O + 48*rh
        a.wait(lg=("x", rh, 1))
        for r in range(0, 8, 2): a.i(f"v_pk_add_f32 {v(d+r,2)}, {v(d+r,2)}, {v(d+16+r,2)}")
        a.wait(lg=("x", rh, 2))
        for r in range(0, 8, 2): a.i(f"v_pk_add_f32 {v(f+r,2)}, {v(f+r,2)}, {v(d+32+r,2)}")
        if rh == 0:
            a.wait(lg="l")
            a.i(f"v_pk_add_f32 {v(LL,2)}, {v(LL,2)}, {v(LL+2,2)}")
            a.i(f"v_pk_add_f32 {v(LL,2)}, {v(LL,2)}, {v(LL+4,2)}")
        a.i(f"v_add_f32 v{f+8}, v{f+8}, v{LL+rh}")
        for r in range(0, 8, 2): a.i(f"v_pk_add_f32 {v(f+r,2)}, {v(f+r,2)}, {v(d+r,2)}")
        a.i(f"v_pk_mul_f32 {v(T0,2)}, {v(f,2)}, 0 op_sel_hi:[1,0]")
        a.i(f"v_cmp_le_f32 s[54:55], s80, v{f+8}")
        a.i(f"v_cmp_ge_f32 s[56:57], s81, v{f+8}")
        for r in range(2, 8, 2): a.i(f"v_pk_fma_f32 {v(T0,2)}, {v(f+r,2)}, 0, {v(T0,2)} op_sel_hi:[1,0,1]")
        a.i("s_and_b64 s[54:55], s[54:55], s[56:57]")
        a.i(f"v_cmp_o_f32 vcc, v{T0}, v{T1}")
        a.i(f"v_rcp_f32 v{T0}, v{f+8}")
        a.i("s_and_b64 s[54:55], s[54:55], vcc")
        a.i("s_cmp_eq_u64 s[54:55], -1")
        a.i(f"s_cbranch_scc0 L_slow{rh}")
        a.label(f"L_ok{rh}")
        a.i(f"v_mul_f32 v{T0}, v{T0}, v{VG+rh}")
        for r in range(0, 8, 2): a.i(f"v_pk_mul_f32 {v(f+r,2)}, {v(f+r,2)}, {v(T0,2)} op_sel_hi:[1,0]")
        for j in range(4): a.i(f"v_cvt_pk_bf16_f32 v{S+4*rh+j}, v{f+2*j}, v{f+2*j+1}")
        a.i(f"v_min_u32 v{S+4*rh}, -2, v{S+4*rh}")
        a.i(f"buffer_store_dwordx4 {v(S+4*rh,4)}, v{VLIN}, {R(SWS)}, s53 offen offset:{1024*rh} sc1")
    if PRM["b3b"]: a.i("s_barrier")
    stamp(a, 6, AST)
    a.i("s_setprio 0")
    final_addr(a, 8)
    a.i("s_waitcnt vmcnt(0)"); a.vm = []
    a.i("s_barrier")
    final_stage(a, 8)
    stamp(a, 7, AST)
    stamp_dump(a, "A")
    a.i("s_endpgm")
    a.label("L_kvr_first")
    a.i(f"s_sub_u32 s{SSP}, s{SSP}, 1")
    a.i(f"s_cbranch_scc1 L_kv_first_ok")
    a.i("s_waitcnt vmcnt(0)"); a.vm = []
    kvfirst(a)
    a.wait(vm="all" if PRM["chk3"] else "sweep")
    kvfirstcheck(a)
    a.i("s_cbranch_vccz L_kv_first_ok")
    a.i("s_branch L_kvr_first")
    a.label("L_tagr")
    a.i("s_sleep 4")
    a.i(f"buffer_load_dword v{VG+1}, v{VG}, {R(SWS)}, s{SKC} offen sc1")
    a.i("s_waitcnt vmcnt(0)"); a.vm = []
    a.i(f"v_cmp_ne_u32 vcc, s{S_TAG}, v{VG+1}")
    a.i("s_cbranch_vccz L_tag_ok")
    spin_tail(a, SSP, "L_tagr", "L_tag_ok")
    cnt_wait(a, VG, VG+1, C_F, 4, "L_xwait", 8)
    a.i("s_branch L_xok")
    for q in range(1, 4):
        cnt_wait(a, VC, T0, 4*q, CT[q], f"L_k{q}", 8)
        a.i(f"s_branch L_k{q}_ok")

def a_slow(a):
    KV = KVS[0]
    for rh in range(2):
        f = O + 16*(6 + rh); q = Q + 4*(6 + rh)
        SS, CC, OO, PP = S + 16, KVS[2], O, Pq
        a.label(f"L_slow{rh}")
        if STAMP: a.i(f"s_sub_u32 s{SSP}, s{SSP}, 1000")
        a.i("s_waitcnt vmcnt(0)" + (" lgkmcnt(0)" if rh == 0 else ""))
        a.i(f"s_mov_b32 s{SKO}, {WS_KV}")
        a.i(f"v_mov_b32 v{T1}, 0xff800000")
        a.label(f"L_slow{rh}_a")
        run(a, kvload(a, 0, SWS=SWS))
        a.i("s_waitcnt vmcnt(0)")
        a.i(f"v_max3_u32 v{T0}, v{KV}, v{KV+4}, v{KV+8}")
        a.i(f"v_cmp_eq_u32 vcc, -1, v{T0}")
        a.i(f"s_cbranch_vccz L_slow{rh}_c")
        spin_tail(a, SSP, f"L_slow{rh}_a", f"L_slow{rh}_c")
        a.label(f"L_slow{rh}_c")
        mfma(a, SS, KV, q, "0")
        a.i("s_nop 15")
        for r in range(0, 16, 2): a.i(f"v_max3_f32 v{T1}, v{T1}, v{SS+r}, v{SS+r+1}")
        a.i(f"s_add_u32 s{SKO}, s{SKO}, {TS}")
        a.i(f"s_cmp_lt_u32 s{SKO}, {WS_KV + 64*TS}")
        a.i(f"s_cbranch_scc1 L_slow{rh}_a")
        a.i(f"v_mov_b32 v{T0}, v{T1}")
        a.i("s_nop 1")
        a.i(f"v_permlane32_swap_b32 v{T0}, v{T1}")
        a.i(f"v_max_f32 v{T1}, v{T0}, v{T1}")
        for r in range(16):
            a.i(f"v_sub_f32 v{CC+r}, 0, v{T1}")
            a.i(f"v_mov_b32 v{OO+r}, 0")
        a.i(f"s_mov_b32 s{SKO}, {WS_KV}")
        a.label(f"L_slow{rh}_b")
        run(a, kvload(a, 0, SWS=SWS))
        a.i("s_waitcnt vmcnt(0)")
        mfma(a, SS, KV, q, v(CC, 16))
        a.i("s_nop 15")
        for r in range(16): a.i(f"v_exp_f32 v{SS+r}, v{SS+r}")
        a.i("s_nop 0")
        for j in range(8): a.i(f"v_cvt_pk_bf16_f32 v{PP+j}, v{SS+2*j}, v{SS+2*j+1}")
        a.i("s_nop 1")
        mfma(a, OO, KV + 4, PP)
        mfma(a, OO, KV + 8, PP + 4)
        a.i("s_nop 15")
        a.i(f"s_add_u32 s{SKO}, s{SKO}, {TS}")
        a.i(f"s_cmp_lt_u32 s{SKO}, {WS_KV + 64*TS}")
        a.i(f"s_cbranch_scc1 L_slow{rh}_b")
        for r in range(9): a.i(f"v_mov_b32 v{f+r}, v{OO+r}")
        a.i(f"v_rcp_f32 v{T0}, v{f+8}")
        a.i("s_nop 1")
        a.i(f"s_branch L_ok{rh}")
    a.vm = []; a.lg = []

VW35, VW1K, VSW, GVC, VGG = 4, 6, 3, 12, 12
VTR_G, VTRP, VST = 224, 226, 228
VXR_G, BA1, ONE = 16, 20, 28
ACC, WF, XF, PRE, PD = 64, 32, 48, 128, 12
def g_setup(a):
    srd(a, SW1, "w1"); srd(a, SB1, "b1")
    wchunk_addr(a, VW35, 14, 3584)
    wchunk_addr(a, VW1K, 14, 1024)
    pair_of(a, 12)
    a.i("s_mul_i32 s12, s12, 7")
    role_of(a, 9)
    a.i("s_lshl_b32 s9, s9, 2")
    a.i(f"s_add_u32 s13, s9, s{GW}")
    a.i("s_add_u32 s12, s12, s13")
    a.i("s_lshl_b32 s12, s12, 7")
    a.i(f"s_add_u32 s77, s12, {32*16*3584}")
    a.i(f"s_mul_i32 s76, s{S_J}, {4*16*3584}")
    a.i("s_add_u32 s76, s76, s12")
    a.i("v_lshlrev_b32 v14, 1, v0")
    a.i("v_cmp_gt_u32 vcc, 32, v0")
    a.i(f"v_mov_b32 v15, {BIG:#x}")
    a.i(f"v_mov_b32 v{GVC}, {L_CNT}")
    a.i("v_cndmask_b32 v11, v15, v14, vcc")
    a.i("v_mov_b32 v15, 0x3f80")
    a.i(f"v_cndmask_b32 v{ONE}, 0, v15, vcc")
    for b in (BA1, BA1+4, ONE):
        for r in range(1, 4): a.i(f"v_mov_b32 v{b+r}, 0")
    xfrag_addr(a, VXR_G, 14, 15)
    tr_addr(a, VTR_G, 14, 15, 8)
    tr_addr(a, VTRP, 14, 15, 4)
    a.i(f"s_lshl_b32 s8, s{GW}, 11")
    a.i(f"s_add_u32 s8, s8, {L_STG}")
    a.i(f"v_add_u32 v{VSW}, s8, v{VLIN}")
    a.i(f"v_add_u32 v{VST}, s8, v{VTR_G}")
    a.i(f"s_mul_i32 s14, s{GW}, {RING_W}")
    a.i(f"s_add_u32 s14, s14, {L_RING}")
    a.i(f"v_add_u32 v{VTR_G}, s14, v{VTR_G}")
    a.i(f"v_add_u32 v{VTRP}, s14, v{VTRP}")
    for r in (VTR_G, VTRP, VST): a.i(f"v_xor_b32 v{r+1}, 64, v{r}")
    a.i("v_mov_b32 v8, 1")
def w1load(a, sx):
    pre = sx < PRM["NPRE"]
    if not pre: a.i(f"s_add_u32 m0, s14, {(sx % RD)*2048}")
    a.i(f"s_add_u32 s78, s76, {16*3584}")
    wstep(a, VW35, SW1, 76, PRE+8*(sx % PD) if pre else None, ("w", sx))
    a.i("s_cmp_eq_u32 s78, s77")
    a.i("s_cselect_b32 s76, s12, s78")
def g_w1first(a, name):
    assert (PRM["D1"] <= PRM["NPRE"] < 32 and PRM["D1"] < PD) or (PRM["NPRE"] == 0 and PRM["w1pos"] == 3)
    a.i("s_cmp_eq_u32 s13, 7")
    a.i(f"s_cbranch_scc1 {name}")
    n = len(a.vm)
    for p in range(2): a.i(f"buffer_load_ushort v{BA1+4*p}, v11, {R(SB1)}, s12 offen offset:{64*p}", tag="b")
    for sx in range(PRM["D1"]): w1load(a, sx)
    a.label(name)

def g_waves(a, VGE, VXE, VXO, vmG):
    VTR, VXR, VC = VTR_G, VXR_G, GVC
    NPRE, D1, D2W, D2H, DO, ND = (PRM[k] for k in ("NPRE", "D1", "D2W", "D2H", "DO", "ND"))
    a.label("L_G123")
    a.vm = list(vmG); a.lg = []
    a.i("s_waitcnt lgkmcnt(0)")
    srd(a, SX, "x")
    srd(a, SWS, "ws")
    g_setup(a)
    srd(a, SWQ, "wq")
    a.i(f"s_mov_b32 s{GSP}, {SPIN}")
    for k in range(3):
        a.i(f"s_add_u32 s8, s{GW}, {3*k - 1}")
        a.i("s_min_u32 s8, s8, 7")
        a.i(f"s_lshl_b32 s{60+k}, s8, 11") if False else None
        a.i(f"s_lshl_b32 s{52+k}, s8, 11")
        a.i(f"s_add_u32 s{52+k}, s{52+k}, {L_WQ}")
        a.i("s_lshl_b32 s8, s8, 14")
        a.i(f"s_lshl_b32 s9, s{S_J}, 16")
        a.i("s_add_u32 s8, s8, s9")
        a.i(f"s_lshl_b32 s9, s{S_MU}, 7")
        a.i(f"s_add_u32 s{64+k}, s8, s9")
    a.i("s_waitcnt lgkmcnt(0)"); a.lg = []
    a.i("s_barrier")
    if PRM["w1pos"] == 0:
        n0 = len(a.vm); g_w1first(a, "L_G_now1"); a.vm = a.vm[:n0]
    for q in range(4):
        for sl in (2*q, 2*q+1):
            a.i(f"s_add_u32 m0, s10, {L_X + sl*8192}")
            if sl:
                a.i("s_add_u32 s11, s11, 128")
                a.i("s_and_b32 s11, s11, 0x380")
            a.i(f"buffer_load_dwordx4 v{VXE}, {R(SX)}, s11 offen lds")
            a.i(f"buffer_load_dwordx4 v{VXO}, {R(SX)}, s11 offen offset:1024 lds", tag=("k", q))
        for k in range(3 if q else 0):
            a.i(f"s_add_u32 s8, s{64+k}, {q << 17}")
            a.i(f"s_add_u32 m0, s{52+k}, {q*16384}")
            a.i("s_and_b32 s8, s8, 0x7ffff")
            wstep(a, VW1K, SWQ, 8, tag=("k", q))
        if PRM["st1"] and q in (PRM["st1"] - 1, PRM["st1"]):
            first = q == PRM["st1"] - 1
            if first:
                a.i("s_mul_i32 s8, s2, 7168")
                a.i(f"s_mul_i32 s9, s{GW}, {19*128}")
                a.i("s_add_u32 s8, s8, s9")
                a.i(f"s_sub_u32 s8, s8, {19*128}")
                a.i(f"s_add_u32 s72, s{P['w1']}, s8")
                a.i(f"s_addc_u32 s73, s{P['w1']+1}, 0")
            for i in (range(10) if first else range(10, 19)):
                if i == 18:
                    a.i(f"s_cmp_eq_u32 s{GW}, 3")
                    a.i("s_cbranch_scc1 L_st1")
                a.i(f"s_load_dword s74, s[72:73], {128*i}")
            if not first: a.label("L_st1")
        if q:
            a.wait(vm=("k", q-1))
            cnt_add(a, VC, 8, 4*(q-1))
    if PRM["w1pos"] == 2:
        a.i("s_cmp_eq_u32 s13, 7")
        a.i("s_cbranch_scc0 L_G_w1")
        a.i("s_waitcnt vmcnt(0)")
        a.label("L_G_w1")
        g_w1first(a, "L_G_now1")
    a.wait(vm=("k", 3))
    cnt_add(a, VC, 8, 12)
    stamp(a, 0, 14, first=True)
    a.label("L_G_ffn1")
    a.vm = ["b"]*2 + [("w", sx) for sx in range(D1) for _ in range(2)]
    a.label("L_G_xw")
    if PRM["xsleep"]: a.i(f"s_sleep {PRM['xsleep']}")
    a.i(f"ds_read_b128 v[32:35], v{VC}")
    a.i("s_waitcnt lgkmcnt(0)"); a.lg = []
    a.i("v_add_u32 v32, -5, v32")
    a.i("v_add_u32 v35, -1, v35")
    a.i("v_min3_i32 v33, v33, v34, v35")
    a.i("v_min_i32 v32, v32, v33")
    a.i("v_readfirstlane_b32 s8, v32")
    a.i("s_cmp_ge_i32 s8, 3")
    a.i("s_cbranch_scc0 L_G_xw")
    stamp(a, 14, 14)
    a.i("v_bfe_u32 v14, v0, 4, 2")
    a.i("v_and_b32 v15, 7, v0")
    a.i("v_xor_b32 v14, v14, v15")
    a.i(f"s_and_b32 s8, s{GW}, 1")
    a.i("s_lshl_b32 s8, s8, 2")
    a.i("v_xor_b32 v14, s8, v14")
    a.i("v_lshlrev_b32 v14, 4, v14")
    a.i(f"v_add_u32 v99, {L_GW}, v14")
    a.i(f"s_setprio {PRM['gatep']}")
    XG, AC, GA = 32, 96, 98
    GFA = [64 + 4*k for k in range(8)]
    def gfr():
        for kb in range(8): a.i(f"ds_read_b128 {v(GFA[kb],4)}, v99 offset:{128*kb}")
    gfr()
    a.wait(lg="all")
    a.i(f"s_lshl_b32 s8, s{GW}, 10")
    a.i(f"v_add_u32 v{GA}, s8, v{VLIN}")
    for i in range(2): a.i(f"v_mov_b32 v{AC+i}, 0")
    def grd(kb):
        for i in range(2):
            a.i(f"ds_read_b128 {v(XG + 8*(kb % 3) + 4*i,4)}, v{GA} offset:{kb*8192 + i*4096}", tag=("g", kb))
    grd(0); grd(1)
    for kb in range(8):
        if kb < 6: grd(kb+2)
        a.wait(lg=("g", kb))
        for r in range(4):
            for i in range(2):
                a.i(f"v_dot2_f32_bf16 v{AC+i}, v{XG + 8*(kb % 3) + 4*i + r}, v{GFA[kb]+r}, v{AC+i}")
    a.i(f"v_lshrrev_b32 v{GA}, 3, v0")
    a.i(f"s_lshl_b32 s9, s{GW}, 5")
    a.i(f"s_add_u32 s9, s9, {L_G}")
    for mod in ("quad_perm:[1,0,3,2]", "quad_perm:[2,3,0,1]", "row_half_mirror"):
        for i in range(2):
            a.i(f"v_add_f32_dpp v{AC+i}, v{AC+i}, v{AC+i} {mod} row_mask:0xf bank_mask:0xf")
    a.i(f"s_mov_b32 s10, {f2u(-math.log2(math.e)):#x}")
    for i in range(2): a.i(f"v_mul_f32 v{AC+i}, s10, v{AC+i}")
    for i in range(2): a.i(f"v_exp_f32 v{AC+i}, v{AC+i}")
    a.i(f"v_lshl_add_u32 v{GA}, v{GA}, 2, s9")
    for i in range(2): a.i(f"v_add_f32 v{AC+i}, 1.0, v{AC+i}")
    for i in range(2): a.i(f"v_rcp_f32 v{AC+i}, v{AC+i}")
    a.i("s_nop 0")
    for i in range(2): a.i(f"ds_write_b32 v{GA}, v{AC+i} offset:{128*i}")
    a.i("s_waitcnt lgkmcnt(0)"); a.lg = []
    a.i("s_setprio 2")
    a.i("s_cmp_eq_u32 s13, 7")
    a.i("s_cbranch_scc1 L_G_idle")
    if PRM["w1pos"] == 3:
        a.label("L_G_kw")
        a.i("s_sleep 2")
        cnt_wait(a, VC, 14, C_K, 4, "L_G_kw1", 8)
        a.ins[-1] = Ins("    s_cbranch_scc0 L_G_kw")
        a.vm = []
        g_w1first(a, "L_G3_now1")
    a.wait(vm="b")
    for p in range(2):
        for rh in range(2): mfma(a, ACC + 32*p + 16*rh, BA1 + 4*p, ONE, "0")
    def rd1(sx):
        a.wait(vm=("w", sx))
        b = sx & 1
        if sx < NPRE:
            for p in range(2): a.i(f"ds_write_b128 v{VSW}, {v(PRE+8*(sx % PD)+4*p,4)} offset:{p*1024}")
        for p in range(2):
            o = 0 if sx < NPRE else (sx % RD)*2048
            ar = (VST if sx < NPRE else VTR) + p
            a.i(f"ds_read_b64_tr_b16 {v(WF+8*b+4*p,2)}, v{ar} offset:{o}")
            a.i(f"ds_read_b64_tr_b16 {v(WF+8*b+4*p+2,2)}, v{ar} offset:{o+512}")
        for rh in range(2):
            a.i(f"ds_read_b128 {v(XF+8*b+4*rh,4)}, v{VXR+(sx&3)} offset:{(sx>>2)*8192 + rh*4096}", tag=("r", sx))
    def ringgate():
        a.i("s_setprio 2")
        cnt_wait(a, VC, 14, C_Q, 4, a.newlabel("G_ring"), 8)
        a.i("s_setprio 0")
    a.i(f"s_setprio {PRM['gp0']}")
    rd1(0)
    for sx in range(32):
        if sx in (1, 4, 8, 16) and ("fst" not in OPT or sx == 16): stamp(a, {1: 16, 4: 17, 8: 18, 16: 19}[sx], 14)
        if sx + D1 < NPRE: w1load(a, sx + D1)
        if sx < 31: rd1(sx+1)
        a.wait(lg=("r", sx))
        b = sx & 1
        for p in range(2):
            for rh in range(2):
                mfma(a, ACC + 32*p + 16*rh, WF+8*b+4*p, XF+8*b+4*rh)
        if sx + D1 == NPRE and PRM['w1pos'] != 3: ringgate()
        if NPRE <= sx + D1 < 32: w1load(a, sx + D1)
    a.i("s_setprio 2")
    cnt_add(a, VC, 8, C_F)
    if NPRE >= 32: ringgate(); a.i("s_setprio 2")
    a.label("L_G_ffn1_end")
    a.i(f"ds_read_b32 v8, v{VC} offset:{C_T}")
    a.i("s_waitcnt lgkmcnt(0)"); a.lg = []
    a.i(f"v_readfirstlane_b32 s{S_TAG}, v8")
    stamp(a, 9, 250)
    srd(a, SW2, "w2"); srd(a, SWO, "wo"); srd(a, SB2, "b2")
    BA2 = BA1
    a.i(f"s_lshl_b32 s8, s{S_MU}, 7")
    a.i(f"s_cmp_eq_u32 s{GW}, 0")
    a.i(f"s_cselect_b32 s10, s8, {BIG:#x}")
    for p in range(2): a.i(f"buffer_load_ushort v{BA2+4*p}, v11, {R(SB2)}, s10 offen offset:{64*p}", tag="b")
    a.i(f"s_lshl_b32 s10, s{S_G}, 5")
    a.i(f"s_lshl_b32 s9, s{S_MU}, 2")
    a.i("s_add_u32 s10, s10, s9")
    a.i(f"s_add_u32 s10, s10, s{GW}")
    a.i("s_lshl_b32 s10, s10, 11")
    a.i(f"s_add_u32 s10, s10, {WS_O}")
    for r in range(4): a.i(f"v_mov_b32 v{XF+r}, -1")
    for rh in range(2): a.i(f"buffer_store_dwordx4 {v(XF,4)}, v{VLIN}, {R(SWS)}, s10 offen offset:{1024*rh} sc1")
    a.i(f"s_mul_i32 s66, s{GW}, {28*16384}")
    a.i("s_add_u32 s66, s66, s8")
    a.i(f"s_lshl_b32 s58, s{GW}, {16 if PRM['par'] == 3 else 17}")
    a.i("s_add_u32 s58, s58, s8")
    a.i(f"s_and_b32 s55, s{S_J}, 3" if PRM["gpx"] == 8 else f"s_lshr_b32 s55, s{S_J}, 1")
    a.i("s_lshl_b32 s67, s55, 15")
    a.i(f"s_mul_i32 s60, s{S_J}, 7")
    if PRM["gpx"] == 4: a.i(f"s_mul_i32 s61, s{S_MU}, 7")
    else:
        a.i(f"s_lshr_b32 s61, s{S_MU}, 1" if PRM["par"] in (1, 2) else f"s_and_b32 s61, s{S_MU}, 3")
        a.i("s_mul_i32 s61, s61, 14")
    a.i("s_add_u32 s60, s60, s61")
    a.i("s_lshr_b32 s60, s60, 1")
    a.i("s_sub_u32 s61, s60, 28")
    a.i("s_cselect_b32 s60, s60, s61")
    a.i("s_mov_b32 s61, s66")
    a.i(f"s_add_u32 s62, s66, {28*16384}")
    a.i("s_lshl_b32 s63, s60, 14")
    a.i("s_add_u32 s66, s66, s63")
    HR, HD = 192, 8
    def dma2(sx):
        a.i(f"s_add_u32 m0, s14, {(sx % RD)*2048}")
        if sx < 28:
            a.i("s_add_u32 s63, s66, 16384")
            wstep(a, VW1K, SW2, 66, tag=("w", sx))
            a.i("s_cmp_eq_u32 s63, s62")
            a.i("s_cselect_b32 s66, s61, s63")
        else:
            a.i("s_add_u32 s63, s58, s67")
            if PRM["par"] == 3:
                a.i("s_bfe_u32 s54, s67, 0x10010")
                a.i(f"s_mul_i32 s54, s54, {262144 - 65536}")
                a.i("s_add_u32 s63, s63, s54")
            wstep(a, VW1K, SWO, 63, tag=("w", sx))
            a.i("s_add_u32 s67, s67, 16384")
            a.i("s_and_b32 s67, s67, 0x1ffff")
    def hload(sx):
        for rh in range(2):
            a.i(f"buffer_load_dwordx4 {v(HR + 8*(sx % HD) + 4*rh,4)}, v{VLIN}, {R(SWS)}, s9 offen offset:{1024*rh} sc1", tag=("h", sx))
        a.i("s_add_u32 s9, s9, 2048")
        a.i("s_cmp_eq_u32 s9, s65")
        a.i("s_cselect_b32 s9, s64, s9")
    VTRP2 = XF + 6
    for p in range(2): a.i(f"v_mov_b32 v{VTRP2+p}, v{VTRP+p}")
    a.i(f"s_mul_i32 s8, s{S_G}, 112")
    a.i("s_lshl_b32 s10, s8, 11")
    a.i("s_lshl_b32 s9, s12, 6")
    a.i("s_add_u32 s10, s10, s9")
    a.i(f"s_add_u32 s12, s10, {WS_H}")
    a.i("s_cmp_eq_u32 s13, 7")
    a.i("s_cselect_b32 s56, 1, 0")
    a.i("s_add_u32 s13, s12, 4096")
    a.i(f"s_mul_i32 s9, s{GW}, 28")
    a.i("s_add_u32 s9, s9, s8")
    a.i("s_lshl_b32 s9, s9, 11")
    a.i(f"s_add_u32 s64, s9, {WS_H}")
    a.i(f"s_add_u32 s65, s64, {28*2048}")
    a.i("s_lshl_b32 s9, s60, 11")
    a.i("s_add_u32 s9, s9, s64")
    a.i(f"s_lshl_b32 s11, s{S_G}, 9")
    a.i(f"s_add_u32 s11, s11, {WS_HF}")
    pair_of(a, 10)
    a.i("s_lshl_b32 s10, s10, 7")
    a.i("s_add_u32 s10, s10, s11")
    role_of(a, 8)
    a.i("s_lshl_b32 s8, s8, 2")
    a.i(f"s_add_u32 s8, s8, s{GW}")
    a.i("s_lshl_b32 s8, s8, 2")
    a.i("s_add_u32 s57, s10, s8")
    a.i(f"s_lshl_b32 s8, s{GW}, 7")
    a.i("s_add_u32 s11, s11, s8")
    a.i("v_and_b32 v14, 7, v0")
    a.i("v_lshlrev_b32 v14, 2, v14")
    a.i("s_cmp_eq_u32 s56, 1")
    a.i("s_cbranch_scc1 L_G_noh")
    for p in range(2):
        for rh in range(2):
            t = ACC + 32*p + 16*rh
            o = 192 + 8*(2*p+rh)
            for r in range(16): a.i(f"v_max_f32 v{t+r}, 0, v{t+r}")
            for r in range(0, 16, 2): a.i(f"v_pk_mul_f32 {v(t+r,2)}, {v(t+r,2)}, {v(t+r,2)}")
            for j in range(8): a.i(f"v_cvt_pk_bf16_f32 v{o+j}, v{t+2*j}, v{t+2*j+1}")
            if PRM["hpace"] and 2*p + rh >= PRM["hpace"]: a.i(f"s_waitcnt vmcnt({2*PRM['hpace'] - 2})")
            for u in range(2):
                a.i(f"buffer_store_dwordx4 {v(o+4*u,4)}, v{VLIN}, {R(SWS)}, s{12+p} offen offset:{u*2048 + rh*1024} sc1", tag="hst")
    a.label("L_G_noh")
    a.vm = []
    for k in range(PRM["DOV"]): dma2(28 + k)
    a.i(f"s_waitcnt vmcnt({2*PRM['DOV']})")
    a.i("s_mov_b64 exec, 1")
    a.i(f"buffer_store_dword v8, off, {R(SWS)}, s57 sc1")
    a.i("s_mov_b64 exec, -1")
    for k in range(PRM["DOV"], DO): dma2(28 + k)
    for p in range(2):
        for rh in range(2): mfma(a, ACC + 32*p + 16*rh, BA2 + 4*p, ONE, "0")
    WOF, OF = 128, 192
    def rd2(sx, dst):
        a.wait(vm=[("w", sx)])
        for p in range(2):
            o = (sx % RD)*2048
            a.i(f"ds_read_b64_tr_b16 {v(dst+4*p,2)}, v{VTRP2+p} offset:{o}")
            a.i(f"ds_read_b64_tr_b16 {v(dst+4*p+2,2)}, v{VTRP2+p} offset:{o+1024}", tag=("r", sx))
    for k in range(8):
        rd2(28 + k, WOF + 8*k)
        if k + DO < 8: dma2(28 + k + DO)
        if k >= 2: a.wait(lg=("r", 28 + k - 2))
    a.wait(lg="all")
    for sx in range(D2W): dma2(sx)
    a.label("L_hpoll")
    a.i(f"buffer_load_dword v15, v14, {R(SWS)}, s11 offen sc1")
    a.i("s_waitcnt vmcnt(0)"); a.vm = []
    a.i(f"v_cmp_ne_u32 vcc, s{S_TAG}, v15")
    a.i("s_cbranch_vccz L_hok")
    spin_tail(a, GSP, "L_hpoll", "L_hok", sleep=PRM["hsleep"])
    a.label("L_hok")
    stamp(a, 10, 250)
    for sx in range(D2H): hload(sx)
    a.i(f"s_lshl_b32 s12, s{S_G}, {3 if PRM['par'] == 3 else 2}")
    a.i(f"s_add_u32 s12, s12, s{GW}")
    a.i(f"s_lshl_b32 s12, s12, {13 if PRM['par'] == 3 else 14}")
    a.i(f"s_add_u32 s12, s12, {WS_O}")
    OSO = [12, 56, 57, 13]
    a.i("s_mov_b32 s8, s12")
    for k in range(4):
        a.i(f"s_add_u32 s9, s55, {k}") if False else None
        a.i(f"s_add_u32 s11, s55, {k}")
        a.i("s_and_b32 s11, s11, 3")
        if PRM["par"] == 3:
            a.i("s_lshr_b32 s54, s11, 1")
            a.i("s_mul_i32 s54, s54, 6")
            a.i("s_add_u32 s11, s11, s54")
        a.i("s_lshl_b32 s11, s11, 12")
        a.i(f"s_add_u32 s{OSO[k]}, s8, s11")
    final_addr(a, 8)
    a.i("v_and_b32 v14, 31, v0")
    a.i("v_lshlrev_b32 v3, 2, v14")
    a.i(f"v_add_u32 v3, {L_G}, v3")
    a.i(f"v_mul_u32_u24 v14, {PITCH}, v14")
    a.i("v_lshrrev_b32 v15, 5, v0")
    a.i("v_lshl_add_u32 v14, v15, 4, v14")
    a.i("v_add_u32 v14, s14, v14")
    a.i("s_setprio 0")
    NM = 28 - ND
    def step2(sx):
        if sx + 1 < 28 and sx + 1 != NM: rd2(sx+1, WF + 8*((sx+1) & 1))
        a.wait(vm=("h", sx), lg=("r", sx))
        b = sx & 1
        for p in range(2):
            for rh in range(2):
                mfma(a, ACC + 32*p + 16*rh, WF+8*b+4*p, HR + 8*(sx % HD) + 4*rh)
    if NM: rd2(0, WF)
    for sx in range(28):
        if sx < NM: step2(sx)
        else: a.wait(vm=[("w", sx), ("h", sx)])
        if sx + D2H < 28: hload(sx + D2H)
        if sx + D2W < 28: dma2(sx + D2W)
    stamp(a, 11, 48)
    a.i("s_barrier")
    if PRM["b3b"]: a.i("s_barrier")
    a.i(f"ds_read2_b32 {v(VGG,2)}, v3 offset0:0 offset1:32", tag="g")
    if ND: rd2(NM, WF + 8*(NM & 1))
    OFR = [224, 192]
    def oload(rh):
        for k in range(8):
            a.i(f"buffer_load_dwordx4 {v(OFR[rh] + 4*k,4)}, v{VLIN}, {R(SWS)}, s{OSO[k>>1]} offen offset:{(k&1)*2048 + rh*1024} sc1", tag=("o", rh))
    def ocheck(rh):
        b = OFR[rh]
        a.i(f"v_max3_u32 v20, v{b}, v{b+4}, v{b+8}")
        a.i(f"v_max3_u32 v21, v{b+12}, v{b+16}, v{b+20}")
        a.i(f"v_max3_u32 v20, v20, v{b+24}, v{b+28}")
        a.i("v_max_u32 v20, v20, v21")
        a.i("v_cmp_eq_u32 vcc, -1, v20")
    assert PRM["oat"] >= 23
    if NM > PRM["oat"]: oload(0)
    for sx in range(NM, 28):
        step2(sx)
        if sx == PRM["oat"]: oload(0)
    a.i("s_setprio 2")
    a.wait(lg="all")
    oload(1)
    for rh in range(2): a.i(f"v_sub_f32 v{16+2*rh}, 1.0, v{VGG+rh}")
    for rh in range(2):
        for p in range(2):
            t = ACC + 32*p + 16*rh
            for r in range(0, 16, 2): a.i(f"v_pk_mul_f32 {v(t+r,2)}, {v(t+r,2)}, {v(16+2*rh,2)} op_sel_hi:[1,0]")
    def pwrite(rh, p, q):
        a.i(f"ds_write_b128 v14, {v(ACC + 32*p + 16*rh + 4*q,4)} offset:{rh*32*PITCH + (32*p + 8*q)*4}")
    for rh in range(2):
        a.wait(vm=("o", rh))
        ocheck(rh)
        a.i(f"s_cbranch_vccnz L_or{rh}")
        a.label(f"L_ook{rh}")
        if rh == 0: stamp(a, 12, 22)
        for p in range(2):
            for k in range(8):
                mfma(a, ACC + 32*p + 16*rh, WOF + 8*k + 4*p, OFR[rh] + 4*k)
                if k >= 4 and (rh or p): pwrite(*((rh, 0) if p else (0, 1)), k - 4)
    a.i("s_nop 11")
    for q in range(4): pwrite(1, 1, q)
    a.i("s_waitcnt lgkmcnt(0)"); a.lg = []
    stamp(a, 13, 22)
    a.i("s_barrier")
    final_stage(a, 8)
    a.i(f"s_lshl_b32 s8, s{S_G}, 6")
    a.i(f"s_lshl_b32 s9, s{S_MU}, 3")
    a.i("s_add_u32 s8, s8, s9")
    a.i(f"s_add_u32 s8, s8, s{S_W}")
    a.i("s_cmp_lg_u32 s8, 5")
    a.i("s_cbranch_scc1 L_notag")
    a.i(f"v_mov_b32 v4, s{S_TAG}")
    a.i(f"s_mov_b32 s8, {WS_NONCE}")
    a.i("s_mov_b64 exec, 1")
    a.i(f"buffer_store_dword v4, off, {R(SWS)}, s8 sc1")
    a.label("L_notag")
    stamp(a, 7, 250)
    stamp_dump(a, "G")
    a.i("s_endpgm")
    for rh in range(2):
        a.label(f"L_or{rh}")
        a.i("s_waitcnt vmcnt(0)")
        a.label(f"L_or{rh}_a")
        oload(rh)
        if rh == 0: oload(1)
        a.i("s_waitcnt vmcnt(0)"); a.vm = []
        ocheck(rh)
        a.i(f"s_cbranch_vccz L_ook{rh}")
        spin_tail(a, GSP, f"L_or{rh}_a", f"L_ook{rh}")
    a.label("L_G_idle")
    a.i("s_waitcnt vmcnt(0)")
    cnt_add(a, VC, 8, C_F)
    a.label("L_G_idle_a")
    a.i("s_sleep 8")
    a.i(f"ds_read_b32 v14, v{VC} offset:{C_F}")
    a.i("s_waitcnt lgkmcnt(0)")
    a.i("v_readfirstlane_b32 s8, v14")
    a.i("s_cmp_ge_u32 s8, 4")
    a.i("s_cbranch_scc0 L_G_idle_a")
    a.i("s_branch L_G_ffn1_end")

HEAD = open("cdna_kernels/" + NAME + ".s.ref").read().split("; Override launch")[0]
def kd(name, vg=256):
    return f""".section .rodata,"a"
.p2align 6
.amdhsa_kernel {name}
  .amdhsa_next_free_vgpr {vg}
  .amdhsa_next_free_sgpr 102
  .amdhsa_accum_offset {vg}
  .amdhsa_group_segment_fixed_size 0
  .amdhsa_kernarg_size 112
  .amdhsa_user_sgpr_count 2
  .amdhsa_user_sgpr_kernarg_segment_ptr 1
  .amdhsa_system_sgpr_workgroup_id_x 1
.end_amdhsa_kernel
"""
DOC = """;
;                  8 (head, 32-row) tiles; the partial sums meet in LDS.
;
"""
def build(kernels):
    s_ = HEAD
    if len(kernels) == 1:
        n, blk, lds, body = kernels[0]
        s_ += f"; @launch grid=(256,1,1) block=({blk},1,1) lds={lds}\n"
    else:
        for n, blk, lds, body in kernels:
            s_ += f"; @launch kernel={n} grid=(256,1,1) block=({blk},1,1) lds={lds}\n"
    s_ += DOC + '.amdgcn_target "amdgcn-amd-amdhsa--gfx950"\n'
    for n, blk, lds, body in kernels:
        s_ += f".text\n.globl {n}\n.p2align 8\n.type {n},@function\n{n}:\n{body}" + kd(n)
    return s_

if __name__ == "__main__":
    out = sys.argv[1]
    OPT = set(sys.argv[2:])
    STAMP = "stamp" in OPT
    ks = [(NAME + "_kernel", 512, LDS_BYTES, None)]
    for o in OPT:
        if "=" in o and o.split("=")[0] in PRM: PRM[o.split("=")[0]] = int(o.split("=")[1])
        if o.startswith("only="):
            STAMP = True; ONLY = int(o[5:])
            ks.append(("wait_kernel", 256, 1024, waitk(ONLY)))
    ks[0] = ks[0][:3] + (kernel(),)
    open(out, "w").write(build(ks))
```

```python
import sys, math, struct
from asmgen import *

NAME = "gated_mix__grouped_kv_mqa__dense_activation_squared_relu__prompt"
TS = 2304
WS_KV = 0
WS_NONCE = 0x2c000
WS_HF = 0x28000
WS_O  = 0x40000
WS_H  = 0x240000
WS_END = WS_H + 32*112*2048
L_X, L_WQ, L_RING, RING_W, RD = 0, 65536, 65536, 17408, 8
L_WKV = 135168; L_STG = L_WKV; L_QF = L_WKV + 8192
L_G = 151552; L_GW = L_G + 1024; L_CNT = L_G + 256
C_Q, C_F, C_T, C_K, C_X = 16, 20, 24, 28, 32
CT = [8, 3, 3, 4]
LDS_BYTES = 163840
XO, XK = 13824, 4608
QSCALE = 0.25 * math.log2(math.e)
def f2u(x): return struct.unpack("<I", struct.pack("<f", x))[0]
S_W, S_G, S_MU, S_J, S_KV, S_TAG = 3, 4, 5, 15, 27, 59
P = dict(x=16, wq=18, wk=20, wv=22, wo=24, bx=26, w1=28, b1=30, w2=32, b2=34, gate=36, out=38, dbg=40, ws=42)
SZ = dict(x=2048*1024, wq=512*1024, wo=512*1024, w1=512*3584, b1=3584, w2=1792*1024, b2=1024, gate=1024, out=2048*1024, dbg=256, ws=WS_END)
BIG = 0x40000000
SPIN = 8000
STAMP = False; ONLY = None; OPT = set()
PRM = dict(w1pos=3, apf=0, w1wait=1, tagat=8, kvat=33, ckpos=0, wqlate=0, wqt=0, aprio=0, g0d=0, qnb=4, qprio=1, xsleep=2, nsw=6, chk3=1, par=3, st1=0, gatep=0, ntx=1, ntq=0, ntw=0, ntk=0, ntc=0, ctpos=0, al=6, sh=0, ap=1, esig=1, kscale=1, xw=1, wos=1, burst=1, w1t=0, NPRE=0, gp0=0, b3b=1, D1=4, D2W=3, D2H=2, DO=3, DOV=0, hpace=3, ost=0, ND=8, hsleep=4, oat=26, isleep=4, gpx=8, tsleep=0)
WS_STAMP = 0xC00000
SX, SWQ, SWKV, SW1, SB1, SGT, SWS, SDBG, SW2, SWO, SOUT = 44, 48, 52, 56, 60, 64, 68, 72, 76, 80, 84
SB2 = 48
VLIN = 2
PITCH = 272

def srd(a, d, name):
    a.i(f"s_mov_b32 s{d}, s{P[name]}")
    a.i(f"s_mov_b32 s{d+1}, s{P[name]+1}")
    a.i(f"s_mov_b32 s{d+2}, {SZ[name]:#x}")
    a.i(f"s_mov_b32 s{d+3}, 0x20000")
def R(d): return f"s[{d}:{d+3}]"

ST_A = {0: 100, 1: 88, 2: 90, 3: 92, 4: 94, 5: 96, 6: 98, 7: 44}
CY_A = {4: 46, 5: 72}
ST_G = {0: 100, 15: 88, 8: 90, 14: 92, 16: 94, 17: 96, 18: 98, 19: 26, 9: 18, 10: 20, 11: 22, 12: 72, 13: 74, 7: 44}
NST = 20
def stamping(idx): return STAMP and (ONLY is None or idx == ONLY)
def stamp_init(a, role):
    if not STAMP: return
    for i, r in (ST_A if role == "A" else ST_G).items():
        if r >= 88 and i: a.i(f"s_mov_b32 s{r}, -1")
def stamp(a, idx, role, first=False):
    if not stamping(idx) or first: return
    role = "A" if role == AST else "G"
    r = (ST_A if role == "A" else ST_G)[idx]
    a.i(f"s_memrealtime s[{r}:{r+1}]")
    if role == "A" and idx in CY_A: a.i(f"s_memtime s[{CY_A[idx]}:{CY_A[idx]+1}]")
def stamp_dump(a, role):
    if not STAMP: return
    T = ST_A if role == "A" else ST_G
    a.i("s_waitcnt vmcnt(0) lgkmcnt(0)")
    a.i(f"s_mov_b32 s{SWS+2}, 0x1000000")
    a.i("s_lshl_b32 s8, s2, 3")
    a.i(f"s_add_u32 s8, s8, s{S_W}")
    a.i("s_lshl_b32 s8, s8, 3")
    a.i(f"s_add_u32 s8, s8, {WS_STAMP + 0x10000}")
    a.i("s_mov_b64 exec, 1")
    for idx in range(NST):
        if stamping(idx):
            a.i(f"v_mov_b32 v{2*idx}, {'s%d' % T[idx] if idx in T else -1}")
            a.i(f"v_mov_b32 v{2*idx+1}, {'s%d' % CY_A[idx] if role == 'A' and idx in CY_A else ('s65' if role == 'A' else 's99') if idx == 7 else 0}")
            a.i(f"s_add_u32 s9, s8, {idx*16384}")
            a.i(f"buffer_store_dwordx2 v[{2*idx}:{2*idx+1}], off, {R(SWS)}, s9")
def waitk(idx, ticks=6000):
    a = Asm()
    a.i("s_cmp_ge_u32 s2, 1"); a.i("s_cbranch_scc1 L_w_end")
    a.i("s_load_dwordx2 s[42:43], s[0:1], 104")
    a.i("v_lshlrev_b32 v1, 6, v0")
    a.i("v_mov_b32 v2, 0")
    a.i("ds_write_b32 v2, v2")
    a.i("s_waitcnt lgkmcnt(0)")
    a.i("s_barrier")
    a.i("s_mov_b32 s92, s42"); a.i("s_mov_b32 s93, s43"); a.i("s_mov_b32 s94, 0x1000000"); a.i("s_mov_b32 s95, 0x20000")
    a.i(f"s_mov_b32 s10, {WS_STAMP + 0x10000 + idx*16384}")
    for k in range(4): a.i(f"buffer_load_dwordx4 v[{8+4*k}:{11+4*k}], v1, s[92:95], s10 offen offset:{16*k}")
    a.i("s_waitcnt vmcnt(0)")
    for k in range(8):
        a.i(f"v_add_u32 v3, 1, v{8+2*k}")
        a.i("ds_max_u32 v2, v3")
        a.i("s_waitcnt lgkmcnt(0)")
    a.i("s_barrier")
    a.i("ds_read_b32 v3, v2")
    a.i("s_waitcnt lgkmcnt(0)")
    a.i("v_readfirstlane_b32 s11, v3")
    a.i("s_mov_b32 s12, 20000")
    a.label("L_w_loop")
    a.i("s_memrealtime s[8:9]")
    a.i("s_waitcnt lgkmcnt(0)")
    a.i("s_sub_u32 s8, s8, s11")
    a.i(f"s_cmp_ge_u32 s8, {ticks}")
    a.i("s_cbranch_scc1 L_w_end")
    a.i("s_sub_u32 s12, s12, 1")
    a.i("s_cmp_lg_u32 s12, 0")
    a.i("s_cbranch_scc1 L_w_loop")
    a.label("L_w_end"); a.i("s_endpgm")
    return a.finish()

def mfma(a, d, A, B, C=None):
    c = v(d, 16) if C is None else C
    a.i(f"v_mfma_f32_32x32x16_bf16 {v(d,16)}, {v(A,4)}, {v(B,4)}, {c}")
def mfma16(a, d, A, B, C=None):
    c = v(d, 4) if C is None else C
    a.i(f"v_mfma_f32_16x16x32_bf16 {v(d,4)}, {v(A,4)}, {v(B,4)}, {c}")

def tr_addr(a, dst, t0, t1, rowmul_h):
    a.i(f"v_lshrrev_b32 v{t0}, 5, v0")
    a.i(f"v_mul_u32_u24 v{t0}, {rowmul_h}, v{t0}")
    a.i(f"v_bfe_u32 v{t1}, v0, 2, 2")
    a.i(f"v_add_u32 v{t0}, v{t0}, v{t1}")
    a.i(f"v_lshlrev_b32 v{dst}, 7, v{t0}")
    a.i(f"v_and_b32 v{t1}, 3, v0")
    a.i(f"v_lshl_add_u32 v{dst}, v{t1}, 3, v{dst}")
    a.i(f"v_bfe_u32 v{t1}, v0, 4, 1")
    a.i(f"v_lshl_add_u32 v{dst}, v{t1}, 5, v{dst}")
    a.i(f"v_bfe_u32 v{t1}, v0, 3, 1")
    a.i(f"v_lshl_add_u32 v{dst}, v{t1}, 6, v{dst}")

def xfrag_addr(a, dst, t0, t1):
    a.i(f"v_bfe_u32 v{t0}, v0, 1, 3")
    a.i(f"v_lshrrev_b32 v{t1}, 5, v0")
    a.i(f"v_xor_b32 v{t0}, v{t0}, v{t1}")
    a.i(f"v_and_b32 v{t1}, 31, v0")
    a.i(f"v_lshlrev_b32 v{t1}, 7, v{t1}")
    for q in range(4):
        a.i(f"v_xor_b32 v{dst+q}, {2*q}, v{t0}")
        a.i(f"v_lshl_add_u32 v{dst+q}, v{dst+q}, 4, v{t1}")

def wchunk_addr(a, dst, t0, pitch):
    a.i(f"v_lshrrev_b32 v{t0}, 3, v0")
    a.i(f"v_mul_u32_u24 v{dst}, {pitch}, v{t0}")
    a.i(f"v_bfe_u32 v{t0}, v0, 4, 1")
    a.i(f"v_lshlrev_b32 v{t0}, 2, v{t0}")
    a.i(f"v_xor_b32 v{t0}, v{t0}, v0")
    a.i(f"v_and_b32 v{t0}, 7, v{t0}")
    a.i(f"v_lshl_add_u32 v{dst}, v{t0}, 4, v{dst}")
    a.i(f"v_add_u32 v{dst+1}, {8*pitch - 1024}, v{dst}")
FL = ["", " nt", " sc1", " sc1 nt"]
def wstep(a, va, srd_, so, dst=None, tag=None):
    fl = FL[PRM["ntq"] & 3 if tag == ("wq", 0) else PRM["ntq"] >> 2 if srd_ == SWQ and tag[0] == "k" else PRM["ntw"]]
    if dst is None:
        a.i(f"buffer_load_dwordx4 v{va}, {R(srd_)}, s{so} offen{fl} lds", tag=tag)
        a.i(f"buffer_load_dwordx4 v{va+1}, {R(srd_)}, s{so} offen offset:1024{fl} lds", tag=tag)
    else:
        a.i(f"buffer_load_dwordx4 {v(dst,4)}, v{va}, {R(srd_)}, s{so} offen", tag=tag)
        a.i(f"buffer_load_dwordx4 {v(dst+4,4)}, v{va+1}, {R(srd_)}, s{so} offen offset:1024", tag=tag)

def run(a, items):
    for t in items: t() if callable(t) else a.i(t)

def spin_tail(a, cnt, again, done, sleep=0):
    a.i(f"s_sub_u32 s{cnt}, s{cnt}, 1")
    a.i(f"s_cmp_eq_u32 s{cnt}, 0")
    a.i(f"s_cbranch_scc1 {done}")
    if sleep: a.i(f"s_sleep {sleep}")
    a.i(f"s_branch {again}")

def cnt_add(a, vc, vone, off):
    a.i("s_mov_b64 exec, 1")
    a.i(f"ds_add_u32 v{vc}, v{vone} offset:{off}")
    a.i("s_mov_b64 exec, -1")
def cnt_wait(a, vc, vt, off, n, name, st, extra=None):
    a.label(name)
    a.i(f"ds_read_b32 v{vt}, v{vc} offset:{off}")
    if extra: extra()
    a.i("s_waitcnt lgkmcnt(0)"); a.lg = []
    a.i(f"v_readfirstlane_b32 s{st}, v{vt}")
    a.i(f"s_cmp_ge_u32 s{st}, {n}")
    a.i(f"s_cbranch_scc0 {name}")

def xpairs(a, VE, VO, sbase, st, tagf):
    for sl in range(8):
        a.i(f"s_add_u32 m0, s{sbase}, {L_X + sl*8192}")
        if sl:
            a.i(f"s_add_u32 s{st}, s{st}, 128")
            a.i(f"s_and_b32 s{st}, s{st}, 0x380")
        a.i(f"buffer_load_dwordx4 v{VE}, {R(SX)}, s{st} offen{FL[PRM['ntx']]} lds")
        a.i(f"buffer_load_dwordx4 v{VO}, {R(SX)}, s{st} offen offset:1024{FL[PRM['ntx']]} lds", tag=tagf(sl))

def final_stage(a, T):
    RA, RB, SO = T, T+1, T+2
    B = T + 4
    for w in range(4):
        for hf in range(2):
            a.i(f"ds_read_b128 {v(B + w*8 + 4*hf,4)}, v{RA if w < 2 else RB} offset:{(w&1)*RING_W + 16*hf}", tag=("p", w))
    a.wait(lg=("p", 1))
    for r in range(0, 8, 2): a.i(f"v_pk_add_f32 {v(B+r,2)}, {v(B+r,2)}, {v(B+8+r,2)}")
    a.wait(lg=("p", 3))
    for r in range(0, 8, 2): a.i(f"v_pk_add_f32 {v(B+16+r,2)}, {v(B+16+r,2)}, {v(B+24+r,2)}")
    for r in range(0, 8, 2): a.i(f"v_pk_add_f32 {v(B+r,2)}, {v(B+r,2)}, {v(B+16+r,2)}")
    for j in range(4): a.i(f"v_cvt_pk_bf16_f32 v{B+8+j}, v{B+2*j}, v{B+2*j+1}")
    a.i(f"buffer_store_dwordx4 {v(B+8,4)}, v{SO}, {R(SOUT)}, s10 offen" + ["", " sc1", " nt", " sc0 sc1", " sc0 sc1 nt"][PRM["ost"]])
def final_addr(a, T):
    RA, RB, SO, t = T, T+1, T+2, T+3
    a.i(f"v_lshrrev_b32 v{SO}, 3, v0")
    a.i(f"s_lshl_b32 s10, s{S_W}, 3")
    a.i(f"v_add_u32 v{SO}, s10, v{SO}")
    a.i(f"v_and_b32 v{t}, 7, v0")
    a.i(f"v_mul_u32_u24 v{RA}, {PITCH}, v{SO}")
    a.i(f"v_lshl_add_u32 v{RA}, v{t}, 5, v{RA}")
    a.i(f"v_add_u32 v{RA}, {L_RING}, v{RA}")
    a.i(f"v_add_u32 v{RB}, {2*RING_W}, v{RA}")
    a.i(f"v_lshlrev_b32 v{SO}, 10, v{SO}")
    a.i(f"v_lshl_add_u32 v{SO}, v{t}, 4, v{SO}")
    a.i(f"s_lshl_b32 s10, s{S_G}, 16")
    a.i(f"s_lshl_b32 s11, s{S_MU}, 7")
    a.i("s_add_u32 s10, s10, s11")
    srd(a, SOUT, "out")

VV1, VV0, VG, T0, T1 = 1, 3, 4, 6, 7
Q, S, Pq, F, O = 8, 64, 96, 104, 128
KVS = [40, 52, 104, 116]
AST = 94
SKO, SKL, SIT, SSP, SKC, SKV = 62, 63, 64, 65, 66, 76
VW1K_A = 12

def wq_round(a, r):
    a.i(f"s_add_u32 s10, s9, {r << 17}")
    a.i("s_and_b32 s10, s10, 0x7ffff")
    a.i("s_add_u32 s11, s10, 16384")
    for e in range(2):
        a.i(f"s_add_u32 m0, s8, {r*16384 + e*2048}")
        wstep(a, VW1K_A, SWQ, 10+e, tag=("wq", r))

def kernel():
    a = Asm()
    if STAMP: a.i("s_memrealtime s[100:101]")
    a.i("s_cmp_ge_u32 s2, 256")
    a.i("s_cbranch_scc1 L_end")
    a.i("s_load_dwordx16 s[16:31], s[0:1], 0")
    a.i("s_load_dwordx8 s[32:39], s[0:1], 64")
    a.i("s_load_dwordx4 s[40:43], s[0:1], 96")
    a.i("s_getpc_b64 s[44:45]")
    a.label("L_pc")
    a.i("s_mov_b32 s46, L_code_end-L_pc")
    a.i("s_mov_b32 s47, 0x20000")
    a.i("s_lshr_b32 s7, s2, 3")
    a.i("s_lshl_b32 s6, s7, 11")
    a.i("v_lshlrev_b32 v1, 2, v0")
    if PRM["ctpos"] == 0: a.i(f"buffer_load_dword v255, v1, s[44:47], s6 offen{FL[PRM['ntc']]} ; touch")
    if PRM["ctpos"] == 1: a.i("v_lshlrev_b32 v3, 1, v1"); a.i("s_mov_b32 s14, s6")
    a.i("v_lshrrev_b32 v1, 6, v0")
    a.i("v_and_b32 v0, 63, v0")
    a.i(f"v_readfirstlane_b32 s{S_W}, v1")
    if PRM["gpx"] == 4:
        a.i("s_and_b32 s6, s2, 7")
        a.i(f"s_and_b32 s{S_MU}, s7, 7")
        a.i(f"s_lshr_b32 s{S_J}, s7, 3")
        a.i("s_lshl_b32 s6, s6, 2")
        a.i(f"s_add_u32 s{S_G}, s6, s{S_J}")
        a.i(f"s_lshl_b32 s{S_J}, s{S_J}, 1")
    else:
        a.i("s_and_b32 s6, s2, 1")
        a.i("s_lshl_b32 s6, s6, 2")
        a.i(f"s_and_b32 s{S_MU}, s7, 3")
        a.i(f"s_add_u32 s{S_MU}, s{S_MU}, s6")
        if PRM["par"] in (1, 2):
            a.i(f"s_mov_b32 s8, s{S_MU}")
            a.i("s_and_b32 s6, s7, 3")
            a.i("s_lshl_b32 s6, s6, 1")
            a.i(f"s_and_b32 s{S_MU}, s2, 1")
            if PRM["par"] == 2: a.i(f"s_xor_b32 s{S_MU}, s{S_MU}, 1")
            a.i(f"s_add_u32 s{S_MU}, s{S_MU}, s6")
        a.i(f"s_lshr_b32 s{S_J}, s7, 2")
        a.i("s_and_b32 s6, s2, 6")
        a.i("s_lshl_b32 s6, s6, 2")
        a.i(f"s_add_u32 s{S_G}, s6, s{S_J}")
    a.i(f"v_lshlrev_b32 v{VLIN}, 4, v0")
    a.i(f"s_cmp_ge_u32 s{S_W}, 4")
    a.i("s_cbranch_scc1 L_G")
    vm0 = list(a.vm)
    stamp_init(a, "A")
    if PRM["aprio"]: a.i("s_setprio 3")
    wchunk_addr(a, VW1K_A, 14, 1024)
    a.i(f"s_lshl_b32 s9, s{S_W}, 15")
    a.i(f"s_lshl_b32 s10, s{S_MU}, 7")
    a.i("s_add_u32 s9, s9, s10")
    a.i(f"s_lshl_b32 s10, s{S_J}, 16")
    a.i("s_add_u32 s9, s9, s10")
    a.i(f"s_lshl_b32 s8, s{S_W}, 12")
    a.i(f"s_add_u32 s8, s8, {L_WQ}")
    a.i("s_waitcnt lgkmcnt(0)")
    srd(a, SWQ, "wq")
    if PRM["wqt"]:
        a.i("s_lshl_b32 s10, s2, 2")
        a.i(f"s_add_u32 s10, s10, s{S_W}")
        a.i("s_lshl_b32 s10, s10, 9")
        a.i("s_mov_b32 exec_hi, 0")
        a.i(f"buffer_load_dwordx4 v[104:107], v{VLIN}, {R(SWQ)}, s10 offen")
        a.i("s_mov_b32 exec_hi, -1")
    if PRM["w1t"]:
        srd(a, SW1, "w1")
        a.i("s_lshl_b32 s10, s2, 2")
        a.i(f"s_add_u32 s10, s10, s{S_W}")
        a.i("s_mul_i32 s10, s10, 1792")
        a.i("v_lshlrev_b32 v14, 6, v0")
        a.i("s_mov_b64 exec, 0xfffffff")
        a.i(f"buffer_load_dword v108, v14, {R(SW1)}, s10 offen")
        a.i("s_mov_b64 exec, -1")
    if not PRM["wqlate"]: wq_round(a, 0)
    if PRM["ctpos"] == 1: a.i("buffer_load_dwordx2 v[104:105], v3, s[44:47], s14 offen ; touch")
    vmA = list(a.vm)
    if PRM["aprio"]: a.i("s_setprio 0")
    a.i("s_branch L_A")
    a.label("L_G")
    a.i(f"s_mov_b32 s62, s{8 if PRM['par'] in (1, 2) and PRM['gpx'] == 8 else S_MU}")
    stamp_init(a, "G")
    if STAMP: a.i("s_waitcnt lgkmcnt(0)"); a.i("s_mov_b32 s26, -1")
    a.vm = list(vm0)
    VGE, VXE, VXO = 8, 9, 10
    a.i("v_bfe_u32 v14, v0, 4, 2")
    a.i("v_and_b32 v15, 7, v0")
    a.i("v_xor_b32 v14, v14, v15")
    a.i(f"v_lshlrev_b32 v{VGE}, 4, v14")
    a.i("v_lshrrev_b32 v14, 3, v0")
    a.i(f"s_sub_u32 s6, s{S_W}, 4")
    a.i(f"s_add_u32 s12, s62, s6")
    a.i("s_and_b32 s12, s12, 3")
    a.i(f"s_lshl_b32 s7, s{S_G}, 2")
    a.i("s_add_u32 s7, s7, s12")
    a.i("s_lshl_b32 s7, s7, 4")
    a.i("v_add_u32 v14, s7, v14")
    a.i(f"v_lshl_add_u32 v{VXE}, v14, 10, v{VGE}")
    a.i(f"v_xor_b32 v{VXO}, 64, v{VXE}")
    a.i(f"v_add_u32 v{VXO}, {8192-1024}, v{VXO}")
    a.i("s_lshl_b32 s10, s12, 11")
    a.i(f"s_lshl_b32 s11, s{S_J}, 7")
    a.i(f"s_lshl_b32 s9, s{S_J}, 11")
    a.i("s_setprio 2")
    a.i("s_cmp_lg_u32 s6, 0")
    a.i("s_cbranch_scc1 L_G123")
    vmG = list(a.vm)
    g0_front(a, VXE, VXO)
    a_waves(a, vmA)
    g_waves(a, VGE, VXE, VXO, vmG)
    a.label("L_end")
    a.i("s_endpgm")
    a_slow(a)
    a.label("L_code_end")
    return a.finish()

GW, GSP = 6, 99
def pair_of(a, d): a.i(f"s_and_b32 s{d}, s{S_MU}, 3" if PRM["par"] == 3 else f"s_lshr_b32 s{d}, s{S_MU}, 1")
def role_of(a, d): a.i(f"s_lshr_b32 s{d}, s{S_MU}, 2" if PRM["par"] == 3 else f"s_and_b32 s{d}, s{S_MU}, 1")
def kv_addr(a):
    a.i(f"s_and_b32 s7, s62, 3")
    a.i(f"s_cmp_ge_u32 s62, 4")
    a.i("s_cselect_b32 s8, 8, 9")
    a.i("s_cselect_b32 s13, 9, 8")
    a.i("s_cselect_b32 s60, 1024, 0")
    a.i("s_and_b32 s61, s7, 1")
    a.i("s_lshl_b32 s61, s61, s13")
    a.i("s_add_u32 s60, s60, s61")
    a.i(f"s_lshl_b32 s61, s{S_G}, 1")
    a.i("s_lshr_b32 s13, s7, 1")
    a.i("s_add_u32 s61, s61, s13")
    a.i(f"s_mul_i32 s61, s61, {TS}")
    a.i("s_add_u32 s60, s60, s61")
    a.i("v_bfe_u32 v15, v0, 4, 1")
    a.i("v_lshlrev_b32 v15, s8, v15")
    a.i("v_and_b32 v24, 15, v0")
    a.i("v_lshl_add_u32 v23, v24, 4, v15")
def g0_front(a, VXE, VXO):
    if not PRM["aprio"]: a.i("s_setprio 3")
    kv_addr(a)
    a.i("v_cmp_gt_u32 vcc, 32, v0")
    a.i("v_mov_b32 v36, 0x3f803f80")
    a.i("s_sub_u32 s13, s61, s60")
    a.i("s_add_u32 s13, s13, 2048")
    a.i("v_mov_b32 v37, s13")
    a.i("v_cndmask_b32 v38, v37, v23, vcc")
    for r in range(32, 36): a.i(f"v_cndmask_b32 v{r}, v36, -1, vcc")
    a.i(f"s_lshr_b32 s8, s62, 2")
    a.i("s_lshl_b32 s8, s8, 1")
    a.i("s_and_b32 s7, s7, 1")
    a.i("s_add_u32 s8, s8, s7")
    a.i("s_lshl_b32 s8, s8, 2")
    a.i("s_add_u32 s61, s61, s8")
    a.i(f"s_mov_b32 s8, {WS_NONCE}")
    a.i("s_waitcnt lgkmcnt(0)")
    srd(a, SWS, "ws")
    a.i(f"buffer_load_dword v40, off, {R(SWS)}, s8 sc1")
    a.i(f"buffer_store_dwordx4 v[32:35], v38, {R(SWS)}, s60 offen sc1", tag="mark")
    srd(a, SX, "x")
    a.i(f"s_cmp_ge_u32 s62, 4")
    a.i(f"s_cselect_b32 s{SWKV}, s{P['wv']}, s{P['wk']}")
    a.i(f"s_cselect_b32 s{SWKV+1}, s{P['wv']+1}, s{P['wk']+1}")
    a.i(f"s_mov_b32 s{SWKV+2}, 16384")
    a.i(f"s_mov_b32 m0, {L_WKV}")
    a.i(f"s_mov_b32 s{SWKV+3}, 0x20000")
    def wpair(q):
        if q:
            a.i(f"s_mov_b32 m0, {L_WKV + q*2048}")
            a.i("s_add_u32 s9, s9, 2048")
            a.i("s_and_b32 s9, s9, 0x3fff")
        for i in range(2):
            a.i(f"buffer_load_dwordx4 v{VLIN}, {R(SWKV)}, s9 offen offset:{i*1024}{FL[PRM['ntk'] if q < 2 else 0]} lds", tag=("wk", 2*q+i))
    if PRM["g0d"]: a.i(f"s_sleep {PRM['g0d']}")
    wpair(0)
    xpairs(a, VXE, VXO, 10, 11, lambda sl: ("x", sl))
    for r in range(36, 40): a.i(f"v_mov_b32 v{r}, 0")
    a.i(f"v_mov_b32 v14, {L_CNT}")
    a.i("ds_write_b128 v14, v[36:39]")
    a.i("ds_write_b128 v14, v[36:39] offset:16")
    a.i("ds_write_b128 v14, v[36:39] offset:32")
    if PRM["aprio"]: a.i("s_setprio 3")
    a.wait(vm="mark")
    a.i("v_add_u32 v40, 0x9e3779b9, v40")
    a.i("s_mov_b64 exec, 1")
    a.i(f"buffer_store_dword v40, off, {R(SWS)}, s61 offset:{2048+128} sc1")
    a.i(f"ds_write_b32 v14, v40 offset:{C_T}")
    a.i("s_mov_b64 exec, -1")
    wpair(1)
    srd(a, SGT, "gate")
    a.i(f"s_lshl_b32 s8, s{S_J}, 7")
    a.i(f"v_add_u32 v14, s8, v{VLIN}")
    a.i(f"s_mov_b32 m0, {L_GW}")
    a.i("v_and_b32 v14, 0x3ff, v14")
    a.i(f"buffer_load_dwordx4 v14, {R(SGT)}, 0 offen lds")
    for q in range(2, 8): wpair(q)
    if "fst" in OPT: stamp(a, 16, 14)
    a.i("s_waitcnt lgkmcnt(0)"); a.lg = []
    a.i("s_barrier")
    XA, TA = 20, 22
    a.i("v_bfe_u32 v14, v0, 1, 3")
    a.i("v_lshrrev_b32 v15, 4, v0")
    a.i("v_xor_b32 v14, v14, v15")
    a.i("v_and_b32 v24, 15, v0")
    a.i("s_lshl_b32 s7, s12, 4")
    a.i("v_add_u32 v25, s7, v24")
    a.i("v_lshlrev_b32 v25, 7, v25")
    a.i(f"v_lshl_add_u32 v{XA}, v14, 4, v25")
    a.i(f"v_xor_b32 v{XA+1}, 64, v{XA}")
    a.i("v_bfe_u32 v14, v0, 2, 2")
    a.i("v_lshl_add_u32 v14, v15, 3, v14")
    a.i(f"v_lshlrev_b32 v{TA}, 5, v14")
    a.i("v_and_b32 v14, 3, v0")
    a.i(f"v_lshl_add_u32 v{TA}, v14, 3, v{TA}")
    a.i(f"v_add_u32 v{TA}, {L_WKV}, v{TA}")
    a.i(f"s_mov_b32 s{GSP}, {SPIN}")
    for r in range(34, 36): a.i(f"v_mov_b32 v{r}, 0")
    a.i(f"v_mov_b32 v14, {L_CNT}")
    a.i("v_mov_b32 v15, 1")
    a.i(f"s_cmp_ge_u32 s62, 4")
    a.i("s_cbranch_scc1 L_G0_V")
    vm1 = list(a.vm); lg1 = list(a.lg)
    for orient in range(2):
        if orient:
            a.label("L_G0_V"); a.vm = list(vm1); a.lg = list(lg1)
        NB_ = 4
        def rd(sx):
            b = 64 + 8*(sx % NB_)
            a.wait(vm=[("wk", sx), ("x", sx >> 1)])
            if "fst" in OPT and sx in (0, 4): stamp(a, 17 + sx//4, 14)
            if sx == 4: cnt_add(a, 14, 15, 0)
            a.i(f"ds_read_b64_tr_b16 {v(b,2)}, v{TA} offset:{sx*1024}")
            a.i(f"ds_read_b64_tr_b16 {v(b+2,2)}, v{TA} offset:{sx*1024+128}")
            a.i(f"ds_read_b128 {v(b+4,4)}, v{XA + (sx&1)} offset:{(sx>>1)*8192}", tag=("c", sx))
        for sx in range(NB_): rd(sx)
        for sx in range(16):
            a.wait(lg=("c", sx))
            b = 64 + 8*(sx % NB_)
            mfma16(a, 28, *((b, b+4) if orient == 0 else (b+4, b)), "0" if sx == 0 else None)
            if sx + NB_ < 16: rd(sx + NB_)
        if orient == 0: a.i("s_branch L_G0_pub")
    a.label("L_G0_pub")
    cnt_add(a, 14, 15, 12)
    stamp(a, 15, 250)
    if PRM["kscale"]:
        a.i("s_cmp_ge_u32 s62, 4")
        a.i(f"s_cselect_b32 s8, 1.0, {f2u(QSCALE):#x}")
        a.i("s_nop 2")
        for r in range(28, 32): a.i(f"v_mul_f32 v{r}, s8, v{r}")
    else: a.i("s_nop 1")
    a.i("v_cvt_pk_bf16_f32 v32, v28, v29")
    a.i("v_cvt_pk_bf16_f32 v33, v30, v31")
    a.i("v_min_u32 v32, -2, v32")
    a.i("s_nop 0")
    a.i("v_permlane32_swap_b32 v33, v35")
    a.i("v_permlane32_swap_b32 v32, v34")
    a.i("s_mov_b32 exec_hi, 0")
    a.i(f"buffer_store_dwordx4 v[32:35], v23, {R(SWS)}, s60 offen sc1")
    a.i("s_mov_b32 exec_hi, -1")
    stamp(a, 8, 14)
    g_setup(a)
    a.i("s_setprio 2")
    if PRM["w1pos"] != 3: g_w1first(a, "L_G0_now1")
    a.i("s_branch L_G_ffn1")

def kvload(a, st, so=SKO, off=0, SWS=SKV):
    b = KVS[st]
    return [
        lambda: a.i(f"buffer_load_dwordx4 {v(b,4)}, v{VLIN}, {R(SWS)}, s{so} offen offset:{off} sc1", tag=("kv", st)),
        lambda: a.i(f"buffer_load_dwordx4 {v(b+4,4)}, v{VV0}, {R(SWS)}, s{so} offen offset:{off+1024} sc1", tag=("kv", st)),
        lambda: a.i(f"buffer_load_dwordx4 {v(b+8,4)}, v{VV1}, {R(SWS)}, s{so} offen offset:{off+1024} sc1", tag=("kv", st))]
def kvfirstcheck(a):
    b0 = KVS[0]
    a.i(f"v_max3_u32 v{T0}, v{b0}, v{b0+4}, v{b0+8}")
    if PRM["chk3"]:
        b1, b2 = KVS[1:3]
        a.i(f"v_max3_u32 v{T1}, v{b1}, v{b1+4}, v{b1+8}")
        a.i(f"v_max3_u32 v{T0}, v{T0}, v{b2}, v{b2+4}")
        a.i(f"v_max3_u32 v{T0}, v{T0}, v{T1}, v{b2+8}")
    a.i(f"v_max_u32 v{T0}, v{T0}, v{KVS[3]+1}")
    a.i(f"v_cmp_eq_u32 vcc, -1, v{T0}")
def kvfirst(a):
    run(a, kvload(a, 0, SKC))
    a.i(f"buffer_load_dword v{KVS[3]+1}, v{KVS[3]}, {R(SWS)}, s{SKC} offen sc1", tag="sweep")
    run(a, kvload(a, 1, SKC, TS)); run(a, kvload(a, 2, SKO))

def attn_slot(a, i, prv, cur, nxt, extra, last=False):
    Sc = S + 16*(i & 1); Sn = S + 16*((i+1) & 1)
    e = lambda r: a.i(f"v_exp_f32 v{Sc+r}, v{Sc+r}")
    c = lambda j: a.i(f"v_cvt_pk_bf16_f32 v{Pq+j}, v{Sc+2*j}, v{Sc+2*j+1}")
    ex = lambda k: run(a, extra.get(k, []))
    e(0); e(1)
    mfma(a, O + 16*((i - 1) % 8), (cur if i > 0 else prv) + 8, Pq + 4)
    ex(0)
    for r in range(2, 7): e(r)
    ex("pre1")
    if not (last and i == 7): mfma(a, Sn, cur if i < 7 else nxt, Q + 4*((i + 1) % 8), "0")
    ex(1)
    e(7)
    for j in range(4): c(j)
    e(8); e(9)
    mfma(a, O + 16*i, cur + 4, Pq)
    ex(2)
    for r in range(10, 16): e(r)
    for j in range(4, 8): c(j)

def a_waves(a, vmA):
    VXR, VTR, VC = 88, 92, 93
    a.label("L_A")
    a.vm = list(vmA); a.lg = []
    if PRM["apf"]:
        srd(a, SW1, "w1")
        wchunk_addr(a, 16, 14, 3584)
        a.i(f"s_lshr_b32 s12, s{S_MU}, 1")
        a.i("s_mul_i32 s12, s12, 7")
        a.i(f"s_and_b32 s13, s{S_MU}, 1")
        a.i("s_lshl_b32 s13, s13, 2")
        a.i("s_add_u32 s12, s12, s13")
        a.i("s_lshl_b32 s12, s12, 7")
        a.i(f"s_lshl_b32 s13, s{S_J}, 2")
        a.i(f"s_add_u32 s13, s13, s{S_W}")
        a.i(f"s_mul_i32 s13, s13, {16*3584}")
        a.i("s_add_u32 s12, s12, s13")
    assert not PRM["apf"]
    srd(a, SWS, "ws")
    xfrag_addr(a, VXR, 14, 15)
    tr_addr(a, VTR, 14, 15, 8)
    a.i(f"s_and_b32 s6, s{S_W}, 1")
    a.i(f"s_lshr_b32 s7, s{S_W}, 1")
    a.i("s_lshl_b32 s12, s6, 6")
    a.i(f"v_xor_b32 v{VTR}, s12, v{VTR}")
    a.i(f"v_add_u32 v{VTR}, {L_WQ}, v{VTR}")
    a.i("s_lshl_b32 s12, s7, 12")
    for q in range(4): a.i(f"v_add_u32 v{VXR+q}, s12, v{VXR+q}")
    a.i(f"v_and_b32 v{T0}, 15, v0")
    a.i(f"v_lshrrev_b32 v{T1}, 5, v0")
    a.i(f"v_lshlrev_b32 v{T1}, 8, v{T1}")
    a.i(f"v_lshl_add_u32 v{VV0}, v{T0}, 4, v{T1}")
    a.i(f"v_add_u32 v{VV1}, 512, v{VV0}")
    a.i(f"v_and_b32 v{T0}, 27, v0")
    a.i(f"v_cmp_eq_u32 vcc, 16, v{T0}")
    a.i(f"v_mov_b32 v{T1}, {BIG:#x}")
    a.i("v_mov_b32 v14, 1024")
    a.i(f"v_cndmask_b32 v{T1}, v{T1}, v14, vcc")
    a.i(f"v_and_b32 v{T0}, 16, v0")
    a.i(f"v_cmp_eq_u32 vcc, 0, v{T0}")
    a.i(f"s_mul_i32 s{SKC}, s{S_W}, {16*TS}")
    a.i(f"s_add_u32 s{SKO}, s{SKC}, {2*TS}")
    a.i(f"v_cndmask_b32 v{VV0}, v{T1}, v{VV0}, vcc")
    a.i(f"v_cndmask_b32 v{VV1}, v{T1}, v{VV1}, vcc")
    srd(a, SKV, "ws")
    a.i(f"s_add_u32 s{SKV+2}, s{SKC}, {16*TS}")
    a.i(f"s_mov_b32 s{SSP}, {SPIN}")
    a.i(f"v_mov_b32 v{VC}, {L_CNT}")
    for r in range(4, 8): a.i(f"v_mov_b32 v{Pq+r}, 0")
    for r in range(8, 12): a.i(f"v_mov_b32 v{KVS[3]+r}, 0")
    for r in range(127): a.i(f"v_mov_b32 v{O+r}, 0")
    a.i(f"v_lshrrev_b32 v{VG}, 2, v0")
    a.i(f"v_mul_u32_u24 v{VG}, {TS}, v{VG}")
    a.i(f"v_and_b32 v{VG+1}, 3, v0")
    a.i(f"v_bfe_u32 v14, v0, 1, 1")
    a.i(f"v_lshl_add_u32 v{KVS[3]}, v14, 10, v{VG}")
    a.i(f"v_add_u32 v14, 8, v14")
    a.i(f"v_and_b32 v15, 1, v0")
    a.i(f"v_lshlrev_b32 v15, v14, v15")
    a.i(f"v_add_u32 v{KVS[3]}, v{KVS[3]}, v15")
    a.i(f"v_subrev_u32 v14, 4, v0")
    a.i(f"v_cmp_gt_u32 vcc, {4*PRM['nsw']}, v14")
    a.i(f"v_mov_b32 v15, {BIG:#x}")
    a.i("s_nop 0")
    a.i(f"v_cndmask_b32 v{KVS[3]}, v15, v{KVS[3]}, vcc")
    a.i(f"v_lshl_add_u32 v{VG}, v{VG+1}, 2, v{VG}")
    a.i(f"v_add_u32 v{VG}, {2048 + 128}, v{VG}")
    QWA, QRA = 95, 96
    a.i("s_lshl_b32 s8, s6, 12")
    a.i("s_lshl_b32 s9, s7, 10")
    a.i("s_add_u32 s8, s8, s9")
    a.i(f"s_add_u32 s8, s8, {L_QF}")
    a.i(f"v_add_u32 v{QWA}, s8, v{VLIN}")
    a.i(f"s_mov_b32 s52, {f2u(QSCALE):#x}")
    for k in range(4):
        a.i(f"s_add_u32 s8, s{S_W}, {k+1}")
        a.i("s_and_b32 s8, s8, 3")
        a.i("s_lshl_b32 s8, s8, 11")
        a.i(f"s_add_u32 s8, s8, {L_QF}")
        a.i(f"v_add_u32 v{QRA+k}, s8, v{VLIN}")
    a.i(f"s_lshl_b32 s53, s{S_G}, 5")
    a.i(f"s_lshl_b32 s9, s{S_MU}, 2")
    a.i("s_add_u32 s53, s53, s9")
    a.i(f"s_add_u32 s53, s53, s{S_W}")
    a.i("s_lshl_b32 s53, s53, 11")
    a.i(f"s_add_u32 s53, s53, {WS_O}")
    a.i(f"s_mov_b32 s80, {f2u(2.0**-30):#x}")
    a.i(f"s_mov_b32 s81, {f2u(2.0**100):#x}")
    a.i("s_barrier")
    if PRM["wqlate"]: wq_round(a, 0)
    a.i(f"ds_read_b32 v{T0}, v{VC} offset:{C_T}")
    a.i(f"v_mov_b32 v{T1}, 1")
    a.i("s_waitcnt lgkmcnt(0)"); a.lg = []
    a.i(f"v_readfirstlane_b32 s{S_TAG}, v{T0}")
    a.wait(vm=("wq", 0))
    cnt_add(a, VC, T1, 0)
    a.i(f"v_mov_b32 v{O+127}, 0")
    a.i(f"s_setprio {PRM['qprio']}")
    cnt_wait(a, VC, T0, 0, CT[0], "L_k0", 8)
    stamp(a, 1, AST)
    def tagcheck():
        a.wait(vm="tag")
        a.i(f"v_cmp_ne_u32 vcc, s{S_TAG}, v{VG+1}")
        a.i("s_cbranch_vccnz L_tagr")
        a.label("L_tag_ok")
        stamp(a, 3, AST)
        a.vm = []
        kvfirst(a)
        if PRM["w1pos"] == 3 and PRM["ckpos"]: cnt_add(a, VC, T1, C_K)
    FRS = [8, 16, 24, 32, 40]; NB_ = PRM["qnb"]
    assert NB_ == 4 or PRM["kvat"] >= 32
    def rd(sx):
        b = FRS[sx % NB_]
        a.i(f"ds_read_b64_tr_b16 {v(b,2)}, v{VTR} offset:{sx*2048}")
        a.i(f"ds_read_b64_tr_b16 {v(b+2,2)}, v{VTR} offset:{sx*2048+512}")
        a.i(f"ds_read_b128 {v(b+4,4)}, v{VXR + (sx&3)} offset:{(sx>>2)*8192}", tag=("c", sx))
    for sx in range(NB_-1): rd(sx)
    for sx in range(32):
        nx = sx + NB_ - 1
        if nx < 32 and nx % 8 == 8 - NB_ and nx < 24: a.i(f"ds_read_b32 v{T0}, v{VC} offset:{4*(nx//8 + 1)}")
        if nx < 32 and nx % 8 == 0:
            a.i(f"v_readfirstlane_b32 s8, v{T0}")
            a.i(f"s_cmp_ge_u32 s8, {CT[nx//8]}")
            a.i(f"s_cbranch_scc0 L_k{nx//8}")
            a.label(f"L_k{nx//8}_ok")
        if nx < 32: rd(nx)
        if sx == PRM["tagat"]: a.i(f"buffer_load_dword v{VG+1}, v{VG}, {R(SWS)}, s{SKC} offen sc1", tag="tag")
        if sx == PRM["kvat"]: tagcheck()
        a.wait(lg=("c", sx))
        b = FRS[sx % NB_]
        mfma(a, S, b, b+4, "0" if sx == 0 else None)
    stamp(a, 2, AST)
    if PRM["kvat"] == 32: tagcheck()
    for r in range(0 if PRM["kscale"] else 16): a.i(f"v_mul_f32 v{S+r}, s52, v{S+r}")
    for j in range(8): a.i(f"v_cvt_pk_bf16_f32 v{80+j}, v{S+2*j}, v{S+2*j+1}")
    for e in range(2): a.i(f"ds_write_b128 v{QWA}, {v(80+4*e,4)} offset:{2048*e}")
    cnt_add(a, VC, T1, C_Q)
    if PRM["kvat"] == 33: tagcheck()
    def qreads():
        for i in range(8): a.i(f"ds_read_b128 {v(Q+4*i,4)}, v{QRA + (i>>1)} offset:{1024*(i&1)}")
    cnt_wait(a, VC, VTR, C_Q, 4, "L_qwait", 8, qreads)
    if PRM["kvat"] == 34: tagcheck()
    a.i(f"v_mov_b32 v{VG}, v{VC}")
    a.i(f"v_mov_b32 v{VG+1}, 1")
    a.wait(vm="all" if PRM["chk3"] else "sweep")
    kvfirstcheck(a)
    a.i("s_cbranch_vccnz L_kvr_first")
    a.label("L_kv_first_ok")
    if PRM["w1pos"] == 3 and not PRM["ckpos"]: cnt_add(a, VG, VG+1, C_K)
    stamp(a, 4, AST)
    mfma(a, S, KVS[0], Q, "0")
    a.i(f"s_setprio {PRM['ap']}")
    a.i(f"s_mov_b32 s{SIT}, 4")
    a.i("s_nop 8")
    a.i("s_branch L_attn_in")
    def tile(t, last=False):
        prv, cur, nxt = (t-1) % 4, t, (t+1) % 4
        ld = kvload(a, prv)
        XA = KVS[2]
        for i in range(8):
            extra = {}
            if not last:
                if i == 0: extra = {0: [f"s_add_u32 s{SKO}, s{SKO}, {TS}"], 1: [ld[0]], 2: [ld[1]]}
                if i == 1: extra = {0: [ld[2]]}
                if i == 7:
                    extra = {0: [lambda: a.wait(vm=("kv", nxt))]}
                    if t == 2:
                        extra[1] = [f"s_sub_u32 s{SIT}, s{SIT}, 1"]; extra[2] = [f"s_cmp_lg_u32 s{SIT}, 0"]
                if t == 2 and i == 5: extra = {0: [f"ds_read_b32 v{VG+1}, v{VG} offset:{C_F}"]}
                if t == 2 and i == 6: extra = {0: ["s_waitcnt lgkmcnt(0)"]}
            elif i >= 2:
                j = i - 2; k = j >> 1; o = k*XK + (j & 1)*2048
                extra = {0: [f"ds_write_b128 v{XA+k}, {v(O+16*j,4)} offset:{o}"],
                         1: [f"ds_write_b128 v{XA+k}, {v(O+16*j+4,4)} offset:{o+1024}"]}
                if j & 1: extra[2] = [f"ds_write2st64_b32 v{XA+3+k}, v{O+16*j-8}, v{O+16*j+8} offset0:{k*XK//256} offset1:{k*XK//256+1}"]
            attn_slot(a, i, KVS[prv], KVS[cur], KVS[nxt], extra, last)
    a.raw(f".p2align {PRM['al']}")
    for _ in range(PRM["sh"]): a.raw("    s_nop 0")
    a.label("L_attn_loop")
    a.vm = [("kv", 0)]*3 + [("kv", 1)]*3; a.lg = []
    tile(3)
    a.label("L_attn_in")
    for t in range(3): tile(t)
    a.i("s_cbranch_scc1 L_attn_loop")
    a.lg = []
    a.i(f"v_readfirstlane_b32 s8, v{VG+1}")
    XA = KVS[2]
    a.i(f"v_lshlrev_b32 v{T1}, 2, v0")
    for k in range(3):
        a.i(f"s_add_u32 s9, s{S_W}, {k+1}")
        a.i("s_and_b32 s9, s9, 3")
        a.i(f"s_mul_i32 s9, s9, {XO}")
        a.i(f"v_add_u32 v{XA+k}, s9, v{VLIN}")
        a.i("s_add_u32 s9, s9, 4096")
        a.i(f"v_add_u32 v{XA+3+k}, s9, v{T1}")
    a.i("s_cmp_ge_u32 s8, 4")
    a.i("s_cbranch_scc0 L_xwait")
    a.label("L_xok")
    tile(3, last=True)
    a.i(f"s_mul_i32 s9, s{S_W}, {XO}")
    a.i(f"v_add_u32 v{XA}, s9, v{VLIN}")
    mfma(a, O + 16*7, KVS[3] + 8, Pq + 4)
    a.i("s_add_u32 s9, s9, 4096")
    a.i(f"v_add_u32 v{XA+1}, s9, v{T1}")
    a.i(f"v_and_b32 v{T1}, 31, v0")
    a.i(f"v_lshlrev_b32 v{T1}, 2, v{T1}")
    a.i(f"v_add_u32 v{T1}, {L_G}, v{T1}")
    a.i("s_waitcnt lgkmcnt(0)"); a.lg = []
    stamp(a, 5, AST)
    a.i("s_barrier")
    a.i("s_setprio 3")
    LL = O + 16*5 + 10
    for rh in range(2):
        for k in range(3):
            o = k*XK + rh*2048; d = O + 16*(rh*3 + k)
            a.i(f"ds_read_b128 {v(d,4)}, v{XA} offset:{o}")
            a.i(f"ds_read_b128 {v(d+4,4)}, v{XA} offset:{o+1024}", tag=("x", rh, k))
        if rh == 0:
            for k in range(3): a.i(f"ds_read2st64_b32 {v(LL+2*k,2)}, v{XA+1} offset0:{k*XK//256} offset1:{k*XK//256+1}")
            a.i(f"ds_read2_b32 {v(VG,2)}, v{T1} offset0:0 offset1:32", tag="l")
    for rh in range(2):
        f = O + 16*(6 + rh); d = O + 48*rh
        a.wait(lg=("x", rh, 1))
        for r in range(0, 8, 2): a.i(f"v_pk_add_f32 {v(d+r,2)}, {v(d+r,2)}, {v(d+16+r,2)}")
        a.wait(lg=("x", rh, 2))
        for r in range(0, 8, 2): a.i(f"v_pk_add_f32 {v(f+r,2)}, {v(f+r,2)}, {v(d+32+r,2)}")
        if rh == 0:
            a.wait(lg="l")
            a.i(f"v_pk_add_f32 {v(LL,2)}, {v(LL,2)}, {v(LL+2,2)}")
            a.i(f"v_pk_add_f32 {v(LL,2)}, {v(LL,2)}, {v(LL+4,2)}")
        a.i(f"v_add_f32 v{f+8}, v{f+8}, v{LL+rh}")
        for r in range(0, 8, 2): a.i(f"v_pk_add_f32 {v(f+r,2)}, {v(f+r,2)}, {v(d+r,2)}")
        a.i(f"v_pk_mul_f32 {v(T0,2)}, {v(f,2)}, 0 op_sel_hi:[1,0]")
        a.i(f"v_cmp_le_f32 s[54:55], s80, v{f+8}")
        a.i(f"v_cmp_ge_f32 s[56:57], s81, v{f+8}")
        for r in range(2, 8, 2): a.i(f"v_pk_fma_f32 {v(T0,2)}, {v(f+r,2)}, 0, {v(T0,2)} op_sel_hi:[1,0,1]")
        a.i("s_and_b64 s[54:55], s[54:55], s[56:57]")
        a.i(f"v_cmp_o_f32 vcc, v{T0}, v{T1}")
        a.i(f"v_rcp_f32 v{T0}, v{f+8}")
        a.i("s_and_b64 s[54:55], s[54:55], vcc")
        a.i("s_cmp_eq_u64 s[54:55], -1")
        a.i(f"s_cbranch_scc0 L_slow{rh}")
        a.label(f"L_ok{rh}")
        a.i(f"v_mul_f32 v{T0}, v{T0}, v{VG+rh}")
        for r in range(0, 8, 2): a.i(f"v_pk_mul_f32 {v(f+r,2)}, {v(f+r,2)}, {v(T0,2)} op_sel_hi:[1,0]")
        for j in range(4): a.i(f"v_cvt_pk_bf16_f32 v{S+4*rh+j}, v{f+2*j}, v{f+2*j+1}")
        a.i(f"v_min_u32 v{S+4*rh}, -2, v{S+4*rh}")
        a.i(f"buffer_store_dwordx4 {v(S+4*rh,4)}, v{VLIN}, {R(SWS)}, s53 offen offset:{1024*rh} sc1")
    if PRM["b3b"]: a.i("s_barrier")
    stamp(a, 6, AST)
    a.i("s_setprio 0")
    final_addr(a, 8)
    a.i("s_waitcnt vmcnt(0)"); a.vm = []
    a.i("s_barrier")
    final_stage(a, 8)
    stamp(a, 7, AST)
    stamp_dump(a, "A")
    a.i("s_endpgm")
    a.label("L_kvr_first")
    a.i(f"s_sub_u32 s{SSP}, s{SSP}, 1")
    a.i(f"s_cbranch_scc1 L_kv_first_ok")
    a.i("s_waitcnt vmcnt(0)"); a.vm = []
    kvfirst(a)
    a.wait(vm="all" if PRM["chk3"] else "sweep")
    kvfirstcheck(a)
    a.i("s_cbranch_vccz L_kv_first_ok")
    a.i("s_branch L_kvr_first")
    a.label("L_tagr")
    a.i("s_sleep 4")
    a.i(f"buffer_load_dword v{VG+1}, v{VG}, {R(SWS)}, s{SKC} offen sc1")
    a.i("s_waitcnt vmcnt(0)"); a.vm = []
    a.i(f"v_cmp_ne_u32 vcc, s{S_TAG}, v{VG+1}")
    a.i("s_cbranch_vccz L_tag_ok")
    spin_tail(a, SSP, "L_tagr", "L_tag_ok")
    cnt_wait(a, VG, VG+1, C_F, 4, "L_xwait", 8)
    a.i("s_branch L_xok")
    for q in range(1, 4):
        cnt_wait(a, VC, T0, 4*q, CT[q], f"L_k{q}", 8)
        a.i(f"s_branch L_k{q}_ok")

def a_slow(a):
    KV = KVS[0]
    for rh in range(2):
        f = O + 16*(6 + rh); q = Q + 4*(6 + rh)
        SS, CC, OO, PP = S + 16, KVS[2], O, Pq
        a.label(f"L_slow{rh}")
        if STAMP: a.i(f"s_sub_u32 s{SSP}, s{SSP}, 1000")
        a.i("s_waitcnt vmcnt(0)" + (" lgkmcnt(0)" if rh == 0 else ""))
        a.i(f"s_mov_b32 s{SKO}, {WS_KV}")
        a.i(f"v_mov_b32 v{T1}, 0xff800000")
        a.label(f"L_slow{rh}_a")
        run(a, kvload(a, 0, SWS=SWS))
        a.i("s_waitcnt vmcnt(0)")
        a.i(f"v_max3_u32 v{T0}, v{KV}, v{KV+4}, v{KV+8}")
        a.i(f"v_cmp_eq_u32 vcc, -1, v{T0}")
        a.i(f"s_cbranch_vccz L_slow{rh}_c")
        spin_tail(a, SSP, f"L_slow{rh}_a", f"L_slow{rh}_c")
        a.label(f"L_slow{rh}_c")
        mfma(a, SS, KV, q, "0")
        a.i("s_nop 15")
        for r in range(0, 16, 2): a.i(f"v_max3_f32 v{T1}, v{T1}, v{SS+r}, v{SS+r+1}")
        a.i(f"s_add_u32 s{SKO}, s{SKO}, {TS}")
        a.i(f"s_cmp_lt_u32 s{SKO}, {WS_KV + 64*TS}")
        a.i(f"s_cbranch_scc1 L_slow{rh}_a")
        a.i(f"v_mov_b32 v{T0}, v{T1}")
        a.i("s_nop 1")
        a.i(f"v_permlane32_swap_b32 v{T0}, v{T1}")
        a.i(f"v_max_f32 v{T1}, v{T0}, v{T1}")
        for r in range(16):
            a.i(f"v_sub_f32 v{CC+r}, 0, v{T1}")
            a.i(f"v_mov_b32 v{OO+r}, 0")
        a.i(f"s_mov_b32 s{SKO}, {WS_KV}")
        a.label(f"L_slow{rh}_b")
        run(a, kvload(a, 0, SWS=SWS))
        a.i("s_waitcnt vmcnt(0)")
        mfma(a, SS, KV, q, v(CC, 16))
        a.i("s_nop 15")
        for r in range(16): a.i(f"v_exp_f32 v{SS+r}, v{SS+r}")
        a.i("s_nop 0")
        for j in range(8): a.i(f"v_cvt_pk_bf16_f32 v{PP+j}, v{SS+2*j}, v{SS+2*j+1}")
        a.i("s_nop 1")
        mfma(a, OO, KV + 4, PP)
        mfma(a, OO, KV + 8, PP + 4)
        a.i("s_nop 15")
        a.i(f"s_add_u32 s{SKO}, s{SKO}, {TS}")
        a.i(f"s_cmp_lt_u32 s{SKO}, {WS_KV + 64*TS}")
        a.i(f"s_cbranch_scc1 L_slow{rh}_b")
        for r in range(9): a.i(f"v_mov_b32 v{f+r}, v{OO+r}")
        a.i(f"v_rcp_f32 v{T0}, v{f+8}")
        a.i("s_nop 1")
        a.i(f"s_branch L_ok{rh}")
    a.vm = []; a.lg = []

VW35, VW1K, VSW, GVC, VGG = 4, 6, 3, 12, 12
VTR_G, VTRP, VST = 224, 226, 228
VXR_G, BA1, ONE = 16, 20, 28
ACC, WF, XF, PRE, PD = 64, 32, 48, 128, 12
def g_setup(a):
    srd(a, SW1, "w1"); srd(a, SB1, "b1")
    wchunk_addr(a, VW35, 14, 3584)
    wchunk_addr(a, VW1K, 14, 1024)
    pair_of(a, 12)
    a.i("s_mul_i32 s12, s12, 7")
    role_of(a, 9)
    a.i("s_lshl_b32 s9, s9, 2")
    a.i(f"s_add_u32 s13, s9, s{GW}")
    a.i("s_add_u32 s12, s12, s13")
    a.i("s_lshl_b32 s12, s12, 7")
    a.i(f"s_add_u32 s77, s12, {32*16*3584}")
    a.i(f"s_mul_i32 s76, s{S_J}, {4*16*3584}")
    a.i("s_add_u32 s76, s76, s12")
    a.i("v_lshlrev_b32 v14, 1, v0")
    a.i("v_cmp_gt_u32 vcc, 32, v0")
    a.i(f"v_mov_b32 v15, {BIG:#x}")
    a.i(f"v_mov_b32 v{GVC}, {L_CNT}")
    a.i("v_cndmask_b32 v11, v15, v14, vcc")
    a.i("v_mov_b32 v15, 0x3f80")
    a.i(f"v_cndmask_b32 v{ONE}, 0, v15, vcc")
    for b in (BA1, BA1+4, ONE):
        for r in range(1, 4): a.i(f"v_mov_b32 v{b+r}, 0")
    xfrag_addr(a, VXR_G, 14, 15)
    tr_addr(a, VTR_G, 14, 15, 8)
    tr_addr(a, VTRP, 14, 15, 4)
    a.i(f"s_lshl_b32 s8, s{GW}, 11")
    a.i(f"s_add_u32 s8, s8, {L_STG}")
    a.i(f"v_add_u32 v{VSW}, s8, v{VLIN}")
    a.i(f"v_add_u32 v{VST}, s8, v{VTR_G}")
    a.i(f"s_mul_i32 s14, s{GW}, {RING_W}")
    a.i(f"s_add_u32 s14, s14, {L_RING}")
    a.i(f"v_add_u32 v{VTR_G}, s14, v{VTR_G}")
    a.i(f"v_add_u32 v{VTRP}, s14, v{VTRP}")
    for r in (VTR_G, VTRP, VST): a.i(f"v_xor_b32 v{r+1}, 64, v{r}")
    a.i("v_mov_b32 v8, 1")
def w1load(a, sx):
    pre = sx < PRM["NPRE"]
    if not pre: a.i(f"s_add_u32 m0, s14, {(sx % RD)*2048}")
    a.i(f"s_add_u32 s78, s76, {16*3584}")
    wstep(a, VW35, SW1, 76, PRE+8*(sx % PD) if pre else None, ("w", sx))
    a.i("s_cmp_eq_u32 s78, s77")
    a.i("s_cselect_b32 s76, s12, s78")
def g_w1first(a, name):
    assert (PRM["D1"] <= PRM["NPRE"] < 32 and PRM["D1"] < PD) or (PRM["NPRE"] == 0 and PRM["w1pos"] == 3)
    a.i("s_cmp_eq_u32 s13, 7")
    a.i(f"s_cbranch_scc1 {name}")
    n = len(a.vm)
    for p in range(2): a.i(f"buffer_load_ushort v{BA1+4*p}, v11, {R(SB1)}, s12 offen offset:{64*p}", tag="b")
    for sx in range(PRM["D1"]): w1load(a, sx)
    a.label(name)

def g_waves(a, VGE, VXE, VXO, vmG):
    VTR, VXR, VC = VTR_G, VXR_G, GVC
    NPRE, D1, D2W, D2H, DO, ND = (PRM[k] for k in ("NPRE", "D1", "D2W", "D2H", "DO", "ND"))
    a.label("L_G123")
    a.vm = list(vmG); a.lg = []
    a.i("s_waitcnt lgkmcnt(0)")
    srd(a, SX, "x")
    srd(a, SWS, "ws")
    g_setup(a)
    srd(a, SWQ, "wq")
    a.i(f"s_mov_b32 s{GSP}, {SPIN}")
    for k in range(3):
        a.i(f"s_add_u32 s8, s{GW}, {3*k - 1}")
        a.i("s_min_u32 s8, s8, 7")
        a.i(f"s_lshl_b32 s{60+k}, s8, 11") if False else None
        a.i(f"s_lshl_b32 s{52+k}, s8, 11")
        a.i(f"s_add_u32 s{52+k}, s{52+k}, {L_WQ}")
        a.i("s_lshl_b32 s8, s8, 14")
        a.i(f"s_lshl_b32 s9, s{S_J}, 16")
        a.i("s_add_u32 s8, s8, s9")
        a.i(f"s_lshl_b32 s9, s{S_MU}, 7")
        a.i(f"s_add_u32 s{64+k}, s8, s9")
    a.i("s_waitcnt lgkmcnt(0)"); a.lg = []
    a.i("s_barrier")
    if PRM["w1pos"] == 0:
        n0 = len(a.vm); g_w1first(a, "L_G_now1"); a.vm = a.vm[:n0]
    for q in range(4):
        for sl in (2*q, 2*q+1):
            a.i(f"s_add_u32 m0, s10, {L_X + sl*8192}")
            if sl:
                a.i("s_add_u32 s11, s11, 128")
                a.i("s_and_b32 s11, s11, 0x380")
            a.i(f"buffer_load_dwordx4 v{VXE}, {R(SX)}, s11 offen lds")
            a.i(f"buffer_load_dwordx4 v{VXO}, {R(SX)}, s11 offen offset:1024 lds", tag=("k", q) if q < 3 or sl < 7 else "x3")
        if q and PRM["esig"]:
            a.wait(vm=("k", q-1))
            cnt_add(a, VC, 8, 4*(q-1))
        for k in range(3 if q else 0):
            a.i(f"s_add_u32 s8, s{64+k}, {q << 17}")
            a.i(f"s_add_u32 m0, s{52+k}, {q*16384}")
            a.i("s_and_b32 s8, s8, 0x7ffff")
            wstep(a, VW1K, SWQ, 8, tag=("k", q))
        if PRM["st1"] and q in (PRM["st1"] - 1, PRM["st1"]):
            first = q == PRM["st1"] - 1
            if first:
                a.i("s_mul_i32 s8, s2, 7168")
                a.i(f"s_mul_i32 s9, s{GW}, {19*128}")
                a.i("s_add_u32 s8, s8, s9")
                a.i(f"s_sub_u32 s8, s8, {19*128}")
                a.i(f"s_add_u32 s72, s{P['w1']}, s8")
                a.i(f"s_addc_u32 s73, s{P['w1']+1}, 0")
            for i in (range(10) if first else range(10, 19)):
                if i == 18:
                    a.i(f"s_cmp_eq_u32 s{GW}, 3")
                    a.i("s_cbranch_scc1 L_st1")
                a.i(f"s_load_dword s74, s[72:73], {128*i}")
            if not first: a.label("L_st1")
        if q and not PRM["esig"]:
            a.wait(vm=("k", q-1))
            cnt_add(a, VC, 8, 4*(q-1))
    if PRM["w1pos"] == 2:
        a.i("s_cmp_eq_u32 s13, 7")
        a.i("s_cbranch_scc0 L_G_w1")
        a.i("s_waitcnt vmcnt(0)")
        a.label("L_G_w1")
        g_w1first(a, "L_G_now1")
    if PRM["xw"]:
        a.wait(vm="x3")
        cnt_add(a, VC, 8, C_X)
    a.wait(vm=("k", 3))
    cnt_add(a, VC, 8, 12)
    stamp(a, 0, 14, first=True)
    a.label("L_G_ffn1")
    a.vm = ["b"]*2 + [("w", sx) for sx in range(D1) for _ in range(2)]
    a.label("L_G_xw")
    if PRM["xsleep"]: a.i(f"s_sleep {PRM['xsleep']}")
    if PRM["xw"]:
        assert PRM["w1pos"] == 3
        a.i(f"ds_read2_b32 v[32:33], v{VC} offset0:0 offset1:{C_X//4}")
        a.i("s_waitcnt lgkmcnt(0)"); a.lg = []
        a.i("v_add_u32 v32, -5, v32")
        a.i("v_min_i32 v32, v32, v33")
    else:
        a.i(f"ds_read_b128 v[32:35], v{VC}")
        a.i("s_waitcnt lgkmcnt(0)"); a.lg = []
        a.i("v_add_u32 v32, -5, v32")
        a.i("v_add_u32 v35, -1, v35")
        a.i("v_min3_i32 v33, v33, v34, v35")
        a.i("v_min_i32 v32, v32, v33")
    a.i("v_readfirstlane_b32 s8, v32")
    a.i("s_cmp_ge_i32 s8, 3")
    a.i("s_cbranch_scc0 L_G_xw")
    stamp(a, 14, 14)
    a.i("v_bfe_u32 v14, v0, 4, 2")
    a.i("v_and_b32 v15, 7, v0")
    a.i("v_xor_b32 v14, v14, v15")
    a.i(f"s_and_b32 s8, s{GW}, 1")
    a.i("s_lshl_b32 s8, s8, 2")
    a.i("v_xor_b32 v14, s8, v14")
    a.i("v_lshlrev_b32 v14, 4, v14")
    a.i(f"v_add_u32 v99, {L_GW}, v14")
    a.i(f"s_setprio {PRM['gatep']}")
    XG, AC, GA = 32, 96, 98
    GFA = [64 + 4*k for k in range(8)]
    def gfr():
        for kb in range(8): a.i(f"ds_read_b128 {v(GFA[kb],4)}, v99 offset:{128*kb}")
    gfr()
    a.wait(lg="all")
    a.i(f"s_lshl_b32 s8, s{GW}, 10")
    a.i(f"v_add_u32 v{GA}, s8, v{VLIN}")
    for i in range(2): a.i(f"v_mov_b32 v{AC+i}, 0")
    def grd(kb):
        for i in range(2):
            a.i(f"ds_read_b128 {v(XG + 8*(kb % 3) + 4*i,4)}, v{GA} offset:{kb*8192 + i*4096}", tag=("g", kb))
    grd(0); grd(1)
    for kb in range(8):
        if kb < 6: grd(kb+2)
        a.wait(lg=("g", kb))
        for r in range(4):
            for i in range(2):
                a.i(f"v_dot2_f32_bf16 v{AC+i}, v{XG + 8*(kb % 3) + 4*i + r}, v{GFA[kb]+r}, v{AC+i}")
    a.i(f"v_lshrrev_b32 v{GA}, 3, v0")
    a.i(f"s_lshl_b32 s9, s{GW}, 5")
    a.i(f"s_add_u32 s9, s9, {L_G}")
    for mod in ("quad_perm:[1,0,3,2]", "quad_perm:[2,3,0,1]", "row_half_mirror"):
        for i in range(2):
            a.i(f"v_add_f32_dpp v{AC+i}, v{AC+i}, v{AC+i} {mod} row_mask:0xf bank_mask:0xf")
    a.i(f"s_mov_b32 s10, {f2u(-math.log2(math.e)):#x}")
    for i in range(2): a.i(f"v_mul_f32 v{AC+i}, s10, v{AC+i}")
    for i in range(2): a.i(f"v_exp_f32 v{AC+i}, v{AC+i}")
    a.i(f"v_lshl_add_u32 v{GA}, v{GA}, 2, s9")
    for i in range(2): a.i(f"v_add_f32 v{AC+i}, 1.0, v{AC+i}")
    for i in range(2): a.i(f"v_rcp_f32 v{AC+i}, v{AC+i}")
    a.i("s_nop 0")
    for i in range(2): a.i(f"ds_write_b32 v{GA}, v{AC+i} offset:{128*i}")
    a.i("s_waitcnt lgkmcnt(0)"); a.lg = []
    a.i("s_setprio 2")
    a.i("s_cmp_eq_u32 s13, 7")
    a.i("s_cbranch_scc1 L_G_idle")
    if PRM["w1pos"] == 3:
        a.label("L_G_kw")
        a.i("s_sleep 2")
        cnt_wait(a, VC, 14, C_K, 4, "L_G_kw1", 8)
        a.ins[-1] = Ins("    s_cbranch_scc0 L_G_kw")
        a.vm = []
        g_w1first(a, "L_G3_now1")
    a.wait(vm="b")
    for p in range(2):
        for rh in range(2): mfma(a, ACC + 32*p + 16*rh, BA1 + 4*p, ONE, "0")
    def rd1(sx):
        a.wait(vm=("w", sx))
        b = sx & 1
        if sx < NPRE:
            for p in range(2): a.i(f"ds_write_b128 v{VSW}, {v(PRE+8*(sx % PD)+4*p,4)} offset:{p*1024}")
        for p in range(2):
            o = 0 if sx < NPRE else (sx % RD)*2048
            ar = (VST if sx < NPRE else VTR) + p
            a.i(f"ds_read_b64_tr_b16 {v(WF+8*b+4*p,2)}, v{ar} offset:{o}")
            a.i(f"ds_read_b64_tr_b16 {v(WF+8*b+4*p+2,2)}, v{ar} offset:{o+512}")
        for rh in range(2):
            a.i(f"ds_read_b128 {v(XF+8*b+4*rh,4)}, v{VXR+(sx&3)} offset:{(sx>>2)*8192 + rh*4096}", tag=("r", sx))
    def ringgate():
        a.i("s_setprio 2")
        cnt_wait(a, VC, 14, C_Q, 4, a.newlabel("G_ring"), 8)
        a.i("s_setprio 0")
    a.i(f"s_setprio {PRM['gp0']}")
    rd1(0)
    for sx in range(32):
        if sx in (1, 4, 8, 16) and ("fst" not in OPT or sx == 16) and "gst" not in OPT: stamp(a, {1: 16, 4: 17, 8: 18, 16: 19}[sx], 14)
        if sx + D1 < NPRE: w1load(a, sx + D1)
        if sx < 31: rd1(sx+1)
        a.wait(lg=("r", sx))
        b = sx & 1
        for p in range(2):
            for rh in range(2):
                mfma(a, ACC + 32*p + 16*rh, WF+8*b+4*p, XF+8*b+4*rh)
        if sx + D1 == NPRE and PRM['w1pos'] != 3: ringgate()
        if NPRE <= sx + D1 < 32: w1load(a, sx + D1)
    a.i("s_setprio 2")
    cnt_add(a, VC, 8, C_F)
    if NPRE >= 32: ringgate(); a.i("s_setprio 2")
    a.label("L_G_ffn1_end")
    a.i(f"ds_read_b32 v8, v{VC} offset:{C_T}")
    a.i("s_waitcnt lgkmcnt(0)"); a.lg = []
    a.i(f"v_readfirstlane_b32 s{S_TAG}, v8")
    stamp(a, 9, 250)
    srd(a, SW2, "w2"); srd(a, SWO, "wo"); srd(a, SB2, "b2")
    BA2 = BA1
    a.i(f"s_lshl_b32 s8, s{S_MU}, 7")
    a.i(f"s_cmp_eq_u32 s{GW}, 0")
    a.i(f"s_cselect_b32 s10, s8, {BIG:#x}")
    for p in range(2): a.i(f"buffer_load_ushort v{BA2+4*p}, v11, {R(SB2)}, s10 offen offset:{64*p}", tag="b")
    a.i(f"s_lshl_b32 s10, s{S_G}, 5")
    a.i(f"s_lshl_b32 s9, s{S_MU}, 2")
    a.i("s_add_u32 s10, s10, s9")
    a.i(f"s_add_u32 s10, s10, s{GW}")
    a.i("s_lshl_b32 s10, s10, 11")
    a.i(f"s_add_u32 s10, s10, {WS_O}")
    for r in range(4): a.i(f"v_mov_b32 v{XF+r}, -1")
    for rh in range(2): a.i(f"buffer_store_dwordx4 {v(XF,4)}, v{VLIN}, {R(SWS)}, s10 offen offset:{1024*rh} sc1")
    a.i(f"s_mul_i32 s66, s{GW}, {28*16384}")
    a.i("s_add_u32 s66, s66, s8")
    a.i(f"s_lshl_b32 s58, s{GW}, {16 if PRM['par'] == 3 else 17}")
    a.i("s_add_u32 s58, s58, s8")
    a.i(f"s_and_b32 s55, s{S_J}, 3" if PRM["gpx"] == 8 else f"s_lshr_b32 s55, s{S_J}, 1")
    a.i("s_lshl_b32 s67, s55, 15")
    a.i(f"s_mul_i32 s60, s{S_J}, 7")
    if PRM["gpx"] == 4: a.i(f"s_mul_i32 s61, s{S_MU}, 7")
    else:
        a.i(f"s_lshr_b32 s61, s{S_MU}, 1" if PRM["par"] in (1, 2) else f"s_and_b32 s61, s{S_MU}, 3")
        a.i("s_mul_i32 s61, s61, 14")
    a.i("s_add_u32 s60, s60, s61")
    a.i("s_lshr_b32 s60, s60, 1")
    a.i("s_sub_u32 s61, s60, 28")
    a.i("s_cselect_b32 s60, s60, s61")
    a.i("s_mov_b32 s61, s66")
    a.i(f"s_add_u32 s62, s66, {28*16384}")
    a.i("s_lshl_b32 s63, s60, 14")
    a.i("s_add_u32 s66, s66, s63")
    HR, HD = 192, 8
    slot = lambda sx: sx % RD if sx < 28 or not PRM["wos"] else 4 + (sx & 3)
    def dma2(sx):
        a.i(f"s_add_u32 m0, s14, {slot(sx)*2048}")
        if sx < 28:
            a.i("s_add_u32 s63, s66, 16384")
            wstep(a, VW1K, SW2, 66, tag=("w", sx))
            a.i("s_cmp_eq_u32 s63, s62")
            a.i("s_cselect_b32 s66, s61, s63")
        else:
            a.i("s_add_u32 s63, s58, s67")
            if PRM["par"] == 3:
                a.i("s_bfe_u32 s54, s67, 0x10010")
                a.i(f"s_mul_i32 s54, s54, {262144 - 65536}")
                a.i("s_add_u32 s63, s63, s54")
            wstep(a, VW1K, SWO, 63, tag=("w", sx))
            a.i("s_add_u32 s67, s67, 16384")
            a.i("s_and_b32 s67, s67, 0x1ffff")
    def hload(sx):
        for rh in range(2):
            a.i(f"buffer_load_dwordx4 {v(HR + 8*(sx % HD) + 4*rh,4)}, v{VLIN}, {R(SWS)}, s9 offen offset:{1024*rh} sc1", tag=("h", sx))
        a.i("s_add_u32 s9, s9, 2048")
        a.i("s_cmp_eq_u32 s9, s65")
        a.i("s_cselect_b32 s9, s64, s9")
    VTRP2 = XF + 6
    for p in range(2): a.i(f"v_mov_b32 v{VTRP2+p}, v{VTRP+p}")
    a.i(f"s_mul_i32 s8, s{S_G}, 112")
    a.i("s_lshl_b32 s10, s8, 11")
    a.i("s_lshl_b32 s9, s12, 6")
    a.i("s_add_u32 s10, s10, s9")
    a.i(f"s_add_u32 s12, s10, {WS_H}")
    a.i("s_cmp_eq_u32 s13, 7")
    a.i("s_cselect_b32 s56, 1, 0")
    a.i("s_add_u32 s13, s12, 4096")
    a.i(f"s_mul_i32 s9, s{GW}, 28")
    a.i("s_add_u32 s9, s9, s8")
    a.i("s_lshl_b32 s9, s9, 11")
    a.i(f"s_add_u32 s64, s9, {WS_H}")
    a.i(f"s_add_u32 s65, s64, {28*2048}")
    a.i("s_lshl_b32 s9, s60, 11")
    a.i("s_add_u32 s9, s9, s64")
    a.i(f"s_lshl_b32 s11, s{S_G}, 9")
    a.i(f"s_add_u32 s11, s11, {WS_HF}")
    pair_of(a, 10)
    a.i("s_lshl_b32 s10, s10, 7")
    a.i("s_add_u32 s10, s10, s11")
    role_of(a, 8)
    a.i("s_lshl_b32 s8, s8, 2")
    a.i(f"s_add_u32 s8, s8, s{GW}")
    a.i("s_lshl_b32 s8, s8, 2")
    a.i("s_add_u32 s57, s10, s8")
    a.i(f"s_lshl_b32 s8, s{GW}, 7")
    a.i("s_add_u32 s11, s11, s8")
    a.i("v_and_b32 v14, 7, v0")
    a.i("v_lshlrev_b32 v14, 2, v14")
    a.i("s_cmp_eq_u32 s56, 1")
    a.i("s_cbranch_scc1 L_G_noh")
    for p in range(2):
        for rh in range(2):
            t = ACC + 32*p + 16*rh
            o = 192 + 8*(2*p+rh)
            for r in range(16): a.i(f"v_max_f32 v{t+r}, 0, v{t+r}")
            for r in range(0, 16, 2): a.i(f"v_pk_mul_f32 {v(t+r,2)}, {v(t+r,2)}, {v(t+r,2)}")
            for j in range(8): a.i(f"v_cvt_pk_bf16_f32 v{o+j}, v{t+2*j}, v{t+2*j+1}")
            if PRM["hpace"] and 2*p + rh >= PRM["hpace"]: a.i(f"s_waitcnt vmcnt({2*PRM['hpace'] - 2})")
            for u in range(2):
                a.i(f"buffer_store_dwordx4 {v(o+4*u,4)}, v{VLIN}, {R(SWS)}, s{12+p} offen offset:{u*2048 + rh*1024} sc1", tag="hst")
    a.label("L_G_noh")
    if "gst" in OPT: stamp(a, 16, 14)
    a.vm = []
    for k in range(PRM["DOV"]): dma2(28 + k)
    a.i(f"s_waitcnt vmcnt({2*PRM['DOV']})")
    a.i("s_mov_b64 exec, 1")
    a.i(f"buffer_store_dword v8, off, {R(SWS)}, s57 sc1")
    a.i("s_mov_b64 exec, -1")
    if "gst" in OPT: stamp(a, 17, 14)
    for k in range(PRM["DOV"], DO): dma2(28 + k)
    for p in range(2):
        for rh in range(2): mfma(a, ACC + 32*p + 16*rh, BA2 + 4*p, ONE, "0")
    WOF, OF = 128, 192
    def rd2(sx, dst):
        a.wait(vm=[("w", sx)])
        for p in range(2):
            o = slot(sx)*2048
            a.i(f"ds_read_b64_tr_b16 {v(dst+4*p,2)}, v{VTRP2+p} offset:{o}")
            a.i(f"ds_read_b64_tr_b16 {v(dst+4*p+2,2)}, v{VTRP2+p} offset:{o+1024}", tag=("r", sx))
    for k in range(8):
        rd2(28 + k, WOF + 8*k)
        if PRM["wos"]:
            assert DO <= 3 and D2W <= 4
            if k: a.wait(lg=("r", 28 + k - 1))
            if k + DO < 8: dma2(28 + k + DO)
            elif k + DO - 8 < D2W: dma2(k + DO - 8)
        else:
            if k + DO < 8: dma2(28 + k + DO)
            if k >= 2: a.wait(lg=("r", 28 + k - 2))
    a.wait(lg="all")
    if "gst" in OPT: stamp(a, 18, 14)
    for sx in range(min(DO, D2W) if PRM["wos"] else 0, D2W): dma2(sx)
    a.label("L_hpoll")
    a.i(f"buffer_load_dword v15, v14, {R(SWS)}, s11 offen sc1")
    a.i("s_waitcnt vmcnt(0)"); a.vm = []
    a.i(f"v_cmp_ne_u32 vcc, s{S_TAG}, v15")
    a.i("s_cbranch_vccz L_hok")
    spin_tail(a, GSP, "L_hpoll", "L_hok", sleep=PRM["hsleep"])
    a.label("L_hok")
    stamp(a, 10, 250)
    for sx in range(D2H): hload(sx)
    a.i(f"s_lshl_b32 s12, s{S_G}, {3 if PRM['par'] == 3 else 2}")
    a.i(f"s_add_u32 s12, s12, s{GW}")
    a.i(f"s_lshl_b32 s12, s12, {13 if PRM['par'] == 3 else 14}")
    a.i(f"s_add_u32 s12, s12, {WS_O}")
    OSO = [12, 56, 57, 13]
    a.i("s_mov_b32 s8, s12")
    for k in range(4):
        a.i(f"s_add_u32 s9, s55, {k}") if False else None
        a.i(f"s_add_u32 s11, s55, {k}")
        a.i("s_and_b32 s11, s11, 3")
        if PRM["par"] == 3:
            a.i("s_lshr_b32 s54, s11, 1")
            a.i("s_mul_i32 s54, s54, 6")
            a.i("s_add_u32 s11, s11, s54")
        a.i("s_lshl_b32 s11, s11, 12")
        a.i(f"s_add_u32 s{OSO[k]}, s8, s11")
    final_addr(a, 8)
    a.i("v_and_b32 v14, 31, v0")
    a.i("v_lshlrev_b32 v3, 2, v14")
    a.i(f"v_add_u32 v3, {L_G}, v3")
    a.i(f"v_mul_u32_u24 v14, {PITCH}, v14")
    a.i("v_lshrrev_b32 v15, 5, v0")
    a.i("v_lshl_add_u32 v14, v15, 4, v14")
    a.i("v_add_u32 v14, s14, v14")
    a.i("s_setprio 0")
    NM = 28 - ND
    def step2(sx):
        if sx + 1 < 28 and sx + 1 != NM: rd2(sx+1, WF + 8*((sx+1) & 1))
        a.wait(vm=("h", sx), lg=("r", sx))
        b = sx & 1
        for p in range(2):
            for rh in range(2):
                mfma(a, ACC + 32*p + 16*rh, WF+8*b+4*p, HR + 8*(sx % HD) + 4*rh)
    if NM: rd2(0, WF)
    for sx in range(28):
        if sx == NM and "gst" in OPT: stamp(a, 19, 14)
        if sx < NM: step2(sx)
        elif not PRM["burst"] or sx == 27: a.wait(vm=[("w", sx), ("h", sx)])
        elif PRM["burst"] > 1: a.wait(vm=[("w", sx - PRM["burst"]), ("h", sx - PRM["burst"])])
        if sx + D2H < 28: hload(sx + D2H)
        if sx + D2W < 28: dma2(sx + D2W)
    stamp(a, 11, 48)
    a.i("s_barrier")
    if PRM["b3b"]: a.i("s_barrier")
    a.i(f"ds_read2_b32 {v(VGG,2)}, v3 offset0:0 offset1:32", tag="g")
    if ND: rd2(NM, WF + 8*(NM & 1))
    OFR = [224, 192]
    def oload(rh):
        for k in range(8):
            a.i(f"buffer_load_dwordx4 {v(OFR[rh] + 4*k,4)}, v{VLIN}, {R(SWS)}, s{OSO[k>>1]} offen offset:{(k&1)*2048 + rh*1024} sc1", tag=("o", rh))
    def ocheck(rh):
        b = OFR[rh]
        a.i(f"v_max3_u32 v20, v{b}, v{b+4}, v{b+8}")
        a.i(f"v_max3_u32 v21, v{b+12}, v{b+16}, v{b+20}")
        a.i(f"v_max3_u32 v20, v20, v{b+24}, v{b+28}")
        a.i("v_max_u32 v20, v20, v21")
        a.i("v_cmp_eq_u32 vcc, -1, v20")
    assert PRM["oat"] >= 23
    if NM > PRM["oat"]: oload(0)
    for sx in range(NM, 28):
        step2(sx)
        if sx == PRM["oat"]: oload(0)
    a.i("s_setprio 2")
    a.wait(lg="all")
    oload(1)
    for rh in range(2): a.i(f"v_sub_f32 v{16+2*rh}, 1.0, v{VGG+rh}")
    for rh in range(2):
        for p in range(2):
            t = ACC + 32*p + 16*rh
            for r in range(0, 16, 2): a.i(f"v_pk_mul_f32 {v(t+r,2)}, {v(t+r,2)}, {v(16+2*rh,2)} op_sel_hi:[1,0]")
    def pwrite(rh, p, q):
        a.i(f"ds_write_b128 v14, {v(ACC + 32*p + 16*rh + 4*q,4)} offset:{rh*32*PITCH + (32*p + 8*q)*4}")
    for rh in range(2):
        a.wait(vm=("o", rh))
        ocheck(rh)
        a.i(f"s_cbranch_vccnz L_or{rh}")
        a.label(f"L_ook{rh}")
        if rh == 0: stamp(a, 12, 22)
        for p in range(2):
            for k in range(8):
                mfma(a, ACC + 32*p + 16*rh, WOF + 8*k + 4*p, OFR[rh] + 4*k)
                if k >= 4 and (rh or p): pwrite(*((rh, 0) if p else (0, 1)), k - 4)
    a.i("s_nop 11")
    for q in range(4): pwrite(1, 1, q)
    a.i("s_waitcnt lgkmcnt(0)"); a.lg = []
    stamp(a, 13, 22)
    a.i("s_barrier")
    final_stage(a, 8)
    a.i(f"s_lshl_b32 s8, s{S_G}, 6")
    a.i(f"s_lshl_b32 s9, s{S_MU}, 3")
    a.i("s_add_u32 s8, s8, s9")
    a.i(f"s_add_u32 s8, s8, s{S_W}")
    a.i("s_cmp_lg_u32 s8, 5")
    a.i("s_cbranch_scc1 L_notag")
    a.i(f"v_mov_b32 v4, s{S_TAG}")
    a.i(f"s_mov_b32 s8, {WS_NONCE}")
    a.i("s_mov_b64 exec, 1")
    a.i(f"buffer_store_dword v4, off, {R(SWS)}, s8 sc1")
    a.label("L_notag")
    stamp(a, 7, 250)
    stamp_dump(a, "G")
    a.i("s_endpgm")
    for rh in range(2):
        a.label(f"L_or{rh}")
        a.i("s_waitcnt vmcnt(0)")
        a.label(f"L_or{rh}_a")
        oload(rh)
        if rh == 0: oload(1)
        a.i("s_waitcnt vmcnt(0)"); a.vm = []
        ocheck(rh)
        a.i(f"s_cbranch_vccz L_ook{rh}")
        spin_tail(a, GSP, f"L_or{rh}_a", f"L_ook{rh}")
    a.label("L_G_idle")
    a.i("s_waitcnt vmcnt(0)")
    cnt_add(a, VC, 8, C_F)
    a.label("L_G_idle_a")
    a.i("s_sleep 8")
    a.i(f"ds_read_b32 v14, v{VC} offset:{C_F}")
    a.i("s_waitcnt lgkmcnt(0)")
    a.i("v_readfirstlane_b32 s8, v14")
    a.i("s_cmp_ge_u32 s8, 4")
    a.i("s_cbranch_scc0 L_G_idle_a")
    a.i("s_branch L_G_ffn1_end")

HEAD = open("cdna_kernels/" + NAME + ".s.ref").read().split("; Override launch")[0]
def kd(name, vg=256):
    return f""".section .rodata,"a"
.p2align 6
.amdhsa_kernel {name}
  .amdhsa_next_free_vgpr {vg}
  .amdhsa_next_free_sgpr 102
  .amdhsa_accum_offset {vg}
  .amdhsa_group_segment_fixed_size 0
  .amdhsa_kernarg_size 112
  .amdhsa_user_sgpr_count 2
  .amdhsa_user_sgpr_kernarg_segment_ptr 1
  .amdhsa_system_sgpr_workgroup_id_x 1
.end_amdhsa_kernel
"""
DOC = """;
;                  8 (head, 32-row) tiles; the partial sums meet in LDS.
;
"""
def build(kernels):
    s_ = HEAD
    if len(kernels) == 1:
        n, blk, lds, body = kernels[0]
        s_ += f"; @launch grid=(256,1,1) block=({blk},1,1) lds={lds}\n"
    else:
        for n, blk, lds, body in kernels:
            s_ += f"; @launch kernel={n} grid=(256,1,1) block=({blk},1,1) lds={lds}\n"
    s_ += DOC + '.amdgcn_target "amdgcn-amd-amdhsa--gfx950"\n'
    for n, blk, lds, body in kernels:
        s_ += f".text\n.globl {n}\n.p2align 8\n.type {n},@function\n{n}:\n{body}" + kd(n)
    return s_

if __name__ == "__main__":
    out = sys.argv[1]
    OPT = set(sys.argv[2:])
    STAMP = "stamp" in OPT
    ks = [(NAME + "_kernel", 512, LDS_BYTES, None)]
    for o in OPT:
        if "=" in o and o.split("=")[0] in PRM: PRM[o.split("=")[0]] = int(o.split("=")[1])
        if o.startswith("only="):
            STAMP = True; ONLY = int(o[5:])
            ks.append(("wait_kernel", 256, 1024, waitk(ONLY)))
    ks[0] = ks[0][:3] + (kernel(),)
    open(out, "w").write(build(ks))
```

```python
import sys, math, struct
from asmgen import *

NAME = "gated_mix__grouped_kv_mqa__dense_activation_squared_relu__prompt"
TS = 2304
WS_KV = 0
WS_NONCE = 0x2c000
WS_OH = 0x30000
WS_HF = 0x28000
WS_O  = 0x40000
WS_H  = 0x240000
WS_END = WS_H + 32*112*2048
L_X, L_WQ, L_RING, RING_W, RD = 0, 65536, 65536, 17408, 8
L_WKV = 135168; L_STG = L_WKV; L_QF = L_WKV + 8192
L_G = 151552; L_GW = L_G + 1024; L_CNT = L_G + 256
C_Q, C_F, C_T, C_K, C_X = 16, 20, 24, 28, 32
CT = [8, 3, 3, 4]
LDS_BYTES = 163840
XO, XK = 13824, 4608
QSCALE = 0.25 * math.log2(math.e)
def f2u(x): return struct.unpack("<I", struct.pack("<f", x))[0]
S_W, S_G, S_MU, S_J, S_KV, S_TAG = 3, 4, 5, 15, 27, 59
P = dict(x=16, wq=18, wk=20, wv=22, wo=24, bx=26, w1=28, b1=30, w2=32, b2=34, gate=36, out=38, dbg=40, ws=42)
SZ = dict(x=2048*1024, wq=512*1024, wo=512*1024, w1=512*3584, b1=3584, w2=1792*1024, b2=1024, gate=1024, out=2048*1024, dbg=256, ws=WS_END)
BIG = 0x40000000
SPIN = 8000
STAMP = False; ONLY = None; OPT = set()
PRM = dict(w1pos=3, apf=0, w1wait=1, tagat=8, kvat=33, ckpos=0, wqlate=0, wqt=0, aprio=0, g0d=0, qnb=4, qprio=1, xsleep=2, nsw=6, chk3=1, par=3, st1=0, gatep=0, ntx=1, ntq=0, ntw=0, ntk=0, ntc=0, ctpos=0, al=6, sh=0, ap=1, esig=0, kscale=1, xw=0, wos=0, burst=0, NL=0, il=1, orsleep=0, opoll=0, hint=1, hat=20, hwait=0, oq=1, **{'await': 0}, w1t=0, NPRE=0, gp0=0, b3b=1, D1=4, D2W=3, D2H=2, DO=3, DOV=0, hpace=3, ost=0, ND=8, hsleep=4, oat=25, isleep=4, gpx=8, tsleep=0)
WS_STAMP = 0xC00000
SX, SWQ, SWKV, SW1, SB1, SGT, SWS, SDBG, SW2, SWO, SOUT = 44, 48, 52, 56, 60, 64, 68, 72, 76, 80, 84
SB2 = 48
VLIN = 2
PITCH = 272

def srd(a, d, name):
    a.i(f"s_mov_b32 s{d}, s{P[name]}")
    a.i(f"s_mov_b32 s{d+1}, s{P[name]+1}")
    a.i(f"s_mov_b32 s{d+2}, {SZ[name]:#x}")
    a.i(f"s_mov_b32 s{d+3}, 0x20000")
def R(d): return f"s[{d}:{d+3}]"

ST_A = {0: 100, 1: 88, 2: 90, 3: 92, 4: 94, 5: 96, 6: 98, 7: 44}
CY_A = {4: 46, 5: 72}
ST_G = {0: 100, 15: 88, 8: 90, 14: 92, 16: 94, 17: 96, 18: 98, 19: 26, 9: 18, 10: 20, 11: 22, 12: 46, 13: 52, 7: 44}
NST = 20
def stamping(idx): return STAMP and (ONLY is None or idx == ONLY)
def stamp_init(a, role):
    if not STAMP: return
    for i, r in (ST_A if role == "A" else ST_G).items():
        if r >= 88 and i: a.i(f"s_mov_b32 s{r}, -1")
def stamp(a, idx, role, first=False):
    if not stamping(idx) or first: return
    role = "A" if role == AST else "G"
    r = (ST_A if role == "A" else ST_G)[idx]
    a.i(f"s_memrealtime s[{r}:{r+1}]")
    if role == "A" and idx in CY_A: a.i(f"s_memtime s[{CY_A[idx]}:{CY_A[idx]+1}]")
def stamp_dump(a, role):
    if not STAMP: return
    T = ST_A if role == "A" else ST_G
    a.i("s_waitcnt vmcnt(0) lgkmcnt(0)")
    a.i(f"s_mov_b32 s{SWS+2}, 0x1000000")
    a.i("s_lshl_b32 s8, s2, 3")
    a.i(f"s_add_u32 s8, s8, s{S_W}")
    a.i("s_lshl_b32 s8, s8, 3")
    a.i(f"s_add_u32 s8, s8, {WS_STAMP + 0x10000}")
    a.i("s_mov_b64 exec, 1")
    for idx in range(NST):
        if stamping(idx):
            a.i(f"v_mov_b32 v{2*idx}, {'s%d' % T[idx] if idx in T else -1}")
            a.i(f"v_mov_b32 v{2*idx+1}, {'s%d' % CY_A[idx] if role == 'A' and idx in CY_A else ('s65' if role == 'A' else 's99') if idx == 7 else 0}")
            a.i(f"s_add_u32 s9, s8, {idx*16384}")
            a.i(f"buffer_store_dwordx2 v[{2*idx}:{2*idx+1}], off, {R(SWS)}, s9")
def waitk(idx, ticks=6000):
    a = Asm()
    a.i("s_cmp_ge_u32 s2, 1"); a.i("s_cbranch_scc1 L_w_end")
    a.i("s_load_dwordx2 s[42:43], s[0:1], 104")
    a.i("v_lshlrev_b32 v1, 6, v0")
    a.i("v_mov_b32 v2, 0")
    a.i("ds_write_b32 v2, v2")
    a.i("s_waitcnt lgkmcnt(0)")
    a.i("s_barrier")
    a.i("s_mov_b32 s92, s42"); a.i("s_mov_b32 s93, s43"); a.i("s_mov_b32 s94, 0x1000000"); a.i("s_mov_b32 s95, 0x20000")
    a.i(f"s_mov_b32 s10, {WS_STAMP + 0x10000 + idx*16384}")
    for k in range(4): a.i(f"buffer_load_dwordx4 v[{8+4*k}:{11+4*k}], v1, s[92:95], s10 offen offset:{16*k}")
    a.i("s_waitcnt vmcnt(0)")
    for k in range(8):
        a.i(f"v_add_u32 v3, 1, v{8+2*k}")
        a.i("ds_max_u32 v2, v3")
        a.i("s_waitcnt lgkmcnt(0)")
    a.i("s_barrier")
    a.i("ds_read_b32 v3, v2")
    a.i("s_waitcnt lgkmcnt(0)")
    a.i("v_readfirstlane_b32 s11, v3")
    a.i("s_mov_b32 s12, 20000")
    a.label("L_w_loop")
    a.i("s_memrealtime s[8:9]")
    a.i("s_waitcnt lgkmcnt(0)")
    a.i("s_sub_u32 s8, s8, s11")
    a.i(f"s_cmp_ge_u32 s8, {ticks}")
    a.i("s_cbranch_scc1 L_w_end")
    a.i("s_sub_u32 s12, s12, 1")
    a.i("s_cmp_lg_u32 s12, 0")
    a.i("s_cbranch_scc1 L_w_loop")
    a.label("L_w_end"); a.i("s_endpgm")
    return a.finish()

def mfma(a, d, A, B, C=None):
    c = v(d, 16) if C is None else C
    a.i(f"v_mfma_f32_32x32x16_bf16 {v(d,16)}, {v(A,4)}, {v(B,4)}, {c}")
def mfma16(a, d, A, B, C=None):
    c = v(d, 4) if C is None else C
    a.i(f"v_mfma_f32_16x16x32_bf16 {v(d,4)}, {v(A,4)}, {v(B,4)}, {c}")

def tr_addr(a, dst, t0, t1, rowmul_h):
    a.i(f"v_lshrrev_b32 v{t0}, 5, v0")
    a.i(f"v_mul_u32_u24 v{t0}, {rowmul_h}, v{t0}")
    a.i(f"v_bfe_u32 v{t1}, v0, 2, 2")
    a.i(f"v_add_u32 v{t0}, v{t0}, v{t1}")
    a.i(f"v_lshlrev_b32 v{dst}, 7, v{t0}")
    a.i(f"v_and_b32 v{t1}, 3, v0")
    a.i(f"v_lshl_add_u32 v{dst}, v{t1}, 3, v{dst}")
    a.i(f"v_bfe_u32 v{t1}, v0, 4, 1")
    a.i(f"v_lshl_add_u32 v{dst}, v{t1}, 5, v{dst}")
    a.i(f"v_bfe_u32 v{t1}, v0, 3, 1")
    a.i(f"v_lshl_add_u32 v{dst}, v{t1}, 6, v{dst}")

def xfrag_addr(a, dst, t0, t1):
    a.i(f"v_bfe_u32 v{t0}, v0, 1, 3")
    a.i(f"v_lshrrev_b32 v{t1}, 5, v0")
    a.i(f"v_xor_b32 v{t0}, v{t0}, v{t1}")
    a.i(f"v_and_b32 v{t1}, 31, v0")
    a.i(f"v_lshlrev_b32 v{t1}, 7, v{t1}")
    for q in range(4):
        a.i(f"v_xor_b32 v{dst+q}, {2*q}, v{t0}")
        a.i(f"v_lshl_add_u32 v{dst+q}, v{dst+q}, 4, v{t1}")

def wchunk_addr(a, dst, t0, pitch):
    a.i(f"v_lshrrev_b32 v{t0}, 3, v0")
    a.i(f"v_mul_u32_u24 v{dst}, {pitch}, v{t0}")
    a.i(f"v_bfe_u32 v{t0}, v0, 4, 1")
    a.i(f"v_lshlrev_b32 v{t0}, 2, v{t0}")
    a.i(f"v_xor_b32 v{t0}, v{t0}, v0")
    a.i(f"v_and_b32 v{t0}, 7, v{t0}")
    a.i(f"v_lshl_add_u32 v{dst}, v{t0}, 4, v{dst}")
    a.i(f"v_add_u32 v{dst+1}, {8*pitch - 1024}, v{dst}")
FL = ["", " nt", " sc1", " sc1 nt"]
def wstep(a, va, srd_, so, dst=None, tag=None):
    fl = FL[PRM["ntq"] & 3 if tag == ("wq", 0) else PRM["ntq"] >> 2 if srd_ == SWQ and tag[0] == "k" else PRM["ntw"]]
    if dst is None:
        a.i(f"buffer_load_dwordx4 v{va}, {R(srd_)}, s{so} offen{fl} lds", tag=tag)
        a.i(f"buffer_load_dwordx4 v{va+1}, {R(srd_)}, s{so} offen offset:1024{fl} lds", tag=tag)
    else:
        a.i(f"buffer_load_dwordx4 {v(dst,4)}, v{va}, {R(srd_)}, s{so} offen", tag=tag)
        a.i(f"buffer_load_dwordx4 {v(dst+4,4)}, v{va+1}, {R(srd_)}, s{so} offen offset:1024", tag=tag)

def run(a, items):
    for t in items: t() if callable(t) else a.i(t)

def spin_tail(a, cnt, again, done, sleep=0):
    a.i(f"s_sub_u32 s{cnt}, s{cnt}, 1")
    a.i(f"s_cmp_eq_u32 s{cnt}, 0")
    a.i(f"s_cbranch_scc1 {done}")
    if sleep: a.i(f"s_sleep {sleep}")
    a.i(f"s_branch {again}")

def cnt_add(a, vc, vone, off):
    a.i("s_mov_b64 exec, 1")
    a.i(f"ds_add_u32 v{vc}, v{vone} offset:{off}")
    a.i("s_mov_b64 exec, -1")
def cnt_wait(a, vc, vt, off, n, name, st, extra=None):
    a.label(name)
    a.i(f"ds_read_b32 v{vt}, v{vc} offset:{off}")
    if extra: extra()
    a.i("s_waitcnt lgkmcnt(0)"); a.lg = []
    a.i(f"v_readfirstlane_b32 s{st}, v{vt}")
    a.i(f"s_cmp_ge_u32 s{st}, {n}")
    a.i(f"s_cbranch_scc0 {name}")

def xpairs(a, VE, VO, sbase, st, tagf):
    for sl in range(8):
        a.i(f"s_add_u32 m0, s{sbase}, {L_X + sl*8192}")
        if sl:
            a.i(f"s_add_u32 s{st}, s{st}, 128")
            a.i(f"s_and_b32 s{st}, s{st}, 0x380")
        a.i(f"buffer_load_dwordx4 v{VE}, {R(SX)}, s{st} offen{FL[PRM['ntx']]} lds")
        a.i(f"buffer_load_dwordx4 v{VO}, {R(SX)}, s{st} offen offset:1024{FL[PRM['ntx']]} lds", tag=tagf(sl))

def final_stage(a, T):
    RA, RB, SO = T, T+1, T+2
    B = T + 4
    for w in range(4):
        for hf in range(2):
            a.i(f"ds_read_b128 {v(B + w*8 + 4*hf,4)}, v{RA if w < 2 else RB} offset:{(w&1)*RING_W + 16*hf}", tag=("p", w))
    a.wait(lg=("p", 1))
    for r in range(0, 8, 2): a.i(f"v_pk_add_f32 {v(B+r,2)}, {v(B+r,2)}, {v(B+8+r,2)}")
    a.wait(lg=("p", 3))
    for r in range(0, 8, 2): a.i(f"v_pk_add_f32 {v(B+16+r,2)}, {v(B+16+r,2)}, {v(B+24+r,2)}")
    for r in range(0, 8, 2): a.i(f"v_pk_add_f32 {v(B+r,2)}, {v(B+r,2)}, {v(B+16+r,2)}")
    for j in range(4): a.i(f"v_cvt_pk_bf16_f32 v{B+8+j}, v{B+2*j}, v{B+2*j+1}")
    a.i(f"buffer_store_dwordx4 {v(B+8,4)}, v{SO}, {R(SOUT)}, s10 offen" + ["", " sc1", " nt", " sc0 sc1", " sc0 sc1 nt"][PRM["ost"]])
def final_addr(a, T):
    RA, RB, SO, t = T, T+1, T+2, T+3
    a.i(f"v_lshrrev_b32 v{SO}, 3, v0")
    a.i(f"s_lshl_b32 s10, s{S_W}, 3")
    a.i(f"v_add_u32 v{SO}, s10, v{SO}")
    a.i(f"v_and_b32 v{t}, 7, v0")
    a.i(f"v_mul_u32_u24 v{RA}, {PITCH}, v{SO}")
    a.i(f"v_lshl_add_u32 v{RA}, v{t}, 5, v{RA}")
    a.i(f"v_add_u32 v{RA}, {L_RING}, v{RA}")
    a.i(f"v_add_u32 v{RB}, {2*RING_W}, v{RA}")
    a.i(f"v_lshlrev_b32 v{SO}, 10, v{SO}")
    a.i(f"v_lshl_add_u32 v{SO}, v{t}, 4, v{SO}")
    a.i(f"s_lshl_b32 s10, s{S_G}, 16")
    a.i(f"s_lshl_b32 s11, s{S_MU}, 7")
    a.i("s_add_u32 s10, s10, s11")
    srd(a, SOUT, "out")

VV1, VV0, VG, T0, T1 = 1, 3, 4, 6, 7
Q, S, Pq, F, O = 8, 64, 96, 104, 128
KVS = [40, 52, 104, 116]
AST = 94
SKO, SKL, SIT, SSP, SKC, SKV = 62, 63, 64, 65, 66, 76
VW1K_A = 12

def wq_round(a, r):
    a.i(f"s_add_u32 s10, s9, {r << 17}")
    a.i("s_and_b32 s10, s10, 0x7ffff")
    a.i("s_add_u32 s11, s10, 16384")
    for e in range(2):
        a.i(f"s_add_u32 m0, s8, {r*16384 + e*2048}")
        wstep(a, VW1K_A, SWQ, 10+e, tag=("wq", r))

def kernel():
    a = Asm()
    if STAMP: a.i("s_memrealtime s[100:101]")
    a.i("s_cmp_ge_u32 s2, 256")
    a.i("s_cbranch_scc1 L_end")
    a.i("s_load_dwordx16 s[16:31], s[0:1], 0")
    a.i("s_load_dwordx8 s[32:39], s[0:1], 64")
    a.i("s_load_dwordx4 s[40:43], s[0:1], 96")
    a.i("s_getpc_b64 s[44:45]")
    a.label("L_pc")
    a.i("s_mov_b32 s46, L_code_end-L_pc")
    a.i("s_mov_b32 s47, 0x20000")
    a.i("s_lshr_b32 s7, s2, 3")
    a.i("s_lshl_b32 s6, s7, 11")
    a.i("v_lshlrev_b32 v1, 2, v0")
    if PRM["ctpos"] == 0: a.i(f"buffer_load_dword v255, v1, s[44:47], s6 offen{FL[PRM['ntc']]} ; touch")
    if PRM["ctpos"] == 1: a.i("v_lshlrev_b32 v3, 1, v1"); a.i("s_mov_b32 s14, s6")
    a.i("v_lshrrev_b32 v1, 6, v0")
    a.i("v_and_b32 v0, 63, v0")
    a.i(f"v_readfirstlane_b32 s{S_W}, v1")
    if PRM["gpx"] == 4:
        a.i("s_and_b32 s6, s2, 7")
        a.i(f"s_and_b32 s{S_MU}, s7, 7")
        a.i(f"s_lshr_b32 s{S_J}, s7, 3")
        a.i("s_lshl_b32 s6, s6, 2")
        a.i(f"s_add_u32 s{S_G}, s6, s{S_J}")
        a.i(f"s_lshl_b32 s{S_J}, s{S_J}, 1")
    else:
        a.i("s_and_b32 s6, s2, 1")
        a.i("s_lshl_b32 s6, s6, 2")
        a.i(f"s_and_b32 s{S_MU}, s7, 3")
        a.i(f"s_add_u32 s{S_MU}, s{S_MU}, s6")
        if PRM["par"] in (1, 2):
            a.i(f"s_mov_b32 s8, s{S_MU}")
            a.i("s_and_b32 s6, s7, 3")
            a.i("s_lshl_b32 s6, s6, 1")
            a.i(f"s_and_b32 s{S_MU}, s2, 1")
            if PRM["par"] == 2: a.i(f"s_xor_b32 s{S_MU}, s{S_MU}, 1")
            a.i(f"s_add_u32 s{S_MU}, s{S_MU}, s6")
        a.i(f"s_lshr_b32 s{S_J}, s7, 2")
        a.i("s_and_b32 s6, s2, 6")
        a.i("s_lshl_b32 s6, s6, 2")
        a.i(f"s_add_u32 s{S_G}, s6, s{S_J}")
    a.i(f"v_lshlrev_b32 v{VLIN}, 4, v0")
    a.i(f"s_cmp_ge_u32 s{S_W}, 4")
    a.i("s_cbranch_scc1 L_G")
    vm0 = list(a.vm)
    stamp_init(a, "A")
    if PRM["aprio"]: a.i("s_setprio 3")
    wchunk_addr(a, VW1K_A, 14, 1024)
    a.i(f"s_lshl_b32 s9, s{S_W}, 15")
    a.i(f"s_lshl_b32 s10, s{S_MU}, 7")
    a.i("s_add_u32 s9, s9, s10")
    a.i(f"s_lshl_b32 s10, s{S_J}, 16")
    a.i("s_add_u32 s9, s9, s10")
    a.i(f"s_lshl_b32 s8, s{S_W}, 12")
    a.i(f"s_add_u32 s8, s8, {L_WQ}")
    a.i("s_waitcnt lgkmcnt(0)")
    srd(a, SWQ, "wq")
    if PRM["wqt"]:
        a.i("s_lshl_b32 s10, s2, 2")
        a.i(f"s_add_u32 s10, s10, s{S_W}")
        a.i("s_lshl_b32 s10, s10, 9")
        a.i("s_mov_b32 exec_hi, 0")
        a.i(f"buffer_load_dwordx4 v[104:107], v{VLIN}, {R(SWQ)}, s10 offen")
        a.i("s_mov_b32 exec_hi, -1")
    if PRM["w1t"]:
        srd(a, SW1, "w1")
        a.i("s_lshl_b32 s10, s2, 2")
        a.i(f"s_add_u32 s10, s10, s{S_W}")
        a.i("s_mul_i32 s10, s10, 1792")
        a.i("v_lshlrev_b32 v14, 6, v0")
        a.i("s_mov_b64 exec, 0xfffffff")
        a.i(f"buffer_load_dword v108, v14, {R(SW1)}, s10 offen")
        a.i("s_mov_b64 exec, -1")
    if not PRM["wqlate"]: wq_round(a, 0)
    if PRM["ctpos"] == 1: a.i("buffer_load_dwordx2 v[104:105], v3, s[44:47], s14 offen ; touch")
    vmA = list(a.vm)
    if PRM["aprio"]: a.i("s_setprio 0")
    a.i("s_branch L_A")
    a.label("L_G")
    a.i(f"s_mov_b32 s62, s{8 if PRM['par'] in (1, 2) and PRM['gpx'] == 8 else S_MU}")
    stamp_init(a, "G")
    if STAMP: a.i("s_waitcnt lgkmcnt(0)"); a.i("s_mov_b32 s26, -1")
    a.vm = list(vm0)
    VGE, VXE, VXO = 8, 9, 10
    a.i("v_bfe_u32 v14, v0, 4, 2")
    a.i("v_and_b32 v15, 7, v0")
    a.i("v_xor_b32 v14, v14, v15")
    a.i(f"v_lshlrev_b32 v{VGE}, 4, v14")
    a.i("v_lshrrev_b32 v14, 3, v0")
    a.i(f"s_sub_u32 s6, s{S_W}, 4")
    a.i(f"s_add_u32 s12, s62, s6")
    a.i("s_and_b32 s12, s12, 3")
    a.i(f"s_lshl_b32 s7, s{S_G}, 2")
    a.i("s_add_u32 s7, s7, s12")
    a.i("s_lshl_b32 s7, s7, 4")
    a.i("v_add_u32 v14, s7, v14")
    a.i(f"v_lshl_add_u32 v{VXE}, v14, 10, v{VGE}")
    a.i(f"v_xor_b32 v{VXO}, 64, v{VXE}")
    a.i(f"v_add_u32 v{VXO}, {8192-1024}, v{VXO}")
    a.i("s_lshl_b32 s10, s12, 11")
    a.i(f"s_lshl_b32 s11, s{S_J}, 7")
    a.i(f"s_lshl_b32 s9, s{S_J}, 11")
    a.i("s_setprio 2")
    a.i("s_cmp_lg_u32 s6, 0")
    a.i("s_cbranch_scc1 L_G123")
    vmG = list(a.vm)
    g0_front(a, VXE, VXO)
    a_waves(a, vmA)
    g_waves(a, VGE, VXE, VXO, vmG)
    a.label("L_end")
    a.i("s_endpgm")
    a_slow(a)
    a.label("L_code_end")
    return a.finish()

GW, GSP = 6, 99
def pair_of(a, d): a.i(f"s_and_b32 s{d}, s{S_MU}, 3" if PRM["par"] == 3 else f"s_lshr_b32 s{d}, s{S_MU}, 1")
def role_of(a, d): a.i(f"s_lshr_b32 s{d}, s{S_MU}, 2" if PRM["par"] == 3 else f"s_and_b32 s{d}, s{S_MU}, 1")
def kv_addr(a):
    a.i(f"s_and_b32 s7, s62, 3")
    a.i(f"s_cmp_ge_u32 s62, 4")
    a.i("s_cselect_b32 s8, 8, 9")
    a.i("s_cselect_b32 s13, 9, 8")
    a.i("s_cselect_b32 s60, 1024, 0")
    a.i("s_and_b32 s61, s7, 1")
    a.i("s_lshl_b32 s61, s61, s13")
    a.i("s_add_u32 s60, s60, s61")
    a.i(f"s_lshl_b32 s61, s{S_G}, 1")
    a.i("s_lshr_b32 s13, s7, 1")
    a.i("s_add_u32 s61, s61, s13")
    a.i(f"s_mul_i32 s61, s61, {TS}")
    a.i("s_add_u32 s60, s60, s61")
    a.i("v_bfe_u32 v15, v0, 4, 1")
    a.i("v_lshlrev_b32 v15, s8, v15")
    a.i("v_and_b32 v24, 15, v0")
    a.i("v_lshl_add_u32 v23, v24, 4, v15")
def g0_front(a, VXE, VXO):
    if not PRM["aprio"]: a.i("s_setprio 3")
    kv_addr(a)
    a.i("v_cmp_gt_u32 vcc, 32, v0")
    a.i("v_mov_b32 v36, 0x3f803f80")
    a.i("s_sub_u32 s13, s61, s60")
    a.i("s_add_u32 s13, s13, 2048")
    a.i("v_mov_b32 v37, s13")
    a.i("v_cndmask_b32 v38, v37, v23, vcc")
    for r in range(32, 36): a.i(f"v_cndmask_b32 v{r}, v36, -1, vcc")
    a.i(f"s_lshr_b32 s8, s62, 2")
    a.i("s_lshl_b32 s8, s8, 1")
    a.i("s_and_b32 s7, s7, 1")
    a.i("s_add_u32 s8, s8, s7")
    a.i("s_lshl_b32 s8, s8, 2")
    a.i("s_add_u32 s61, s61, s8")
    a.i(f"s_mov_b32 s8, {WS_NONCE}")
    a.i("s_waitcnt lgkmcnt(0)")
    srd(a, SWS, "ws")
    a.i(f"buffer_load_dword v40, off, {R(SWS)}, s8 sc1")
    a.i(f"buffer_store_dwordx4 v[32:35], v38, {R(SWS)}, s60 offen sc1", tag="mark")
    srd(a, SX, "x")
    a.i(f"s_cmp_ge_u32 s62, 4")
    a.i(f"s_cselect_b32 s{SWKV}, s{P['wv']}, s{P['wk']}")
    a.i(f"s_cselect_b32 s{SWKV+1}, s{P['wv']+1}, s{P['wk']+1}")
    a.i(f"s_mov_b32 s{SWKV+2}, 16384")
    a.i(f"s_mov_b32 m0, {L_WKV}")
    a.i(f"s_mov_b32 s{SWKV+3}, 0x20000")
    def wpair(q):
        if q:
            a.i(f"s_mov_b32 m0, {L_WKV + q*2048}")
            a.i("s_add_u32 s9, s9, 2048")
            a.i("s_and_b32 s9, s9, 0x3fff")
        for i in range(2):
            a.i(f"buffer_load_dwordx4 v{VLIN}, {R(SWKV)}, s9 offen offset:{i*1024}{FL[PRM['ntk'] if q < 2 else 0]} lds", tag=("wk", 2*q+i))
    if PRM["g0d"]: a.i(f"s_sleep {PRM['g0d']}")
    wpair(0)
    xpairs(a, VXE, VXO, 10, 11, lambda sl: ("x", sl))
    for r in range(36, 40): a.i(f"v_mov_b32 v{r}, 0")
    a.i(f"v_mov_b32 v14, {L_CNT}")
    a.i("ds_write_b128 v14, v[36:39]")
    a.i("ds_write_b128 v14, v[36:39] offset:16")
    a.i("ds_write_b128 v14, v[36:39] offset:32")
    if PRM["aprio"]: a.i("s_setprio 3")
    a.wait(vm="mark")
    a.i("v_add_u32 v40, 0x9e3779b9, v40")
    a.i("s_mov_b64 exec, 1")
    a.i(f"buffer_store_dword v40, off, {R(SWS)}, s61 offset:{2048+128} sc1")
    a.i(f"ds_write_b32 v14, v40 offset:{C_T}")
    a.i("s_mov_b64 exec, -1")
    wpair(1)
    srd(a, SGT, "gate")
    a.i(f"s_lshl_b32 s8, s{S_J}, 7")
    a.i(f"v_add_u32 v14, s8, v{VLIN}")
    a.i(f"s_mov_b32 m0, {L_GW}")
    a.i("v_and_b32 v14, 0x3ff, v14")
    a.i(f"buffer_load_dwordx4 v14, {R(SGT)}, 0 offen lds")
    for q in range(2, 8): wpair(q)
    if "fst" in OPT: stamp(a, 16, 14)
    a.i("s_waitcnt lgkmcnt(0)"); a.lg = []
    a.i("s_barrier")
    XA, TA = 20, 22
    a.i("v_bfe_u32 v14, v0, 1, 3")
    a.i("v_lshrrev_b32 v15, 4, v0")
    a.i("v_xor_b32 v14, v14, v15")
    a.i("v_and_b32 v24, 15, v0")
    a.i("s_lshl_b32 s7, s12, 4")
    a.i("v_add_u32 v25, s7, v24")
    a.i("v_lshlrev_b32 v25, 7, v25")
    a.i(f"v_lshl_add_u32 v{XA}, v14, 4, v25")
    a.i(f"v_xor_b32 v{XA+1}, 64, v{XA}")
    a.i("v_bfe_u32 v14, v0, 2, 2")
    a.i("v_lshl_add_u32 v14, v15, 3, v14")
    a.i(f"v_lshlrev_b32 v{TA}, 5, v14")
    a.i("v_and_b32 v14, 3, v0")
    a.i(f"v_lshl_add_u32 v{TA}, v14, 3, v{TA}")
    a.i(f"v_add_u32 v{TA}, {L_WKV}, v{TA}")
    a.i(f"s_mov_b32 s{GSP}, {SPIN}")
    for r in range(34, 36): a.i(f"v_mov_b32 v{r}, 0")
    a.i(f"v_mov_b32 v14, {L_CNT}")
    a.i("v_mov_b32 v15, 1")
    a.i(f"s_cmp_ge_u32 s62, 4")
    a.i("s_cbranch_scc1 L_G0_V")
    vm1 = list(a.vm); lg1 = list(a.lg)
    for orient in range(2):
        if orient:
            a.label("L_G0_V"); a.vm = list(vm1); a.lg = list(lg1)
        NB_ = 4
        def rd(sx):
            b = 64 + 8*(sx % NB_)
            a.wait(vm=[("wk", sx), ("x", sx >> 1)])
            if "fst" in OPT and sx in (0, 4): stamp(a, 17 + sx//4, 14)
            if sx == 4: cnt_add(a, 14, 15, 0)
            a.i(f"ds_read_b64_tr_b16 {v(b,2)}, v{TA} offset:{sx*1024}")
            a.i(f"ds_read_b64_tr_b16 {v(b+2,2)}, v{TA} offset:{sx*1024+128}")
            a.i(f"ds_read_b128 {v(b+4,4)}, v{XA + (sx&1)} offset:{(sx>>1)*8192}", tag=("c", sx))
        for sx in range(NB_): rd(sx)
        for sx in range(16):
            a.wait(lg=("c", sx))
            b = 64 + 8*(sx % NB_)
            mfma16(a, 28, *((b, b+4) if orient == 0 else (b+4, b)), "0" if sx == 0 else None)
            if sx + NB_ < 16: rd(sx + NB_)
        if orient == 0: a.i("s_branch L_G0_pub")
    a.label("L_G0_pub")
    cnt_add(a, 14, 15, 12)
    stamp(a, 15, 250)
    if PRM["kscale"]:
        a.i("s_cmp_ge_u32 s62, 4")
        a.i(f"s_cselect_b32 s8, 1.0, {f2u(QSCALE):#x}")
        a.i("s_nop 2")
        for r in range(28, 32): a.i(f"v_mul_f32 v{r}, s8, v{r}")
    else: a.i("s_nop 1")
    a.i("v_cvt_pk_bf16_f32 v32, v28, v29")
    a.i("v_cvt_pk_bf16_f32 v33, v30, v31")
    a.i("v_min_u32 v32, -2, v32")
    a.i("s_nop 0")
    a.i("v_permlane32_swap_b32 v33, v35")
    a.i("v_permlane32_swap_b32 v32, v34")
    a.i("s_mov_b32 exec_hi, 0")
    a.i(f"buffer_store_dwordx4 v[32:35], v23, {R(SWS)}, s60 offen sc1")
    a.i("s_mov_b32 exec_hi, -1")
    stamp(a, 8, 14)
    g_setup(a)
    a.i("s_setprio 2")
    if PRM["w1pos"] != 3: g_w1first(a, "L_G0_now1")
    a.i("s_branch L_G_ffn1")

def kvload(a, st, so=SKO, off=0, SWS=SKV):
    b = KVS[st]
    return [
        lambda: a.i(f"buffer_load_dwordx4 {v(b,4)}, v{VLIN}, {R(SWS)}, s{so} offen offset:{off} sc1", tag=("kv", st)),
        lambda: a.i(f"buffer_load_dwordx4 {v(b+4,4)}, v{VV0}, {R(SWS)}, s{so} offen offset:{off+1024} sc1", tag=("kv", st)),
        lambda: a.i(f"buffer_load_dwordx4 {v(b+8,4)}, v{VV1}, {R(SWS)}, s{so} offen offset:{off+1024} sc1", tag=("kv", st))]
def kvfirstcheck(a):
    b0 = KVS[0]
    a.i(f"v_max3_u32 v{T0}, v{b0}, v{b0+4}, v{b0+8}")
    if PRM["chk3"]:
        b1, b2 = KVS[1:3]
        a.i(f"v_max3_u32 v{T1}, v{b1}, v{b1+4}, v{b1+8}")
        a.i(f"v_max3_u32 v{T0}, v{T0}, v{b2}, v{b2+4}")
        a.i(f"v_max3_u32 v{T0}, v{T0}, v{T1}, v{b2+8}")
    a.i(f"v_max_u32 v{T0}, v{T0}, v{KVS[3]+1}")
    a.i(f"v_cmp_eq_u32 vcc, -1, v{T0}")
def kvfirst(a):
    run(a, kvload(a, 0, SKC))
    a.i(f"buffer_load_dword v{KVS[3]+1}, v{KVS[3]}, {R(SWS)}, s{SKC} offen sc1", tag="sweep")
    run(a, kvload(a, 1, SKC, TS)); run(a, kvload(a, 2, SKO))

def attn_slot(a, i, prv, cur, nxt, extra, last=False):
    Sc = S + 16*(i & 1); Sn = S + 16*((i+1) & 1)
    e = lambda r: a.i(f"v_exp_f32 v{Sc+r}, v{Sc+r}")
    c = lambda j: a.i(f"v_cvt_pk_bf16_f32 v{Pq+j}, v{Sc+2*j}, v{Sc+2*j+1}")
    ex = lambda k: run(a, extra.get(k, []))
    e(0); e(1)
    mfma(a, O + 16*((i - 1) % 8), (cur if i > 0 else prv) + 8, Pq + 4)
    ex(0)
    for r in range(2, 7): e(r)
    ex("pre1")
    if not (last and i == 7): mfma(a, Sn, cur if i < 7 else nxt, Q + 4*((i + 1) % 8), "0")
    ex(1)
    e(7)
    for j in range(4): c(j)
    e(8); e(9)
    mfma(a, O + 16*i, cur + 4, Pq)
    ex(2)
    for r in range(10, 16): e(r)
    for j in range(4, 8): c(j)

def a_waves(a, vmA):
    VXR, VTR, VC = 88, 92, 93
    a.label("L_A")
    a.vm = list(vmA); a.lg = []
    if PRM["apf"]:
        srd(a, SW1, "w1")
        wchunk_addr(a, 16, 14, 3584)
        a.i(f"s_lshr_b32 s12, s{S_MU}, 1")
        a.i("s_mul_i32 s12, s12, 7")
        a.i(f"s_and_b32 s13, s{S_MU}, 1")
        a.i("s_lshl_b32 s13, s13, 2")
        a.i("s_add_u32 s12, s12, s13")
        a.i("s_lshl_b32 s12, s12, 7")
        a.i(f"s_lshl_b32 s13, s{S_J}, 2")
        a.i(f"s_add_u32 s13, s13, s{S_W}")
        a.i(f"s_mul_i32 s13, s13, {16*3584}")
        a.i("s_add_u32 s12, s12, s13")
    assert not PRM["apf"]
    srd(a, SWS, "ws")
    xfrag_addr(a, VXR, 14, 15)
    tr_addr(a, VTR, 14, 15, 8)
    a.i(f"s_and_b32 s6, s{S_W}, 1")
    a.i(f"s_lshr_b32 s7, s{S_W}, 1")
    a.i("s_lshl_b32 s12, s6, 6")
    a.i(f"v_xor_b32 v{VTR}, s12, v{VTR}")
    a.i(f"v_add_u32 v{VTR}, {L_WQ}, v{VTR}")
    a.i("s_lshl_b32 s12, s7, 12")
    for q in range(4): a.i(f"v_add_u32 v{VXR+q}, s12, v{VXR+q}")
    a.i(f"v_and_b32 v{T0}, 15, v0")
    a.i(f"v_lshrrev_b32 v{T1}, 5, v0")
    a.i(f"v_lshlrev_b32 v{T1}, 8, v{T1}")
    a.i(f"v_lshl_add_u32 v{VV0}, v{T0}, 4, v{T1}")
    a.i(f"v_add_u32 v{VV1}, 512, v{VV0}")
    a.i(f"v_and_b32 v{T0}, 27, v0")
    a.i(f"v_cmp_eq_u32 vcc, 16, v{T0}")
    a.i(f"v_mov_b32 v{T1}, {BIG:#x}")
    a.i("v_mov_b32 v14, 1024")
    a.i(f"v_cndmask_b32 v{T1}, v{T1}, v14, vcc")
    a.i(f"v_and_b32 v{T0}, 16, v0")
    a.i(f"v_cmp_eq_u32 vcc, 0, v{T0}")
    a.i(f"s_mul_i32 s{SKC}, s{S_W}, {16*TS}")
    a.i(f"s_add_u32 s{SKO}, s{SKC}, {2*TS}")
    a.i(f"v_cndmask_b32 v{VV0}, v{T1}, v{VV0}, vcc")
    a.i(f"v_cndmask_b32 v{VV1}, v{T1}, v{VV1}, vcc")
    srd(a, SKV, "ws")
    a.i(f"s_add_u32 s{SKV+2}, s{SKC}, {16*TS}")
    a.i(f"s_mov_b32 s{SSP}, {SPIN}")
    a.i(f"v_mov_b32 v{VC}, {L_CNT}")
    for r in range(4, 8): a.i(f"v_mov_b32 v{Pq+r}, 0")
    for r in range(8, 12): a.i(f"v_mov_b32 v{KVS[3]+r}, 0")
    for r in range(127): a.i(f"v_mov_b32 v{O+r}, 0")
    a.i(f"v_lshrrev_b32 v{VG}, 2, v0")
    a.i(f"v_mul_u32_u24 v{VG}, {TS}, v{VG}")
    a.i(f"v_and_b32 v{VG+1}, 3, v0")
    a.i(f"v_bfe_u32 v14, v0, 1, 1")
    a.i(f"v_lshl_add_u32 v{KVS[3]}, v14, 10, v{VG}")
    a.i(f"v_add_u32 v14, 8, v14")
    a.i(f"v_and_b32 v15, 1, v0")
    a.i(f"v_lshlrev_b32 v15, v14, v15")
    a.i(f"v_add_u32 v{KVS[3]}, v{KVS[3]}, v15")
    a.i(f"v_subrev_u32 v14, 4, v0")
    a.i(f"v_cmp_gt_u32 vcc, {4*PRM['nsw']}, v14")
    a.i(f"v_mov_b32 v15, {BIG:#x}")
    a.i("s_nop 0")
    a.i(f"v_cndmask_b32 v{KVS[3]}, v15, v{KVS[3]}, vcc")
    a.i(f"v_lshl_add_u32 v{VG}, v{VG+1}, 2, v{VG}")
    a.i(f"v_add_u32 v{VG}, {2048 + 128}, v{VG}")
    QWA, QRA = 95, 96
    a.i("s_lshl_b32 s8, s6, 12")
    a.i("s_lshl_b32 s9, s7, 10")
    a.i("s_add_u32 s8, s8, s9")
    a.i(f"s_add_u32 s8, s8, {L_QF}")
    a.i(f"v_add_u32 v{QWA}, s8, v{VLIN}")
    a.i(f"s_mov_b32 s52, {f2u(QSCALE):#x}")
    for k in range(4):
        a.i(f"s_add_u32 s8, s{S_W}, {k+1}")
        a.i("s_and_b32 s8, s8, 3")
        a.i("s_lshl_b32 s8, s8, 11")
        a.i(f"s_add_u32 s8, s8, {L_QF}")
        a.i(f"v_add_u32 v{QRA+k}, s8, v{VLIN}")
    a.i(f"s_lshl_b32 s53, s{S_G}, 5")
    a.i(f"s_lshl_b32 s9, s{S_MU}, 2")
    a.i("s_add_u32 s53, s53, s9")
    a.i(f"s_add_u32 s53, s53, s{S_W}")
    a.i("s_lshl_b32 s53, s53, 11")
    a.i(f"s_add_u32 s53, s53, {WS_O}")
    a.i(f"s_mov_b32 s80, {f2u(2.0**-30):#x}")
    a.i(f"s_mov_b32 s81, {f2u(2.0**100):#x}")
    a.i("s_barrier")
    if PRM["wqlate"]: wq_round(a, 0)
    a.i(f"ds_read_b32 v{T0}, v{VC} offset:{C_T}")
    a.i(f"v_mov_b32 v{T1}, 1")
    a.i("s_waitcnt lgkmcnt(0)"); a.lg = []
    a.i(f"v_readfirstlane_b32 s{S_TAG}, v{T0}")
    a.wait(vm=("wq", 0))
    cnt_add(a, VC, T1, 0)
    a.i(f"v_mov_b32 v{O+127}, 0")
    a.i(f"s_setprio {PRM['qprio']}")
    cnt_wait(a, VC, T0, 0, CT[0], "L_k0", 8)
    stamp(a, 1, AST)
    def tagcheck():
        a.wait(vm="tag")
        a.i(f"v_cmp_ne_u32 vcc, s{S_TAG}, v{VG+1}")
        a.i("s_cbranch_vccnz L_tagr")
        a.label("L_tag_ok")
        stamp(a, 3, AST)
        a.vm = []
        kvfirst(a)
        if PRM["w1pos"] == 3 and PRM["ckpos"]: cnt_add(a, VC, T1, C_K)
    FRS = [8, 16, 24, 32, 40]; NB_ = PRM["qnb"]
    assert NB_ == 4 or PRM["kvat"] >= 32
    def rd(sx):
        b = FRS[sx % NB_]
        a.i(f"ds_read_b64_tr_b16 {v(b,2)}, v{VTR} offset:{sx*2048}")
        a.i(f"ds_read_b64_tr_b16 {v(b+2,2)}, v{VTR} offset:{sx*2048+512}")
        a.i(f"ds_read_b128 {v(b+4,4)}, v{VXR + (sx&3)} offset:{(sx>>2)*8192}", tag=("c", sx))
    for sx in range(NB_-1): rd(sx)
    for sx in range(32):
        nx = sx + NB_ - 1
        if nx < 32 and nx % 8 == 8 - NB_ and nx < 24: a.i(f"ds_read_b32 v{T0}, v{VC} offset:{4*(nx//8 + 1)}")
        if nx < 32 and nx % 8 == 0:
            a.i(f"v_readfirstlane_b32 s8, v{T0}")
            a.i(f"s_cmp_ge_u32 s8, {CT[nx//8]}")
            a.i(f"s_cbranch_scc0 L_k{nx//8}")
            a.label(f"L_k{nx//8}_ok")
        if nx < 32: rd(nx)
        if sx == PRM["tagat"]: a.i(f"buffer_load_dword v{VG+1}, v{VG}, {R(SWS)}, s{SKC} offen sc1", tag="tag")
        if sx == PRM["kvat"]: tagcheck()
        a.wait(lg=("c", sx))
        b = FRS[sx % NB_]
        mfma(a, S, b, b+4, "0" if sx == 0 else None)
    stamp(a, 2, AST)
    if PRM["kvat"] == 32: tagcheck()
    for r in range(0 if PRM["kscale"] else 16): a.i(f"v_mul_f32 v{S+r}, s52, v{S+r}")
    for j in range(8): a.i(f"v_cvt_pk_bf16_f32 v{80+j}, v{S+2*j}, v{S+2*j+1}")
    for e in range(2): a.i(f"ds_write_b128 v{QWA}, {v(80+4*e,4)} offset:{2048*e}")
    cnt_add(a, VC, T1, C_Q)
    if PRM["kvat"] == 33: tagcheck()
    def qreads():
        for i in range(8): a.i(f"ds_read_b128 {v(Q+4*i,4)}, v{QRA + (i>>1)} offset:{1024*(i&1)}")
    cnt_wait(a, VC, VTR, C_Q, 4, "L_qwait", 8, qreads)
    if PRM["kvat"] == 34: tagcheck()
    a.i(f"v_mov_b32 v{VG}, v{VC}")
    a.i(f"v_mov_b32 v{VG+1}, 1")
    a.wait(vm="all" if PRM["chk3"] else "sweep")
    kvfirstcheck(a)
    a.i("s_cbranch_vccnz L_kvr_first")
    a.label("L_kv_first_ok")
    if PRM["w1pos"] == 3 and not PRM["ckpos"]: cnt_add(a, VG, VG+1, C_K)
    if PRM["await"]:
        a.i("s_setprio 0")
        a.label("L_aw")
        a.i("s_sleep 2")
        cnt_wait(a, VG, T0, C_F, PRM["await"], "L_aw1", 8)
        a.ins[-1] = Ins("    s_cbranch_scc0 L_aw")
    stamp(a, 4, AST)
    mfma(a, S, KVS[0], Q, "0")
    a.i(f"s_setprio {PRM['ap']}")
    a.i(f"s_mov_b32 s{SIT}, 4")
    a.i("s_nop 8")
    a.i("s_branch L_attn_in")
    def tile(t, last=False):
        prv, cur, nxt = (t-1) % 4, t, (t+1) % 4
        ld = kvload(a, prv)
        XA = KVS[2]
        for i in range(8):
            extra = {}
            if not last:
                if i == 0: extra = {0: [f"s_add_u32 s{SKO}, s{SKO}, {TS}"], 1: [ld[0]], 2: [ld[1]]}
                if i == 1: extra = {0: [ld[2]]}
                if i == 7:
                    extra = {0: [lambda: a.wait(vm=("kv", nxt))]}
                    if t == 2:
                        extra[1] = [f"s_sub_u32 s{SIT}, s{SIT}, 1"]; extra[2] = [f"s_cmp_lg_u32 s{SIT}, 0"]
                if t == 2 and i == 5: extra = {0: [f"ds_read_b32 v{VG+1}, v{VG} offset:{C_F}"]}
                if t == 2 and i == 6: extra = {0: ["s_waitcnt lgkmcnt(0)"]}
            elif i >= 2:
                j = i - 2; k = j >> 1; o = k*XK + (j & 1)*2048
                extra = {0: [f"ds_write_b128 v{XA+k}, {v(O+16*j,4)} offset:{o}"],
                         1: [f"ds_write_b128 v{XA+k}, {v(O+16*j+4,4)} offset:{o+1024}"]}
                if j & 1: extra[2] = [f"ds_write2st64_b32 v{XA+3+k}, v{O+16*j-8}, v{O+16*j+8} offset0:{k*XK//256} offset1:{k*XK//256+1}"]
            attn_slot(a, i, KVS[prv], KVS[cur], KVS[nxt], extra, last)
    a.raw(f".p2align {PRM['al']}")
    for _ in range(PRM["sh"]): a.raw("    s_nop 0")
    a.label("L_attn_loop")
    a.vm = [("kv", 0)]*3 + [("kv", 1)]*3; a.lg = []
    tile(3)
    a.label("L_attn_in")
    for t in range(3): tile(t)
    a.i("s_cbranch_scc1 L_attn_loop")
    a.lg = []
    a.i(f"v_readfirstlane_b32 s8, v{VG+1}")
    XA = KVS[2]
    a.i(f"v_lshlrev_b32 v{T1}, 2, v0")
    for k in range(3):
        a.i(f"s_add_u32 s9, s{S_W}, {k+1}")
        a.i("s_and_b32 s9, s9, 3")
        a.i(f"s_mul_i32 s9, s9, {XO}")
        a.i(f"v_add_u32 v{XA+k}, s9, v{VLIN}")
        a.i("s_add_u32 s9, s9, 4096")
        a.i(f"v_add_u32 v{XA+3+k}, s9, v{T1}")
    a.i("s_cmp_ge_u32 s8, 4")
    a.i("s_cbranch_scc0 L_xwait")
    a.label("L_xok")
    tile(3, last=True)
    a.i(f"s_mul_i32 s9, s{S_W}, {XO}")
    a.i(f"v_add_u32 v{XA}, s9, v{VLIN}")
    mfma(a, O + 16*7, KVS[3] + 8, Pq + 4)
    a.i("s_add_u32 s9, s9, 4096")
    a.i(f"v_add_u32 v{XA+1}, s9, v{T1}")
    a.i(f"v_and_b32 v{T1}, 31, v0")
    a.i(f"v_lshlrev_b32 v{T1}, 2, v{T1}")
    a.i(f"v_add_u32 v{T1}, {L_G}, v{T1}")
    a.i("s_waitcnt lgkmcnt(0)"); a.lg = []
    stamp(a, 5, AST)
    a.i("s_barrier")
    a.i("s_setprio 3")
    LL = O + 16*5 + 10
    for rh in range(2):
        for k in range(3):
            o = k*XK + rh*2048; d = O + 16*(rh*3 + k)
            a.i(f"ds_read_b128 {v(d,4)}, v{XA} offset:{o}")
            a.i(f"ds_read_b128 {v(d+4,4)}, v{XA} offset:{o+1024}", tag=("x", rh, k))
        if rh == 0:
            for k in range(3): a.i(f"ds_read2st64_b32 {v(LL+2*k,2)}, v{XA+1} offset0:{k*XK//256} offset1:{k*XK//256+1}")
            a.i(f"ds_read2_b32 {v(VG,2)}, v{T1} offset0:0 offset1:32", tag="l")
    for rh in range(2):
        f = O + 16*(6 + rh); d = O + 48*rh
        a.wait(lg=("x", rh, 1))
        for r in range(0, 8, 2): a.i(f"v_pk_add_f32 {v(d+r,2)}, {v(d+r,2)}, {v(d+16+r,2)}")
        a.wait(lg=("x", rh, 2))
        for r in range(0, 8, 2): a.i(f"v_pk_add_f32 {v(f+r,2)}, {v(f+r,2)}, {v(d+32+r,2)}")
        if rh == 0:
            a.wait(lg="l")
            a.i(f"v_pk_add_f32 {v(LL,2)}, {v(LL,2)}, {v(LL+2,2)}")
            a.i(f"v_pk_add_f32 {v(LL,2)}, {v(LL,2)}, {v(LL+4,2)}")
        a.i(f"v_add_f32 v{f+8}, v{f+8}, v{LL+rh}")
        for r in range(0, 8, 2): a.i(f"v_pk_add_f32 {v(f+r,2)}, {v(f+r,2)}, {v(d+r,2)}")
        a.i(f"v_pk_mul_f32 {v(T0,2)}, {v(f,2)}, 0 op_sel_hi:[1,0]")
        a.i(f"v_cmp_le_f32 s[54:55], s80, v{f+8}")
        a.i(f"v_cmp_ge_f32 s[56:57], s81, v{f+8}")
        for r in range(2, 8, 2): a.i(f"v_pk_fma_f32 {v(T0,2)}, {v(f+r,2)}, 0, {v(T0,2)} op_sel_hi:[1,0,1]")
        a.i("s_and_b64 s[54:55], s[54:55], s[56:57]")
        a.i(f"v_cmp_o_f32 vcc, v{T0}, v{T1}")
        a.i(f"v_rcp_f32 v{T0}, v{f+8}")
        a.i("s_and_b64 s[54:55], s[54:55], vcc")
        a.i("s_cmp_eq_u64 s[54:55], -1")
        a.i(f"s_cbranch_scc0 L_slow{rh}")
        a.label(f"L_ok{rh}")
        a.i(f"v_mul_f32 v{T0}, v{T0}, v{VG+rh}")
        for r in range(0, 8, 2): a.i(f"v_pk_mul_f32 {v(f+r,2)}, {v(f+r,2)}, {v(T0,2)} op_sel_hi:[1,0]")
        for j in range(4): a.i(f"v_cvt_pk_bf16_f32 v{S+4*rh+j}, v{f+2*j}, v{f+2*j+1}")
        a.i(f"v_min_u32 v{S+4*rh}, -2, v{S+4*rh}")
        a.i(f"buffer_store_dwordx4 {v(S+4*rh,4)}, v{VLIN}, {R(SWS)}, s53 offen offset:{1024*rh} sc1")
    if PRM["b3b"]: a.i("s_barrier")
    stamp(a, 6, AST)
    a.i("s_setprio 0")
    final_addr(a, 8)
    a.i("s_waitcnt vmcnt(0)"); a.vm = []
    a.i("s_barrier")
    final_stage(a, 8)
    stamp(a, 7, AST)
    stamp_dump(a, "A")
    a.i("s_endpgm")
    a.label("L_kvr_first")
    a.i(f"s_sub_u32 s{SSP}, s{SSP}, 1")
    a.i(f"s_cbranch_scc1 L_kv_first_ok")
    a.i("s_waitcnt vmcnt(0)"); a.vm = []
    kvfirst(a)
    a.wait(vm="all" if PRM["chk3"] else "sweep")
    kvfirstcheck(a)
    a.i("s_cbranch_vccz L_kv_first_ok")
    a.i("s_branch L_kvr_first")
    a.label("L_tagr")
    a.i("s_sleep 4")
    a.i(f"buffer_load_dword v{VG+1}, v{VG}, {R(SWS)}, s{SKC} offen sc1")
    a.i("s_waitcnt vmcnt(0)"); a.vm = []
    a.i(f"v_cmp_ne_u32 vcc, s{S_TAG}, v{VG+1}")
    a.i("s_cbranch_vccz L_tag_ok")
    spin_tail(a, SSP, "L_tagr", "L_tag_ok")
    cnt_wait(a, VG, VG+1, C_F, 4, "L_xwait", 8)
    a.i("s_branch L_xok")
    for q in range(1, 4):
        cnt_wait(a, VC, T0, 4*q, CT[q], f"L_k{q}", 8)
        a.i(f"s_branch L_k{q}_ok")

def a_slow(a):
    KV = KVS[0]
    for rh in range(2):
        f = O + 16*(6 + rh); q = Q + 4*(6 + rh)
        SS, CC, OO, PP = S + 16, KVS[2], O, Pq
        a.label(f"L_slow{rh}")
        if STAMP: a.i(f"s_sub_u32 s{SSP}, s{SSP}, 1000")
        a.i("s_waitcnt vmcnt(0)" + (" lgkmcnt(0)" if rh == 0 else ""))
        a.i(f"s_mov_b32 s{SKO}, {WS_KV}")
        a.i(f"v_mov_b32 v{T1}, 0xff800000")
        a.label(f"L_slow{rh}_a")
        run(a, kvload(a, 0, SWS=SWS))
        a.i("s_waitcnt vmcnt(0)")
        a.i(f"v_max3_u32 v{T0}, v{KV}, v{KV+4}, v{KV+8}")
        a.i(f"v_cmp_eq_u32 vcc, -1, v{T0}")
        a.i(f"s_cbranch_vccz L_slow{rh}_c")
        spin_tail(a, SSP, f"L_slow{rh}_a", f"L_slow{rh}_c")
        a.label(f"L_slow{rh}_c")
        mfma(a, SS, KV, q, "0")
        a.i("s_nop 15")
        for r in range(0, 16, 2): a.i(f"v_max3_f32 v{T1}, v{T1}, v{SS+r}, v{SS+r+1}")
        a.i(f"s_add_u32 s{SKO}, s{SKO}, {TS}")
        a.i(f"s_cmp_lt_u32 s{SKO}, {WS_KV + 64*TS}")
        a.i(f"s_cbranch_scc1 L_slow{rh}_a")
        a.i(f"v_mov_b32 v{T0}, v{T1}")
        a.i("s_nop 1")
        a.i(f"v_permlane32_swap_b32 v{T0}, v{T1}")
        a.i(f"v_max_f32 v{T1}, v{T0}, v{T1}")
        for r in range(16):
            a.i(f"v_sub_f32 v{CC+r}, 0, v{T1}")
            a.i(f"v_mov_b32 v{OO+r}, 0")
        a.i(f"s_mov_b32 s{SKO}, {WS_KV}")
        a.label(f"L_slow{rh}_b")
        run(a, kvload(a, 0, SWS=SWS))
        a.i("s_waitcnt vmcnt(0)")
        mfma(a, SS, KV, q, v(CC, 16))
        a.i("s_nop 15")
        for r in range(16): a.i(f"v_exp_f32 v{SS+r}, v{SS+r}")
        a.i("s_nop 0")
        for j in range(8): a.i(f"v_cvt_pk_bf16_f32 v{PP+j}, v{SS+2*j}, v{SS+2*j+1}")
        a.i("s_nop 1")
        mfma(a, OO, KV + 4, PP)
        mfma(a, OO, KV + 8, PP + 4)
        a.i("s_nop 15")
        a.i(f"s_add_u32 s{SKO}, s{SKO}, {TS}")
        a.i(f"s_cmp_lt_u32 s{SKO}, {WS_KV + 64*TS}")
        a.i(f"s_cbranch_scc1 L_slow{rh}_b")
        for r in range(9): a.i(f"v_mov_b32 v{f+r}, v{OO+r}")
        a.i(f"v_rcp_f32 v{T0}, v{f+8}")
        a.i("s_nop 1")
        a.i(f"s_branch L_ok{rh}")
    a.vm = []; a.lg = []

VW35, VW1K, VSW, GVC, VGG = 4, 6, 3, 12, 12
VTR_G, VTRP, VST = 224, 226, 228
VXR_G, BA1, ONE = 16, 20, 28
ACC, WF, XF, PRE, PD = 64, 32, 48, 128, 12
def g_setup(a):
    srd(a, SW1, "w1"); srd(a, SB1, "b1")
    wchunk_addr(a, VW35, 14, 3584)
    wchunk_addr(a, VW1K, 14, 1024)
    pair_of(a, 12)
    a.i("s_mul_i32 s12, s12, 7")
    role_of(a, 9)
    a.i("s_lshl_b32 s9, s9, 2")
    a.i(f"s_add_u32 s13, s9, s{GW}")
    a.i("s_add_u32 s12, s12, s13")
    a.i("s_lshl_b32 s12, s12, 7")
    a.i(f"s_add_u32 s77, s12, {32*16*3584}")
    a.i(f"s_mul_i32 s76, s{S_J}, {4*16*3584}")
    a.i("s_add_u32 s76, s76, s12")
    a.i("v_lshlrev_b32 v14, 1, v0")
    a.i("v_cmp_gt_u32 vcc, 32, v0")
    a.i(f"v_mov_b32 v15, {BIG:#x}")
    a.i(f"v_mov_b32 v{GVC}, {L_CNT}")
    a.i("v_cndmask_b32 v11, v15, v14, vcc")
    a.i("v_mov_b32 v15, 0x3f80")
    a.i(f"v_cndmask_b32 v{ONE}, 0, v15, vcc")
    for b in (BA1, BA1+4, ONE):
        for r in range(1, 4): a.i(f"v_mov_b32 v{b+r}, 0")
    xfrag_addr(a, VXR_G, 14, 15)
    tr_addr(a, VTR_G, 14, 15, 8)
    tr_addr(a, VTRP, 14, 15, 4)
    a.i(f"s_lshl_b32 s8, s{GW}, 11")
    a.i(f"s_add_u32 s8, s8, {L_STG}")
    a.i(f"v_add_u32 v{VSW}, s8, v{VLIN}")
    a.i(f"v_add_u32 v{VST}, s8, v{VTR_G}")
    a.i(f"s_mul_i32 s14, s{GW}, {RING_W}")
    a.i(f"s_add_u32 s14, s14, {L_RING}")
    a.i(f"v_add_u32 v{VTR_G}, s14, v{VTR_G}")
    a.i(f"v_add_u32 v{VTRP}, s14, v{VTRP}")
    for r in (VTR_G, VTRP, VST): a.i(f"v_xor_b32 v{r+1}, 64, v{r}")
    a.i("v_mov_b32 v8, 1")
def w1load(a, sx):
    pre = sx < PRM["NPRE"]
    if not pre: a.i(f"s_add_u32 m0, s14, {(sx % RD)*2048}")
    a.i(f"s_add_u32 s78, s76, {16*3584}")
    wstep(a, VW35, SW1, 76, PRE+8*(sx % PD) if pre else None, ("w", sx))
    a.i("s_cmp_eq_u32 s78, s77")
    a.i("s_cselect_b32 s76, s12, s78")
def g_w1first(a, name):
    assert (PRM["D1"] <= PRM["NPRE"] < 32 and PRM["D1"] < PD) or (PRM["NPRE"] == 0 and PRM["w1pos"] == 3)
    a.i("s_cmp_eq_u32 s13, 7")
    a.i(f"s_cbranch_scc1 {name}")
    n = len(a.vm)
    for p in range(2): a.i(f"buffer_load_ushort v{BA1+4*p}, v11, {R(SB1)}, s12 offen offset:{64*p}", tag="b")
    for sx in range(PRM["D1"]): w1load(a, sx)
    a.label(name)

def g_waves(a, VGE, VXE, VXO, vmG):
    VTR, VXR, VC = VTR_G, VXR_G, GVC
    NPRE, D1, D2W, D2H, DO, ND = (PRM[k] for k in ("NPRE", "D1", "D2W", "D2H", "DO", "ND"))
    a.label("L_G123")
    a.vm = list(vmG); a.lg = []
    a.i("s_waitcnt lgkmcnt(0)")
    srd(a, SX, "x")
    srd(a, SWS, "ws")
    g_setup(a)
    srd(a, SWQ, "wq")
    a.i(f"s_mov_b32 s{GSP}, {SPIN}")
    for k in range(3):
        a.i(f"s_add_u32 s8, s{GW}, {3*k - 1}")
        a.i("s_min_u32 s8, s8, 7")
        a.i(f"s_lshl_b32 s{60+k}, s8, 11") if False else None
        a.i(f"s_lshl_b32 s{52+k}, s8, 11")
        a.i(f"s_add_u32 s{52+k}, s{52+k}, {L_WQ}")
        a.i("s_lshl_b32 s8, s8, 14")
        a.i(f"s_lshl_b32 s9, s{S_J}, 16")
        a.i("s_add_u32 s8, s8, s9")
        a.i(f"s_lshl_b32 s9, s{S_MU}, 7")
        a.i(f"s_add_u32 s{64+k}, s8, s9")
    a.i("s_waitcnt lgkmcnt(0)"); a.lg = []
    a.i("s_barrier")
    if PRM["w1pos"] == 0:
        n0 = len(a.vm); g_w1first(a, "L_G_now1"); a.vm = a.vm[:n0]
    for q in range(4):
        for sl in (2*q, 2*q+1):
            a.i(f"s_add_u32 m0, s10, {L_X + sl*8192}")
            if sl:
                a.i("s_add_u32 s11, s11, 128")
                a.i("s_and_b32 s11, s11, 0x380")
            a.i(f"buffer_load_dwordx4 v{VXE}, {R(SX)}, s11 offen lds")
            a.i(f"buffer_load_dwordx4 v{VXO}, {R(SX)}, s11 offen offset:1024 lds", tag=("k", q) if q < 3 or sl < 7 else "x3")
        if q and PRM["esig"]:
            a.wait(vm=("k", q-1))
            cnt_add(a, VC, 8, 4*(q-1))
        for k in range(3 if q else 0):
            a.i(f"s_add_u32 s8, s{64+k}, {q << 17}")
            a.i(f"s_add_u32 m0, s{52+k}, {q*16384}")
            a.i("s_and_b32 s8, s8, 0x7ffff")
            wstep(a, VW1K, SWQ, 8, tag=("k", q))
        if PRM["st1"] and q in (PRM["st1"] - 1, PRM["st1"]):
            first = q == PRM["st1"] - 1
            if first:
                a.i("s_mul_i32 s8, s2, 7168")
                a.i(f"s_mul_i32 s9, s{GW}, {19*128}")
                a.i("s_add_u32 s8, s8, s9")
                a.i(f"s_sub_u32 s8, s8, {19*128}")
                a.i(f"s_add_u32 s72, s{P['w1']}, s8")
                a.i(f"s_addc_u32 s73, s{P['w1']+1}, 0")
            for i in (range(10) if first else range(10, 19)):
                if i == 18:
                    a.i(f"s_cmp_eq_u32 s{GW}, 3")
                    a.i("s_cbranch_scc1 L_st1")
                a.i(f"s_load_dword s74, s[72:73], {128*i}")
            if not first: a.label("L_st1")
        if q and not PRM["esig"]:
            a.wait(vm=("k", q-1))
            cnt_add(a, VC, 8, 4*(q-1))
    if PRM["w1pos"] == 2:
        a.i("s_cmp_eq_u32 s13, 7")
        a.i("s_cbranch_scc0 L_G_w1")
        a.i("s_waitcnt vmcnt(0)")
        a.label("L_G_w1")
        g_w1first(a, "L_G_now1")
    if PRM["xw"]:
        a.wait(vm="x3")
        cnt_add(a, VC, 8, C_X)
    a.wait(vm=("k", 3))
    cnt_add(a, VC, 8, 12)
    stamp(a, 0, 14, first=True)
    a.label("L_G_ffn1")
    a.vm = ["b"]*2 + [("w", sx) for sx in range(D1) for _ in range(2)]
    a.label("L_G_xw")
    if PRM["xsleep"]: a.i(f"s_sleep {PRM['xsleep']}")
    if PRM["xw"]:
        assert PRM["w1pos"] == 3
        a.i(f"ds_read2_b32 v[32:33], v{VC} offset0:0 offset1:{C_X//4}")
        a.i("s_waitcnt lgkmcnt(0)"); a.lg = []
        a.i("v_add_u32 v32, -5, v32")
        a.i("v_min_i32 v32, v32, v33")
    else:
        a.i(f"ds_read_b128 v[32:35], v{VC}")
        a.i("s_waitcnt lgkmcnt(0)"); a.lg = []
        a.i("v_add_u32 v32, -5, v32")
        a.i("v_add_u32 v35, -1, v35")
        a.i("v_min3_i32 v33, v33, v34, v35")
        a.i("v_min_i32 v32, v32, v33")
    a.i("v_readfirstlane_b32 s8, v32")
    a.i("s_cmp_ge_i32 s8, 3")
    a.i("s_cbranch_scc0 L_G_xw")
    stamp(a, 14, 14)
    a.i("v_bfe_u32 v14, v0, 4, 2")
    a.i("v_and_b32 v15, 7, v0")
    a.i("v_xor_b32 v14, v14, v15")
    a.i(f"s_and_b32 s8, s{GW}, 1")
    a.i("s_lshl_b32 s8, s8, 2")
    a.i("v_xor_b32 v14, s8, v14")
    a.i("v_lshlrev_b32 v14, 4, v14")
    a.i(f"v_add_u32 v99, {L_GW}, v14")
    a.i(f"s_setprio {PRM['gatep']}")
    XG, AC, GA = 32, 96, 98
    GFA = [64 + 4*k for k in range(8)]
    def gfr():
        for kb in range(8): a.i(f"ds_read_b128 {v(GFA[kb],4)}, v99 offset:{128*kb}")
    gfr()
    a.wait(lg="all")
    a.i(f"s_lshl_b32 s8, s{GW}, 10")
    a.i(f"v_add_u32 v{GA}, s8, v{VLIN}")
    for i in range(2): a.i(f"v_mov_b32 v{AC+i}, 0")
    def grd(kb):
        for i in range(2):
            a.i(f"ds_read_b128 {v(XG + 8*(kb % 3) + 4*i,4)}, v{GA} offset:{kb*8192 + i*4096}", tag=("g", kb))
    grd(0); grd(1)
    for kb in range(8):
        if kb < 6: grd(kb+2)
        a.wait(lg=("g", kb))
        for r in range(4):
            for i in range(2):
                a.i(f"v_dot2_f32_bf16 v{AC+i}, v{XG + 8*(kb % 3) + 4*i + r}, v{GFA[kb]+r}, v{AC+i}")
    a.i(f"v_lshrrev_b32 v{GA}, 3, v0")
    a.i(f"s_lshl_b32 s9, s{GW}, 5")
    a.i(f"s_add_u32 s9, s9, {L_G}")
    for mod in ("quad_perm:[1,0,3,2]", "quad_perm:[2,3,0,1]", "row_half_mirror"):
        for i in range(2):
            a.i(f"v_add_f32_dpp v{AC+i}, v{AC+i}, v{AC+i} {mod} row_mask:0xf bank_mask:0xf")
    a.i(f"s_mov_b32 s10, {f2u(-math.log2(math.e)):#x}")
    for i in range(2): a.i(f"v_mul_f32 v{AC+i}, s10, v{AC+i}")
    for i in range(2): a.i(f"v_exp_f32 v{AC+i}, v{AC+i}")
    a.i(f"v_lshl_add_u32 v{GA}, v{GA}, 2, s9")
    for i in range(2): a.i(f"v_add_f32 v{AC+i}, 1.0, v{AC+i}")
    for i in range(2): a.i(f"v_rcp_f32 v{AC+i}, v{AC+i}")
    a.i("s_nop 0")
    for i in range(2): a.i(f"ds_write_b32 v{GA}, v{AC+i} offset:{128*i}")
    a.i("s_waitcnt lgkmcnt(0)"); a.lg = []
    a.i("s_setprio 2")
    a.i("s_cmp_eq_u32 s13, 7")
    a.i("s_cbranch_scc1 L_G_idle")
    if PRM["w1pos"] == 3:
        a.label("L_G_kw")
        a.i("s_sleep 2")
        cnt_wait(a, VC, 14, C_K, 4, "L_G_kw1", 8)
        a.ins[-1] = Ins("    s_cbranch_scc0 L_G_kw")
        a.vm = []
        g_w1first(a, "L_G3_now1")
    a.wait(vm="b")
    for p in range(2):
        for rh in range(2): mfma(a, ACC + 32*p + 16*rh, BA1 + 4*p, ONE, "0")
    def rd1(sx):
        a.wait(vm=("w", sx))
        b = sx & 1
        if sx < NPRE:
            for p in range(2): a.i(f"ds_write_b128 v{VSW}, {v(PRE+8*(sx % PD)+4*p,4)} offset:{p*1024}")
        for p in range(2):
            o = 0 if sx < NPRE else (sx % RD)*2048
            ar = (VST if sx < NPRE else VTR) + p
            a.i(f"ds_read_b64_tr_b16 {v(WF+8*b+4*p,2)}, v{ar} offset:{o}")
            a.i(f"ds_read_b64_tr_b16 {v(WF+8*b+4*p+2,2)}, v{ar} offset:{o+512}")
        for rh in range(2):
            a.i(f"ds_read_b128 {v(XF+8*b+4*rh,4)}, v{VXR+(sx&3)} offset:{(sx>>2)*8192 + rh*4096}", tag=("r", sx))
    def ringgate():
        a.i("s_setprio 2")
        cnt_wait(a, VC, 14, C_Q, 4, a.newlabel("G_ring"), 8)
        a.i(f"s_setprio {PRM['gp0'] if PRM['await'] else 0}")
    a.i(f"s_setprio {PRM['gp0']}")
    rd1(0)
    for sx in range(32):
        if sx in (1, 4, 8, 16) and ("fst" not in OPT or sx == 16) and "gst" not in OPT: stamp(a, {1: 16, 4: 17, 8: 18, 16: 19}[sx], 14)
        if sx + D1 < NPRE: w1load(a, sx + D1)
        if sx < 31: rd1(sx+1)
        a.wait(lg=("r", sx))
        b = sx & 1
        for p in range(2):
            for rh in range(2):
                mfma(a, ACC + 32*p + 16*rh, WF+8*b+4*p, XF+8*b+4*rh)
        if sx + D1 == NPRE and PRM['w1pos'] != 3: ringgate()
        if NPRE <= sx + D1 < 32: w1load(a, sx + D1)
    a.i("s_setprio 2")
    cnt_add(a, VC, 8, C_F)
    if NPRE >= 32: ringgate(); a.i("s_setprio 2")
    a.label("L_G_ffn1_end")
    a.i(f"ds_read_b32 v8, v{VC} offset:{C_T}")
    a.i("s_waitcnt lgkmcnt(0)"); a.lg = []
    a.i(f"v_readfirstlane_b32 s{S_TAG}, v8")
    stamp(a, 9, 250)
    srd(a, SW2, "w2"); srd(a, SWO, "wo"); srd(a, SB2, "b2")
    BA2 = BA1
    a.i(f"s_lshl_b32 s8, s{S_MU}, 7")
    a.i(f"s_cmp_eq_u32 s{GW}, 0")
    a.i(f"s_cselect_b32 s10, s8, {BIG:#x}")
    for p in range(2): a.i(f"buffer_load_ushort v{BA2+4*p}, v11, {R(SB2)}, s10 offen offset:{64*p}", tag="b")
    a.i(f"s_lshl_b32 s10, s{S_G}, 5")
    a.i(f"s_lshl_b32 s9, s{S_MU}, 2")
    a.i("s_add_u32 s10, s10, s9")
    a.i(f"s_add_u32 s10, s10, s{GW}")
    a.i("s_lshl_b32 s10, s10, 11")
    a.i(f"s_add_u32 s10, s10, {WS_O}")
    for r in range(4): a.i(f"v_mov_b32 v{XF+r}, -1")
    for rh in range(2): a.i(f"buffer_store_dwordx4 {v(XF,4)}, v{VLIN}, {R(SWS)}, s10 offen offset:{1024*rh} sc1")
    a.i(f"s_mul_i32 s66, s{GW}, {28*16384}")
    a.i("s_add_u32 s66, s66, s8")
    a.i(f"s_lshl_b32 s58, s{GW}, {16 if PRM['par'] == 3 else 17}")
    a.i("s_add_u32 s58, s58, s8")
    a.i(f"s_and_b32 s55, s{S_J}, 3" if PRM["gpx"] == 8 else f"s_lshr_b32 s55, s{S_J}, 1")
    a.i("s_lshl_b32 s67, s55, 15")
    a.i(f"s_mul_i32 s60, s{S_J}, 7")
    if PRM["gpx"] == 4: a.i(f"s_mul_i32 s61, s{S_MU}, 7")
    else:
        a.i(f"s_lshr_b32 s61, s{S_MU}, 1" if PRM["par"] in (1, 2) else f"s_and_b32 s61, s{S_MU}, 3")
        a.i("s_mul_i32 s61, s61, 14")
    a.i("s_add_u32 s60, s60, s61")
    a.i("s_lshr_b32 s60, s60, 1")
    a.i("s_sub_u32 s61, s60, 28")
    a.i("s_cselect_b32 s60, s60, s61")
    a.i("s_mov_b32 s61, s66")
    a.i(f"s_add_u32 s62, s66, {28*16384}")
    a.i("s_lshl_b32 s63, s60, 14")
    a.i("s_add_u32 s66, s66, s63")
    HR, HD = 192, 8
    slot = lambda sx: sx % RD if sx < 28 or not PRM["wos"] else 4 + (sx & 3)
    def dma2(sx):
        a.i(f"s_add_u32 m0, s14, {slot(sx)*2048}")
        if sx < 28:
            a.i("s_add_u32 s63, s66, 16384")
            wstep(a, VW1K, SW2, 66, tag=("w", sx))
            a.i("s_cmp_eq_u32 s63, s62")
            a.i("s_cselect_b32 s66, s61, s63")
        else:
            a.i("s_add_u32 s63, s58, s67")
            if PRM["par"] == 3:
                a.i("s_bfe_u32 s54, s67, 0x10010")
                a.i(f"s_mul_i32 s54, s54, {262144 - 65536}")
                a.i("s_add_u32 s63, s63, s54")
            wstep(a, VW1K, SWO, 63, tag=("w", sx))
            a.i("s_add_u32 s67, s67, 16384")
            a.i("s_and_b32 s67, s67, 0x1ffff")
    def hload(sx):
        for rh in range(2):
            a.i(f"buffer_load_dwordx4 {v(HR + 8*(sx % HD) + 4*rh,4)}, v{VLIN}, {R(SWS)}, s9 offen offset:{1024*rh} sc1", tag=("h", sx))
        a.i("s_add_u32 s9, s9, 2048")
        a.i("s_cmp_eq_u32 s9, s65")
        a.i("s_cselect_b32 s9, s64, s9")
    VTRP2 = XF + 6
    for p in range(2): a.i(f"v_mov_b32 v{VTRP2+p}, v{VTRP+p}")
    a.i(f"s_mul_i32 s8, s{S_G}, 112")
    a.i("s_lshl_b32 s10, s8, 11")
    a.i("s_lshl_b32 s9, s12, 6")
    a.i("s_add_u32 s10, s10, s9")
    a.i(f"s_add_u32 s12, s10, {WS_H}")
    a.i("s_cmp_eq_u32 s13, 7")
    a.i("s_cselect_b32 s56, 1, 0")
    a.i("s_add_u32 s13, s12, 4096")
    a.i(f"s_mul_i32 s9, s{GW}, 28")
    a.i("s_add_u32 s9, s9, s8")
    a.i("s_lshl_b32 s9, s9, 11")
    a.i(f"s_add_u32 s64, s9, {WS_H}")
    a.i(f"s_add_u32 s65, s64, {28*2048}")
    a.i("s_lshl_b32 s9, s60, 11")
    a.i("s_add_u32 s9, s9, s64")
    a.i(f"s_lshl_b32 s11, s{S_G}, 9")
    a.i(f"s_add_u32 s11, s11, {WS_HF}")
    pair_of(a, 10)
    a.i("s_lshl_b32 s10, s10, 7")
    a.i("s_add_u32 s10, s10, s11")
    role_of(a, 8)
    a.i("s_lshl_b32 s8, s8, 2")
    a.i(f"s_add_u32 s8, s8, s{GW}")
    a.i("s_lshl_b32 s8, s8, 2")
    a.i("s_add_u32 s57, s10, s8")
    a.i(f"s_lshl_b32 s8, s{GW}, 7")
    a.i("s_add_u32 s11, s11, s8")
    a.i("v_and_b32 v14, 7, v0")
    a.i("v_lshlrev_b32 v14, 2, v14")
    a.i("s_cmp_eq_u32 s56, 1")
    a.i("s_cbranch_scc1 L_G_noh")
    for p in range(2):
        for rh in range(2):
            t = ACC + 32*p + 16*rh
            o = 192 + 8*(2*p+rh)
            for r in range(16): a.i(f"v_max_f32 v{t+r}, 0, v{t+r}")
            for r in range(0, 16, 2): a.i(f"v_pk_mul_f32 {v(t+r,2)}, {v(t+r,2)}, {v(t+r,2)}")
            for j in range(8): a.i(f"v_cvt_pk_bf16_f32 v{o+j}, v{t+2*j}, v{t+2*j+1}")
            if PRM["hpace"] and 2*p + rh >= PRM["hpace"]: a.i(f"s_waitcnt vmcnt({2*PRM['hpace'] - 2})")
            for u in range(2):
                a.i(f"buffer_store_dwordx4 {v(o+4*u,4)}, v{VLIN}, {R(SWS)}, s{12+p} offen offset:{u*2048 + rh*1024} sc1", tag="hst")
    a.label("L_G_noh")
    if "gst" in OPT: stamp(a, 16, 14)
    a.vm = []
    for k in range(PRM["DOV"]): dma2(28 + k)
    a.i(f"s_waitcnt vmcnt({2*PRM['DOV']})")
    a.i("s_mov_b64 exec, 1")
    a.i(f"buffer_store_dword v8, off, {R(SWS)}, s57 sc1")
    a.i("s_mov_b64 exec, -1")
    if "gst" in OPT: stamp(a, 17, 14)
    for k in range(PRM["DOV"], DO): dma2(28 + k)
    for p in range(2):
        for rh in range(2): mfma(a, ACC + 32*p + 16*rh, BA2 + 4*p, ONE, "0")
    WOF, OF = 128, 192
    def rd2(sx, dst):
        a.wait(vm=[("w", sx)])
        for p in range(2):
            o = slot(sx)*2048
            a.i(f"ds_read_b64_tr_b16 {v(dst+4*p,2)}, v{VTRP2+p} offset:{o}")
            a.i(f"ds_read_b64_tr_b16 {v(dst+4*p+2,2)}, v{VTRP2+p} offset:{o+1024}", tag=("r", sx))
    for k in range(8):
        rd2(28 + k, WOF + 8*k)
        if PRM["wos"]:
            assert DO <= 3 and D2W <= 4
            if k: a.wait(lg=("r", 28 + k - 1))
            if k + DO < 8: dma2(28 + k + DO)
            elif k + DO - 8 < D2W: dma2(k + DO - 8)
        else:
            if k + DO < 8: dma2(28 + k + DO)
            if k >= 2: a.wait(lg=("r", 28 + k - 2))
    a.wait(lg="all")
    if "gst" in OPT: stamp(a, 18, 14)
    for sx in range(min(DO, D2W) if PRM["wos"] else 0, D2W): dma2(sx)
    a.label("L_hpoll")
    a.i(f"buffer_load_dword v15, v14, {R(SWS)}, s11 offen sc1")
    a.i("s_waitcnt vmcnt(0)"); a.vm = []
    a.i(f"v_cmp_ne_u32 vcc, s{S_TAG}, v15")
    a.i("s_cbranch_vccz L_hok")
    spin_tail(a, GSP, "L_hpoll", "L_hok", sleep=PRM["hsleep"])
    a.label("L_hok")
    stamp(a, 10, 250)
    for sx in range(D2H): hload(sx)
    a.i(f"s_lshl_b32 s12, s{S_G}, {3 if PRM['par'] == 3 else 2}")
    a.i(f"s_add_u32 s12, s12, s{GW}")
    a.i(f"s_lshl_b32 s12, s12, {13 if PRM['par'] == 3 else 14}")
    a.i(f"s_add_u32 s12, s12, {WS_O}")
    OSO = [12, 56, 57, 13]
    a.i("s_mov_b32 s8, s12")
    for k in range(4):
        a.i(f"s_add_u32 s9, s55, {k}") if False else None
        a.i(f"s_add_u32 s11, s55, {k}")
        a.i("s_and_b32 s11, s11, 3")
        if PRM["par"] == 3:
            a.i("s_lshr_b32 s54, s11, 1")
            a.i("s_mul_i32 s54, s54, 6")
            a.i("s_add_u32 s11, s11, s54")
        a.i("s_lshl_b32 s11, s11, 12")
        a.i(f"s_add_u32 s{OSO[k]}, s8, s11")
    if PRM["hint"]:
        a.i(f"s_lshl_b32 s72, s{S_G}, 9")
        a.i(f"s_add_u32 s72, s72, {WS_OH}")
        pair_of(a, 73)
        a.i("s_lshl_b32 s73, s73, 7")
        role_of(a, 74)
        a.i("s_lshl_b32 s74, s74, 2")
        a.i("s_add_u32 s73, s73, s74")
        a.i("s_add_u32 s73, s73, s72")
        a.i(f"s_lshl_b32 s74, s{GW}, 7")
        a.i("s_add_u32 s72, s72, s74")
        a.i("v_and_b32 v23, 1, v0")
        a.i("v_lshlrev_b32 v23, 2, v23")
        a.i(f"v_mov_b32 v22, s{S_TAG}")
    final_addr(a, 8)
    a.i("v_and_b32 v14, 31, v0")
    a.i("v_lshlrev_b32 v3, 2, v14")
    a.i(f"v_add_u32 v3, {L_G}, v3")
    a.i(f"v_mul_u32_u24 v14, {PITCH}, v14")
    a.i("v_lshrrev_b32 v15, 5, v0")
    a.i("v_lshl_add_u32 v14, v15, 4, v14")
    a.i("v_add_u32 v14, s14, v14")
    a.i("s_setprio 0")
    NM = 28 - ND
    def step2(sx):
        if sx + 1 < 28 and sx + 1 != NM: rd2(sx+1, WF + 8*((sx+1) & 1))
        a.wait(vm=("h", sx), lg=("r", sx))
        b = sx & 1
        for p in range(2):
            for rh in range(2):
                mfma(a, ACC + 32*p + 16*rh, WF+8*b+4*p, HR + 8*(sx % HD) + 4*rh)
    if NM: rd2(0, WF)
    for sx in range(28):
        if sx == NM and "gst" in OPT: stamp(a, 19, 14)
        if sx < NM: step2(sx)
        elif not PRM["burst"] or sx == 27: a.wait(vm=[("w", sx), ("h", sx)])
        elif PRM["burst"] > 1: a.wait(vm=[("w", sx - PRM["burst"]), ("h", sx - PRM["burst"])])
        if sx + D2H < 28 - PRM["NL"]: hload(sx + D2H)
        if sx + D2W < 28 - PRM["NL"]: dma2(sx + D2W)
    stamp(a, 11, 48)
    a.i("s_barrier")
    for sx in range(28 - PRM["NL"], 28): dma2(sx); hload(sx)
    if PRM["hint"]:
        a.i(f"s_cmp_lg_u32 s{GW}, 0")
        a.i("s_cbranch_scc1 L_nohint")
        if PRM["hwait"]: a.i(f"s_sleep {PRM['hwait']}")
        a.i("s_mov_b64 exec, 1")
        a.i(f"buffer_store_dword v22, off, {R(SWS)}, s73 sc1")
        a.i("s_mov_b64 exec, -1")
        a.vm.pop()
        a.label("L_nohint")
    if PRM["b3b"]: a.i("s_barrier")
    a.i(f"ds_read2_b32 {v(VGG,2)}, v3 offset0:0 offset1:32", tag="g")
    if ND: rd2(NM, WF + 8*(NM & 1))
    OFR = [224, 192]
    def oload(rh):
        for k in range(8):
            a.i(f"buffer_load_dwordx4 {v(OFR[rh] + 4*k,4)}, v{VLIN}, {R(SWS)}, s{OSO[k>>1]} offen offset:{(k&1)*2048 + rh*1024} sc1", tag=("o", rh) if k >= 4 else ("oq", rh))
    def hintpoll(): a.i(f"buffer_load_dword v24, v23, {R(SWS)}, s72 offen sc1", tag="hint")
    def hintcheck():
        a.i("s_setprio 2")
        a.wait(vm="hint")
        a.i(f"v_cmp_ne_u32 vcc, s{S_TAG}, v24")
        a.i("s_cbranch_vccnz L_hint")
        a.label("L_hint_ok")
    _oload = oload
    def oload(rh, first=True):
        if PRM["hint"] and rh == 0 and first: hintcheck()
        _oload(rh)
    def ocheck(rh):
        b = OFR[rh]
        a.i(f"v_max3_u32 v20, v{b}, v{b+4}, v{b+8}")
        a.i(f"v_max3_u32 v21, v{b+12}, v{b+16}, v{b+20}")
        a.i(f"v_max3_u32 v20, v20, v{b+24}, v{b+28}")
        a.i("v_max_u32 v20, v20, v21")
        a.i("v_cmp_eq_u32 vcc, -1, v20")
    assert PRM["oat"] >= 23
    if NM > PRM["oat"]: oload(0)
    if PRM["il"]:
        WB = lambda sx: [WF + 8*(NM & 1), WF + 8*(1 - (NM & 1)), 56][(sx - NM) % 3]
        def rd_one(sx, j):
            p, second = j >> 1, j & 1
            a.i(f"ds_read_b64_tr_b16 {v(WB(sx)+4*p+2*second,2)}, v{VTRP2+p} offset:{slot(sx)*2048 + 1024*second}", tag=("r", sx))
        a.wait(vm="all")
        if NM + 1 < 28:
            for j in range(4): rd_one(NM + 1, j)
        for sx in range(NM, 28):
            a.wait(lg=("r", sx))
            for j in range(4):
                mfma(a, ACC + 32*(j >> 1) + 16*(j & 1), WB(sx) + 4*(j >> 1), HR + 8*(sx % HD) + 4*(j & 1))
                if sx + 2 < 28: rd_one(sx + 2, j)
            if PRM["hint"] and sx == PRM["hat"]: hintpoll()
            if sx == PRM["oat"]: oload(0)
    for sx in range(NM, 28 if not PRM["il"] else NM):
        step2(sx)
        if PRM["hint"] and sx == PRM["hat"]: hintpoll()
        if sx == PRM["oat"]: oload(0)
    a.i("s_setprio 2")
    a.wait(lg="all")
    oload(1)
    for rh in range(2): a.i(f"v_sub_f32 v{16+2*rh}, 1.0, v{VGG+rh}")
    for rh in range(2):
        for p in range(2):
            t = ACC + 32*p + 16*rh
            for r in range(0, 16, 2): a.i(f"v_pk_mul_f32 {v(t+r,2)}, {v(t+r,2)}, {v(16+2*rh,2)} op_sel_hi:[1,0]")
    def pwrite(rh, p, q):
        a.i(f"ds_write_b128 v14, {v(ACC + 32*p + 16*rh + 4*q,4)} offset:{rh*32*PITCH + (32*p + 8*q)*4}")
    def qcheck(q):
        b = OFR[q >> 1] + 16*(q & 1)
        a.i(f"v_max3_u32 v20, v{b}, v{b+4}, v{b+8}")
        a.i(f"v_max_u32 v20, v20, v{b+12}")
        a.i("v_cmp_eq_u32 vcc, -1, v20")
    if PRM["oq"]:
        for q in range(4):
            rh, kh = q >> 1, q & 1
            a.wait(vm=("o", rh) if kh else ("oq", rh))
            qcheck(q)
            a.i(f"s_cbranch_vccnz L_oq{q}")
            a.label(f"L_oqk{q}")
            if q == 0: stamp(a, 12, 22)
            for p in range(2):
                for k in range(4*kh, 4*kh + 4):
                    mfma(a, ACC + 32*p + 16*rh, WOF + 8*k + 4*p, OFR[rh] + 4*k)
                    if q == 2: pwrite(0, p, k)
                    if q == 3 and p == 1 and k == 4: a.i("s_nop 9")
                    if q == 3 and p == 1 and k in (5, 6): pwrite(1, 0, 2*k - 10); pwrite(1, 0, 2*k - 9)
        a.i("s_nop 11")
    else:
        for rh in range(2):
            a.wait(vm=("o", rh))
            ocheck(rh)
            a.i(f"s_cbranch_vccnz L_or{rh}")
            a.label(f"L_ook{rh}")
            if rh == 0: stamp(a, 12, 22)
            for p in range(2):
                for k in range(8):
                    mfma(a, ACC + 32*p + 16*rh, WOF + 8*k + 4*p, OFR[rh] + 4*k)
                    if k >= 4 and (rh or p): pwrite(*((rh, 0) if p else (0, 1)), k - 4)
    if not PRM["oq"]: a.i("s_nop 11")
    for q in range(4): pwrite(1, 1, q)
    a.i("s_waitcnt lgkmcnt(0)"); a.lg = []
    stamp(a, 13, 22)
    a.i("s_barrier")
    final_stage(a, 8)
    a.i(f"s_lshl_b32 s8, s{S_G}, 6")
    a.i(f"s_lshl_b32 s9, s{S_MU}, 3")
    a.i("s_add_u32 s8, s8, s9")
    a.i(f"s_add_u32 s8, s8, s{S_W}")
    a.i("s_cmp_lg_u32 s8, 5")
    a.i("s_cbranch_scc1 L_notag")
    a.i(f"v_mov_b32 v4, s{S_TAG}")
    a.i(f"s_mov_b32 s8, {WS_NONCE}")
    a.i("s_mov_b64 exec, 1")
    a.i(f"buffer_store_dword v4, off, {R(SWS)}, s8 sc1")
    a.label("L_notag")
    stamp(a, 7, 250)
    stamp_dump(a, "G")
    a.i("s_endpgm")
    for q in range(4 if PRM["oq"] else 0):
        a.label(f"L_oq{q}")
        a.i("s_waitcnt vmcnt(0)")
        a.label(f"L_oq{q}_a")
        for qq in range(q, 4):
            for k in range(4*(qq & 1), 4*(qq & 1) + 4):
                a.i(f"buffer_load_dwordx4 {v(OFR[qq >> 1] + 4*k,4)}, v{VLIN}, {R(SWS)}, s{OSO[k>>1]} offen offset:{(k&1)*2048 + (qq >> 1)*1024} sc1")
        a.i(f"s_waitcnt vmcnt({4*(3 - q)})")
        qcheck(q)
        a.i(f"s_cbranch_vccz L_oqk{q}")
        a.i("s_waitcnt vmcnt(0)"); a.vm = []
        spin_tail(a, GSP, f"L_oq{q}_a", f"L_oqk{q}")
    for rh in range(0 if PRM["oq"] else 2):
        a.label(f"L_or{rh}")
        a.i("s_waitcnt vmcnt(0)")
        a.label(f"L_or{rh}_a")
        if PRM["orsleep"]: a.i(f"s_sleep {PRM['orsleep']}")
        if PRM["opoll"] and rh == 0:
            a.i("v_lshlrev_b32 v22, 11, v0")
            a.i("v_and_b32 v22, 0x800, v22")
            a.label("L_op")
            a.i("s_mov_b64 exec, 3")
            for k in range(4): a.i(f"buffer_load_dword v{24+k}, v22, {R(SWS)}, s{OSO[k]} offen offset:{1024+1008} sc1")
            a.i("s_waitcnt vmcnt(0)")
            a.i("v_max3_u32 v24, v24, v25, v26")
            a.i("v_max_u32 v24, v24, v27")
            a.i("v_cmp_eq_u32 vcc, -1, v24")
            a.i("s_mov_b64 exec, -1")
            a.i("s_cbranch_vccz L_op_ok")
            spin_tail(a, GSP, "L_op", "L_op_ok")
            a.label("L_op_ok")
        oload(rh, False)
        if rh == 0: oload(1)
        a.i("s_waitcnt vmcnt(0)"); a.vm = []
        ocheck(rh)
        a.i(f"s_cbranch_vccz L_ook{rh}")
        spin_tail(a, GSP, f"L_or{rh}_a", f"L_ook{rh}")
    if PRM["hint"]:
        a.label("L_hint")
        a.i(f"buffer_load_dword v24, v23, {R(SWS)}, s72 offen sc1")
        a.i("s_waitcnt vmcnt(0)")
        a.i(f"v_cmp_ne_u32 vcc, s{S_TAG}, v24")
        a.i("s_cbranch_vccz L_hint_ok")
        spin_tail(a, GSP, "L_hint", "L_hint_ok")
    a.label("L_G_idle")
    a.i("s_waitcnt vmcnt(0)")
    cnt_add(a, VC, 8, C_F)
    a.label("L_G_idle_a")
    a.i("s_sleep 8")
    a.i(f"ds_read_b32 v14, v{VC} offset:{C_F}")
    a.i("s_waitcnt lgkmcnt(0)")
    a.i("v_readfirstlane_b32 s8, v14")
    a.i("s_cmp_ge_u32 s8, 4")
    a.i("s_cbranch_scc0 L_G_idle_a")
    a.i("s_branch L_G_ffn1_end")

HEAD = open("cdna_kernels/" + NAME + ".s.ref").read().split("; Override launch")[0]
def kd(name, vg=256):
    return f""".section .rodata,"a"
.p2align 6
.amdhsa_kernel {name}
  .amdhsa_next_free_vgpr {vg}
  .amdhsa_next_free_sgpr 102
  .amdhsa_accum_offset {vg}
  .amdhsa_group_segment_fixed_size 0
  .amdhsa_kernarg_size 112
  .amdhsa_user_sgpr_count 2
  .amdhsa_user_sgpr_kernarg_segment_ptr 1
  .amdhsa_system_sgpr_workgroup_id_x 1
.end_amdhsa_kernel
"""
DOC = """;
;                  8 (head, 32-row) tiles; the partial sums meet in LDS.
; (all ones) first, h is announced with flags; marks and flags carry a tag that differs from the tag of the
;
"""
def build(kernels):
    s_ = HEAD
    if len(kernels) == 1:
        n, blk, lds, body = kernels[0]
        s_ += f"; @launch grid=(256,1,1) block=({blk},1,1) lds={lds}\n"
    else:
        for n, blk, lds, body in kernels:
            s_ += f"; @launch kernel={n} grid=(256,1,1) block=({blk},1,1) lds={lds}\n"
    s_ += DOC + '.amdgcn_target "amdgcn-amd-amdhsa--gfx950"\n'
    for n, blk, lds, body in kernels:
        s_ += f".text\n.globl {n}\n.p2align 8\n.type {n},@function\n{n}:\n{body}" + kd(n)
    return s_

if __name__ == "__main__":
    out = sys.argv[1]
    OPT = set(sys.argv[2:])
    STAMP = "stamp" in OPT
    ks = [(NAME + "_kernel", 512, LDS_BYTES, None)]
    for o in OPT:
        if "=" in o and o.split("=")[0] in PRM: PRM[o.split("=")[0]] = int(o.split("=")[1])
        if o.startswith("only="):
            STAMP = True; ONLY = int(o[5:])
            ks.append(("wait_kernel", 256, 1024, waitk(ONLY)))
    ks[0] = ks[0][:3] + (kernel(),)
    open(out, "w").write(build(ks))
```

```python
import sys, math, struct
from asmgen import *

NAME = "gated_mix__grouped_kv_mqa__dense_activation_squared_relu__prompt"
TS = 2304
WS_KV = 0
WS_NONCE = 0x2c000
WS_OH = 0x30000
WS_HF = 0x28000
WS_O  = 0x40000
WS_H  = 0x240000
WS_END = WS_H + 32*112*2048
L_X, L_WQ, L_RING, RING_W, RD = 0, 65536, 65536, 17408, 8
L_WKV = 135168; L_STG = L_WKV; L_QF = L_WKV + 8192
L_G = 151552; L_GW = L_G + 1024; L_CNT = L_G + 256
C_Q, C_F, C_T, C_K, C_X = 16, 20, 24, 28, 32
CT = [8, 3, 3, 4]
LDS_BYTES = 163840
XO, XK = 13824, 4608
QSCALE = 0.25 * math.log2(math.e)
def f2u(x): return struct.unpack("<I", struct.pack("<f", x))[0]
S_W, S_G, S_MU, S_J, S_KV, S_TAG = 3, 4, 5, 15, 27, 59
P = dict(x=16, wq=18, wk=20, wv=22, wo=24, bx=26, w1=28, b1=30, w2=32, b2=34, gate=36, out=38, dbg=40, ws=42)
SZ = dict(x=2048*1024, wq=512*1024, wo=512*1024, w1=512*3584, b1=3584, w2=1792*1024, b2=1024, gate=1024, out=2048*1024, dbg=256, ws=WS_END)
BIG = 0x40000000
SPIN = 8000
STAMP = False; ONLY = None; OPT = set()
PRM = dict(w1pos=3, apf=0, w1wait=1, tagat=8, kvat=33, ckpos=0, wqlate=0, wqt=0, aprio=0, g0d=0, qnb=4, qprio=1, xsleep=2, nsw=6, chk3=1, par=3, st1=0, gatep=0, ntx=1, ntq=0, ntw=0, ntk=0, ntc=0, ctpos=0, al=6, sh=0, ap=1, esig=0, kscale=1, xw=0, wos=1, burst=0, NL=0, il=1, orsleep=0, opoll=0, hint=1, hat=20, hwait=0, oq=1, mp1=3, mq=6, mp0=14, gil=3, kvp=5, woe=0, **{'await': 0}, w1t=0, NPRE=0, gp0=0, b3b=1, D1=4, D2W=4, D2H=2, DO=3, DOV=0, hpace=3, ost=0, ND=8, hsleep=4, oat=25, isleep=4, gpx=8, tsleep=0)
WS_STAMP = 0xC00000
SX, SWQ, SWKV, SW1, SB1, SGT, SWS, SDBG, SW2, SWO, SOUT = 44, 48, 52, 56, 60, 64, 68, 72, 76, 80, 84
SB2 = 48
VLIN = 2
PITCH = 272

def srd(a, d, name):
    a.i(f"s_mov_b32 s{d}, s{P[name]}")
    a.i(f"s_mov_b32 s{d+1}, s{P[name]+1}")
    a.i(f"s_mov_b32 s{d+2}, {SZ[name]:#x}")
    a.i(f"s_mov_b32 s{d+3}, 0x20000")
def R(d): return f"s[{d}:{d+3}]"

ST_A = {0: 100, 1: 88, 2: 90, 3: 92, 4: 94, 5: 96, 6: 98, 7: 44}
CY_A = {4: 46, 5: 72}
ST_G = {0: 100, 15: 88, 8: 90, 14: 92, 16: 94, 17: 96, 18: 98, 19: 26, 9: 18, 10: 20, 11: 22, 12: 46, 13: 52, 7: 44}
NST = 20
def stamping(idx): return STAMP and (ONLY is None or idx == ONLY)
def stamp_init(a, role):
    if not STAMP: return
    for i, r in (ST_A if role == "A" else ST_G).items():
        if r >= 88 and i: a.i(f"s_mov_b32 s{r}, -1")
def stamp(a, idx, role, first=False):
    if not stamping(idx) or first: return
    role = "A" if role == AST else "G"
    r = (ST_A if role == "A" else ST_G)[idx]
    a.i(f"s_memrealtime s[{r}:{r+1}]")
    if role == "A" and idx in CY_A: a.i(f"s_memtime s[{CY_A[idx]}:{CY_A[idx]+1}]")
def stamp_dump(a, role):
    if not STAMP: return
    T = ST_A if role == "A" else ST_G
    a.i("s_waitcnt vmcnt(0) lgkmcnt(0)")
    a.i(f"s_mov_b32 s{SWS+2}, 0x1000000")
    a.i("s_lshl_b32 s8, s2, 3")
    a.i(f"s_add_u32 s8, s8, s{S_W}")
    a.i("s_lshl_b32 s8, s8, 3")
    a.i(f"s_add_u32 s8, s8, {WS_STAMP + 0x10000}")
    a.i("s_mov_b64 exec, 1")
    for idx in range(NST):
        if stamping(idx):
            a.i(f"v_mov_b32 v{2*idx}, {'s%d' % T[idx] if idx in T else -1}")
            a.i(f"v_mov_b32 v{2*idx+1}, {'s%d' % CY_A[idx] if role == 'A' and idx in CY_A else ('s65' if role == 'A' else 's99') if idx == 7 else 0}")
            a.i(f"s_add_u32 s9, s8, {idx*16384}")
            a.i(f"buffer_store_dwordx2 v[{2*idx}:{2*idx+1}], off, {R(SWS)}, s9")
def waitk(idx, ticks=6000):
    a = Asm()
    a.i("s_cmp_ge_u32 s2, 1"); a.i("s_cbranch_scc1 L_w_end")
    a.i("s_load_dwordx2 s[42:43], s[0:1], 104")
    a.i("v_lshlrev_b32 v1, 6, v0")
    a.i("v_mov_b32 v2, 0")
    a.i("ds_write_b32 v2, v2")
    a.i("s_waitcnt lgkmcnt(0)")
    a.i("s_barrier")
    a.i("s_mov_b32 s92, s42"); a.i("s_mov_b32 s93, s43"); a.i("s_mov_b32 s94, 0x1000000"); a.i("s_mov_b32 s95, 0x20000")
    a.i(f"s_mov_b32 s10, {WS_STAMP + 0x10000 + idx*16384}")
    for k in range(4): a.i(f"buffer_load_dwordx4 v[{8+4*k}:{11+4*k}], v1, s[92:95], s10 offen offset:{16*k}")
    a.i("s_waitcnt vmcnt(0)")
    for k in range(8):
        a.i(f"v_add_u32 v3, 1, v{8+2*k}")
        a.i("ds_max_u32 v2, v3")
        a.i("s_waitcnt lgkmcnt(0)")
    a.i("s_barrier")
    a.i("ds_read_b32 v3, v2")
    a.i("s_waitcnt lgkmcnt(0)")
    a.i("v_readfirstlane_b32 s11, v3")
    a.i("s_mov_b32 s12, 20000")
    a.label("L_w_loop")
    a.i("s_memrealtime s[8:9]")
    a.i("s_waitcnt lgkmcnt(0)")
    a.i("s_sub_u32 s8, s8, s11")
    a.i(f"s_cmp_ge_u32 s8, {ticks}")
    a.i("s_cbranch_scc1 L_w_end")
    a.i("s_sub_u32 s12, s12, 1")
    a.i("s_cmp_lg_u32 s12, 0")
    a.i("s_cbranch_scc1 L_w_loop")
    a.label("L_w_end"); a.i("s_endpgm")
    return a.finish()

def mfma(a, d, A, B, C=None):
    c = v(d, 16) if C is None else C
    a.i(f"v_mfma_f32_32x32x16_bf16 {v(d,16)}, {v(A,4)}, {v(B,4)}, {c}")
def mfma16(a, d, A, B, C=None):
    c = v(d, 4) if C is None else C
    a.i(f"v_mfma_f32_16x16x32_bf16 {v(d,4)}, {v(A,4)}, {v(B,4)}, {c}")

def tr_addr(a, dst, t0, t1, rowmul_h):
    a.i(f"v_lshrrev_b32 v{t0}, 5, v0")
    a.i(f"v_mul_u32_u24 v{t0}, {rowmul_h}, v{t0}")
    a.i(f"v_bfe_u32 v{t1}, v0, 2, 2")
    a.i(f"v_add_u32 v{t0}, v{t0}, v{t1}")
    a.i(f"v_lshlrev_b32 v{dst}, 7, v{t0}")
    a.i(f"v_and_b32 v{t1}, 3, v0")
    a.i(f"v_lshl_add_u32 v{dst}, v{t1}, 3, v{dst}")
    a.i(f"v_bfe_u32 v{t1}, v0, 4, 1")
    a.i(f"v_lshl_add_u32 v{dst}, v{t1}, 5, v{dst}")
    a.i(f"v_bfe_u32 v{t1}, v0, 3, 1")
    a.i(f"v_lshl_add_u32 v{dst}, v{t1}, 6, v{dst}")

def xfrag_addr(a, dst, t0, t1):
    a.i(f"v_bfe_u32 v{t0}, v0, 1, 3")
    a.i(f"v_lshrrev_b32 v{t1}, 5, v0")
    a.i(f"v_xor_b32 v{t0}, v{t0}, v{t1}")
    a.i(f"v_and_b32 v{t1}, 31, v0")
    a.i(f"v_lshlrev_b32 v{t1}, 7, v{t1}")
    for q in range(4):
        a.i(f"v_xor_b32 v{dst+q}, {2*q}, v{t0}")
        a.i(f"v_lshl_add_u32 v{dst+q}, v{dst+q}, 4, v{t1}")

def wchunk_addr(a, dst, t0, pitch):
    a.i(f"v_lshrrev_b32 v{t0}, 3, v0")
    a.i(f"v_mul_u32_u24 v{dst}, {pitch}, v{t0}")
    a.i(f"v_bfe_u32 v{t0}, v0, 4, 1")
    a.i(f"v_lshlrev_b32 v{t0}, 2, v{t0}")
    a.i(f"v_xor_b32 v{t0}, v{t0}, v0")
    a.i(f"v_and_b32 v{t0}, 7, v{t0}")
    a.i(f"v_lshl_add_u32 v{dst}, v{t0}, 4, v{dst}")
    a.i(f"v_add_u32 v{dst+1}, {8*pitch - 1024}, v{dst}")
FL = ["", " nt", " sc1", " sc1 nt"]
def wstep(a, va, srd_, so, dst=None, tag=None):
    fl = FL[PRM["ntq"] & 3 if tag == ("wq", 0) else PRM["ntq"] >> 2 if srd_ == SWQ and tag[0] == "k" else PRM["ntw"]]
    if dst is None:
        a.i(f"buffer_load_dwordx4 v{va}, {R(srd_)}, s{so} offen{fl} lds", tag=tag)
        a.i(f"buffer_load_dwordx4 v{va+1}, {R(srd_)}, s{so} offen offset:1024{fl} lds", tag=tag)
    else:
        a.i(f"buffer_load_dwordx4 {v(dst,4)}, v{va}, {R(srd_)}, s{so} offen", tag=tag)
        a.i(f"buffer_load_dwordx4 {v(dst+4,4)}, v{va+1}, {R(srd_)}, s{so} offen offset:1024", tag=tag)

def run(a, items):
    for t in items: t() if callable(t) else a.i(t)

def spin_tail(a, cnt, again, done, sleep=0):
    a.i(f"s_sub_u32 s{cnt}, s{cnt}, 1")
    a.i(f"s_cmp_le_i32 s{cnt}, 0")
    a.i(f"s_cbranch_scc1 {done}")
    if sleep: a.i(f"s_sleep {sleep}")
    a.i(f"s_branch {again}")

def cnt_add(a, vc, vone, off):
    a.i("s_mov_b64 exec, 1")
    a.i(f"ds_add_u32 v{vc}, v{vone} offset:{off}")
    a.i("s_mov_b64 exec, -1")
def cnt_wait(a, vc, vt, off, n, name, st, extra=None):
    a.label(name)
    a.i(f"ds_read_b32 v{vt}, v{vc} offset:{off}")
    if extra: extra()
    a.i("s_waitcnt lgkmcnt(0)"); a.lg = []
    a.i(f"v_readfirstlane_b32 s{st}, v{vt}")
    a.i(f"s_cmp_ge_u32 s{st}, {n}")
    a.i(f"s_cbranch_scc0 {name}")

def xpairs(a, VE, VO, sbase, st, tagf):
    for sl in range(8):
        a.i(f"s_add_u32 m0, s{sbase}, {L_X + sl*8192}")
        if sl:
            a.i(f"s_add_u32 s{st}, s{st}, 128")
            a.i(f"s_and_b32 s{st}, s{st}, 0x380")
        a.i(f"buffer_load_dwordx4 v{VE}, {R(SX)}, s{st} offen{FL[PRM['ntx']]} lds")
        a.i(f"buffer_load_dwordx4 v{VO}, {R(SX)}, s{st} offen offset:1024{FL[PRM['ntx']]} lds", tag=tagf(sl))

def final_stage(a, T):
    RA, RB, SO = T, T+1, T+2
    B = T + 4
    for w in range(4):
        for hf in range(2):
            a.i(f"ds_read_b128 {v(B + w*8 + 4*hf,4)}, v{RA if w < 2 else RB} offset:{(w&1)*RING_W + 16*hf}", tag=("p", w))
    a.wait(lg=("p", 1))
    for r in range(0, 8, 2): a.i(f"v_pk_add_f32 {v(B+r,2)}, {v(B+r,2)}, {v(B+8+r,2)}")
    a.wait(lg=("p", 3))
    for r in range(0, 8, 2): a.i(f"v_pk_add_f32 {v(B+16+r,2)}, {v(B+16+r,2)}, {v(B+24+r,2)}")
    for r in range(0, 8, 2): a.i(f"v_pk_add_f32 {v(B+r,2)}, {v(B+r,2)}, {v(B+16+r,2)}")
    for j in range(4): a.i(f"v_cvt_pk_bf16_f32 v{B+8+j}, v{B+2*j}, v{B+2*j+1}")
    a.i(f"buffer_store_dwordx4 {v(B+8,4)}, v{SO}, {R(SOUT)}, s10 offen" + ["", " sc1", " nt", " sc0 sc1", " sc0 sc1 nt"][PRM["ost"]])
def final_addr(a, T):
    RA, RB, SO, t = T, T+1, T+2, T+3
    a.i(f"v_lshrrev_b32 v{SO}, 3, v0")
    a.i(f"s_lshl_b32 s10, s{S_W}, 3")
    a.i(f"v_add_u32 v{SO}, s10, v{SO}")
    a.i(f"v_and_b32 v{t}, 7, v0")
    a.i(f"v_mul_u32_u24 v{RA}, {PITCH}, v{SO}")
    a.i(f"v_lshl_add_u32 v{RA}, v{t}, 5, v{RA}")
    a.i(f"v_add_u32 v{RA}, {L_RING}, v{RA}")
    a.i(f"v_add_u32 v{RB}, {2*RING_W}, v{RA}")
    a.i(f"v_lshlrev_b32 v{SO}, 10, v{SO}")
    a.i(f"v_lshl_add_u32 v{SO}, v{t}, 4, v{SO}")
    a.i(f"s_lshl_b32 s10, s{S_G}, 16")
    a.i(f"s_lshl_b32 s11, s{S_MU}, 7")
    a.i("s_add_u32 s10, s10, s11")
    srd(a, SOUT, "out")

VV1, VV0, VG, T0, T1 = 1, 3, 4, 6, 7
Q, S, Pq, F, O = 8, 64, 96, 104, 128
KVS = [40, 52, 104, 116]
AST = 94
SKO, SKL, SIT, SSP, SKC, SKV = 62, 63, 64, 65, 66, 76
VW1K_A = 12

def wq_round(a, r):
    a.i(f"s_add_u32 s10, s9, {r << 17}")
    a.i("s_and_b32 s10, s10, 0x7ffff")
    a.i("s_add_u32 s11, s10, 16384")
    for e in range(2):
        a.i(f"s_add_u32 m0, s8, {r*16384 + e*2048}")
        wstep(a, VW1K_A, SWQ, 10+e, tag=("wq", r))

def kernel():
    a = Asm()
    if STAMP: a.i("s_memrealtime s[100:101]")
    a.i("s_cmp_ge_u32 s2, 256")
    a.i("s_cbranch_scc1 L_end")
    a.i("s_load_dwordx16 s[16:31], s[0:1], 0")
    a.i("s_load_dwordx8 s[32:39], s[0:1], 64")
    a.i("s_load_dwordx4 s[40:43], s[0:1], 96")
    a.i("s_getpc_b64 s[44:45]")
    a.label("L_pc")
    a.i("s_mov_b32 s46, L_code_end-L_pc")
    a.i("s_mov_b32 s47, 0x20000")
    a.i("s_lshr_b32 s7, s2, 3")
    a.i("s_lshl_b32 s6, s7, 11")
    a.i("v_lshlrev_b32 v1, 2, v0")
    if PRM["ctpos"] == 0: a.i(f"buffer_load_dword v255, v1, s[44:47], s6 offen{FL[PRM['ntc']]} ; touch")
    if PRM["ctpos"] == 1: a.i("v_lshlrev_b32 v3, 1, v1"); a.i("s_mov_b32 s14, s6")
    a.i("v_lshrrev_b32 v1, 6, v0")
    a.i("v_and_b32 v0, 63, v0")
    a.i(f"v_readfirstlane_b32 s{S_W}, v1")
    if PRM["gpx"] == 4:
        a.i("s_and_b32 s6, s2, 7")
        a.i(f"s_and_b32 s{S_MU}, s7, 7")
        a.i(f"s_lshr_b32 s{S_J}, s7, 3")
        a.i("s_lshl_b32 s6, s6, 2")
        a.i(f"s_add_u32 s{S_G}, s6, s{S_J}")
        a.i(f"s_lshl_b32 s{S_J}, s{S_J}, 1")
    else:
        a.i("s_and_b32 s6, s2, 1")
        a.i("s_lshl_b32 s6, s6, 2")
        a.i(f"s_and_b32 s{S_MU}, s7, 3")
        a.i(f"s_add_u32 s{S_MU}, s{S_MU}, s6")
        if PRM["par"] in (1, 2):
            a.i(f"s_mov_b32 s8, s{S_MU}")
            a.i("s_and_b32 s6, s7, 3")
            a.i("s_lshl_b32 s6, s6, 1")
            a.i(f"s_and_b32 s{S_MU}, s2, 1")
            if PRM["par"] == 2: a.i(f"s_xor_b32 s{S_MU}, s{S_MU}, 1")
            a.i(f"s_add_u32 s{S_MU}, s{S_MU}, s6")
        a.i(f"s_lshr_b32 s{S_J}, s7, 2")
        a.i("s_and_b32 s6, s2, 6")
        a.i("s_lshl_b32 s6, s6, 2")
        a.i(f"s_add_u32 s{S_G}, s6, s{S_J}")
    a.i(f"v_lshlrev_b32 v{VLIN}, 4, v0")
    a.i(f"s_cmp_ge_u32 s{S_W}, 4")
    a.i("s_cbranch_scc1 L_G")
    vm0 = list(a.vm)
    stamp_init(a, "A")
    if PRM["aprio"]: a.i("s_setprio 3")
    wchunk_addr(a, VW1K_A, 14, 1024)
    a.i(f"s_lshl_b32 s9, s{S_W}, 15")
    a.i(f"s_lshl_b32 s10, s{S_MU}, 7")
    a.i("s_add_u32 s9, s9, s10")
    a.i(f"s_lshl_b32 s10, s{S_J}, 16")
    a.i("s_add_u32 s9, s9, s10")
    a.i(f"s_lshl_b32 s8, s{S_W}, 12")
    a.i(f"s_add_u32 s8, s8, {L_WQ}")
    a.i("s_waitcnt lgkmcnt(0)")
    srd(a, SWQ, "wq")
    if PRM["wqt"]:
        a.i("s_lshl_b32 s10, s2, 2")
        a.i(f"s_add_u32 s10, s10, s{S_W}")
        a.i("s_lshl_b32 s10, s10, 9")
        a.i("s_mov_b32 exec_hi, 0")
        a.i(f"buffer_load_dwordx4 v[104:107], v{VLIN}, {R(SWQ)}, s10 offen")
        a.i("s_mov_b32 exec_hi, -1")
    if PRM["w1t"]:
        srd(a, SW1, "w1")
        a.i("s_lshl_b32 s10, s2, 2")
        a.i(f"s_add_u32 s10, s10, s{S_W}")
        a.i("s_mul_i32 s10, s10, 1792")
        a.i("v_lshlrev_b32 v14, 6, v0")
        a.i("s_mov_b64 exec, 0xfffffff")
        a.i(f"buffer_load_dword v108, v14, {R(SW1)}, s10 offen")
        a.i("s_mov_b64 exec, -1")
    if not PRM["wqlate"]: wq_round(a, 0)
    if PRM["ctpos"] == 1: a.i("buffer_load_dwordx2 v[104:105], v3, s[44:47], s14 offen ; touch")
    vmA = list(a.vm)
    if PRM["aprio"]: a.i("s_setprio 0")
    a.i("s_branch L_A")
    a.label("L_G")
    a.i(f"s_mov_b32 s62, s{8 if PRM['par'] in (1, 2) and PRM['gpx'] == 8 else S_MU}")
    stamp_init(a, "G")
    if STAMP: a.i("s_waitcnt lgkmcnt(0)"); a.i("s_mov_b32 s26, -1")
    a.vm = list(vm0)
    VGE, VXE, VXO = 8, 9, 10
    a.i("v_bfe_u32 v14, v0, 4, 2")
    a.i("v_and_b32 v15, 7, v0")
    a.i("v_xor_b32 v14, v14, v15")
    a.i(f"v_lshlrev_b32 v{VGE}, 4, v14")
    a.i("v_lshrrev_b32 v14, 3, v0")
    a.i(f"s_sub_u32 s6, s{S_W}, 4")
    a.i(f"s_add_u32 s12, s62, s6")
    a.i("s_and_b32 s12, s12, 3")
    a.i(f"s_lshl_b32 s7, s{S_G}, 2")
    a.i("s_add_u32 s7, s7, s12")
    a.i("s_lshl_b32 s7, s7, 4")
    a.i("v_add_u32 v14, s7, v14")
    a.i(f"v_lshl_add_u32 v{VXE}, v14, 10, v{VGE}")
    a.i(f"v_xor_b32 v{VXO}, 64, v{VXE}")
    a.i(f"v_add_u32 v{VXO}, {8192-1024}, v{VXO}")
    a.i("s_lshl_b32 s10, s12, 11")
    a.i(f"s_lshl_b32 s11, s{S_J}, 7")
    a.i(f"s_lshl_b32 s9, s{S_J}, 11")
    a.i("s_setprio 2")
    a.i("s_cmp_lg_u32 s6, 0")
    a.i("s_cbranch_scc1 L_G123")
    vmG = list(a.vm)
    g0_front(a, VXE, VXO)
    a_waves(a, vmA)
    g_waves(a, VGE, VXE, VXO, vmG)
    a.label("L_end")
    a.i("s_endpgm")
    a_slow(a)
    a.label("L_code_end")
    return a.finish()

GW, GSP = 6, 99
def pair_of(a, d): a.i(f"s_and_b32 s{d}, s{S_MU}, 3" if PRM["par"] == 3 else f"s_lshr_b32 s{d}, s{S_MU}, 1")
def role_of(a, d): a.i(f"s_lshr_b32 s{d}, s{S_MU}, 2" if PRM["par"] == 3 else f"s_and_b32 s{d}, s{S_MU}, 1")
def kv_addr(a):
    a.i(f"s_and_b32 s7, s62, 3")
    a.i(f"s_cmp_ge_u32 s62, 4")
    a.i("s_cselect_b32 s8, 8, 9")
    a.i("s_cselect_b32 s13, 9, 8")
    a.i("s_cselect_b32 s60, 1024, 0")
    a.i("s_and_b32 s61, s7, 1")
    a.i("s_lshl_b32 s61, s61, s13")
    a.i("s_add_u32 s60, s60, s61")
    a.i(f"s_lshl_b32 s61, s{S_G}, 1")
    a.i("s_lshr_b32 s13, s7, 1")
    a.i("s_add_u32 s61, s61, s13")
    a.i(f"s_mul_i32 s61, s61, {TS}")
    a.i("s_add_u32 s60, s60, s61")
    a.i("v_bfe_u32 v15, v0, 4, 1")
    a.i("v_lshlrev_b32 v15, s8, v15")
    a.i("v_and_b32 v24, 15, v0")
    a.i("v_lshl_add_u32 v23, v24, 4, v15")
def g0_front(a, VXE, VXO):
    if not PRM["aprio"]: a.i("s_setprio 3")
    kv_addr(a)
    a.i("v_cmp_gt_u32 vcc, 32, v0")
    a.i("v_mov_b32 v36, 0x3f803f80")
    a.i("s_sub_u32 s13, s61, s60")
    a.i("s_add_u32 s13, s13, 2048")
    a.i("v_mov_b32 v37, s13")
    a.i("v_cndmask_b32 v38, v37, v23, vcc")
    for r in range(32, 36): a.i(f"v_cndmask_b32 v{r}, v36, -1, vcc")
    a.i(f"s_lshr_b32 s8, s62, 2")
    a.i("s_lshl_b32 s8, s8, 1")
    a.i("s_and_b32 s7, s7, 1")
    a.i("s_add_u32 s8, s8, s7")
    a.i("s_lshl_b32 s8, s8, 2")
    a.i("s_add_u32 s61, s61, s8")
    a.i(f"s_mov_b32 s8, {WS_NONCE}")
    a.i("s_waitcnt lgkmcnt(0)")
    srd(a, SWS, "ws")
    a.i(f"buffer_load_dword v40, off, {R(SWS)}, s8 sc1")
    a.i(f"buffer_store_dwordx4 v[32:35], v38, {R(SWS)}, s60 offen sc1", tag="mark")
    srd(a, SX, "x")
    a.i(f"s_cmp_ge_u32 s62, 4")
    a.i(f"s_cselect_b32 s{SWKV}, s{P['wv']}, s{P['wk']}")
    a.i(f"s_cselect_b32 s{SWKV+1}, s{P['wv']+1}, s{P['wk']+1}")
    a.i(f"s_mov_b32 s{SWKV+2}, 16384")
    a.i(f"s_mov_b32 m0, {L_WKV}")
    a.i(f"s_mov_b32 s{SWKV+3}, 0x20000")
    def wpair(q):
        if q:
            a.i(f"s_mov_b32 m0, {L_WKV + q*2048}")
            a.i("s_add_u32 s9, s9, 2048")
            a.i("s_and_b32 s9, s9, 0x3fff")
        for i in range(2):
            a.i(f"buffer_load_dwordx4 v{VLIN}, {R(SWKV)}, s9 offen offset:{i*1024}{FL[PRM['ntk'] if q < 2 else 0]} lds", tag=("wk", 2*q+i))
    if PRM["g0d"]: a.i(f"s_sleep {PRM['g0d']}")
    wpair(0)
    xpairs(a, VXE, VXO, 10, 11, lambda sl: ("x", sl))
    for r in range(36, 40): a.i(f"v_mov_b32 v{r}, 0")
    a.i(f"v_mov_b32 v14, {L_CNT}")
    a.i("ds_write_b128 v14, v[36:39]")
    a.i("ds_write_b128 v14, v[36:39] offset:16")
    a.i("ds_write_b128 v14, v[36:39] offset:32")
    if PRM["aprio"]: a.i("s_setprio 3")
    a.wait(vm="mark")
    a.i("v_add_u32 v40, 0x9e3779b9, v40")
    a.i("s_mov_b64 exec, 1")
    a.i(f"buffer_store_dword v40, off, {R(SWS)}, s61 offset:{2048+128} sc1")
    a.i(f"ds_write_b32 v14, v40 offset:{C_T}")
    a.i("s_mov_b64 exec, -1")
    wpair(1)
    srd(a, SGT, "gate")
    a.i(f"s_lshl_b32 s8, s{S_J}, 7")
    a.i(f"v_add_u32 v14, s8, v{VLIN}")
    a.i(f"s_mov_b32 m0, {L_GW}")
    a.i("v_and_b32 v14, 0x3ff, v14")
    a.i(f"buffer_load_dwordx4 v14, {R(SGT)}, 0 offen lds")
    for q in range(2, 8): wpair(q)
    if "fst" in OPT: stamp(a, 16, 14)
    a.i("s_waitcnt lgkmcnt(0)"); a.lg = []
    a.i("s_barrier")
    XA, TA = 20, 22
    a.i("v_bfe_u32 v14, v0, 1, 3")
    a.i("v_lshrrev_b32 v15, 4, v0")
    a.i("v_xor_b32 v14, v14, v15")
    a.i("v_and_b32 v24, 15, v0")
    a.i("s_lshl_b32 s7, s12, 4")
    a.i("v_add_u32 v25, s7, v24")
    a.i("v_lshlrev_b32 v25, 7, v25")
    a.i(f"v_lshl_add_u32 v{XA}, v14, 4, v25")
    a.i(f"v_xor_b32 v{XA+1}, 64, v{XA}")
    a.i("v_bfe_u32 v14, v0, 2, 2")
    a.i("v_lshl_add_u32 v14, v15, 3, v14")
    a.i(f"v_lshlrev_b32 v{TA}, 5, v14")
    a.i("v_and_b32 v14, 3, v0")
    a.i(f"v_lshl_add_u32 v{TA}, v14, 3, v{TA}")
    a.i(f"v_add_u32 v{TA}, {L_WKV}, v{TA}")
    a.i(f"s_mov_b32 s{GSP}, {SPIN}")
    for r in range(34, 36): a.i(f"v_mov_b32 v{r}, 0")
    a.i(f"v_mov_b32 v14, {L_CNT}")
    a.i("v_mov_b32 v15, 1")
    a.i(f"s_cmp_ge_u32 s62, 4")
    a.i("s_cbranch_scc1 L_G0_V")
    vm1 = list(a.vm); lg1 = list(a.lg)
    for orient in range(2):
        if orient:
            a.label("L_G0_V"); a.vm = list(vm1); a.lg = list(lg1)
        NB_ = 4
        def rd(sx):
            b = 64 + 8*(sx % NB_)
            a.wait(vm=[("wk", sx), ("x", sx >> 1)])
            if "fst" in OPT and sx in (0, 4): stamp(a, 17 + sx//4, 14)
            if sx == 4: cnt_add(a, 14, 15, 0)
            a.i(f"ds_read_b64_tr_b16 {v(b,2)}, v{TA} offset:{sx*1024}")
            a.i(f"ds_read_b64_tr_b16 {v(b+2,2)}, v{TA} offset:{sx*1024+128}")
            a.i(f"ds_read_b128 {v(b+4,4)}, v{XA + (sx&1)} offset:{(sx>>1)*8192}", tag=("c", sx))
        for sx in range(NB_): rd(sx)
        for sx in range(16):
            a.wait(lg=("c", sx))
            b = 64 + 8*(sx % NB_)
            mfma16(a, 28, *((b, b+4) if orient == 0 else (b+4, b)), "0" if sx == 0 else None)
            if sx + NB_ < 16: rd(sx + NB_)
        if orient == 0: a.i("s_branch L_G0_pub")
    a.label("L_G0_pub")
    cnt_add(a, 14, 15, 12)
    stamp(a, 15, 250)
    if PRM["kscale"]:
        a.i("s_cmp_ge_u32 s62, 4")
        a.i(f"s_cselect_b32 s8, 1.0, {f2u(QSCALE):#x}")
        a.i("s_nop 2")
        for r in range(28, 32): a.i(f"v_mul_f32 v{r}, s8, v{r}")
    else: a.i("s_nop 1")
    a.i("v_cvt_pk_bf16_f32 v32, v28, v29")
    a.i("v_cvt_pk_bf16_f32 v33, v30, v31")
    a.i("v_min_u32 v32, -2, v32")
    a.i("s_nop 0")
    a.i("v_permlane32_swap_b32 v33, v35")
    a.i("v_permlane32_swap_b32 v32, v34")
    a.i("s_mov_b32 exec_hi, 0")
    a.i(f"buffer_store_dwordx4 v[32:35], v23, {R(SWS)}, s60 offen sc1")
    a.i("s_mov_b32 exec_hi, -1")
    stamp(a, 8, 14)
    g_setup(a)
    a.i("s_setprio 2")
    if PRM["w1pos"] != 3: g_w1first(a, "L_G0_now1")
    a.i("s_branch L_G_ffn1")

def kvload(a, st, so=SKO, off=0, SWS=SKV):
    b = KVS[st]
    return [
        lambda: a.i(f"buffer_load_dwordx4 {v(b,4)}, v{VLIN}, {R(SWS)}, s{so} offen offset:{off} sc1", tag=("kv", st)),
        lambda: a.i(f"buffer_load_dwordx4 {v(b+4,4)}, v{VV0}, {R(SWS)}, s{so} offen offset:{off+1024} sc1", tag=("kv", st)),
        lambda: a.i(f"buffer_load_dwordx4 {v(b+8,4)}, v{VV1}, {R(SWS)}, s{so} offen offset:{off+1024} sc1", tag=("kv", st))]
def kvfirstcheck(a):
    b0 = KVS[0]
    a.i(f"v_max3_u32 v{T0}, v{b0}, v{b0+4}, v{b0+8}")
    if PRM["chk3"]:
        b1, b2 = KVS[1:3]
        if PRM["kvp"] == 6: b2 = b1
        a.i(f"v_max3_u32 v{T1}, v{b1}, v{b1+4}, v{b1+8}")
        a.i(f"v_max3_u32 v{T0}, v{T0}, v{b2}, v{b2+4}")
        a.i(f"v_max3_u32 v{T0}, v{T0}, v{T1}, v{b2+8}")
    a.i(f"v_max_u32 v{T0}, v{T0}, v{KVS[3]+1}")
    a.i(f"v_cmp_eq_u32 vcc, -1, v{T0}")
def kvfirst(a):
    run(a, kvload(a, 0, SKC))
    a.i(f"buffer_load_dword v{KVS[3]+1}, v{KVS[3]}, {R(SWS)}, s{SKC} offen sc1", tag="sweep")
    run(a, kvload(a, 1, SKC, TS))
    if PRM["kvp"] != 6: run(a, kvload(a, 2, SKO))

def attn_slot(a, i, prv, cur, nxt, extra, last=False):
    Sc = S + 16*(i & 1); Sn = S + 16*((i+1) & 1)
    e = lambda r: a.i(f"v_exp_f32 v{Sc+r}, v{Sc+r}")
    c = lambda j: a.i(f"v_cvt_pk_bf16_f32 v{Pq+j}, v{Sc+2*j}, v{Sc+2*j+1}")
    ex = lambda k: run(a, extra.get(k, []))
    seq = [("e", r) for r in range(8)] + [("c", j) for j in range(4)] + [("e", r) for r in range(8, 16)] + [("c", j) for j in range(4, 8)]
    p1, pq, p0 = PRM["mp1"], PRM["mq"], PRM["mp0"]
    for n, (kind, r) in enumerate(seq):
        if n == p1:
            mfma(a, O + 16*((i - 1) % 8), (cur if i > 0 else prv) + 8, Pq + 4)
            ex(0)
        if n == pq:
            ex("pre1")
            if not (last and i == 7): mfma(a, Sn, cur if i < 7 else nxt, Q + 4*((i + 1) % 8), "0")
            ex(1)
        if n == p0:
            mfma(a, O + 16*i, cur + 4, Pq)
            ex(2)
        (e if kind == "e" else c)(r)

def a_waves(a, vmA):
    VXR, VTR, VC = 88, 92, 93
    a.label("L_A")
    a.vm = list(vmA); a.lg = []
    if PRM["apf"]:
        srd(a, SW1, "w1")
        wchunk_addr(a, 16, 14, 3584)
        a.i(f"s_lshr_b32 s12, s{S_MU}, 1")
        a.i("s_mul_i32 s12, s12, 7")
        a.i(f"s_and_b32 s13, s{S_MU}, 1")
        a.i("s_lshl_b32 s13, s13, 2")
        a.i("s_add_u32 s12, s12, s13")
        a.i("s_lshl_b32 s12, s12, 7")
        a.i(f"s_lshl_b32 s13, s{S_J}, 2")
        a.i(f"s_add_u32 s13, s13, s{S_W}")
        a.i(f"s_mul_i32 s13, s13, {16*3584}")
        a.i("s_add_u32 s12, s12, s13")
    assert not PRM["apf"]
    srd(a, SWS, "ws")
    xfrag_addr(a, VXR, 14, 15)
    tr_addr(a, VTR, 14, 15, 8)
    a.i(f"s_and_b32 s6, s{S_W}, 1")
    a.i(f"s_lshr_b32 s7, s{S_W}, 1")
    a.i("s_lshl_b32 s12, s6, 6")
    a.i(f"v_xor_b32 v{VTR}, s12, v{VTR}")
    a.i(f"v_add_u32 v{VTR}, {L_WQ}, v{VTR}")
    a.i("s_lshl_b32 s12, s7, 12")
    for q in range(4): a.i(f"v_add_u32 v{VXR+q}, s12, v{VXR+q}")
    a.i(f"v_and_b32 v{T0}, 15, v0")
    a.i(f"v_lshrrev_b32 v{T1}, 5, v0")
    a.i(f"v_lshlrev_b32 v{T1}, 8, v{T1}")
    a.i(f"v_lshl_add_u32 v{VV0}, v{T0}, 4, v{T1}")
    a.i(f"v_add_u32 v{VV1}, 512, v{VV0}")
    a.i(f"v_and_b32 v{T0}, 27, v0")
    a.i(f"v_cmp_eq_u32 vcc, 16, v{T0}")
    a.i(f"v_mov_b32 v{T1}, {BIG:#x}")
    a.i("v_mov_b32 v14, 1024")
    a.i(f"v_cndmask_b32 v{T1}, v{T1}, v14, vcc")
    a.i(f"v_and_b32 v{T0}, 16, v0")
    a.i(f"v_cmp_eq_u32 vcc, 0, v{T0}")
    a.i(f"s_mul_i32 s{SKC}, s{S_W}, {16*TS}")
    a.i(f"s_add_u32 s{SKO}, s{SKC}, {2*TS}")
    a.i(f"v_cndmask_b32 v{VV0}, v{T1}, v{VV0}, vcc")
    a.i(f"v_cndmask_b32 v{VV1}, v{T1}, v{VV1}, vcc")
    srd(a, SKV, "ws")
    a.i(f"s_add_u32 s{SKV+2}, s{SKC}, {16*TS}")
    a.i(f"s_mov_b32 s{SSP}, {SPIN}")
    a.i(f"v_mov_b32 v{VC}, {L_CNT}")
    for r in range(4, 8): a.i(f"v_mov_b32 v{Pq+r}, 0")
    for r in range(8, 12): a.i(f"v_mov_b32 v{KVS[3]+r}, 0")
    for r in range(127): a.i(f"v_mov_b32 v{O+r}, 0")
    a.i(f"v_lshrrev_b32 v{VG}, 2, v0")
    a.i(f"v_mul_u32_u24 v{VG}, {TS}, v{VG}")
    a.i(f"v_and_b32 v{VG+1}, 3, v0")
    a.i(f"v_bfe_u32 v14, v0, 1, 1")
    a.i(f"v_lshl_add_u32 v{KVS[3]}, v14, 10, v{VG}")
    a.i(f"v_add_u32 v14, 8, v14")
    a.i(f"v_and_b32 v15, 1, v0")
    a.i(f"v_lshlrev_b32 v15, v14, v15")
    a.i(f"v_add_u32 v{KVS[3]}, v{KVS[3]}, v15")
    a.i(f"v_subrev_u32 v14, 4, v0")
    a.i(f"v_cmp_gt_u32 vcc, {4*PRM['nsw']}, v14")
    a.i(f"v_mov_b32 v15, {BIG:#x}")
    a.i("s_nop 0")
    a.i(f"v_cndmask_b32 v{KVS[3]}, v15, v{KVS[3]}, vcc")
    a.i(f"v_lshl_add_u32 v{VG}, v{VG+1}, 2, v{VG}")
    a.i(f"v_add_u32 v{VG}, {2048 + 128}, v{VG}")
    QWA, QRA = 95, 96
    a.i("s_lshl_b32 s8, s6, 12")
    a.i("s_lshl_b32 s9, s7, 10")
    a.i("s_add_u32 s8, s8, s9")
    a.i(f"s_add_u32 s8, s8, {L_QF}")
    a.i(f"v_add_u32 v{QWA}, s8, v{VLIN}")
    a.i(f"s_mov_b32 s52, {f2u(QSCALE):#x}")
    for k in range(4):
        a.i(f"s_add_u32 s8, s{S_W}, {k+1}")
        a.i("s_and_b32 s8, s8, 3")
        a.i("s_lshl_b32 s8, s8, 11")
        a.i(f"s_add_u32 s8, s8, {L_QF}")
        a.i(f"v_add_u32 v{QRA+k}, s8, v{VLIN}")
    a.i(f"s_lshl_b32 s53, s{S_G}, 5")
    a.i(f"s_lshl_b32 s9, s{S_MU}, 2")
    a.i("s_add_u32 s53, s53, s9")
    a.i(f"s_add_u32 s53, s53, s{S_W}")
    a.i("s_lshl_b32 s53, s53, 11")
    a.i(f"s_add_u32 s53, s53, {WS_O}")
    a.i(f"s_mov_b32 s80, {f2u(2.0**-30):#x}")
    a.i(f"s_mov_b32 s81, {f2u(2.0**100):#x}")
    for k in range(3):
        a.i(f"s_add_u32 s9, s{S_W}, {3 - k}")
        a.i("s_and_b32 s9, s9, 3")
        a.i(f"s_add_u32 s9, s9, {4*k}")
        a.i(f"s_mul_i32 s{82+k}, s9, {XK}")
    a.i(f"s_mul_i32 s67, s{S_W}, {XK}")
    a.i("s_barrier")
    if PRM["wqlate"]: wq_round(a, 0)
    a.i(f"ds_read_b32 v{T0}, v{VC} offset:{C_T}")
    a.i(f"v_mov_b32 v{T1}, 1")
    a.i("s_waitcnt lgkmcnt(0)"); a.lg = []
    a.i(f"v_readfirstlane_b32 s{S_TAG}, v{T0}")
    a.wait(vm=("wq", 0))
    cnt_add(a, VC, T1, 0)
    a.i(f"v_mov_b32 v{O+127}, 0")
    a.i(f"s_setprio {PRM['qprio']}")
    cnt_wait(a, VC, T0, 0, CT[0], "L_k0", 8)
    stamp(a, 1, AST)
    def tagcheck():
        a.wait(vm="tag")
        a.i(f"v_cmp_ne_u32 vcc, s{S_TAG}, v{VG+1}")
        a.i("s_cbranch_vccnz L_tagr")
        a.label("L_tag_ok")
        stamp(a, 3, AST)
        a.vm = []
        kvfirst(a)
        if PRM["w1pos"] == 3 and PRM["ckpos"]: cnt_add(a, VC, T1, C_K)
    FRS = [8, 16, 24, 32, 40]; NB_ = PRM["qnb"]
    assert NB_ == 4 or PRM["kvat"] >= 32
    def rd(sx):
        b = FRS[sx % NB_]
        a.i(f"ds_read_b64_tr_b16 {v(b,2)}, v{VTR} offset:{sx*2048}")
        a.i(f"ds_read_b64_tr_b16 {v(b+2,2)}, v{VTR} offset:{sx*2048+512}")
        a.i(f"ds_read_b128 {v(b+4,4)}, v{VXR + (sx&3)} offset:{(sx>>2)*8192}", tag=("c", sx))
    for sx in range(NB_-1): rd(sx)
    for sx in range(32):
        nx = sx + NB_ - 1
        if nx < 32 and nx % 8 == 8 - NB_ and nx < 24: a.i(f"ds_read_b32 v{T0}, v{VC} offset:{4*(nx//8 + 1)}")
        if nx < 32 and nx % 8 == 0:
            a.i(f"v_readfirstlane_b32 s8, v{T0}")
            a.i(f"s_cmp_ge_u32 s8, {CT[nx//8]}")
            a.i(f"s_cbranch_scc0 L_k{nx//8}")
            a.label(f"L_k{nx//8}_ok")
        if nx < 32: rd(nx)
        if sx == PRM["tagat"]: a.i(f"buffer_load_dword v{VG+1}, v{VG}, {R(SWS)}, s{SKC} offen sc1", tag="tag")
        if sx == PRM["kvat"]: tagcheck()
        a.wait(lg=("c", sx))
        b = FRS[sx % NB_]
        mfma(a, S, b, b+4, "0" if sx == 0 else None)
    stamp(a, 2, AST)
    if PRM["kvat"] == 32: tagcheck()
    for r in range(0 if PRM["kscale"] else 16): a.i(f"v_mul_f32 v{S+r}, s52, v{S+r}")
    for j in range(8): a.i(f"v_cvt_pk_bf16_f32 v{80+j}, v{S+2*j}, v{S+2*j+1}")
    for e in range(2): a.i(f"ds_write_b128 v{QWA}, {v(80+4*e,4)} offset:{2048*e}")
    cnt_add(a, VC, T1, C_Q)
    if PRM["kvat"] == 33: tagcheck()
    def qreads():
        for i in range(8): a.i(f"ds_read_b128 {v(Q+4*i,4)}, v{QRA + (i>>1)} offset:{1024*(i&1)}")
    cnt_wait(a, VC, VTR, C_Q, 4, "L_qwait", 8, qreads)
    if PRM["kvat"] == 34: tagcheck()
    a.i(f"v_mov_b32 v{VG}, v{VC}")
    a.i(f"v_mov_b32 v{VG+1}, 1")
    a.wait(vm="all" if PRM["chk3"] else "sweep")
    kvfirstcheck(a)
    a.i("s_cbranch_vccnz L_kvr_first")
    a.label("L_kv_first_ok")
    if PRM["w1pos"] == 3 and not PRM["ckpos"]: cnt_add(a, VG, VG+1, C_K)
    if PRM["await"]:
        a.i("s_setprio 0")
        a.label("L_aw")
        a.i("s_sleep 2")
        cnt_wait(a, VG, T0, C_F, PRM["await"], "L_aw1", 8)
        a.ins[-1] = Ins("    s_cbranch_scc0 L_aw")
    stamp(a, 4, AST)
    mfma(a, S, KVS[0], Q, "0")
    a.i(f"s_setprio {PRM['ap']}")
    a.i(f"v_add_u32 v{T0}, s67, v{VLIN}")
    a.i(f"v_lshlrev_b32 v{T1}, 2, v0")
    a.i("s_add_u32 s67, s67, 4096")
    a.i(f"v_add_u32 v{T1}, s67, v{T1}")
    a.i(f"s_mov_b32 s{SIT}, 4")
    a.i("s_nop 4")
    a.i("s_branch L_attn_in")
    def tile(t, last=False):
        prv, cur, nxt = (t-1) % 4, t, (t+1) % 4
        ld = kvload(a, prv)
        if "nokv" in OPT: ld = ["s_nop 0"]*3
        XA = KVS[2]
        for i in range(8):
            extra = {}
            if not last:
                kp = PRM["kvp"]
                if i == 0: extra = {0: [f"s_add_u32 s{SKO}, s{SKO}, {TS}"]}
                if kp == 0:
                    if i == 0: extra.update({1: [ld[0]], 2: [ld[1]]})
                    if i == 1: extra = {0: [ld[2]]}
                elif kp == 1:
                    if i == 1: extra = {0: ld}
                elif kp == 5:
                    if i == 0: extra[2] = ld
                elif kp == 6:
                    extra = {}
                    if i == 0 and t % 2 == 0:
                        extra = {2: kvload(a, (t+2) % 4) + kvload(a, (t+3) % 4, off=TS)}
                    if i == 1 and t % 2 == 0: extra = {0: [f"s_add_u32 s{SKO}, s{SKO}, {2*TS}"]}
                elif i in (1, 2, 3): extra = {{2: 1, 3: 2, 4: 0}[kp]: [ld[i-1]]}
                if i == 7:
                    extra = {0: [lambda: a.wait(vm=("kv", nxt))]}
                    if t == 2:
                        extra[1] = [f"s_sub_u32 s{SIT}, s{SIT}, 1"]; extra[2] = [f"s_cmp_lg_u32 s{SIT}, 0"]
                if t == 2 and i == 5: extra = {0: [f"ds_read_b32 v{VG+1}, v{VG} offset:{C_F}"]}
                if t == 2 and i == 6: extra = {0: ["s_waitcnt lgkmcnt(0)"]}
            elif i >= 2 and 'nox' not in OPT:
                j = i - 2; k = j >> 1; o = 4*k*XK + (j & 1)*2048
                extra = {0: [f"ds_write_b128 v{T0}, {v(O+16*j,4)} offset:{o}"],
                         1: [f"ds_write_b128 v{T0}, {v(O+16*j+4,4)} offset:{o+1024}"]}
                if j & 1: extra[2] = [f"ds_write2st64_b32 v{T1}, v{O+16*j-8}, v{O+16*j+8} offset0:{4*k*XK//256} offset1:{4*k*XK//256+1}"]
            attn_slot(a, i, KVS[prv], KVS[cur], KVS[nxt], extra, last)
    a.raw(f".p2align {PRM['al']}")
    for _ in range(PRM["sh"]): a.raw("    s_nop 0")
    a.label("L_attn_loop")
    a.vm = [("kv", 0)]*3 + [("kv", 1)]*3; a.lg = []
    tile(3)
    a.label("L_attn_in")
    for t in range(3): tile(t)
    a.i("s_cbranch_scc1 L_attn_loop")
    a.lg = []
    a.i(f"v_readfirstlane_b32 s8, v{VG+1}")
    XA = KVS[2]
    a.i("s_cmp_ge_u32 s8, 4")
    a.i("s_cbranch_scc0 L_xwait")
    a.label("L_xok")
    tile(3, last=True)
    for k in range(2): a.i(f"v_add_u32 v{XA+k}, s{82+k}, v{VLIN}")
    mfma(a, O + 16*7, KVS[3] + 8, Pq + 4)
    a.i(f"v_add_u32 v{XA+2}, s84, v{VLIN}")
    a.i(f"v_lshlrev_b32 v{XA+6}, 2, v0")
    for k in range(3): a.i(f"v_add_u32 v{XA+3+k}, s{82+k}, v{XA+6}")
    a.i(f"v_and_b32 v{XA+6}, 124, v{XA+6}")
    a.i(f"v_add_u32 v{XA+6}, {L_G}, v{XA+6}")
    a.i("s_waitcnt lgkmcnt(0)"); a.lg = []
    stamp(a, 5, AST)
    a.i("s_barrier")
    a.i("s_setprio 3")
    LL = O + 16*5 + 10
    for rh in range(2):
        for k in range(3):
            o = rh*2048; d = O + 16*(rh*3 + k)
            a.i(f"ds_read_b128 {v(d,4)}, v{XA+k} offset:{o}")
            a.i(f"ds_read_b128 {v(d+4,4)}, v{XA+k} offset:{o+1024}", tag=("x", rh, k))
        if rh == 0:
            for k in range(3): a.i(f"ds_read2st64_b32 {v(LL+2*k,2)}, v{XA+3+k} offset0:16 offset1:17")
            a.i(f"ds_read2_b32 {v(VG,2)}, v{XA+6} offset0:0 offset1:32", tag="l")
    for rh in range(2):
        f = O + 16*(6 + rh); d = O + 48*rh
        a.wait(lg=("x", rh, 1))
        for r in range(0, 8, 2): a.i(f"v_pk_add_f32 {v(d+r,2)}, {v(d+r,2)}, {v(d+16+r,2)}")
        a.wait(lg=("x", rh, 2))
        for r in range(0, 8, 2): a.i(f"v_pk_add_f32 {v(f+r,2)}, {v(f+r,2)}, {v(d+32+r,2)}")
        if rh == 0:
            a.wait(lg="l")
            a.i(f"v_pk_add_f32 {v(LL,2)}, {v(LL,2)}, {v(LL+2,2)}")
            a.i(f"v_pk_add_f32 {v(LL,2)}, {v(LL,2)}, {v(LL+4,2)}")
        a.i(f"v_add_f32 v{f+8}, v{f+8}, v{LL+rh}")
        for r in range(0, 8, 2): a.i(f"v_pk_add_f32 {v(f+r,2)}, {v(f+r,2)}, {v(d+r,2)}")
        a.i(f"v_pk_mul_f32 {v(T0,2)}, {v(f,2)}, 0 op_sel_hi:[1,0]")
        a.i(f"v_cmp_le_f32 s[54:55], s80, v{f+8}")
        a.i(f"v_cmp_ge_f32 s[56:57], s81, v{f+8}")
        for r in range(2, 8, 2): a.i(f"v_pk_fma_f32 {v(T0,2)}, {v(f+r,2)}, 0, {v(T0,2)} op_sel_hi:[1,0,1]")
        a.i("s_and_b64 s[54:55], s[54:55], s[56:57]")
        a.i(f"v_cmp_o_f32 vcc, v{T0}, v{T1}")
        a.i(f"v_rcp_f32 v{T0}, v{f+8}")
        a.i("s_and_b64 s[54:55], s[54:55], vcc")
        a.i("s_cmp_eq_u64 s[54:55], -1")
        a.i(f"s_cbranch_scc0 L_slow{rh}")
        a.label(f"L_ok{rh}")
        a.i(f"v_mul_f32 v{T0}, v{T0}, v{VG+rh}")
        for r in range(0, 8, 2): a.i(f"v_pk_mul_f32 {v(f+r,2)}, {v(f+r,2)}, {v(T0,2)} op_sel_hi:[1,0]")
        for j in range(4): a.i(f"v_cvt_pk_bf16_f32 v{S+4*rh+j}, v{f+2*j}, v{f+2*j+1}")
        a.i(f"v_min_u32 v{S+4*rh}, -2, v{S+4*rh}")
        a.i(f"buffer_store_dwordx4 {v(S+4*rh,4)}, v{VLIN}, {R(SWS)}, s53 offen offset:{1024*rh} sc1")
    if PRM["b3b"]: a.i("s_barrier")
    stamp(a, 6, AST)
    a.i("s_setprio 0")
    final_addr(a, 8)
    a.i("s_waitcnt vmcnt(0)"); a.vm = []
    a.i("s_barrier")
    final_stage(a, 8)
    stamp(a, 7, AST)
    stamp_dump(a, "A")
    a.i("s_endpgm")
    a.label("L_kvr_first")
    a.i(f"s_sub_u32 s{SSP}, s{SSP}, 1")
    a.i(f"s_cmp_le_i32 s{SSP}, 0")
    a.i(f"s_cbranch_scc1 L_kv_first_ok")
    a.i("s_waitcnt vmcnt(0)"); a.vm = []
    kvfirst(a)
    a.wait(vm="all" if PRM["chk3"] else "sweep")
    kvfirstcheck(a)
    a.i("s_cbranch_vccz L_kv_first_ok")
    a.i("s_branch L_kvr_first")
    a.label("L_tagr")
    a.i("s_sleep 4")
    a.i(f"buffer_load_dword v{VG+1}, v{VG}, {R(SWS)}, s{SKC} offen sc1")
    a.i("s_waitcnt vmcnt(0)"); a.vm = []
    a.i(f"v_cmp_ne_u32 vcc, s{S_TAG}, v{VG+1}")
    a.i("s_cbranch_vccz L_tag_ok")
    spin_tail(a, SSP, "L_tagr", "L_tag_ok")
    cnt_wait(a, VG, VG+1, C_F, 4, "L_xwait", 8)
    a.i("s_branch L_xok")
    for q in range(1, 4):
        cnt_wait(a, VC, T0, 4*q, CT[q], f"L_k{q}", 8)
        a.i(f"s_branch L_k{q}_ok")

def a_slow(a):
    KV = KVS[0]
    for rh in range(2):
        f = O + 16*(6 + rh); q = Q + 4*(6 + rh)
        SS, CC, OO, PP = S + 16, KVS[2], O, Pq
        a.label(f"L_slow{rh}")
        if STAMP: a.i(f"s_sub_u32 s{SSP}, s{SSP}, 1000")
        a.i("s_waitcnt vmcnt(0)" + (" lgkmcnt(0)" if rh == 0 else ""))
        a.i(f"s_mov_b32 s{SKO}, {WS_KV}")
        a.i(f"v_mov_b32 v{T1}, 0xff800000")
        a.label(f"L_slow{rh}_a")
        run(a, kvload(a, 0, SWS=SWS))
        a.i("s_waitcnt vmcnt(0)")
        a.i(f"v_max3_u32 v{T0}, v{KV}, v{KV+4}, v{KV+8}")
        a.i(f"v_cmp_eq_u32 vcc, -1, v{T0}")
        a.i(f"s_cbranch_vccz L_slow{rh}_c")
        spin_tail(a, SSP, f"L_slow{rh}_a", f"L_slow{rh}_c")
        a.label(f"L_slow{rh}_c")
        mfma(a, SS, KV, q, "0")
        a.i("s_nop 15")
        for r in range(0, 16, 2): a.i(f"v_max3_f32 v{T1}, v{T1}, v{SS+r}, v{SS+r+1}")
        a.i(f"s_add_u32 s{SKO}, s{SKO}, {TS}")
        a.i(f"s_cmp_lt_u32 s{SKO}, {WS_KV + 64*TS}")
        a.i(f"s_cbranch_scc1 L_slow{rh}_a")
        a.i(f"v_mov_b32 v{T0}, v{T1}")
        a.i("s_nop 1")
        a.i(f"v_permlane32_swap_b32 v{T0}, v{T1}")
        a.i(f"v_max_f32 v{T1}, v{T0}, v{T1}")
        for r in range(16):
            a.i(f"v_sub_f32 v{CC+r}, 0, v{T1}")
            a.i(f"v_mov_b32 v{OO+r}, 0")
        a.i(f"s_mov_b32 s{SKO}, {WS_KV}")
        a.label(f"L_slow{rh}_b")
        run(a, kvload(a, 0, SWS=SWS))
        a.i("s_waitcnt vmcnt(0)")
        mfma(a, SS, KV, q, v(CC, 16))
        a.i("s_nop 15")
        for r in range(16): a.i(f"v_exp_f32 v{SS+r}, v{SS+r}")
        a.i("s_nop 0")
        for j in range(8): a.i(f"v_cvt_pk_bf16_f32 v{PP+j}, v{SS+2*j}, v{SS+2*j+1}")
        a.i("s_nop 1")
        mfma(a, OO, KV + 4, PP)
        mfma(a, OO, KV + 8, PP + 4)
        a.i("s_nop 15")
        a.i(f"s_add_u32 s{SKO}, s{SKO}, {TS}")
        a.i(f"s_cmp_lt_u32 s{SKO}, {WS_KV + 64*TS}")
        a.i(f"s_cbranch_scc1 L_slow{rh}_b")
        for r in range(9): a.i(f"v_mov_b32 v{f+r}, v{OO+r}")
        a.i(f"v_rcp_f32 v{T0}, v{f+8}")
        a.i("s_nop 1")
        a.i(f"s_branch L_ok{rh}")
    a.vm = []; a.lg = []

VW35, VW1K, VSW, GVC, VGG = 4, 6, 3, 12, 12
VTR_G, VTRP, VST = 224, 226, 228
VXR_G, BA1, ONE = 16, 20, 28
ACC, WF, XF, PRE, PD = 64, 32, 48, 128, 12
def g_setup(a):
    srd(a, SW1, "w1"); srd(a, SB1, "b1")
    wchunk_addr(a, VW35, 14, 3584)
    wchunk_addr(a, VW1K, 14, 1024)
    pair_of(a, 12)
    a.i("s_mul_i32 s12, s12, 7")
    role_of(a, 9)
    a.i("s_lshl_b32 s9, s9, 2")
    a.i(f"s_add_u32 s13, s9, s{GW}")
    a.i("s_add_u32 s12, s12, s13")
    a.i("s_lshl_b32 s12, s12, 7")
    a.i(f"s_add_u32 s77, s12, {32*16*3584}")
    a.i(f"s_mul_i32 s76, s{S_J}, {4*16*3584}")
    a.i("s_add_u32 s76, s76, s12")
    a.i("v_lshlrev_b32 v14, 1, v0")
    a.i("v_cmp_gt_u32 vcc, 32, v0")
    a.i(f"v_mov_b32 v15, {BIG:#x}")
    a.i(f"v_mov_b32 v{GVC}, {L_CNT}")
    a.i("v_cndmask_b32 v11, v15, v14, vcc")
    a.i("v_mov_b32 v15, 0x3f80")
    a.i(f"v_cndmask_b32 v{ONE}, 0, v15, vcc")
    for b in (BA1, BA1+4, ONE):
        for r in range(1, 4): a.i(f"v_mov_b32 v{b+r}, 0")
    xfrag_addr(a, VXR_G, 14, 15)
    tr_addr(a, VTR_G, 14, 15, 8)
    tr_addr(a, VTRP, 14, 15, 4)
    a.i(f"s_lshl_b32 s8, s{GW}, 11")
    a.i(f"s_add_u32 s8, s8, {L_STG}")
    a.i(f"v_add_u32 v{VSW}, s8, v{VLIN}")
    a.i(f"v_add_u32 v{VST}, s8, v{VTR_G}")
    a.i(f"s_mul_i32 s14, s{GW}, {RING_W}")
    a.i(f"s_add_u32 s14, s14, {L_RING}")
    a.i(f"v_add_u32 v{VTR_G}, s14, v{VTR_G}")
    a.i(f"v_add_u32 v{VTRP}, s14, v{VTRP}")
    for r in (VTR_G, VTRP, VST): a.i(f"v_xor_b32 v{r+1}, 64, v{r}")
    a.i("v_mov_b32 v8, 1")
def w1load(a, sx):
    pre = sx < PRM["NPRE"]
    if not pre: a.i(f"s_add_u32 m0, s14, {(sx % RD)*2048}")
    a.i(f"s_add_u32 s78, s76, {16*3584}")
    wstep(a, VW35, SW1, 76, PRE+8*(sx % PD) if pre else None, ("w", sx))
    a.i("s_cmp_eq_u32 s78, s77")
    a.i("s_cselect_b32 s76, s12, s78")
def g_w1first(a, name):
    assert (PRM["D1"] <= PRM["NPRE"] < 32 and PRM["D1"] < PD) or (PRM["NPRE"] == 0 and PRM["w1pos"] == 3)
    a.i("s_cmp_eq_u32 s13, 7")
    a.i(f"s_cbranch_scc1 {name}")
    n = len(a.vm)
    for p in range(2): a.i(f"buffer_load_ushort v{BA1+4*p}, v11, {R(SB1)}, s12 offen offset:{64*p}", tag="b")
    for sx in range(PRM["D1"]): w1load(a, sx)
    a.label(name)

def g_waves(a, VGE, VXE, VXO, vmG):
    VTR, VXR, VC = VTR_G, VXR_G, GVC
    NPRE, D1, D2W, D2H, DO, ND = (PRM[k] for k in ("NPRE", "D1", "D2W", "D2H", "DO", "ND"))
    a.label("L_G123")
    a.vm = list(vmG); a.lg = []
    a.i("s_waitcnt lgkmcnt(0)")
    srd(a, SX, "x")
    srd(a, SWS, "ws")
    g_setup(a)
    srd(a, SWQ, "wq")
    a.i(f"s_mov_b32 s{GSP}, {SPIN}")
    for k in range(3):
        a.i(f"s_add_u32 s8, s{GW}, {3*k - 1}")
        a.i("s_min_u32 s8, s8, 7")
        a.i(f"s_lshl_b32 s{60+k}, s8, 11") if False else None
        a.i(f"s_lshl_b32 s{52+k}, s8, 11")
        a.i(f"s_add_u32 s{52+k}, s{52+k}, {L_WQ}")
        a.i("s_lshl_b32 s8, s8, 14")
        a.i(f"s_lshl_b32 s9, s{S_J}, 16")
        a.i("s_add_u32 s8, s8, s9")
        a.i(f"s_lshl_b32 s9, s{S_MU}, 7")
        a.i(f"s_add_u32 s{64+k}, s8, s9")
    a.i("s_waitcnt lgkmcnt(0)"); a.lg = []
    a.i("s_barrier")
    if PRM["w1pos"] == 0:
        n0 = len(a.vm); g_w1first(a, "L_G_now1"); a.vm = a.vm[:n0]
    for q in range(4):
        for sl in (2*q, 2*q+1):
            a.i(f"s_add_u32 m0, s10, {L_X + sl*8192}")
            if sl:
                a.i("s_add_u32 s11, s11, 128")
                a.i("s_and_b32 s11, s11, 0x380")
            a.i(f"buffer_load_dwordx4 v{VXE}, {R(SX)}, s11 offen lds")
            a.i(f"buffer_load_dwordx4 v{VXO}, {R(SX)}, s11 offen offset:1024 lds", tag=("k", q) if q < 3 or sl < 7 else "x3")
        if q and PRM["esig"]:
            a.wait(vm=("k", q-1))
            cnt_add(a, VC, 8, 4*(q-1))
        for k in range(3 if q else 0):
            a.i(f"s_add_u32 s8, s{64+k}, {q << 17}")
            a.i(f"s_add_u32 m0, s{52+k}, {q*16384}")
            a.i("s_and_b32 s8, s8, 0x7ffff")
            wstep(a, VW1K, SWQ, 8, tag=("k", q))
        if PRM["st1"] and q in (PRM["st1"] - 1, PRM["st1"]):
            first = q == PRM["st1"] - 1
            if first:
                a.i("s_mul_i32 s8, s2, 7168")
                a.i(f"s_mul_i32 s9, s{GW}, {19*128}")
                a.i("s_add_u32 s8, s8, s9")
                a.i(f"s_sub_u32 s8, s8, {19*128}")
                a.i(f"s_add_u32 s72, s{P['w1']}, s8")
                a.i(f"s_addc_u32 s73, s{P['w1']+1}, 0")
            for i in (range(10) if first else range(10, 19)):
                if i == 18:
                    a.i(f"s_cmp_eq_u32 s{GW}, 3")
                    a.i("s_cbranch_scc1 L_st1")
                a.i(f"s_load_dword s74, s[72:73], {128*i}")
            if not first: a.label("L_st1")
        if q and not PRM["esig"]:
            a.wait(vm=("k", q-1))
            cnt_add(a, VC, 8, 4*(q-1))
    if PRM["w1pos"] == 2:
        a.i("s_cmp_eq_u32 s13, 7")
        a.i("s_cbranch_scc0 L_G_w1")
        a.i("s_waitcnt vmcnt(0)")
        a.label("L_G_w1")
        g_w1first(a, "L_G_now1")
    if PRM["xw"]:
        a.wait(vm="x3")
        cnt_add(a, VC, 8, C_X)
    a.wait(vm=("k", 3))
    cnt_add(a, VC, 8, 12)
    stamp(a, 0, 14, first=True)
    a.label("L_G_ffn1")
    a.vm = ["b"]*2 + [("w", sx) for sx in range(D1) for _ in range(2)]
    a.label("L_G_xw")
    if PRM["xsleep"]: a.i(f"s_sleep {PRM['xsleep']}")
    if PRM["xw"]:
        assert PRM["w1pos"] == 3
        a.i(f"ds_read2_b32 v[32:33], v{VC} offset0:0 offset1:{C_X//4}")
        a.i("s_waitcnt lgkmcnt(0)"); a.lg = []
        a.i("v_add_u32 v32, -5, v32")
        a.i("v_min_i32 v32, v32, v33")
    else:
        a.i(f"ds_read_b128 v[32:35], v{VC}")
        a.i("s_waitcnt lgkmcnt(0)"); a.lg = []
        a.i("v_add_u32 v32, -5, v32")
        a.i("v_add_u32 v35, -1, v35")
        a.i("v_min3_i32 v33, v33, v34, v35")
        a.i("v_min_i32 v32, v32, v33")
    a.i("v_readfirstlane_b32 s8, v32")
    a.i("s_cmp_ge_i32 s8, 3")
    a.i("s_cbranch_scc0 L_G_xw")
    stamp(a, 14, 14)
    a.i("v_bfe_u32 v14, v0, 4, 2")
    a.i("v_and_b32 v15, 7, v0")
    a.i("v_xor_b32 v14, v14, v15")
    a.i(f"s_and_b32 s8, s{GW}, 1")
    a.i("s_lshl_b32 s8, s8, 2")
    a.i("v_xor_b32 v14, s8, v14")
    a.i("v_lshlrev_b32 v14, 4, v14")
    a.i(f"v_add_u32 v99, {L_GW}, v14")
    a.i(f"s_setprio {PRM['gatep']}")
    XG, AC, GA = 32, 96, 98
    GFA = [64 + 4*k for k in range(8)]
    def gfr():
        for kb in range(8): a.i(f"ds_read_b128 {v(GFA[kb],4)}, v99 offset:{128*kb}")
    gfr()
    a.wait(lg="all")
    a.i(f"s_lshl_b32 s8, s{GW}, 10")
    a.i(f"v_add_u32 v{GA}, s8, v{VLIN}")
    for i in range(2): a.i(f"v_mov_b32 v{AC+i}, 0")
    def grd(kb):
        for i in range(2):
            a.i(f"ds_read_b128 {v(XG + 8*(kb % 3) + 4*i,4)}, v{GA} offset:{kb*8192 + i*4096}", tag=("g", kb))
    grd(0); grd(1)
    for kb in range(8):
        if kb < 6: grd(kb+2)
        a.wait(lg=("g", kb))
        for r in range(4):
            for i in range(2):
                a.i(f"v_dot2_f32_bf16 v{AC+i}, v{XG + 8*(kb % 3) + 4*i + r}, v{GFA[kb]+r}, v{AC+i}")
    a.i(f"v_lshrrev_b32 v{GA}, 3, v0")
    a.i(f"s_lshl_b32 s9, s{GW}, 5")
    a.i(f"s_add_u32 s9, s9, {L_G}")
    for mod in ("quad_perm:[1,0,3,2]", "quad_perm:[2,3,0,1]", "row_half_mirror"):
        for i in range(2):
            a.i(f"v_add_f32_dpp v{AC+i}, v{AC+i}, v{AC+i} {mod} row_mask:0xf bank_mask:0xf")
    a.i(f"s_mov_b32 s10, {f2u(-math.log2(math.e)):#x}")
    for i in range(2): a.i(f"v_mul_f32 v{AC+i}, s10, v{AC+i}")
    for i in range(2): a.i(f"v_exp_f32 v{AC+i}, v{AC+i}")
    a.i(f"v_lshl_add_u32 v{GA}, v{GA}, 2, s9")
    for i in range(2): a.i(f"v_add_f32 v{AC+i}, 1.0, v{AC+i}")
    for i in range(2): a.i(f"v_rcp_f32 v{AC+i}, v{AC+i}")
    a.i("s_nop 0")
    for i in range(2): a.i(f"ds_write_b32 v{GA}, v{AC+i} offset:{128*i}")
    a.i("s_waitcnt lgkmcnt(0)"); a.lg = []
    a.i("s_setprio 2")
    if "gidle" in OPT:
        a.i("s_waitcnt vmcnt(0)"); cnt_add(a, VC, 8, C_F)
        for _ in range(3): a.i("s_barrier")
        stamp_dump(a, "G"); a.i("s_endpgm")
    a.i("s_cmp_eq_u32 s13, 7")
    a.i("s_cbranch_scc1 L_G_idle")
    if PRM["w1pos"] == 3:
        a.label("L_G_kw")
        a.i("s_sleep 2")
        cnt_wait(a, VC, 14, C_K, 4, "L_G_kw1", 8)
        a.ins[-1] = Ins("    s_cbranch_scc0 L_G_kw")
        a.vm = []
        g_w1first(a, "L_G3_now1")
    a.wait(vm="b")
    for p in range(2):
        for rh in range(2): mfma(a, ACC + 32*p + 16*rh, BA1 + 4*p, ONE, "0")
    def rd1(sx):
        a.wait(vm=("w", sx))
        b = sx & 1
        if sx < NPRE:
            for p in range(2): a.i(f"ds_write_b128 v{VSW}, {v(PRE+8*(sx % PD)+4*p,4)} offset:{p*1024}")
        for p in range(2):
            o = 0 if sx < NPRE else (sx % RD)*2048
            ar = (VST if sx < NPRE else VTR) + p
            a.i(f"ds_read_b64_tr_b16 {v(WF+8*b+4*p,2)}, v{ar} offset:{o}")
            a.i(f"ds_read_b64_tr_b16 {v(WF+8*b+4*p+2,2)}, v{ar} offset:{o+512}")
        for rh in range(2):
            a.i(f"ds_read_b128 {v(XF+8*b+4*rh,4)}, v{VXR+(sx&3)} offset:{(sx>>2)*8192 + rh*4096}", tag=("r", sx))
    def ringgate():
        a.i("s_setprio 2")
        cnt_wait(a, VC, 14, C_Q, 4, a.newlabel("G_ring"), 8)
        a.i(f"s_setprio {PRM['gp0'] if PRM['await'] else 0}")
    WOF = 128
    def wo_setup():
        srd(a, SWO, "wo")
        a.i(f"s_lshl_b32 s8, s{S_MU}, 7")
        a.i(f"s_lshl_b32 s52, s{GW}, {16 if PRM['par'] == 3 else 17}")
        a.i("s_add_u32 s52, s52, s8")
        a.i(f"s_and_b32 s55, s{S_J}, 3" if PRM["gpx"] == 8 else f"s_lshr_b32 s55, s{S_J}, 1")
        a.i("s_lshl_b32 s67, s55, 15")
    def wo_load(k):
        a.i(f"s_add_u32 m0, s14, {k*2048}")
        a.i("s_add_u32 s63, s52, s67")
        if PRM["par"] == 3:
            a.i("s_bfe_u32 s54, s67, 0x10010")
            a.i(f"s_mul_i32 s54, s54, {262144 - 65536}")
            a.i("s_add_u32 s63, s63, s54")
        wstep(a, VW1K, SWO, 63, tag=("wo", k))
        a.i("s_add_u32 s67, s67, 16384")
        a.i("s_and_b32 s67, s67, 0x1ffff")
    def wo_read(k):
        a.wait(vm=("wo", k))
        for p in range(2):
            a.i(f"ds_read_b64_tr_b16 {v(WOF+8*k+4*p,2)}, v{VTRP+p} offset:{k*2048}")
            a.i(f"ds_read_b64_tr_b16 {v(WOF+8*k+4*p+2,2)}, v{VTRP+p} offset:{k*2048+1024}", tag=("wr", k))
    if PRM["woe"]:
        assert NPRE == 0 and D1 <= 4
        wo_setup()
    a.i(f"s_setprio {PRM['gp0']}")
    rd1(0)
    for sx in range(32):
        if sx in (1, 4, 8, 16) and ("fst" not in OPT or sx == 16) and "gst" not in OPT: stamp(a, {1: 16, 4: 17, 8: 18, 16: 19}[sx], 14)
        if sx + D1 < NPRE: w1load(a, sx + D1)
        b = sx & 1
        if PRM["gil"] & 1:
            assert NPRE == 0
            a.wait(lg=("r", sx))
            n = sx + 1; nb = n & 1; o = (n % RD)*2048
            rds = [] if n > 31 else [
                [lambda: a.wait(vm=("w", n)), f"ds_read_b64_tr_b16 {v(WF+8*nb,2)}, v{VTR} offset:{o}", f"ds_read_b64_tr_b16 {v(WF+8*nb+2,2)}, v{VTR} offset:{o+512}"],
                [f"ds_read_b128 {v(XF+8*nb,4)}, v{VXR+(n&3)} offset:{(n>>2)*8192}", f"ds_read_b128 {v(XF+8*nb+4,4)}, v{VXR+(n&3)} offset:{(n>>2)*8192 + 4096}"],
                [f"ds_read_b64_tr_b16 {v(WF+8*nb+4,2)}, v{VTR+1} offset:{o}", lambda: a.i(f"ds_read_b64_tr_b16 {v(WF+8*nb+6,2)}, v{VTR+1} offset:{o+512}", tag=("r", n))]]
            for j in range(4):
                mfma(a, ACC + 32*(j >> 1) + 16*(j & 1), WF+8*b+4*(j >> 1), XF+8*b+4*(j & 1))
                if j < len(rds): run(a, rds[j])
        else:
            if sx < 31: rd1(sx+1)
            a.wait(lg=("r", sx))
            for p in range(2):
                for rh in range(2):
                    mfma(a, ACC + 32*p + 16*rh, WF+8*b+4*p, XF+8*b+4*rh)
        if sx + D1 == NPRE and PRM['w1pos'] != 3: ringgate()
        if NPRE <= sx + D1 < 32: w1load(a, sx + D1)
        elif PRM["woe"]: wo_load(sx + D1 - 32)
    a.i("s_setprio 2")
    cnt_add(a, VC, 8, C_F)
    vm_end = list(a.vm)
    if NPRE >= 32: ringgate(); a.i("s_setprio 2")
    a.label("L_G_ffn1_end")
    if PRM["woe"]:
        for k in range(D1):
            wo_read(k)
            if k + D1 < 8: wo_load(k + D1)
            if k: a.wait(lg=("wr", k-1))
    a.i(f"ds_read_b32 v8, v{VC} offset:{C_T}")
    a.i("s_waitcnt lgkmcnt(0)"); a.lg = []
    a.i(f"v_readfirstlane_b32 s{S_TAG}, v8")
    stamp(a, 9, 250)
    srd(a, SW2, "w2"); srd(a, SB2, "b2")
    BA2 = BA1
    a.i(f"s_lshl_b32 s8, s{S_MU}, 7")
    a.i(f"s_cmp_eq_u32 s{GW}, 0")
    a.i(f"s_cselect_b32 s10, s8, {BIG:#x}")
    for p in range(2): a.i(f"buffer_load_ushort v{BA2+4*p}, v11, {R(SB2)}, s10 offen offset:{64*p}", tag="b")
    a.i(f"s_lshl_b32 s10, s{S_G}, 5")
    a.i(f"s_lshl_b32 s9, s{S_MU}, 2")
    a.i("s_add_u32 s10, s10, s9")
    a.i(f"s_add_u32 s10, s10, s{GW}")
    a.i("s_lshl_b32 s10, s10, 11")
    a.i(f"s_add_u32 s10, s10, {WS_O}")
    for r in range(4): a.i(f"v_mov_b32 v{XF+r}, -1")
    for rh in range(2): a.i(f"buffer_store_dwordx4 {v(XF,4)}, v{VLIN}, {R(SWS)}, s10 offen offset:{1024*rh} sc1")
    a.i(f"s_mul_i32 s66, s{GW}, {28*16384}")
    a.i("s_add_u32 s66, s66, s8")
    if not PRM["woe"]: wo_setup()
    a.i(f"s_mul_i32 s60, s{S_J}, 7")
    if PRM["gpx"] == 4: a.i(f"s_mul_i32 s61, s{S_MU}, 7")
    else:
        a.i(f"s_lshr_b32 s61, s{S_MU}, 1" if PRM["par"] in (1, 2) else f"s_and_b32 s61, s{S_MU}, 3")
        a.i("s_mul_i32 s61, s61, 14")
    a.i("s_add_u32 s60, s60, s61")
    a.i("s_lshr_b32 s60, s60, 1")
    a.i("s_sub_u32 s61, s60, 28")
    a.i("s_cselect_b32 s60, s60, s61")
    a.i("s_mov_b32 s61, s66")
    a.i(f"s_add_u32 s62, s66, {28*16384}")
    a.i("s_lshl_b32 s63, s60, 14")
    a.i("s_add_u32 s66, s66, s63")
    HR, HD = 192, 8
    slot = lambda sx: sx % RD if sx < 28 or not PRM["wos"] else 4 + (sx & 3)
    def dma2(sx):
        a.i(f"s_add_u32 m0, s14, {slot(sx)*2048}")
        if sx < 28:
            a.i("s_add_u32 s63, s66, 16384")
            wstep(a, VW1K, SW2, 66, tag=("w", sx))
            a.i("s_cmp_eq_u32 s63, s62")
            a.i("s_cselect_b32 s66, s61, s63")
        else:
            a.i("s_add_u32 s63, s52, s67")
            if PRM["par"] == 3:
                a.i("s_bfe_u32 s54, s67, 0x10010")
                a.i(f"s_mul_i32 s54, s54, {262144 - 65536}")
                a.i("s_add_u32 s63, s63, s54")
            wstep(a, VW1K, SWO, 63, tag=("w", sx))
            a.i("s_add_u32 s67, s67, 16384")
            a.i("s_and_b32 s67, s67, 0x1ffff")
    def hload(sx):
        for rh in range(2):
            a.i(f"buffer_load_dwordx4 {v(HR + 8*(sx % HD) + 4*rh,4)}, v{VLIN}, {R(SWS)}, s9 offen offset:{1024*rh} sc1", tag=("h", sx))
        a.i("s_add_u32 s9, s9, 2048")
        a.i("s_cmp_eq_u32 s9, s65")
        a.i("s_cselect_b32 s9, s64, s9")
    VTRP2 = XF + 6
    for p in range(2): a.i(f"v_mov_b32 v{VTRP2+p}, v{VTRP+p}")
    a.i(f"s_mul_i32 s8, s{S_G}, 112")
    a.i("s_lshl_b32 s10, s8, 11")
    a.i("s_lshl_b32 s9, s12, 6")
    a.i("s_add_u32 s10, s10, s9")
    a.i(f"s_add_u32 s12, s10, {WS_H}")
    a.i("s_cmp_eq_u32 s13, 7")
    a.i("s_cselect_b32 s56, 1, 0")
    a.i("s_add_u32 s13, s12, 4096")
    a.i(f"s_mul_i32 s9, s{GW}, 28")
    a.i("s_add_u32 s9, s9, s8")
    a.i("s_lshl_b32 s9, s9, 11")
    a.i(f"s_add_u32 s64, s9, {WS_H}")
    a.i(f"s_add_u32 s65, s64, {28*2048}")
    a.i("s_lshl_b32 s9, s60, 11")
    a.i("s_add_u32 s9, s9, s64")
    a.i(f"s_lshl_b32 s11, s{S_G}, 9")
    a.i(f"s_add_u32 s11, s11, {WS_HF}")
    pair_of(a, 10)
    a.i("s_lshl_b32 s10, s10, 7")
    a.i("s_add_u32 s10, s10, s11")
    role_of(a, 8)
    a.i("s_lshl_b32 s8, s8, 2")
    a.i(f"s_add_u32 s8, s8, s{GW}")
    a.i("s_lshl_b32 s8, s8, 2")
    a.i("s_add_u32 s57, s10, s8")
    a.i(f"s_lshl_b32 s8, s{GW}, 7")
    a.i("s_add_u32 s11, s11, s8")
    a.i("v_and_b32 v14, 7, v0")
    a.i("v_lshlrev_b32 v14, 2, v14")
    a.i("s_cmp_eq_u32 s56, 1")
    a.i("s_cbranch_scc1 L_G_noh")
    for p in range(2):
        for rh in range(2):
            t = ACC + 32*p + 16*rh
            o = 192 + 8*(2*p+rh)
            for r in range(0 if "noepi" in OPT else 16): a.i(f"v_max_f32 v{t+r}, 0, v{t+r}")
            for r in range(0, 0 if "noepi" in OPT else 16, 2): a.i(f"v_pk_mul_f32 {v(t+r,2)}, {v(t+r,2)}, {v(t+r,2)}")
            for j in range(0 if "noepi" in OPT else 8): a.i(f"v_cvt_pk_bf16_f32 v{o+j}, v{t+2*j}, v{t+2*j+1}")
            if PRM["hpace"] and 2*p + rh >= PRM["hpace"]: a.i(f"s_waitcnt vmcnt({2*PRM['hpace'] - 2})")
            for u in range(2):
                a.i(f"buffer_store_dwordx4 {v(o+4*u,4)}, v{VLIN}, {R(SWS)}, s{12+p} offen offset:{u*2048 + rh*1024} sc1", tag="hst")
    a.label("L_G_noh")
    if "gst" in OPT: stamp(a, 16, 14)
    a.vm = []
    if PRM["woe"]:
        assert PRM["DOV"] == 0
        DO = 0
    for k in range(PRM["DOV"]): dma2(28 + k)
    a.i(f"s_waitcnt vmcnt({2*PRM['DOV']})")
    a.i("s_mov_b64 exec, 1")
    a.i(f"buffer_store_dword v8, off, {R(SWS)}, s57 sc1")
    a.i("s_mov_b64 exec, -1")
    if "gst" in OPT: stamp(a, 17, 14)
    for k in range(PRM["DOV"], DO): dma2(28 + k)
    if PRM["woe"]:
        assert D1 == 4 and D2W <= 4
        for sx in range(D2W): dma2(sx)
    for p in range(2):
        for rh in range(2): mfma(a, ACC + 32*p + 16*rh, BA2 + 4*p, ONE, "0")
    WOF, OF = 128, 192
    def rd2(sx, dst):
        a.wait(vm=[("w", sx)])
        for p in range(2):
            o = slot(sx)*2048
            a.i(f"ds_read_b64_tr_b16 {v(dst+4*p,2)}, v{VTRP2+p} offset:{o}")
            a.i(f"ds_read_b64_tr_b16 {v(dst+4*p+2,2)}, v{VTRP2+p} offset:{o+1024}", tag=("r", sx))
    if PRM["woe"]:
        for k in range(D1, 8):
            if k >= 2*D1: wo_load(k)
            wo_read(k)
            if k > D1: a.wait(lg=("wr", k-1))
    for k in range(0 if PRM["woe"] else 8):
        rd2(28 + k, WOF + 8*k)
        if PRM["wos"]:
            assert DO <= 3 and D2W <= 4
            if k: a.wait(lg=("r", 28 + k - 1))
            if k + DO < 8: dma2(28 + k + DO)
            elif k + DO - 8 < D2W: dma2(k + DO - 8)
        else:
            if k + DO < 8: dma2(28 + k + DO)
            if k >= 2: a.wait(lg=("r", 28 + k - 2))
    a.wait(lg="all")
    if "gst" in OPT: stamp(a, 18, 14)
    for sx in range(D2W if PRM["woe"] else min(DO, D2W) if PRM["wos"] else 0, D2W): dma2(sx)
    a.label("L_hpoll")
    a.i(f"buffer_load_dword v15, v14, {R(SWS)}, s11 offen sc1")
    a.i("s_waitcnt vmcnt(0)"); a.vm = []
    a.i(f"v_cmp_ne_u32 vcc, s{S_TAG}, v15")
    a.i("s_cbranch_vccz L_hok")
    spin_tail(a, GSP, "L_hpoll", "L_hok", sleep=PRM["hsleep"])
    a.label("L_hok")
    stamp(a, 10, 250)
    for sx in range(D2H): hload(sx)
    a.i(f"s_lshl_b32 s12, s{S_G}, {3 if PRM['par'] == 3 else 2}")
    a.i(f"s_add_u32 s12, s12, s{GW}")
    a.i(f"s_lshl_b32 s12, s12, {13 if PRM['par'] == 3 else 14}")
    a.i(f"s_add_u32 s12, s12, {WS_O}")
    OSO = [12, 56, 57, 13]
    a.i("s_mov_b32 s8, s12")
    for k in range(4):
        a.i(f"s_add_u32 s9, s55, {k}") if False else None
        a.i(f"s_add_u32 s11, s55, {k}")
        a.i("s_and_b32 s11, s11, 3")
        if PRM["par"] == 3:
            a.i("s_lshr_b32 s54, s11, 1")
            a.i("s_mul_i32 s54, s54, 6")
            a.i("s_add_u32 s11, s11, s54")
        a.i("s_lshl_b32 s11, s11, 12")
        a.i(f"s_add_u32 s{OSO[k]}, s8, s11")
    if PRM["hint"]:
        a.i(f"s_lshl_b32 s72, s{S_G}, 9")
        a.i(f"s_add_u32 s72, s72, {WS_OH}")
        pair_of(a, 73)
        a.i("s_lshl_b32 s73, s73, 7")
        role_of(a, 74)
        a.i("s_lshl_b32 s74, s74, 2")
        a.i("s_add_u32 s73, s73, s74")
        a.i("s_add_u32 s73, s73, s72")
        a.i(f"s_lshl_b32 s74, s{GW}, 7")
        a.i("s_add_u32 s72, s72, s74")
        a.i("v_and_b32 v23, 1, v0")
        a.i("v_lshlrev_b32 v23, 2, v23")
        a.i(f"v_mov_b32 v22, s{S_TAG}")
    final_addr(a, 8)
    a.i("v_and_b32 v14, 31, v0")
    a.i("v_lshlrev_b32 v3, 2, v14")
    a.i(f"v_add_u32 v3, {L_G}, v3")
    a.i(f"v_mul_u32_u24 v14, {PITCH}, v14")
    a.i("v_lshrrev_b32 v15, 5, v0")
    a.i("v_lshl_add_u32 v14, v15, 4, v14")
    a.i("v_add_u32 v14, s14, v14")
    a.i("s_setprio 0")
    NM = 28 - ND
    def step2(sx):
        if PRM["gil"] & 2:
            a.wait(vm=("h", sx), lg=("r", sx))
            b = sx & 1; n = sx + 1; d = WF + 8*(n & 1); o = slot(n)*2048
            for j in range(4):
                mfma(a, ACC + 32*(j >> 1) + 16*(j & 1), WF+8*b+4*(j >> 1), HR + 8*(sx % HD) + 4*(j & 1))
                if n < 28 and n != NM and j < 2:
                    if j == 0: a.wait(vm=[("w", n)])
                    a.i(f"ds_read_b64_tr_b16 {v(d+4*j,2)}, v{VTRP2+j} offset:{o}")
                    a.i(f"ds_read_b64_tr_b16 {v(d+4*j+2,2)}, v{VTRP2+j} offset:{o+1024}", tag=("r", n))
            return
        if sx + 1 < 28 and sx + 1 != NM: rd2(sx+1, WF + 8*((sx+1) & 1))
        a.wait(vm=("h", sx), lg=("r", sx))
        b = sx & 1
        for p in range(2):
            for rh in range(2):
                mfma(a, ACC + 32*p + 16*rh, WF+8*b+4*p, HR + 8*(sx % HD) + 4*rh)
    if NM: rd2(0, WF)
    for sx in range(28):
        if sx == NM and "gst" in OPT: stamp(a, 19, 14)
        if sx < NM: step2(sx)
        elif not PRM["burst"] or sx == 27: a.wait(vm=[("w", sx), ("h", sx)])
        elif PRM["burst"] > 1: a.wait(vm=[("w", sx - PRM["burst"]), ("h", sx - PRM["burst"])])
        if sx + D2H < 28 - PRM["NL"]: hload(sx + D2H)
        if sx + D2W < 28 - PRM["NL"]: dma2(sx + D2W)
    stamp(a, 11, 48)
    a.i("s_barrier")
    for sx in range(28 - PRM["NL"], 28): dma2(sx); hload(sx)
    if PRM["hint"]:
        a.i(f"s_cmp_lg_u32 s{GW}, 0")
        a.i("s_cbranch_scc1 L_nohint")
        if PRM["hwait"]: a.i(f"s_sleep {PRM['hwait']}")
        a.i("s_mov_b64 exec, 1")
        a.i(f"buffer_store_dword v22, off, {R(SWS)}, s73 sc1")
        a.i("s_mov_b64 exec, -1")
        a.vm.pop()
        a.label("L_nohint")
    if PRM["b3b"]: a.i("s_barrier")
    a.i(f"ds_read2_b32 {v(VGG,2)}, v3 offset0:0 offset1:32", tag="g")
    if ND: rd2(NM, WF + 8*(NM & 1))
    OFR = [224, 192]
    def oload(rh):
        for k in range(8):
            a.i(f"buffer_load_dwordx4 {v(OFR[rh] + 4*k,4)}, v{VLIN}, {R(SWS)}, s{OSO[k>>1]} offen offset:{(k&1)*2048 + rh*1024} sc1", tag=("o", rh) if k >= 4 else ("oq", rh))
    def hintpoll(): a.i(f"buffer_load_dword v24, v23, {R(SWS)}, s72 offen sc1", tag="hint")
    def hintcheck():
        a.i("s_setprio 2")
        a.wait(vm="hint")
        a.i(f"v_cmp_ne_u32 vcc, s{S_TAG}, v24")
        a.i("s_cbranch_vccnz L_hint")
        a.label("L_hint_ok")
    _oload = oload
    def oload(rh, first=True):
        if PRM["hint"] and rh == 0 and first: hintcheck()
        _oload(rh)
    def ocheck(rh):
        b = OFR[rh]
        a.i(f"v_max3_u32 v20, v{b}, v{b+4}, v{b+8}")
        a.i(f"v_max3_u32 v21, v{b+12}, v{b+16}, v{b+20}")
        a.i(f"v_max3_u32 v20, v20, v{b+24}, v{b+28}")
        a.i("v_max_u32 v20, v20, v21")
        a.i("v_cmp_eq_u32 vcc, -1, v20")
    assert PRM["oat"] >= 23
    if NM > PRM["oat"]: oload(0)
    if PRM["il"]:
        WB = lambda sx: [WF + 8*(NM & 1), WF + 8*(1 - (NM & 1)), 56][(sx - NM) % 3]
        def rd_one(sx, j):
            p, second = j >> 1, j & 1
            a.i(f"ds_read_b64_tr_b16 {v(WB(sx)+4*p+2*second,2)}, v{VTRP2+p} offset:{slot(sx)*2048 + 1024*second}", tag=("r", sx))
        a.wait(vm="all")
        if NM + 1 < 28:
            for j in range(4): rd_one(NM + 1, j)
        for sx in range(NM, 28):
            a.wait(lg=("r", sx))
            for j in range(4):
                mfma(a, ACC + 32*(j >> 1) + 16*(j & 1), WB(sx) + 4*(j >> 1), HR + 8*(sx % HD) + 4*(j & 1))
                if sx + 2 < 28: rd_one(sx + 2, j)
            if PRM["hint"] and sx == PRM["hat"]: hintpoll()
            if sx == PRM["oat"]: oload(0)
    for sx in range(NM, 28 if not PRM["il"] else NM):
        step2(sx)
        if PRM["hint"] and sx == PRM["hat"]: hintpoll()
        if sx == PRM["oat"]: oload(0)
    a.i("s_setprio 2")
    a.wait(lg="all")
    oload(1)
    for rh in range(2): a.i(f"v_sub_f32 v{16+2*rh}, 1.0, v{VGG+rh}")
    for rh in range(2):
        for p in range(2):
            t = ACC + 32*p + 16*rh
            for r in range(0, 16, 2): a.i(f"v_pk_mul_f32 {v(t+r,2)}, {v(t+r,2)}, {v(16+2*rh,2)} op_sel_hi:[1,0]")
    def pwrite(rh, p, q):
        a.i(f"ds_write_b128 v14, {v(ACC + 32*p + 16*rh + 4*q,4)} offset:{rh*32*PITCH + (32*p + 8*q)*4}")
    def qcheck(q):
        b = OFR[q >> 1] + 16*(q & 1)
        a.i(f"v_max3_u32 v20, v{b}, v{b+4}, v{b+8}")
        a.i(f"v_max_u32 v20, v20, v{b+12}")
        a.i("v_cmp_eq_u32 vcc, -1, v20")
    if PRM["oq"]:
        for q in range(4):
            rh, kh = q >> 1, q & 1
            a.wait(vm=("o", rh) if kh else ("oq", rh))
            qcheck(q)
            a.i(f"s_cbranch_vccnz L_oq{q}")
            a.label(f"L_oqk{q}")
            if q == 0: stamp(a, 12, 22)
            for p in range(2):
                for k in range(4*kh, 4*kh + 4):
                    mfma(a, ACC + 32*p + 16*rh, WOF + 8*k + 4*p, OFR[rh] + 4*k)
                    if q == 2: pwrite(0, p, k)
                    if q == 3 and p == 1 and k == 4: a.i("s_nop 9")
                    if q == 3 and p == 1 and k in (5, 6): pwrite(1, 0, 2*k - 10); pwrite(1, 0, 2*k - 9)
        a.i("s_nop 11")
    else:
        for rh in range(2):
            a.wait(vm=("o", rh))
            ocheck(rh)
            a.i(f"s_cbranch_vccnz L_or{rh}")
            a.label(f"L_ook{rh}")
            if rh == 0: stamp(a, 12, 22)
            for p in range(2):
                for k in range(8):
                    mfma(a, ACC + 32*p + 16*rh, WOF + 8*k + 4*p, OFR[rh] + 4*k)
                    if k >= 4 and (rh or p): pwrite(*((rh, 0) if p else (0, 1)), k - 4)
    if not PRM["oq"]: a.i("s_nop 11")
    for q in range(4): pwrite(1, 1, q)
    a.i("s_waitcnt lgkmcnt(0)"); a.lg = []
    stamp(a, 13, 22)
    a.i("s_barrier")
    final_stage(a, 8)
    a.i(f"s_lshl_b32 s8, s{S_G}, 6")
    a.i(f"s_lshl_b32 s9, s{S_MU}, 3")
    a.i("s_add_u32 s8, s8, s9")
    a.i(f"s_add_u32 s8, s8, s{S_W}")
    a.i("s_cmp_lg_u32 s8, 5")
    a.i("s_cbranch_scc1 L_notag")
    a.i(f"v_mov_b32 v4, s{S_TAG}")
    a.i(f"s_mov_b32 s8, {WS_NONCE}")
    a.i("s_mov_b64 exec, 1")
    a.i(f"buffer_store_dword v4, off, {R(SWS)}, s8 sc1")
    a.label("L_notag")
    stamp(a, 7, 250)
    stamp_dump(a, "G")
    a.i("s_endpgm")
    for q in range(4 if PRM["oq"] else 0):
        a.label(f"L_oq{q}")
        a.i("s_waitcnt vmcnt(0)")
        a.label(f"L_oq{q}_a")
        for qq in range(q, 4):
            for k in range(4*(qq & 1), 4*(qq & 1) + 4):
                a.i(f"buffer_load_dwordx4 {v(OFR[qq >> 1] + 4*k,4)}, v{VLIN}, {R(SWS)}, s{OSO[k>>1]} offen offset:{(k&1)*2048 + (qq >> 1)*1024} sc1")
        a.i(f"s_waitcnt vmcnt({4*(3 - q)})")
        qcheck(q)
        a.i(f"s_cbranch_vccz L_oqk{q}")
        a.i("s_waitcnt vmcnt(0)"); a.vm = []
        spin_tail(a, GSP, f"L_oq{q}_a", f"L_oqk{q}")
    for rh in range(0 if PRM["oq"] else 2):
        a.label(f"L_or{rh}")
        a.i("s_waitcnt vmcnt(0)")
        a.label(f"L_or{rh}_a")
        if PRM["orsleep"]: a.i(f"s_sleep {PRM['orsleep']}")
        if PRM["opoll"] and rh == 0:
            a.i("v_lshlrev_b32 v22, 11, v0")
            a.i("v_and_b32 v22, 0x800, v22")
            a.label("L_op")
            a.i("s_mov_b64 exec, 3")
            for k in range(4): a.i(f"buffer_load_dword v{24+k}, v22, {R(SWS)}, s{OSO[k]} offen offset:{1024+1008} sc1")
            a.i("s_waitcnt vmcnt(0)")
            a.i("v_max3_u32 v24, v24, v25, v26")
            a.i("v_max_u32 v24, v24, v27")
            a.i("v_cmp_eq_u32 vcc, -1, v24")
            a.i("s_mov_b64 exec, -1")
            a.i("s_cbranch_vccz L_op_ok")
            spin_tail(a, GSP, "L_op", "L_op_ok")
            a.label("L_op_ok")
        oload(rh, False)
        if rh == 0: oload(1)
        a.i("s_waitcnt vmcnt(0)"); a.vm = []
        ocheck(rh)
        a.i(f"s_cbranch_vccz L_ook{rh}")
        spin_tail(a, GSP, f"L_or{rh}_a", f"L_ook{rh}")
    if PRM["hint"]:
        a.label("L_hint")
        a.i(f"buffer_load_dword v24, v23, {R(SWS)}, s72 offen sc1")
        a.i("s_waitcnt vmcnt(0)")
        a.i(f"v_cmp_ne_u32 vcc, s{S_TAG}, v24")
        a.i("s_cbranch_vccz L_hint_ok")
        spin_tail(a, GSP, "L_hint", "L_hint_ok")
    a.label("L_G_idle")
    a.i("s_waitcnt vmcnt(0)")
    cnt_add(a, VC, 8, C_F)
    a.label("L_G_idle_a")
    a.i("s_sleep 8")
    a.i(f"ds_read_b32 v14, v{VC} offset:{C_F}")
    a.i("s_waitcnt lgkmcnt(0)")
    a.i("v_readfirstlane_b32 s8, v14")
    a.i("s_cmp_ge_u32 s8, 4")
    a.i("s_cbranch_scc0 L_G_idle_a")
    if PRM["woe"]:
        wo_setup()
        for k in range(D1): wo_load(k)
    a.i("s_branch L_G_ffn1_end")

HEAD = open("cdna_kernels/" + NAME + ".s.ref").read().split("; Override launch")[0]
def kd(name, vg=256):
    return f""".section .rodata,"a"
.p2align 6
.amdhsa_kernel {name}
  .amdhsa_next_free_vgpr {vg}
  .amdhsa_next_free_sgpr 102
  .amdhsa_accum_offset {vg}
  .amdhsa_group_segment_fixed_size 0
  .amdhsa_kernarg_size 112
  .amdhsa_user_sgpr_count 2
  .amdhsa_user_sgpr_kernarg_segment_ptr 1
  .amdhsa_system_sgpr_workgroup_id_x 1
.end_amdhsa_kernel
"""
DOC = """;
;                  8 (head, 32-row) tiles; the partial sums meet in LDS.
; (all ones = NaN) first, h is announced with flags; the "marked" notices and the flags carry a tag that differs
; from the tag of the launch before (read from d_ws, advanced at the end). A k/v mark that is still there when a
; bounded.
;
"""
def build(kernels):
    s_ = HEAD
    if len(kernels) == 1:
        n, blk, lds, body = kernels[0]
        s_ += f"; @launch grid=(256,1,1) block=({blk},1,1) lds={lds}\n"
    else:
        for n, blk, lds, body in kernels:
            s_ += f"; @launch kernel={n} grid=(256,1,1) block=({blk},1,1) lds={lds}\n"
    s_ += DOC + '.amdgcn_target "amdgcn-amd-amdhsa--gfx950"\n'
    for n, blk, lds, body in kernels:
        s_ += f".text\n.globl {n}\n.p2align 8\n.type {n},@function\n{n}:\n{body}" + kd(n)
    return s_

if __name__ == "__main__":
    out = sys.argv[1]
    OPT = set(sys.argv[2:])
    STAMP = "stamp" in OPT
    ks = [(NAME + "_kernel", 512, LDS_BYTES, None)]
    for o in OPT:
        if "=" in o and o.split("=")[0] in PRM: PRM[o.split("=")[0]] = int(o.split("=")[1])
        if o.startswith("only="):
            STAMP = True; ONLY = int(o[5:])
            ks.append(("wait_kernel", 256, 1024, waitk(ONLY)))
    ks[0] = ks[0][:3] + (kernel(),)
    open(out, "w").write(build(ks))
```

```python
import sys
from mb_common import *
from asmgen import *
Q, S, Pq, O = 8, 64, 96, 128
KVS = [40, 52, 104, 116]
def mf(a, d, A, B, C=None): a.i(f"v_mfma_f32_32x32x16_bf16 {v(d,16)}, {v(A,4)}, {v(B,4)}, {C or v(d,16)}")
def mf16(a, d, A, B, C=None): a.i(f"v_mfma_f32_16x16x32_bf16 {v(d,4)}, {v(A,4)}, {v(B,4)}, {C or v(d,4)}")
def slot(a, var, i, prv, cur, nxt):
    Sc = S + 16*(i & 1); Sn = S + 16*((i+1) & 1)
    e = lambda r: a.i(f"v_exp_f32 v{Sc+r}, v{Sc+r}")
    if "perm" in var: c = lambda j: a.i(f"v_perm_b32 v{Pq+j}, v{Sc+2*j+1}, v{Sc+2*j}, s30")
    else: c = lambda j: a.i(f"v_cvt_pk_bf16_f32 v{Pq+j}, v{Sc+2*j}, v{Sc+2*j+1}")
    ip = (i - 1) % 8; sp = cur if i else prv
    qk = lambda: mf(a, Sn, cur if i < 7 else nxt, Q + 4*((i+1) % 8), "0")
    if var.startswith("agpr"):
        A_ = lambda d: f"a[{d-128}:{d-113}]"
        mfa = lambda d, A, B: a.i(f"v_mfma_f32_32x32x16_bf16 {A_(d)}, {v(A,4)}, {v(B,4)}, {A_(d)}")
        e(0); e(1)
        mfa(O + 16*ip, sp + 8, Pq + 4)
        for r in range(2, 7): e(r)
        qk(); e(7)
        for j in range(4): c(j)
        e(8); e(9)
        mfa(O + 16*i, cur + 4, Pq)
        for r in range(10, 16): e(r)
        for j in range(4, 8): c(j)
    elif var.startswith("even"):
        e(0); e(1)
        mf(a, O + 16*ip, sp + 8, Pq + 4)
        e(2); e(3); c(0); e(4); e(5); c(1)
        qk(); e(6); e(7); c(2); e(8); c(3); e(9); e(10)
        mf(a, O + 16*i, cur + 4, Pq)
        e(11); c(4); e(12); e(13); c(5); e(14); e(15); c(6); c(7)
    elif var.startswith("pvpv"):
        e(0); e(1)
        mf(a, O + 16*ip, sp + 4, Pq)
        e(2); e(3); e(4)
        mf(a, O + 16*ip, sp + 8, Pq + 4)
        for r in range(5, 9): e(r)
        qk()
        for r in range(9, 16): e(r)
        for j in range(8): c(j)
    elif var.startswith("base") or var.startswith("nopv"):
        e(0); e(1)
        if not var.startswith("nopv"): mf(a, O + 16*ip, sp + 8, Pq + 4)
        for r in range(2, 7): e(r)
        qk(); e(7)
        for j in range(4): c(j)
        e(8); e(9)
        if not var.startswith("nopv"): mf(a, O + 16*i, cur + 4, Pq)
        for r in range(10, 16): e(r)
        for j in range(4, 8): c(j)
    elif var.startswith("smf"):
        e(0); e(1)
        a.raw(f"    v_smfmac_f32_32x32x32_bf16 {v(O+16*ip,16)}, {v(sp+4,4)}, {v(Pq,8)}, v7")
        for r in range(2, 5): e(r)
        if "l" in var[3:]: a.raw(f"    v_smfmac_f32_32x32x32_bf16 {v(O+16*((ip+4) % 8),16)}, {v(sp+8,4)}, {v(Pq,8)}, v7")
        for r in range(5, 10): e(r)
        qk()
        if "add" in var:
            for r in range(10, 16): e(r)
            for r in range(0, 16, 2): a.i(f"v_pk_add_f32 v[4:5], v[4:5], {v(Sc+r,2)}")
        else:
            for r in range(10, 16): e(r)
        for j in range(8): c(j)
    elif var.startswith("p16"):
        e(0); e(1)
        mf16(a, O + 16*ip, sp + 4, Pq)
        e(2)
        mf16(a, O + 16*ip + 4, sp + 4, Pq + 4)
        e(3)
        if "l" in var[3:]: mf16(a, O + 16*ip + 8, sp + 8, Pq)
        e(4)
        if "l" in var[3:]: mf16(a, O + 16*ip + 12, sp + 8, Pq + 4)
        for r in range(5, 8): e(r)
        qk()
        for r in range(8, 16): e(r)
        if "add" in var:
            for r in range(0, 16, 2): a.i(f"v_pk_add_f32 v[4:5], v[4:5], {v(Sc+r,2)}")
        for j in (0, 4, 1, 5, 2, 6, 3, 7): c(j)
        a.i("s_nop 0")
        for j in range(4): a.i(f"v_permlane16_swap_b32 v{Pq+j}, v{Pq+4+j}")
def gpart(a, g, n):
    a.i("s_setprio 0")
    a.i("s_lshl_b32 s25, s20, 15"); a.i("s_lshl_b32 s23, s20, 10"); a.i("s_add_u32 m0, s23, 16384")
    a.i(f"s_mov_b32 s21, {n//2}")
    a.label("L_g_@")
    for b in range(2):
        for k in range(4): a.i(f"ds_read_b128 {v(32+16*(1-b)+4*k,4)}, v2 offset:{(b*4+k)*1024}")
        a.i("s_waitcnt lgkmcnt(4)")
        nl = int(g[4:]) if len(g) > 3 else 0
        for k in range(nl):
            a.i("s_add_u32 s25, s25, 1024"); a.i("s_and_b32 s25, s25, 0x3ffff")
            a.i("buffer_load_dwordx4 v2, s[40:43], s25 offen lds")
        if nl: a.i(f"s_waitcnt vmcnt({2*nl})")
        if g.startswith("g00"): pass
        elif g.startswith("g32"):
            for p in range(2):
                for rh in range(2): mf(a, 64+32*p+16*rh, 32+16*b+4*p, 40+16*b+4*rh)
        elif b == 1 or True:
            for t in range(8): mf16(a, 64+4*(8*b+t), 32+16*b+4*(t & 1), 40+16*b+4*((t >> 1) & 1))
    a.i("v_add_u32 v2, 8192, v2") if False else None
    a.i("s_sub_u32 s21, s21, 1"); a.i("s_cmp_lg_u32 s21, 0"); a.i("s_cbranch_scc1 L_g_@")
def body(n, var, g, gn):
    a = Asm()
    a.i("s_load_dwordx4 s[4:7], s[0:1], 0")
    a.i("v_lshrrev_b32 v1, 6, v0"); a.i("v_lshlrev_b32 v3, 4, v0"); a.i("v_and_b32 v0, 63, v0"); a.i("v_readfirstlane_b32 s20, v1")
    a.i("v_lshlrev_b32 v2, 4, v0")
    a.i("s_mov_b32 s30, 0x07060302")
    a.i("s_waitcnt lgkmcnt(0)")
    for d, p in ((8, 4), (40, 6)):
        a.i(f"s_mov_b32 s{d}, s{p}"); a.i(f"s_mov_b32 s{d+1}, s{p+1}"); a.i(f"s_mov_b32 s{d+2}, 0x1000000"); a.i(f"s_mov_b32 s{d+3}, 0x20000")
    a.i("s_lshl_b32 s22, s2, 10"); a.i("s_lshl_b32 s23, s20, 10"); a.i("s_mov_b32 m0, s23")
    a.i("s_mov_b32 s24, 0x300000")
    a.i("buffer_load_dwordx4 v3, s[40:43], s24 offen lds")
    for i in range(8): a.i(f"buffer_load_dwordx4 {v(Q+4*i,4)}, v2, s[40:43], s22 offen"); a.i("s_add_u32 s22, s22, 1024")
    a.i("s_add_u32 s22, s22, 0x100000")
    for st in KVS: a.i(f"buffer_load_dwordx4 {v(st,4)}, v2, s[40:43], s22 offen"); a.i("s_add_u32 s22, s22, 1024")
    a.i("s_add_u32 s22, s22, 0x100000")
    for st in KVS:
        for k in (4, 8): a.i(f"buffer_load_dwordx4 {v(st+k,4)}, v2, s[40:43], s22 offen"); a.i("s_add_u32 s22, s22, 1024")
    a.i("v_mov_b32 v7, 0x44444444")
    a.i("v_and_b32 v6, 16, v0"); a.i("v_cmp_ne_u32 s[26:27], 0, v6")
    a.i("v_mov_b32 v5, 0xeeeeeeee"); a.i("s_nop 1"); a.i("v_cndmask_b32 v7, v7, v5, s[26:27]")
    a.i("v_and_b32 v6, 27, v0"); a.i("v_cmp_eq_u32 vcc, 16, v6"); a.i("v_mov_b32 v5, 0x3f803f80"); a.i("s_nop 1"); a.i("v_cndmask_b32 v5, 0, v5, vcc")
    a.i("v_and_b32 v6, 15, v0"); a.i("v_cmp_eq_u32 vcc, 0, v6"); a.i("v_mov_b32 v6, 0x3f803f80"); a.i("s_nop 1"); a.i("v_cndmask_b32 v6, 0, v6, vcc")
    a.i("s_waitcnt vmcnt(0)")
    for st in KVS:
        if var[:3] not in ("smf", "p16"):
            for k in range(4, 12): a.i(f"v_cndmask_b32 v{st+k}, v{st+k}, v5, s[26:27]")
        else:
            for k in range(8, 12): a.i(f"v_mov_b32 v{st+k}, v6")
    for r in list(range(64, 104)) + [4, 5]: a.i(f"v_mov_b32 v{r}, 0")
    for r in range(128, 256): a.i(f"v_mov_b32 v{r}, 0" if not var.startswith("agpr") else f"v_accvgpr_write_b32 a{r-128}, 0")
    a.i("s_barrier")
    a.i("s_memrealtime s[12:13]"); a.i("s_memtime s[14:15]"); a.i("s_waitcnt lgkmcnt(0)")
    a.i("s_cmp_ge_u32 s20, 4"); a.i("s_cbranch_scc1 L_G_@")
    a.i("s_setprio 1")
    a.i("s_mov_b32 s21, 4")
    a.raw(".p2align 6")
    a.label("L_a_@")
    for t in range(4):
        for i in range(8): slot(a, var, i, KVS[(t-1) % 4], KVS[t], KVS[(t+1) % 4])
    a.i("s_sub_u32 s21, s21, 1"); a.i("s_cmp_lg_u32 s21, 0"); a.i("s_cbranch_scc1 L_a_@")
    a.i("s_branch L_o_@")
    a.label("L_G_@")
    if g: gpart(a, g, gn)
    a.label("L_o_@")
    a.i("s_memrealtime s[16:17]"); a.i("s_memtime s[18:19]"); a.i("s_waitcnt lgkmcnt(0)")
    a.i("s_sub_u32 s16, s16, s12"); a.i("s_sub_u32 s18, s18, s14")
    a.i("s_nop 15")
    a.i("v_mov_b32 v4, s16"); a.i("v_mov_b32 v5, s18")
    a.i("s_lshl_b32 s22, s2, 3"); a.i("s_add_u32 s22, s22, s20"); a.i("s_lshl_b32 s22, s22, 3")
    a.i("buffer_store_dwordx2 v[4:5], off, s[8:11], s22")
    a.i("s_endpgm")
    return a.finish(False).replace("@", str(n))
tests = [("base", None, 0), ("base", "g32", 52), ("base", "g32m2", 52), ("base", "g32m3", 52), ("base", "g32m4", 52), ("base", "g00", 52), ("base", "g00m4", 52), ("base", "g16m3", 52)]
if __name__ == "__main__":
    co = build("mb15.s", [(f"k_{i}", body(i, *t), 256, 128 if t[0] == "agpr" else 256) for i, t in enumerate(tests)])
    if not os.path.exists("/dev/kfd"): sys.exit(0)
    from cdna_launch import AsmKernel, DeviceBuffer, _hip, _check
    rng = np.random.default_rng(0)
    def bf(x): return ((x.astype(np.float32).view(np.uint32) + 0x8000) >> 16).astype(np.uint16)
    data = np.concatenate([bf(rng.normal(0, 0.9*0.36, 1 << 19)), bf(rng.normal(0, 0.9, 1 << 19)), bf(rng.normal(0, 0.22, 1 << 19)), bf(rng.normal(0, 0.05, 1 << 19))])
    buf = DeviceBuffer(1 << 24); db = DeviceBuffer.from_numpy(np.concatenate([data, data])); flush = DeviceBuffer(1 << 28)
    ka = struct.pack("<14Q", *([buf.ptr, db.ptr] + [0]*12))
    ks = [AsmKernel(co, f"k_{i}", check=False) for i in range(len(tests))]
    res = [[] for _ in tests]
    for rep in range(24):
        for i, k in enumerate(ks):
            _check(_hip.hipMemsetAsync(ctypes.c_void_p(flush.ptr), 1, 1 << 28, None))
            k.launch((256,1,1), (512,1,1), ka, shared_mem=100000); _check(_hip.hipDeviceSynchronize())
            o = buf.to_numpy(np.uint32, (256, 8, 2)).astype(np.float64)
            res[i].append([np.median(o[:, :4, 0])/100, np.median(o[:, :4, 1]), np.median(o[:, 4:, 0])/100])
    for t, r in zip(tests, res):
        m = np.median(np.array(r[2:]), 0)
        print(t, "A %.2f us %d cyc (%d MHz)  G %.2f us" % (m[0], m[1], m[1]/m[0], m[2]))
```

```python
import sys
import mb15, mb16
from mb15 import *
forms = {
 "none": [],
 "buf3": ["buffer_load_dwordx4 v[104:107], v2, s[40:43], s24 offen sc1", "buffer_load_dwordx4 v[108:111], v3, s[40:43], s24 offen offset:1024 sc1", "buffer_load_dwordx4 v[112:115], v3, s[40:43], s24 offen offset:1024 sc1"],
 "buf3full": ["buffer_load_dwordx4 v[104:107], v2, s[40:43], s24 offen sc1", "buffer_load_dwordx4 v[108:111], v2, s[40:43], s24 offen offset:1024 sc1", "buffer_load_dwordx4 v[112:115], v2, s[40:43], s24 offen offset:2048 sc1"],
 "glob3": ["global_load_dwordx4 v[104:107], v2, s[6:7] sc1", "global_load_dwordx4 v[108:111], v2, s[6:7] offset:1024 sc1", "global_load_dwordx4 v[112:115], v2, s[6:7] offset:2048 sc1"],
 "bufexec": ["buffer_load_dwordx4 v[104:107], v2, s[40:43], s24 offen sc1", "s_mov_b64 exec, s[28:29]", "buffer_load_dwordx4 v[108:111], v2, s[40:43], s24 offen offset:1024 sc1", "buffer_load_dwordx4 v[112:115], v2, s[40:43], s24 offen offset:2048 sc1", "s_mov_b64 exec, -1"],
 "buf1": ["buffer_load_dwordx4 v[104:107], v2, s[40:43], s24 offen sc1"],
 "buf2": ["buffer_load_dwordx4 v[104:107], v2, s[40:43], s24 offen sc1", "buffer_load_dwordx4 v[108:111], v2, s[40:43], s24 offen offset:1024 sc1"],
 "ds3": ["ds_read_b128 v[104:107], v2", "ds_read_b128 v[108:111], v2 offset:1024", "ds_read_b128 v[112:115], v2 offset:2048"],
}
def mk(form, where):
    def slot(a, var, i, prv, cur, nxt):
        Sc = S + 16*(i & 1); Sn = S + 16*((i+1) & 1)
        seq = [("e", r) for r in range(8)] + [("c", j) for j in range(4)] + [("e", r) for r in range(8, 16)] + [("c", j) for j in range(4, 8)]
        K = 40; m = 0
        for n, (k, r) in enumerate(seq):
            for pos, f in ((3, lambda: mf(a, O + 16*((i-1) % 8), K + 8, Pq + 4)), (6, lambda: mf(a, Sn, K, Q + 4*((i+1) % 8), "0")), (14, lambda: mf(a, O + 16*i, K + 4, Pq))):
                if n == pos:
                    f()
                    if where == "row" and i == 0 and pos == 14:
                        for t in forms[form]: a.raw("    " + t)
                    if where == "row6" and i == 0 and pos == 6:
                        for t in forms[form]: a.raw("    " + t)
                    if where == "row3" and i == 0 and pos == 3:
                        for t in forms[form]: a.raw("    " + t)
                    if where == "sep" and pos == 14 and i < len(forms[form]): a.raw("    " + forms[form][i])
                    if i == 7 and pos == 3: a.raw("    s_waitcnt vmcnt(0) lgkmcnt(0)")
            a.i(f"v_exp_f32 v{Sc+r}, v{Sc+r}" if k == "e" else f"v_cvt_pk_bf16_f32 v{Pq+r}, v{Sc+2*r}, v{Sc+2*r+1}")
    return slot
tests = [(f, w, g) for g in (None, "g32") for f in forms for w in ("row", "row6", "row3", "sep") if not (w == "sep" and f == "bufexec") and (f != "none" or w == "row")]
if __name__ == "__main__":
    ks = []
    for n, (f, w, g) in enumerate(tests):
        mb15.slot = mk(f, w)
        b = body(n, "base", g, 52)
        b = b.replace("    s_barrier\n", "    s_mov_b32 s28, 0xffff\n    s_mov_b32 s29, 0xffff\n    s_mov_b32 s24, 0\n    v_and_b32 v6, 16, v0\n    v_lshlrev_b32 v6, 26, v6\n    v_or_b32 v3, v2, v6\n    s_barrier\n", 1)
        ks.append((f"k_{n}", b, 256, 256))
    co = build("mb18.s", ks)
    if not os.path.exists("/dev/kfd"): sys.exit(0)
    from cdna_launch import AsmKernel, DeviceBuffer, _hip, _check, _launch_function
    buf = DeviceBuffer(1 << 24); db = DeviceBuffer(1 << 24)
    _check(_hip.hipMemset(ctypes.c_void_p(db.ptr), 0, 1 << 24))
    ka = struct.pack("<14Q", *([buf.ptr, db.ptr] + [0]*12))
    k0 = AsmKernel(co, "k_0", check=False)
    for i, t in enumerate(tests):
        f = k0.function(f"k_{i}"); r = []
        for rep in range(3):
            _launch_function(f, (1,1,1), (512,1,1), ka, 100000); _check(_hip.hipDeviceSynchronize())
            o = buf.to_numpy(np.uint32, (8, 2)).astype(np.float64); r.append(np.median(o[:4, 1]))
        print(t, min(r))
```
